```python
import torch

def _softmax(x, axis=-1):
    return torch.softmax(x, dim=axis)
def _gelu(x):
    return torch.nn.functional.gelu(x, approximate="tanh")
def _silu(x):
    return torch.nn.functional.silu(x)
def _sigmoid(x):
    return torch.sigmoid(x)
def _layernorm(x, axis=-1, eps=1e-5):
    m = x.mean(dim=axis, keepdim=True)
    v = x.var(dim=axis, keepdim=True, unbiased=False)
    return (x - m) / torch.sqrt(v + eps)
def _scatter_add(tgt, idx, src, axis=0):
    return tgt.clone().index_add_(axis, idx, src)
def _segment_sum(src, seg, n):
    out = torch.zeros((n,) + src.shape[1:], dtype=src.dtype)
    return out.index_add_(0, seg, src)
def _pad(x, pw):
    flat = tuple(v for pair in reversed(pw) for v in pair)
    return torch.nn.functional.pad(x, flat)

kernel_name = 'sequential_preLN__softmax_full_mha__glu_gated_swiglu__prompt'

def setup_inputs():

    _w = (lambda a: (lambda t: t.to(torch.bfloat16) if t.is_floating_point() else t)(torch.as_tensor(a)))
    def _A_setup():
        B, S, D = 1, 2048, 1024
        return {
            "x": _w((lambda *s: torch.randn(*s, dtype=torch.bfloat16) * 0.05)(B, S, D)),
            "wqkv": _w((lambda *s: torch.randn(*s, dtype=torch.bfloat16) * 0.05)(D, 3 * D)),
            "wo": _w((lambda *s: torch.randn(*s, dtype=torch.bfloat16) * 0.05)(D, D)),
        }
    _A_in = _A_setup()

    def _B_setup():
        B, S, D, F = 1, 2048, 1024, 3584
        return {
            "x": _w((lambda *s: torch.randn(*s, dtype=torch.bfloat16) * 0.05)(B, S, D)),
            "w1": _w((lambda *s: torch.randn(*s, dtype=torch.bfloat16) * 0.8)(D, F) * (2.0 / D) ** 0.5),
            "w3": _w((lambda *s: torch.randn(*s, dtype=torch.bfloat16) * 0.8)(D, F) * (2.0 / D) ** 0.5),
            "w2": _w((lambda *s: torch.randn(*s, dtype=torch.bfloat16) * 0.8)(F, D) * (2.0 / F) ** 0.5),
        }
    _B_in = _B_setup()

    return {
        "A_x": _A_in["x"],
        "A_wqkv": _A_in["wqkv"],
        "A_wo": _A_in["wo"],
        "B_x": _B_in["x"],
        "B_w1": _B_in["w1"],
        "B_w3": _B_in["w3"],
        "B_w2": _B_in["w2"],
    }

def reference(A_x, A_wqkv, A_wo, B_x, B_w1, B_w3, B_w2):
    def _A_ref(x, wqkv, wo):
        B, S, D = x.shape
        H = 32; Dh = D // H
        qkv = (lambda x, *d: x.permute(*d))((x @ wqkv).reshape(B, S, 3, H, Dh), 2, 0, 3, 1, 4)
        q, k, v = qkv[0], qkv[1], qkv[2]
        scale = Dh ** -0.5
        scores = torch.einsum("bhqd,bhkd->bhqk", q, k) * scale
        p = _softmax(scores, axis=-1)
        o = torch.einsum("bhqk,bhkd->bhqd", p, v)
        return (lambda x, *d: x.permute(*d))(o, 0, 2, 1, 3).reshape(B, S, D) @ wo

    def _B_ref(x, w1, w3, w2):
        gate = torch.einsum("bsd,df->bsf", x, w1)
        up = torch.einsum("bsd,df->bsf", x, w3)
        h = _silu(gate) * up
        out = torch.einsum("bsf,fd->bsd", h, w2)
        return out

    x = A_x
    h = x + _A_ref(_layernorm(x, axis=-1), A_wqkv, A_wo)
    h2 = h + _B_ref(_layernorm(h, axis=-1), B_w1, B_w3, B_w2)
    return h2
```

```python
class KB:
    def __init__(self, name, nvgpr, nagpr, lds, block=256, grid=256):
        self.name = name; self.lines = []; self.nvgpr = nvgpr; self.nagpr = nagpr
        self.lds = lds; self.block = block; self.grid = grid; self._lab = 0
    def e(self, s):
        for l in s.strip("\n").split("\n"):
            l = l.strip()
            if not l: continue
            if l.endswith(":") or l.startswith("."): self.lines.append(l)
            else: self.lines.append("    " + l)
    def label(self, base):
        self._lab += 1
        return f"L_{self.name}_{base}_{self._lab}"
    def text(self):
        h = f".globl {self.name}\n.p2align 8\n.type {self.name},@function\n{self.name}:\n"
        return h + "\n".join(self.lines) + "\n"
    def desc(self):
        acc = (self.nvgpr + 3) // 4 * 4
        nfv = acc + self.nagpr if self.nagpr else self.nvgpr
        return f""".p2align 6
.amdhsa_kernel {self.name}
  .amdhsa_next_free_vgpr {nfv}
  .amdhsa_next_free_sgpr 102
  .amdhsa_accum_offset {acc}
  .amdhsa_group_segment_fixed_size 0
  .amdhsa_kernarg_size 80
  .amdhsa_user_sgpr_count 2
  .amdhsa_user_sgpr_kernarg_segment_ptr 1
  .amdhsa_system_sgpr_workgroup_id_x 1
.end_amdhsa_kernel
"""
    def launch(self):
        return f"; @launch kernel={self.name} grid=({self.grid},1,1) block=({self.block},1,1) lds={self.lds}\n"

def v(i, n=1): return f"v{i}" if n == 1 else f"v[{i}:{i+n-1}]"
def a(i, n=1): return f"a{i}" if n == 1 else f"a[{i}:{i+n-1}]"
def s(i, n=1): return f"s{i}" if n == 1 else f"s[{i}:{i+n-1}]"

def srd(k, r, lo, hi, nbytes, off=0):
    if off:
        k.e(f"s_add_u32 s{r}, s{lo}, {hex(off)}\ns_addc_u32 s{r+1}, s{hi}, 0")
    else:
        k.e(f"s_mov_b32 s{r}, s{lo}\ns_mov_b32 s{r+1}, s{hi}")
    k.e(f"s_mov_b32 s{r+2}, {hex(nbytes)}\ns_mov_b32 s{r+3}, 0x20000")

def interleave(k, main, side):
    for x in side.get(-1, []): k.e(x)
    for i, m in enumerate(main):
        k.e(m)
        for x in side.get(i, []): k.e(x)

def build_file(kernels, header=""):
    out = header
    for k in kernels: out += k.launch()
    out += '.amdgcn_target "amdgcn-amd-amdhsa--gfx950"\n.text\n'
    seen = []
    for k in kernels:
        if k in seen: continue
        seen.append(k); out += k.text()
    out += '.section .rodata,"a"\n'
    for k in seen: out += k.desc()
    return out

import re
_reg = re.compile(r"\b([va])(?:\[(\d+):(\d+)\]|(\d+))")
def regs_of(opnd):
    out = set()
    for m in _reg.finditer(opnd):
        if m.group(2) is not None:
            for i in range(int(m.group(2)), int(m.group(3)) + 1): out.add((m.group(1), i))
        else: out.add((m.group(1), int(m.group(4))))
    return out
def flatten(main, side):
    out = list(side.get(-1, []))
    for i, m in enumerate(main):
        out.append(m); out += side.get(i, [])
    return out
def auto_lgkm(body, pre=(), cyclic=True):
    def run(seq, pend):
        out = []
        for ins in seq:
            op = ins.split()[0]
            if op == "s_waitcnt":
                m = re.search(r"lgkmcnt\((\d+)\)", ins)
                if m:
                    n = int(m.group(1)); pend = pend[len(pend) - n:] if n < len(pend) else pend
                    if n == 0: pend = []
                out.append(ins); continue
            ops = ins[len(op):].split(",")
            if op.startswith("ds_read"):
                used = regs_of(",".join(ops[1:])); dst = regs_of(ops[0])
            elif op.startswith("ds_write"):
                used = regs_of(",".join(ops)); dst = set()
            elif op.startswith("s_"):
                out.append(ins); continue
            else:
                used = regs_of(",".join(ops)); dst = None
            last = -1
            for q, d in enumerate(pend):
                if d & used: last = q
            if last >= 0:
                n = len(pend) - 1 - last
                n = min(n, 15)
                out.append(f"s_waitcnt lgkmcnt({n})")
                pend = pend[len(pend) - n:] if n else []
            out.append(ins)
            if dst is not None: pend = pend + [dst]
        return out, pend
    _, p0 = run(list(pre), [])
    o1, p1 = run(body, p0)
    if not cyclic: return o1
    o2, p2 = run(o1, p1)
    o3, p3 = run(o2, p2)
    assert o3 == o2
    o4, _ = run(o2, p0)
    assert o4 == o2
    return o2
```

```python
import sys
from asmlib import *

S_, D_, F_ = 2048, 1024, 3584
WS_XN = 0x0000000; WS_Q = 0x0400000; WS_KV = 0x0800000; WS_O = 0x1000000; WS_H = 0x1400000
WS_G = 0x1800000; WS_ST = 0x2800000; WS_CSP = 0x2900000; WS_CS = 0x2980000; WS_STAMP = 0x3000000
LOG2E = 1.4426950408889634
OOB = 0x40000000
import struct
def fbits(x): return hex(struct.unpack("<I", struct.pack("<f", x))[0])

class Opt:
    diag = False
    store_flags = "sc1"
OPT = Opt()

def prologue(k, nwg=256):
    k.e(f"s_cmp_ge_u32 s2, {nwg}\ns_cbranch_scc1 L_{k.name}_end")
    if OPT.diag: k.e("s_memrealtime s[80:81]\ns_memtime s[82:83]")
    k.e("""
    s_load_dwordx16 s[4:19], s[0:1], 0
    s_load_dwordx4 s[20:23], s[0:1], 64
    v_lshrrev_b32 v1, 6, v0
    v_and_b32 v0, 63, v0
    v_readfirstlane_b32 s3, v1
    """)
def stamp(k, i):
    if OPT.diag:
        k.e(f"s_memrealtime s[{80+4*i}:{81+4*i}]\ns_memtime s[{82+4*i}:{83+4*i}]\ns_waitcnt lgkmcnt(0)")
def finish(k, kid):
    if OPT.diag:
        k.e("s_waitcnt vmcnt(0)")
        stamp(k, 3)
        srd(k, 96, 22, 23, 0x1000000, WS_STAMP)
        k.e(f"s_lshl_b32 s100, s2, 3\ns_add_u32 s100, s100, s3\ns_add_u32 s100, s100, {kid*2048}\ns_lshl_b32 s100, s100, 5")
        for i in range(4):
            k.e(f"v_mov_b32 v{2*i}, s{80+4*i}\nv_mov_b32 v{2*i+1}, s{82+4*i}")
        k.e("v_mov_b32 v8, s100\nbuffer_store_dwordx4 v[0:3], v8, s[96:99], 0 offen\nbuffer_store_dwordx4 v[4:7], v8, s[96:99], 0 offen offset:16")
    k.e(f"L_{k.name}_end:\ns_endpgm")

def udiv_const(k, dst, src, c, tmp_s):
    sh = 20
    m = (1 << sh) // c + 1
    for x in range(0, 4096): assert (x * m) >> sh == x // c
    k.e(f"v_mul_u32_u24 v{dst}, {m}, v{src}\nv_lshrrev_b32 v{dst}, {sh}, v{dst}")

def gen_k4(D=3, chain=True, abl=''):
    STG = 28672
    k = KB("k4_kernel", 256, 240, 4 * STG)
    ACC = lambda j, i: (j * 4 + i) * 4
    VD = 224
    VX = 231
    VR = 235
    VMU = 237
    VC1 = 241; VC2 = 245
    VL = 249
    VT = 250
    AX = lambda st, i, s_: st * 32 + (i * 2 + s_) * 4
    AW = lambda slot, s_: 128 + slot * 8 + s_ * 4
    ACS = 184
    prologue(k)
    k.e(f"""
    v_mov_b32 v{VL}, v0
    s_and_b32 s44, s2, 7
    s_lshr_b32 s45, s2, 3
    s_and_b32 s46, s44, 1
    s_lshl_b32 s46, s46, 2
    s_and_b32 s47, s45, 3
    s_add_u32 s46, s46, s47          ; tm
    s_lshr_b32 s47, s44, 1
    s_lshl_b32 s47, s47, 3
    s_lshr_b32 s48, s45, 2
    s_add_u32 s47, s47, s48          ; cn
    s_lshl_b32 s48, s46, 4
    s_lshl_b32 s49, s3, 2
    s_add_u32 s48, s48, s49
    """)
    k.e(f"s_lshl_b32 s49, s48, 15\nv_lshlrev_b32 v{VT}, 4, v{VL}")
    k.e(f"v_add_u32 v{VX}, s49, v{VT}")
    for i in range(1, 4): k.e(f"v_add_u32 v{VX+i}, {i*32768}, v{VX}")
    k.e(f"s_and_b32 s50, s3, 1\ns_mul_i32 s50, s50, 448\ns_mul_i32 s51, s47, 224")
    for i in range(7):
        k.e(f"v_add_u32 v{VT}, s50, v{VL}")
        if i: k.e(f"v_add_u32 v{VT}, {64*i}, v{VT}")
        udiv_const(k, VT+1, VT, 14, 52)
        k.e(f"""
        v_mul_u32_u24 v{VT+2}, 14, v{VT+1}
        v_sub_u32 v{VT+2}, v{VT}, v{VT+2}
        v_mul_u32_u24 v{VT+1}, 7168, v{VT+1}
        v_lshl_add_u32 v{VT+1}, v{VT+2}, 4, v{VT+1}
        v_add_u32 v{VD+i}, s51, v{VT+1}
        """)
    k.e(f"""
    v_lshrrev_b32 v{VT}, 2, v{VL}
    v_mul_u32_u24 v{VT}, 224, v{VT}
    v_and_b32 v{VT+1}, 3, v{VL}
    v_lshl_add_u32 v{VR}, v{VT+1}, 3, v{VT}
    v_add_u32 v{VR+1}, {2*STG}, v{VR}
    s_mul_i32 s53, s3, 7168
    s_waitcnt lgkmcnt(0)
    s_cmp_lt_u32 s3, 2
    s_cselect_b32 s24, s12, s14
    s_cselect_b32 s25, s13, s15
    s_mov_b32 s26, {D_*F_*2}
    s_mov_b32 s27, 0x20000
    """)
    srd(k, 28, 22, 23, S_*D_*2, WS_H)
    srd(k, 32, 22, 23, S_*F_*2, WS_G)
    srd(k, 36, 22, 23, S_*128, WS_ST)
    srd(k, 40, 22, 23, 2*F_*4, WS_CS)
    k.e(f"""
    v_and_b32 v{VT}, 15, v{VL}
    v_lshrrev_b32 v{VT+1}, 4, v{VL}
    v_lshlrev_b32 v{VT}, 7, v{VT}
    v_lshl_add_u32 v{VT}, v{VT+1}, 5, v{VT}
    s_lshl_b32 s54, s48, 11
    s_add_u32 s55, s54, 4096
    """)
    for i in range(4):
        for h in range(2):
            k.e(f"buffer_load_dwordx4 v[{i*8+h*4}:{i*8+h*4+3}], v{VT}, s[36:39], s{54+i//2} offen offset:{(i%2)*2048+h*16}")
    def vmem_ops(slot):
        ops = []
        for i in range(7):
            ops.append([f"s_add_u32 m0, s53, {slot*STG + i*1024}", "NOP", f"buffer_load_dwordx4 v{VD+i}, s[24:27], s56 offen lds"])
        xs = []
        for i in range(4):
            for s_ in range(2):
                xs.append([f"buffer_load_dwordx4 {a(AX(slot, i, s_), 4)}, v{VX+i}, s[28:31], s57 offen offset:{s_*1024}"])
        return ops, xs
    adv = ["s_add_u32 s56, s56, %d" % (64*7168), "s_add_u32 s58, s58, 2048", "s_cmp_lt_u32 s58, 32768", f"s_cselect_b32 s57, s58, s59"]
    k.e(f"s_mov_b32 s56, 0\ns_mov_b32 s57, 0\ns_mov_b32 s58, 0\ns_mov_b32 s59, {OOB}")
    for st in range(2):
        d, xs = vmem_ops(st)
        for o in d: k.e("\n".join(x if x != "NOP" else "s_nop 0" for x in o))
        for o in xs: k.e(o[0])
        k.e("\n".join(adv))
    k.e(f"v_lshlrev_b32 v{VT+1}, 4, v{VT+1}\ns_mul_i32 s60, s47, 448\ns_add_u32 s61, s60, {F_*4}")
    for j in range(14):
        k.e(f"buffer_load_dwordx4 {a(ACS+4*j,4)}, v{VT+1}, s[40:43], s{60+j//7} offen offset:{(j%7)*64}")
    for r in range(32, 224): k.e(f"v_mov_b32 v{r}, 0")
    k.e("s_waitcnt vmcnt(44)")
    for i in range(4):
        b = i * 8
        k.e(f"v_add_f32 v{b}, v{b}, v{b+2}\nv_add_f32 v{b+1}, v{b+1}, v{b+3}\nv_add_f32 v{b+4}, v{b+4}, v{b+6}\nv_add_f32 v{b+5}, v{b+5}, v{b+7}")
        k.e(f"v_add_f32 v{b}, v{b}, v{b+4}\nv_add_f32 v{b+1}, v{b+1}, v{b+5}")
    for sw in ("v_permlane16_swap_b32", "v_permlane32_swap_b32"):
        for i in range(4):
            b = i * 8
            k.e(f"v_mov_b32 v{b+2}, v{b}\nv_mov_b32 v{b+3}, v{b+1}")
        k.e("s_nop 1")
        for i in range(4):
            b = i * 8
            k.e(f"{sw} v{b}, v{b+2}\n{sw} v{b+1}, v{b+3}")
        k.e("s_nop 1")
        for i in range(4):
            b = i * 8
            k.e(f"v_add_f32 v{b}, v{b}, v{b+2}\nv_add_f32 v{b+1}, v{b+1}, v{b+3}")
    for i in range(4):
        b = i * 8
        k.e(f"""
        v_mul_f32 v{VMU+i}, {fbits(1.0/D_)}, v{b}
        v_mul_f32 v{b+1}, {fbits(1.0/D_)}, v{b+1}
        v_fma_f32 v{b+1}, -v{VMU+i}, v{VMU+i}, v{b+1}
        v_max_f32 v{b+1}, 0, v{b+1}
        v_add_f32 v{VC2+i}, {fbits(1e-5)}, v{b+1}
        v_rsq_f32 v{b+2}, v{VC2+i}
        s_nop 0
        v_mul_f32 v{VC1+i}, {fbits(-LOG2E)}, v{b+2}
        """)
    for r in range(0, 32): k.e(f"v_mov_b32 v{r}, 0")
    def reads(stage_slot, j):
        base = VR + (stage_slot // 2)
        off0 = (stage_slot % 2) * STG + (j // 7) * 14336 + (j % 7) * 32
        out = []
        for s_ in range(2):
            for rd in range(2):
                out.append(f"ds_read_b64_tr_b16 {a(AW(j % 7, s_) + 2*rd, 2)}, v{base} offset:{off0 + (32*s_ + 16*rd)*224}")
        return out
    k.e("s_waitcnt vmcnt(29)\ns_barrier")
    stamp(k, 1)
    for j in range(D):
        for x in reads(0, j): k.e(x)
    k.e("s_mov_b32 s62, 4")
    L = k.label("loop")
    k.e(f".p2align 6\n{L}:")
    for st in range(4):
        main = []; side = {}
        d, xs = vmem_ops((st + 2) % 4)
        vm = []
        for i in range(8):
            if i < 7: vm.append(d[i])
            vm.append(xs[i])
        for j in range(14):
            g0 = len(main)
            order = [(i, s_) for i in range(4) for s_ in range(2)] if chain else [(i, s_) for s_ in range(2) for i in range(4)]
            for (i, s_) in order:
                main.append(f"v_mfma_f32_16x16x32_bf16 {v(ACC(j,i),4)}, {a(AW(j%7,s_),4)}, {a(AX(st,i,s_),4)}, {v(ACC(j,i),4)}")
            pre = side.setdefault(g0 - 1, [])
            if j == 14 - D:
                pre.append("s_waitcnt vmcnt(15)")
                pre.append("s_barrier")
            pre.append(f"s_waitcnt lgkmcnt({4*(D-1)})")
            jj = j + D
            rd = reads(st if jj < 14 else (st + 1) % 4, jj % 14)
            for q, x in enumerate(rd): side.setdefault(g0 + q, []).append(x)
            if j < 8:
                for q in range(2):
                    if not vm: break
                    o = vm.pop(0)
                    if len(o) == 3:
                        side.setdefault(g0 + 3 + 2*q, []).append(o[0])
                        side.setdefault(g0 + 4 + 2*q, []).append(o[2])
                    else:
                        side.setdefault(g0 + 4 + 2*q, []).append(o[0])
            if j == 9:
                for q, x in enumerate(adv): side.setdefault(g0 + 4 + q, []).append(x)
            if j == 13 and st == 3:
                side.setdefault(g0 + 5, []).append("s_sub_u32 s62, s62, 1")
                side.setdefault(g0 + 6, []).append("s_cmp_lg_u32 s62, 0")
        for key in side:
            lst = side[key]
            if 'nods' in abl: lst = [x for x in lst if not x.startswith('ds_read')]
            if 'halfds' in abl: lst = [x for x in lst if not (x.startswith('ds_read') and (key // 8) % 2)]
            if 'nox' in abl: lst = [x for x in lst if not (x.startswith('buffer_load') and 'lds' not in x)]
            if 'nodma' in abl: lst = [x for x in lst if not (x.startswith('buffer_load') and 'lds' in x)]
            if 'dblx' in abl: lst = sum([[x, x] if (x.startswith('buffer_load') and 'lds' not in x) else [x] for x in lst], [])
            if 'dblx' in abl: lst = [x.replace('vmcnt(15)', 'vmcnt(23)') for x in lst]
            side[key] = lst
        interleave(k, main, side)
    k.e(f"s_cbranch_scc1 {L}")
    k.e("s_waitcnt vmcnt(0) lgkmcnt(0)")
    stamp(k, 2)
    k.e(f"""
    v_and_b32 v{VT}, 31, v{VL}
    v_lshrrev_b32 v{VT+1}, 5, v{VL}
    v_lshlrev_b32 v{VT}, 4, v{VT}
    v_mul_u32_u24 v{VT+1}, {224*512}, v{VT+1}
    v_add_u32 v{VD}, v{VT}, v{VT+1}
    s_mul_i32 s60, s48, {224*512}
    s_mul_i32 s61, s47, {7*512}
    s_add_u32 s60, s60, s61
    s_add_u32 s61, s60, {2*224*512}
    """)
    CG = VD + 2
    CU = VD + 6
    for j in range(7):
        for r in range(4):
            k.e(f"v_accvgpr_read_b32 v{CG+r}, a{ACS+4*j+r}\nv_accvgpr_read_b32 v{CU+r}, a{ACS+28+4*j+r}")
        for i in range(4):
            g = ACC(j, i); u = ACC(j + 7, i)
            for r in range(4): k.e(f"v_fma_f32 v{g+r}, -v{VMU+i}, v{CG+r}, v{g+r}")
            for r in range(4): k.e(f"v_fma_f32 v{u+r}, -v{VMU+i}, v{CU+r}, v{u+r}")
            for r in range(4): k.e(f"v_mul_f32 v{u+r}, v{g+r}, v{u+r}")
            for r in range(4): k.e(f"v_mul_f32 v{g+r}, v{VC1+i}, v{g+r}")
            for r in range(4): k.e(f"v_exp_f32 v{g+r}, v{g+r}")
            for r in range(4): k.e(f"v_fma_f32 v{g+r}, v{g+r}, v{VC2+i}, v{VC2+i}")
            for r in range(4): k.e(f"v_rcp_f32 v{g+r}, v{g+r}")
            for r in range(4): k.e(f"v_mul_f32 v{u+r}, v{g+r}, v{u+r}")
            o = ACC(j, i & ~1) + 2 * (i & 1)
            k.e(f"v_cvt_pk_bf16_f32 v{o}, v{u}, v{u+1}\nv_cvt_pk_bf16_f32 v{o+1}, v{u+2}, v{u+3}")
            if i & 1:
                o = ACC(j, i & ~1)
                k.e(f"s_nop 1\nv_permlane32_swap_b32 v{o}, v{o+2}\nv_permlane32_swap_b32 v{o+1}, v{o+3}")
                k.e(f"buffer_store_dwordx4 {v(o,4)}, v{VD}, s[32:35], s{60+i//2} offen offset:{j*512} {OPT.store_flags}")
    finish(k, 4)
    return k


def allreduce64(k, regs, tmp):
    for sh in (8, 4, 2, 1):
        k.e("s_nop 1")
        for r in regs: k.e(f"v_add_f32_dpp v{r}, v{r}, v{r} row_ror:{sh} row_mask:0xf bank_mask:0xf")
    for sw in ("v_permlane16_swap_b32", "v_permlane32_swap_b32"):
        for q, r in enumerate(regs): k.e(f"v_mov_b32 v{tmp+q}, v{r}")
        k.e("s_nop 1")
        for q, r in enumerate(regs): k.e(f"{sw} v{r}, v{tmp+q}")
        k.e("s_nop 1")
        for q, r in enumerate(regs): k.e(f"v_add_f32 v{r}, v{r}, v{tmp+q}")

def gen_k0():
    k = KB("k0_kernel", 64, 0, 0)
    prologue(k)
    k.e("""
    v_lshlrev_b32 v1, 4, v0
    s_lshl_b32 s44, s2, 2
    s_add_u32 s44, s44, s3
    s_lshl_b32 s44, s44, 12
    s_waitcnt lgkmcnt(0)
    """)
    srd(k, 24, 4, 5, S_*D_*2)
    srd(k, 28, 22, 23, S_*D_*2, WS_XN)
    for q in range(4): k.e(f"buffer_load_dwordx4 v[{4+4*q}:{7+4*q}], v1, s[24:27], s44 offen offset:{q*1024}")
    stamp(k, 1)
    k.e("s_waitcnt vmcnt(0)")
    for q in range(16):
        k.e(f"v_lshlrev_b32 v{24+2*q}, 16, v{4+q}\nv_and_b32 v{25+2*q}, 0xffff0000, v{4+q}")
    for r in range(2):
        b = 24 + 16 * r
        k.e(f"v_add_f32 v{2+r}, v{b}, v{b+1}")
        for q in range(2, 16): k.e(f"v_add_f32 v{2+r}, v{2+r}, v{b+q}")
    allreduce64(k, [2, 3], 20)
    for r in range(2):
        b = 24 + 16 * r
        k.e(f"v_mul_f32 v{2+r}, {fbits(1.0/D_)}, v{2+r}")
        for q in range(16): k.e(f"v_sub_f32 v{b+q}, v{b+q}, v{2+r}")
        k.e(f"v_mul_f32 v{2+r}, v{b}, v{b}")
        for q in range(1, 16): k.e(f"v_fmac_f32 v{2+r}, v{b+q}, v{b+q}")
    allreduce64(k, [2, 3], 20)
    k.e(f"v_mov_b32 v20, {fbits(1e-5)}")
    for r in range(2):
        b = 24 + 16 * r
        k.e(f"v_fmac_f32 v20, {fbits(1.0/D_)}, v{2+r}\nv_rsq_f32 v{2+r}, v20\nv_mov_b32 v20, {fbits(1e-5)}")
        for q in range(16): k.e(f"v_mul_f32 v{b+q}, v{b+q}, v{2+r}")
        for q in range(8): k.e(f"v_cvt_pk_bf16_f32 v{4+8*r+q}, v{b+2*q}, v{b+2*q+1}")
    stamp(k, 2)
    for q in range(4): k.e(f"buffer_store_dwordx4 v[{4+4*q}:{7+4*q}], v1, s[28:31], s44 offen offset:{q*1024} {OPT.store_flags}")
    finish(k, 0)
    return k

def gen_k1(D=2):
    STG = 40960
    k = KB("k1_kernel", 160, 112, 4 * STG)
    ACC = lambda j, i: (j * 4 + i) * 4
    VDX = 96
    VDW = 100
    VRX = 106
    VRW = 114
    VL = 122; VT = 124
    AX = lambda st, i, s_: (st % 2) * 32 + (i * 2 + s_) * 4
    AW = lambda j, s_: 64 + j * 8 + s_ * 4
    prologue(k)
    k.e(f"""
    v_mov_b32 v{VL}, v0
    s_and_b32 s44, s2, 7
    s_lshr_b32 s45, s2, 3
    s_and_b32 s46, s44, 1
    s_lshl_b32 s46, s46, 3
    s_and_b32 s47, s45, 7
    s_add_u32 s46, s46, s47          ; rb
    s_lshr_b32 s47, s44, 1
    s_lshl_b32 s47, s47, 2
    s_lshr_b32 s48, s45, 3
    s_add_u32 s47, s47, s48          ; cb
    s_lshr_b32 s48, s3, 1            ; wm
    s_and_b32 s49, s3, 1             ; wn
    """)
    k.e(f"""
    v_lshrrev_b32 v{VT}, 3, v{VL}       ; l/8
    v_and_b32 v{VT+1}, 7, v{VL}         ; p
    v_lshrrev_b32 v{VT+2}, 1, v{VT}     ; (l/8)>>1  (0..3)
    v_xor_b32 v{VT+3}, v{VT+1}, v{VT+2}
    s_lshl_b32 s50, s46, 7
    s_lshl_b32 s51, s3, 5
    s_add_u32 s50, s50, s51
    s_lshl_b32 s50, s50, 11             ; (rb*128 + w*32)*2048
    v_lshlrev_b32 v{VT+4}, 11, v{VT}
    v_add_u32 v{VT+4}, s50, v{VT+4}
    v_lshl_add_u32 v{VDX}, v{VT+3}, 4, v{VT+4}
    v_xor_b32 v{VT+3}, 4, v{VT+3}
    v_lshl_add_u32 v{VDX+1}, v{VT+3}, 4, v{VT+4}
    v_add_u32 v{VDX+2}, {2*15360}, v{VDX}
    v_add_u32 v{VDX+3}, {3*15360}, v{VDX+1}
    v_add_u32 v{VDX+1}, {15360}, v{VDX+1}
    """)
    k.e(f"""
    v_and_b32 v{VT+2}, 1, v{VT+2}
    v_lshlrev_b32 v{VT+2}, 1, v{VT+2}
    v_xor_b32 v{VT+3}, v{VT+1}, v{VT+2}
    v_mul_u32_u24 v{VT+4}, 6144, v{VT}
    s_mul_i32 s50, s3, {16*6144}
    s_lshl_b32 s51, s47, 7
    s_add_u32 s50, s50, s51
    v_add_u32 v{VT+4}, s50, v{VT+4}
    v_lshl_add_u32 v{VDW}, v{VT+3}, 4, v{VT+4}
    v_xor_b32 v{VT+3}, 4, v{VT+3}
    v_lshl_add_u32 v{VDW+1}, v{VT+3}, 4, v{VT+4}
    v_add_u32 v{VDW+1}, {8*6144 - 1024}, v{VDW+1}
    """)
    for sg in range(1, 3):
        k.e(f"v_add_u32 v{VDW+2*sg}, {2048*sg}, v{VDW}\nv_add_u32 v{VDW+2*sg+1}, {2048*sg}, v{VDW+1}")
    k.e("s_lshl_b32 s53, s3, 12\ns_lshl_b32 s54, s3, 11\ns_add_u32 s54, s54, 16384\ns_waitcnt lgkmcnt(0)")
    srd(k, 24, 6, 7, D_*3*D_*2)
    srd(k, 28, 22, 23, S_*D_*2, WS_XN)
    def vmem_ops(slot):
        ops = []
        for q in range(4):
            o = [f"buffer_load_dwordx4 v{VDX+q}, s[28:31], s57 offen offset:{q*1024} lds"]
            if q == 0: o = [f"s_add_u32 m0, s53, {slot*STG}"] + o
            ops.append(o)
        for sg in range(3):
            for q in range(2):
                o = [f"buffer_load_dwordx4 v{VDW+2*sg+q}, s[24:27], s56 offen offset:{q*1024} lds"]
                if q == 0: o = [f"s_add_u32 m0, s54, {slot*STG + sg*8192}"] + o
                ops.append(o)
        return ops
    adv = ["s_add_u32 s56, s56, %d" % (64*6144), "s_add_u32 s58, s58, 128", "s_cmp_lt_u32 s58, 2048", "s_cselect_b32 s57, s58, s59"]
    k.e(f"s_mov_b32 s56, 0\ns_mov_b32 s57, 0\ns_mov_b32 s58, 0\ns_mov_b32 s59, {OOB}")
    for st in range(2):
        for o in vmem_ops(st):
            k.e(o[0] + ("\ns_nop 0\n" + o[1] if len(o) > 1 else ""))
        k.e("\n".join(adv))
    k.e(f"""
    v_and_b32 v{VT}, 15, v{VL}          ; t
    v_lshrrev_b32 v{VT+1}, 4, v{VL}     ; g
    v_lshrrev_b32 v{VT+2}, 1, v{VT}
    v_xor_b32 v{VT+2}, v{VT+1}, v{VT+2}
    s_lshl_b32 s50, s48, 13
    v_lshlrev_b32 v{VT+3}, 7, v{VT}
    v_add_u32 v{VT+3}, s50, v{VT+3}
    v_lshl_add_u32 v{VRX}, v{VT+2}, 4, v{VT+3}
    v_xor_b32 v{VRX+1}, 64, v{VRX}
    v_lshrrev_b32 v{VT+2}, 2, v{VT}     ; i
    v_lshl_add_u32 v{VT+3}, v{VT+1}, 3, v{VT+2}   ; row = 8g+i
    v_lshrrev_b32 v{VT+2}, 1, v{VT+2}
    v_and_b32 v{VT+4}, 1, v{VT+1}
    v_lshl_add_u32 v{VT+2}, v{VT+4}, 1, v{VT+2}   ; swz
    s_lshl_b32 s50, s49, 1
    v_xor_b32 v{VT+2}, s50, v{VT+2}
    v_lshlrev_b32 v{VT+2}, 5, v{VT+2}
    v_lshl_add_u32 v{VT+2}, v{VT+3}, 7, v{VT+2}
    v_and_b32 v{VT+4}, 3, v{VL}
    v_lshl_add_u32 v{VT+2}, v{VT+4}, 3, v{VT+2}
    v_add_u32 v{VRW}, 16384, v{VT+2}
    v_xor_b32 v{VRW+1}, 32, v{VRW}
    """)
    for sl in range(1, 4):
        for q in range(2):
            k.e(f"v_add_u32 v{VRX+2*sl+q}, {sl*STG}, v{VRX+q}\nv_add_u32 v{VRW+2*sl+q}, {sl*STG}, v{VRW+q}")
    for r in range(96): k.e(f"v_mov_b32 v{r}, 0")
    def wreads(slot, j):
        return [f"ds_read_b64_tr_b16 {a(AW(j,s_)+2*rd,2)}, v{VRW+2*slot+j%2} offset:{(j//2)*8192 + (32*s_+4*rd)*128}" for s_ in range(2) for rd in range(2)]
    def xreads(slot):
        return [f"ds_read_b128 {a(AX(slot,i,s_),4)}, v{VRX+2*slot+s_} offset:{i*2048}" for i in range(4) for s_ in range(2)]
    body = []; tail_reads = []
    for st in range(4):
        main = []; side = {}
        vm = vmem_ops((st + 2) % 4)
        xr = xreads((st + 1) % 4)
        for j in range(6):
            g0 = len(main)
            for i in range(4):
                for s_ in range(2):
                    w_, x_ = a(AW(j,s_),4), a(AX(st,i,s_),4)
                    if j >= 4: w_, x_ = x_, w_
                    main.append(f"v_mfma_f32_16x16x32_bf16 {v(ACC(j,i),4)}, {w_}, {x_}, {v(ACC(j,i),4)}")
            if j == 6 - D:
                side.setdefault(g0 - 1, []).extend(["s_waitcnt vmcnt(10)", "s_barrier"])
            jj = j + D
            rd = wreads(st if jj < 6 else (st + 1) % 4, jj % 6)
            if j >= 6 - D:
                n = (8 + D - 1) // D
                rd = rd + xr[:n]; xr = xr[n:]
                if st == 3: tail_reads += rd
            for q, x in enumerate(rd): side.setdefault(g0 + q, []).append(x)
            if j < 6 - D:
                n = (10 + (6 - D) - 1) // (6 - D)
                for q in range(n):
                    if not vm: break
                    o = vm.pop(0)
                    pos = g0 + 2 + (q * 6) // n
                    if len(o) > 1: side.setdefault(pos - 1, []).append(o[0])
                    side.setdefault(pos, []).append(o[-1])
            if j == 5:
                for q, x in enumerate(adv): side.setdefault(g0 + q, []).append(x)
                if st == 3:
                    side.setdefault(g0 + 5, []).append("s_sub_u32 s62, s62, 1")
                    side.setdefault(g0 + 6, []).append("s_cmp_lg_u32 s62, 0")
        assert not vm and not xr
        body += flatten(main, side)
    body = auto_lgkm(body, tail_reads)
    k.e("s_waitcnt vmcnt(10)\ns_barrier")
    stamp(k, 1)
    for x in tail_reads: k.e(x)
    k.e("s_mov_b32 s62, 4")
    L = k.label("loop")
    k.e(f".p2align 6\n{L}:")
    for x in body: k.e(x)
    k.e(f"s_cbranch_scc1 {L}")
    k.e("s_waitcnt vmcnt(0) lgkmcnt(0)")
    stamp(k, 2)
    srd(k, 32, 22, 23, S_*D_*2, WS_Q)
    srd(k, 36, 22, 23, S_*D_*4, WS_KV)
    k.e(f"""
    s_lshl_b32 s50, s47, 1
    s_add_u32 s50, s50, s49
    s_lshl_b32 s50, s50, 6
    s_lshl_b32 s51, s46, 2
    s_add_u32 s50, s50, s51
    s_lshl_b32 s51, s48, 1
    s_add_u32 s50, s50, s51
    s_lshl_b32 s60, s50, 11
    s_lshl_b32 s61, s50, 12
    s_add_u32 s63, s61, 4096
    v_and_b32 v{VT}, 15, v{VL}          ; t
    v_lshrrev_b32 v{VT+1}, 4, v{VL}     ; g
    v_lshlrev_b32 v{VT+1}, 9, v{VT+1}   ; (s*1024 + h*512) = g*512
    v_lshl_add_u32 v{VDX}, v{VT}, 4, v{VT+1}
    v_lshrrev_b32 v{VT+2}, 3, v{VT}
    v_and_b32 v{VT+3}, 7, v{VT}
    v_lshl_add_u32 v{VT+2}, v{VT+2}, 4, v{VT+3}   ; 16*(t/8) + t%8
    v_lshl_add_u32 v{VDX+1}, v{VT+2}, 4, v{VT+1}
    s_mov_b32 s64, {fbits(LOG2E / 32 ** 0.5)}
    """)
    fl = OPT.store_flags
    for i in range(4):
        o = ACC(2, i)
        k.e(f"v_cvt_pk_bf16_f32 v{o}, v{o}, v{o+1}\nv_cvt_pk_bf16_f32 v{o+1}, v{o+2}, v{o+3}")
        u = ACC(3, i)
        k.e(f"v_cvt_pk_bf16_f32 v{o+2}, v{u}, v{u+1}\nv_cvt_pk_bf16_f32 v{o+3}, v{u+2}, v{u+3}")
        k.e(f"buffer_store_dwordx4 {v(o,4)}, v{VDX+1}, s[36:39], s{61 if i < 2 else 63} offen offset:{(i%2)*128} {fl}")
    for p in range(2):
        for fb in range(2):
            o = ACC(4 + fb, 2*p); u = ACC(4 + fb, 2*p + 1)
            k.e(f"v_cvt_pk_bf16_f32 v{o}, v{o}, v{o+1}\nv_cvt_pk_bf16_f32 v{o+1}, v{o+2}, v{o+3}")
            k.e(f"v_cvt_pk_bf16_f32 v{o+2}, v{u}, v{u+1}\nv_cvt_pk_bf16_f32 v{o+3}, v{u+2}, v{u+3}")
            k.e(f"buffer_store_dwordx4 {v(o,4)}, v{VDX}, s[36:39], s{61 if p == 0 else 63} offen offset:{2048 + fb*256} {fl}")
    for i in range(4):
        o = ACC(0, i); u = ACC(1, i)
        for r in range(4): k.e(f"v_mul_f32 v{o+r}, s64, v{o+r}\nv_mul_f32 v{u+r}, s64, v{u+r}")
        k.e(f"v_cvt_pk_bf16_f32 v{o}, v{o}, v{o+1}\nv_cvt_pk_bf16_f32 v{o+1}, v{o+2}, v{o+3}")
        k.e(f"v_cvt_pk_bf16_f32 v{o+2}, v{u}, v{u+1}\nv_cvt_pk_bf16_f32 v{o+3}, v{u+2}, v{u+3}")
        k.e(f"buffer_store_dwordx4 {v(o,4)}, v{VDX}, s[32:35], s60 offen offset:{(i//2)*2048 + (i%2)*256} {fl}")
    finish(k, 1)
    return k

def gen_small(which, DIST=3, D=3):
    k3 = which == 3
    K = D_ if k3 else F_
    NS = K // 128
    U = 8 if k3 else 7
    STG = 16384
    k = KB(f"k{which}_kernel", 128, 256, U * STG)
    ACC = lambda j, i: (j * 2 + i) * 4
    VW = lambda g, s_: 32 + (g % 4) * 8 + s_ * 4
    VD = 64
    VX = 68
    VR = 70
    VL = 78; VT = 80
    VRES = 88
    AX = lambda st, i, s_: st * 32 + (i * 4 + s_) * 4
    prologue(k)
    k.e(f"""
    v_mov_b32 v{VL}, v0
    s_and_b32 s44, s2, 7
    s_lshr_b32 s45, s2, 3
    s_and_b32 s46, s44, 3
    s_lshl_b32 s46, s46, 2
    s_and_b32 s47, s45, 3
    s_add_u32 s46, s46, s47          ; tm
    s_lshr_b32 s47, s44, 2
    s_lshl_b32 s47, s47, 3
    s_lshr_b32 s48, s45, 2
    s_add_u32 s47, s47, s48          ; cn
    s_lshl_b32 s48, s46, 3
    s_lshl_b32 s49, s3, 1
    s_add_u32 s48, s48, s49
    s_mul_i32 s49, s48, {K*32}
    v_lshlrev_b32 v{VT}, 4, v{VL}
    v_add_u32 v{VX}, s49, v{VT}
    v_add_u32 v{VX+1}, {K*32}, v{VX}
    v_lshrrev_b32 v{VT}, 3, v{VL}
    v_and_b32 v{VT+1}, 7, v{VL}
    v_and_b32 v{VT+2}, 6, v{VT}         ; 2*((r>>1)&3)
    v_xor_b32 v{VT+1}, v{VT+1}, v{VT+2}
    v_lshlrev_b32 v{VT}, 11, v{VT}
    v_lshl_add_u32 v{VT}, v{VT+1}, 4, v{VT}
    s_lshl_b32 s50, s3, 16
    s_lshl_b32 s51, s47, 7
    s_add_u32 s50, s50, s51
    v_add_u32 v{VD}, s50, v{VT}
    """)
    for q in range(1, 4): k.e(f"v_add_u32 v{VD+q}, {q*15360}, v{VD}")
    k.e("s_lshl_b32 s53, s3, 12\ns_waitcnt lgkmcnt(0)")
    if k3:
        srd(k, 24, 8, 9, D_*D_*2); srd(k, 28, 22, 23, S_*D_*2, WS_O)
    else:
        srd(k, 24, 16, 17, F_*D_*2); srd(k, 28, 22, 23, S_*F_*2, WS_G)
    def vmem_ops(slot):
        ops = []
        for q in range(4):
            o = [f"buffer_load_dwordx4 v{VD+q}, s[24:27], s56 offen offset:{q*1024} lds"]
            if q == 0: o = [f"s_add_u32 m0, s53, {slot*STG}"] + o
            ops.append(o)
            for i in range(2):
                ops.append([f"buffer_load_dwordx4 {a(AX(slot,i,q),4)}, v{VX+i}, s[28:31], s57 offen offset:{q*1024}"])
        return ops
    adv = ["s_add_u32 s56, s56, %d" % (128*2048), "s_add_u32 s58, s58, 4096", f"s_cmp_lt_u32 s58, {K*32}", "s_cselect_b32 s57, s58, s59"]
    k.e(f"s_mov_b32 s56, 0\ns_mov_b32 s57, 0\ns_mov_b32 s58, 0\ns_mov_b32 s59, {OOB}")
    for st in range(DIST):
        for o in vmem_ops(st):
            k.e(o[0] + ("\ns_nop 0\n" + o[1] if len(o) > 1 else ""))
        k.e("\n".join(adv))
    k.e(f"""
    v_and_b32 v{VT}, 31, v{VL}
    v_lshrrev_b32 v{VT}, 2, v{VT}        ; 4*(g%2)+i
    v_lshrrev_b32 v{VT+1}, 5, v{VL}
    v_lshl_add_u32 v{VT+1}, v{VT+1}, 4, v{VT}   ; row
    v_lshrrev_b32 v{VT}, 1, v{VT}        ; sw
    v_lshlrev_b32 v{VT}, 5, v{VT}
    v_lshl_add_u32 v{VT}, v{VT+1}, 7, v{VT}
    v_and_b32 v{VT+1}, 3, v{VL}
    v_lshl_add_u32 v{VR}, v{VT+1}, 3, v{VT}
    """)
    for fb in range(1, 4): k.e(f"v_xor_b32 v{VR+fb}, {fb*32}, v{VR}")
    for fb in range(4): k.e(f"v_add_u32 v{VR+4+fb}, 0x10000, v{VR+fb}")
    for r in range(32): k.e(f"v_mov_b32 v{r}, 0")
    k.e(f"v_and_b32 v{VT}, 15, v{VL}\nv_lshrrev_b32 v{VT+1}, 4, v{VL}")
    if k3:
        srd(k, 32, 4, 5, S_*D_*2)
        k.e(f"""
        v_lshlrev_b32 v{VT+2}, 11, v{VT}
        v_lshl_add_u32 v{VT+2}, v{VT+1}, 3, v{VT+2}
        s_lshl_b32 s60, s48, 15
        s_add_u32 s60, s60, s51
        s_add_u32 s61, s60, 32768
        """)
        for i in range(2):
            for fb in range(4):
                k.e(f"buffer_load_dwordx2 {v(VRES+i*8+fb*2,2)}, v{VT+2}, s[32:35], s{60+i} offen offset:{fb*32}")
        NRES = 8
    else:
        srd(k, 32, 22, 23, S_*D_*2, WS_H)
        k.e(f"""
        v_lshlrev_b32 v{VT+2}, 4, v{VL}
        s_lshl_b32 s60, s48, 15
        s_lshl_b32 s61, s47, 11
        s_add_u32 s60, s60, s61
        s_add_u32 s61, s60, 32768
        """)
        for i in range(2):
            for p in range(2):
                k.e(f"buffer_load_dwordx4 {v(VRES+i*8+p*4,4)}, v{VT+2}, s[32:35], s{60+i} offen offset:{p*1024}")
        NRES = 4
    def wreads(slot, g):
        fb, sp = g % 4, g // 4
        return [f"ds_read_b64_tr_b16 {v(VW(g,s_)+2*rd,2)}, v{VR+4*(slot//4)+fb} offset:{(slot%4)*STG + (2*sp+s_)*4096 + rd*1024}" for s_ in range(2) for rd in range(2)]
    body = []; tail_reads = []
    for st in range(U):
        main = []; side = {}
        vm = vmem_ops((st + DIST) % U)
        for g in range(8):
            fb, sp = g % 4, g // 4
            g0 = len(main)
            for i in range(2):
                for s_ in range(2):
                    main.append(f"v_mfma_f32_16x16x32_bf16 {v(ACC(fb,i),4)}, {v(VW(g,s_),4)}, {a(AX(st,i,2*sp+s_),4)}, {v(ACC(fb,i),4)}")
            if g == 8 - D:
                side.setdefault(g0 - 1, []).extend([f"s_waitcnt vmcnt({12*(DIST-1)})", "s_barrier"])
            gg = g + D
            rd = wreads(st if gg < 8 else (st + 1) % U, gg % 8)
            if gg >= 8 and st == U - 1: tail_reads += rd
            for q, x in enumerate(rd): side.setdefault(g0 + q, []).append(x)
            if g < 4:
                for q in range(3):
                    o = vm.pop(0)
                    if len(o) > 1: side.setdefault(g0 + q, []).append(o[0])
                    side.setdefault(g0 + q + 1, []).append(o[-1])
            if g == 6:
                for q, x in enumerate(adv): side.setdefault(g0 + q, []).append(x)
            if g == 7 and st == U - 1:
                side.setdefault(g0 + 1, []).append("s_sub_u32 s62, s62, 1")
                side.setdefault(g0 + 2, []).append("s_cmp_lg_u32 s62, 0")
        assert not vm
        body += flatten(main, side)
    body = auto_lgkm(body, tail_reads)
    k.e(f"s_waitcnt vmcnt({12*(DIST-1)+NRES})\ns_barrier")
    stamp(k, 1)
    for x in tail_reads: k.e(x)
    k.e(f"s_mov_b32 s62, {NS//U}")
    L = k.label("loop")
    k.e(f".p2align 6\n{L}:")
    for x in body: k.e(x)
    k.e(f"s_cbranch_scc1 {L}")
    k.e("s_waitcnt vmcnt(0) lgkmcnt(0)")
    stamp(k, 2)
    fl = OPT.store_flags
    k.e("s_nop 7")
    for i in range(2):
        for fb in range(4):
            o = ACC(fb, i); r = VRES + i*8 + fb*2
            k.e(f"""
            v_lshlrev_b32 v{VT+4}, 16, v{r}
            v_and_b32 v{VT+5}, 0xffff0000, v{r}
            v_lshlrev_b32 v{VT+6}, 16, v{r+1}
            v_and_b32 v{VT+7}, 0xffff0000, v{r+1}
            v_add_f32 v{o}, v{o}, v{VT+4}
            v_add_f32 v{o+1}, v{o+1}, v{VT+5}
            v_add_f32 v{o+2}, v{o+2}, v{VT+6}
            v_add_f32 v{o+3}, v{o+3}, v{VT+7}
            v_cvt_pk_bf16_f32 v{r}, v{o}, v{o+1}
            v_cvt_pk_bf16_f32 v{r+1}, v{o+2}, v{o+3}
            """)
    if k3:
        srd(k, 36, 22, 23, S_*D_*2, WS_H)
        srd(k, 40, 22, 23, S_*128, WS_ST)
        k.e(f"""
        v_lshlrev_b32 v{VT+2}, 4, v{VL}
        s_lshl_b32 s60, s48, 15
        s_lshl_b32 s61, s47, 11
        s_add_u32 s60, s60, s61
        s_add_u32 s61, s60, 32768
        """)
        for i in range(2):
            for p in range(2):
                k.e(f"buffer_store_dwordx4 {v(VRES+i*8+p*4,4)}, v{VT+2}, s[36:39], s{60+i} offen offset:{p*1024} {fl}")
        for i in range(2):
            regs = [ACC(fb, i) + r for fb in range(4) for r in range(4)]
            k.e(f"v_add_f32 v{32+2*i}, v{regs[0]}, v{regs[1]}\nv_mul_f32 v{33+2*i}, v{regs[0]}, v{regs[0]}\nv_fmac_f32 v{33+2*i}, v{regs[1]}, v{regs[1]}")
            for r in regs[2:]: k.e(f"v_add_f32 v{32+2*i}, v{32+2*i}, v{r}\nv_fmac_f32 v{33+2*i}, v{r}, v{r}")
        k.e("""
        s_nop 1
        v_permlane32_swap_b32 v32, v34
        v_permlane32_swap_b32 v33, v35
        s_nop 1
        v_add_f32 v32, v32, v34
        v_add_f32 v33, v33, v35
        v_mov_b32 v34, v32
        v_mov_b32 v35, v33
        s_nop 1
        v_permlane16_swap_b32 v32, v34
        v_permlane16_swap_b32 v33, v35
        s_nop 1
        v_add_f32 v32, v32, v34
        v_add_f32 v33, v33, v35
        """)
        k.e(f"""
        v_lshrrev_b32 v{VT+3}, 1, v{VT+1}
        v_lshl_add_u32 v{VT+3}, v{VT+3}, 4, v{VT}
        v_lshlrev_b32 v{VT+3}, 7, v{VT+3}
        v_and_b32 v{VT+4}, 1, v{VT+1}
        v_lshl_add_u32 v{VT+3}, v{VT+4}, 30, v{VT+3}
        s_lshl_b32 s60, s48, 11
        s_lshl_b32 s61, s47, 3
        s_add_u32 s60, s60, s61
        buffer_store_dwordx2 v[32:33], v{VT+3}, s[40:43], s60 offen {fl}
        """)
        srd(k, 36, 22, 23, 16*2*F_*4, WS_CSP)
        srd(k, 40, 22, 23, 2*F_*4, WS_CS)
        k.e(f"""
        s_mul_i32 s60, s2, 112
        s_cmp_lg_u32 s3, 0
        s_cbranch_scc1 L_k3_nocs
        v_lshlrev_b32 v{VT+3}, 2, v{VL}
        v_cmp_gt_u32 vcc, 28, v{VL}
        v_mov_b32 v{VT+4}, {OOB}
        s_nop 0
        v_cndmask_b32 v{VT+3}, v{VT+4}, v{VT+3}, vcc
        s_mov_b32 s61, s60
        """)
        for p in range(16):
            k.e(f"buffer_load_dword v{40+p}, v{VT+3}, s[36:39], s61 offen\ns_add_u32 s61, s61, {2*F_*4}")
        k.e("s_waitcnt vmcnt(0)")
        for p in range(1, 16): k.e(f"v_add_f32 v40, v40, v{40+p}")
        k.e(f"buffer_store_dword v40, v{VT+3}, s[40:43], s60 offen {fl}\nL_k3_nocs:")
    else:
        srd(k, 36, 18, 19, S_*D_*2)
        k.e(f"""
        v_and_b32 v{VT+2}, 1, v{VT+1}
        v_lshrrev_b32 v{VT+3}, 1, v{VT+1}
        v_lshlrev_b32 v{VT+2}, 5, v{VT+2}
        v_lshl_add_u32 v{VT+2}, v{VT+3}, 4, v{VT+2}
        v_lshl_add_u32 v{VT+2}, v{VT}, 11, v{VT+2}
        s_lshl_b32 s60, s48, 15
        s_add_u32 s60, s60, s51
        s_add_u32 s61, s60, 32768
        """)
        for i in range(2):
            for p in range(2):
                r = VRES + i*8 + p*4
                k.e(f"v_permlane16_swap_b32 v{r}, v{r+2}\nv_permlane16_swap_b32 v{r+1}, v{r+3}")
                k.e(f"buffer_store_dwordx4 {v(r,4)}, v{VT+2}, s[36:39], s{60+i} offen offset:{p*64} {fl}")
    finish(k, which)
    return k


def gen_k2(force_fb=False):
    k = KB("k2_kernel", 176, 72, 65536 + 64)
    VS = lambda b: b * 16
    VC = lambda q: 32 + q * 16
    VP = lambda b: 64 + b * 8
    VO = lambda q: 80 + q * 16
    VLs = lambda q: 112 + q * 16
    VONE = 144
    VIDX = 148
    VKA = 149; VVA = 150; VL16 = 151; VL = 152
    VCSA = 153
    VSEL = 156
    VCSD = 160
    VT = 164
    AQ = lambda q, s_: q * 8 + s_ * 4
    AK = lambda b, s_: 16 + b * 8 + s_ * 4
    AV = lambda b, s_: 32 + b * 8 + s_ * 4
    ACSL = lambda b: 48 + b * 4
    APF = 56
    prologue(k)
    k.e(f"""
    v_mov_b32 v{VL}, v0
    v_lshlrev_b32 v{VL16}, 4, v0
    s_and_b32 s44, s2, 7
    s_lshr_b32 s45, s2, 3
    s_lshl_b32 s46, s44, 2
    s_lshr_b32 s47, s45, 3
    s_add_u32 s46, s46, s47          ; head
    s_and_b32 s47, s45, 7            ; qblk (256)
    s_lshl_b32 s48, s47, 3
    s_lshl_b32 s49, s3, 1
    s_add_u32 s48, s48, s49
    s_lshl_b32 s49, s46, 6
    s_add_u32 s49, s49, s48
    s_lshl_b32 s49, s49, 11
    s_lshl_b32 s53, s3, 12           ; wave lds offset
    s_lshl_b32 s52, s46, 18
    s_add_u32 s52, s52, s53
    s_mov_b32 s59, {OOB}
    s_mov_b32 s70, 0
    s_waitcnt lgkmcnt(0)
    """)
    srd(k, 24, 22, 23, S_*D_*4, WS_KV)
    srd(k, 28, 22, 23, S_*D_*2, WS_Q)
    for q in range(2):
        for s_ in range(2):
            k.e(f"buffer_load_dwordx4 {a(AQ(q,s_),4)}, v{VL16}, s[28:31], s49 offen offset:{q*2048+s_*1024}")
    k.e(f"""
    s_lshl_b32 s64, s2, 2
    s_add_u32 s64, s64, s3
    s_mov_b32 s38, {D_*D_*2}
    s_cmp_lt_u32 s64, 448
    s_cselect_b32 s32, s12, s14
    s_cselect_b32 s33, s13, s15
    s_cselect_b32 s36, s16, s8
    s_cselect_b32 s37, s17, s9
    s_cselect_b32 s38, {F_*D_*2}, s38
    s_cselect_b32 s65, 0, 448
    s_cselect_b32 s71, 0, {F_*4}
    s_sub_u32 s65, s64, s65          ; r
    s_mov_b32 s34, {D_*F_*2}
    s_mov_b32 s35, 0x20000
    s_mov_b32 s39, 0x20000
    s_lshl_b32 s67, s65, 14
    s_and_b32 s68, s65, 15           ; part
    s_lshr_b32 s69, s65, 4           ; chunk
    s_mul_i32 s66, s68, {64*7168}
    s_lshl_b32 s72, s69, 8
    s_add_u32 s66, s66, s72
    s_mul_i32 s73, s68, {2*F_*4}
    s_add_u32 s71, s71, s73
    s_lshl_b32 s72, s69, 9
    s_add_u32 s71, s71, s72
    s_cmp_lt_u32 s64, 896
    s_cselect_b32 s66, s66, s59
    s_cselect_b32 s71, s71, s59
    v_and_b32 v{VT}, 15, v{VL}
    v_lshrrev_b32 v{VT+1}, 4, v{VL}
    v_mul_u32_u24 v{VT+2}, 7168, v{VT+1}
    v_lshl_add_u32 v{VCSA}, v{VT}, 4, v{VT+2}
    """)
    for r in range(4):
        k.e(f"""
        v_cmp_eq_u32 vcc, {2*r}, v{VT}
        v_mov_b32 v{VT+2}, 0x3f80
        v_cndmask_b32 v{VSEL+r}, 0, v{VT+2}, vcc
        v_cmp_eq_u32 vcc, {2*r+1}, v{VT}
        v_mov_b32 v{VT+2}, 0x3f800000
        v_cndmask_b32 v{VSEL+r}, v{VSEL+r}, v{VT+2}, vcc
        """.replace("v_cndmask", "s_nop 0\nv_cndmask"))
    k.e(f"""
    v_and_b32 v{VT+2}, 26, v{VL}
    v_cmp_eq_u32 vcc, 0, v{VT+2}
    v_mov_b32 v{VT+3}, 0x3f803f80
    s_nop 0
    v_cndmask_b32 v{VONE}, 0, v{VT+3}, vcc
    v_and_b32 v{VT+2}, 1, v{VL}
    v_cmp_eq_u32 vcc, 0, v{VT+2}
    v_mov_b32 v{VT+3}, 0x44444444
    v_mov_b32 v{VT+4}, 0xeeeeeeee
    v_cndmask_b32 v{VIDX}, v{VT+4}, v{VT+3}, vcc
    v_mov_b32 v{VONE+1}, v{VONE}
    v_mov_b32 v{VONE+2}, v{VONE}
    v_mov_b32 v{VONE+3}, v{VONE}
    """)
    for r in range(4): k.e(f"v_mov_b32 v{VCSD+r}, 0")
    for r in range(8): k.e(f"v_accvgpr_write_b32 a{ACSL(0)+r}, 0")
    def dma(): return [f"buffer_load_dwordx4 v{VL16}, s[24:27], s57 offen offset:{q*1024} lds" for q in range(4)]
    adv = ["s_add_u32 s56, s56, 16384", "s_add_u32 s57, s56, s52", "s_cmp_lt_u32 s56, 0x40000", "s_cselect_b32 s57, s57, s59",
           "s_add_u32 s58, s58, 16384", "s_and_b32 s58, s58, 0xffff", "s_mov_b32 m0, s58"]
    Lre = k.label("restart")
    k.e(f"{Lre}:\ns_mov_b32 s56, 0\ns_mov_b32 s57, s52\ns_mov_b32 s58, s53\ns_mov_b32 m0, s58\ns_nop 0")
    for st in range(3):
        k.e("\n".join(dma for dma in dma())); k.e("\n".join(adv) + "\ns_nop 0")
    for r in list(range(64, 144)): k.e(f"v_mov_b32 v{r}, 0")
    for r in range(8): k.e(f"v_accvgpr_write_b32 a{AV(1,0)+r}, 0")
    k.e(f"v_mov_b32 v{VKA}, v{VL16}\nv_mov_b32 v{VVA}, v{VL16}")
    k.e("s_waitcnt vmcnt(8)\ns_barrier")
    stamp(k, 1)
    def kread(kb): return [f"ds_read_b128 {a(AK(kb%2,s_),4)}, v{VKA} offset:{(kb%4)*4096 + s_*1024}" for s_ in range(2)]
    def vread(kb): return [f"ds_read_b128 {a(AV(kb%2,s_),4)}, v{VVA} offset:{(kb%4)*4096 + 2048 + s_*1024}" for s_ in range(2)]
    for x in kread(0) + kread(1): k.e(x)
    Lskip = k.label("havemax")
    k.e(f"s_waitcnt lgkmcnt(0)\ns_cmp_lg_u32 s70, 0\ns_cbranch_scc1 {Lskip}")
    for q in range(2):
        k.e(f"v_mfma_f32_32x32x16_bf16 {v(VS(q),16)}, {a(AK(0,0),4)}, {a(AQ(q,0),4)}, 0")
        k.e(f"v_mfma_f32_32x32x16_bf16 {v(VS(q),16)}, {a(AK(0,1),4)}, {a(AQ(q,1),4)}, {v(VS(q),16)}")
    k.e("s_nop 11")
    def maxfin(q, m):
        k.e(f"v_mov_b32 v{VT+4}, v{m}\ns_nop 1\nv_permlane32_swap_b32 v{m}, v{VT+4}\ns_nop 1\nv_max_f32 v{m}, v{m}, v{VT+4}")
        for r in range(16): k.e(f"v_sub_f32 v{VC(q)+r}, 0, v{m}")
    for q in range(2):
        b = VS(q)
        k.e(f"v_max3_f32 v{VT+q}, v{b}, v{b+1}, v{b+2}")
        for r in range(3, 15, 2): k.e(f"v_max3_f32 v{VT+q}, v{VT+q}, v{b+r}, v{b+r+1}")
        k.e(f"v_max_f32 v{VT+q}, v{VT+q}, v{b+15}")
        maxfin(q, VT + q)
    k.e(f"{Lskip}:\ns_nop 1")
    def qk(n):
        q = n % 2; kb = n // 2
        return [f"v_mfma_f32_32x32x16_bf16 {v(VS(q),16)}, {a(AK(kb%2,0),4)}, {a(AQ(q,0),4)}, {v(VC(q),16)}",
                f"v_mfma_f32_32x32x16_bf16 {v(VS(q),16)}, {a(AK(kb%2,1),4)}, {a(AQ(q,1),4)}, {v(VS(q),16)}"]
    def pv(n):
        q = n % 2; kb = n // 2
        return [f"v_mfma_f32_32x32x16_bf16 {v(VO(q),16)}, {a(AV(kb%2,s_),4)}, {v(VP(q)+4*s_,4)}, {v(VO(q),16)}" for s_ in range(2)] + \
               [f"v_smfmac_f32_32x32x32_bf16 {v(VLs(q),16)}, {v(VONE,4)}, {v(VP(q),8)}, v{VIDX}"]
    for x in qk(0): k.e(x)
    k.e("s_mov_b32 s62, 8\ns_nop 11\ns_waitcnt vmcnt(4)")
    body = []
    for st in range(2):
        for n in range(8):
            q = n % 2
            b = VS(q)
            ex = lambda r: f"v_exp_f32 v{b+r}, v{b+r}"
            cv = lambda r: f"v_cvt_pk_bf16_f32 v{VP(q)+r}, v{b+2*r}, v{b+2*r+1}"
            m = qk(n + 1) + pv(n - 1)
            seg = [[ex(0), ex(1), ex(2), ex(3)],
                   [cv(0), ex(4), cv(1), ex(5), ex(6)],
                   [cv(2), ex(7), ex(8), cv(3), ex(9)],
                   [ex(10), cv(4), ex(11), ex(12), cv(5)],
                   [ex(13), ex(14), cv(6), ex(15), "NOP", cv(7)]]
            free = [[] for _ in range(5)]
            extra = [[] for _ in range(5)]
            if n % 2 == 1: rd = kread((n + 3) // 2)
            else: rd = vread(n // 2)
            if n == 5:
                free[0] += ["s_barrier"]
            if n == 4: free[4].append("s_waitcnt vmcnt(7)")
            if n % 2 == 1:
                free[1].append("s_waitcnt lgkmcnt(2)"); free[2].append("s_waitcnt lgkmcnt(1)")
            else: free[3].append("s_waitcnt lgkmcnt(1)")
            extra[0].append(rd[0]);
            late = rd[1]
            if n == 4: extra[2] += [f"v_add_u32 v{VKA}, 0x4000, v{VKA}", f"v_and_b32 v{VKA}, 0xffff, v{VKA}"]
            if n == 7: extra[2] += [f"v_add_u32 v{VVA}, 0x4000, v{VVA}", f"v_and_b32 v{VVA}, 0xffff, v{VVA}"]
            d = dma()
            if n == 5: extra[2].append(d[0]); extra[3].append(d[1])
            if n == 6: extra[1].append(d[2]); extra[3].append(d[3])
            if n == 7:
                extra[1].append(f"v_mfma_f32_16x16x32_bf16 {v(VCSD,4)}, {v(VSEL,4)}, {a(ACSL(st),4)}, {v(VCSD,4)}")
                extra[3].append(f"buffer_load_dwordx4 {a(ACSL(st),4)}, v{VCSA}, s[32:35], s66 offen")
            if n == 0:
                extra[3].append(f"buffer_load_dwordx4 {a(APF,4)}, v{VL16}, s[36:39], s67 offen")
                for j_, x in zip((0, 1, 2, 4), adv[:4]): free[j_].append(x)
            if n == 1:
                for j_, x in zip((0, 3, 4), adv[4:]): free[j_].append(x)
            if n == 2:
                free[0].append(f"s_add_u32 s66, s66, {4*7168}"); free[1].append("s_add_u32 s67, s67, 1024")
            if n == 7 and st == 1:
                free[3].append("s_sub_u32 s62, s62, 1"); free[4].append("s_cmp_lg_u32 s62, 0")
            for j_ in range(5):
                body.append(m[j_]); body += free[j_]
                sg = list(seg[j_])
                if j_ == 4: sg[sg.index("NOP")] = late
                body += sg[:2] + extra[j_] + sg[2:]
    body = auto_lgkm(body, kread(1))
    k.e(f"s_sub_u32 s56, s56, 16384\ns_sub_u32 s58, s58, 16384\ns_sub_u32 s66, s66, {4*7168}")
    L = k.label("loop")
    k.e(f".p2align 6\n{L}:")
    for x in body: k.e(x)
    k.e(f"s_cbranch_scc1 {L}")
    k.e("s_nop 1")
    for x in pv(7): k.e(x)
    k.e("s_waitcnt vmcnt(0) lgkmcnt(0)")
    stamp(k, 2)
    Lno = k.label("nofb");
    k.e(f"s_cmp_lg_u32 s70, 0\ns_cbranch_scc1 {Lno}")
    for st in range(2): k.e(f"v_mfma_f32_16x16x32_bf16 {v(VCSD,4)}, {v(VSEL,4)}, {a(ACSL(st),4)}, {v(VCSD,4)}")
    srd(k, 40, 22, 23, 16*2*F_*4, WS_CSP)
    k.e(f"""
    v_and_b32 v{VT}, 15, v{VL}
    v_lshrrev_b32 v{VT+1}, 4, v{VL}
    v_lshlrev_b32 v{VT}, 5, v{VT}
    v_lshl_add_u32 v{VT}, v{VT+1}, 4, v{VT}
    v_lshrrev_b32 v{VT+1}, 1, v{VT+1}
    v_lshl_add_u32 v{VT}, v{VT+1}, 29, v{VT}
    s_nop 3
    buffer_store_dwordx4 {v(VCSD,4)}, v{VT}, s[40:43], s71 offen {OPT.store_flags}
    s_mov_b32 s66, s59
    s_mov_b32 s67, s59
    """)
    k.e(f"""
    v_add_f32 v{VT}, v{VLs(0)}, v{VLs(0)+1}
    v_add_f32 v{VT+1}, v{VLs(1)}, v{VLs(1)+1}
    v_add_f32 v{VT}, v{VT}, v{VT+1}
    v_mov_b32 v{VT+2}, {fbits(2.0**40 if not force_fb else 0.5)}
    v_cmp_nlt_f32 vcc, v{VT}, v{VT+2}
    s_lshl_b32 s60, s3, 2
    s_add_u32 s60, s60, 65536
    v_mov_b32 v{VT+2}, s60
    s_cmp_lg_u64 vcc, 0
    s_cselect_b32 s61, 1, 0
    v_mov_b32 v{VT+3}, s61
    ds_write_b32 v{VT+2}, v{VT+3}
    v_mov_b32 v{VT+2}, 65536
    s_waitcnt lgkmcnt(0)
    s_barrier
    ds_read_b128 {v(VT+4,4)}, v{VT+2}
    s_waitcnt lgkmcnt(0)
    v_or_b32 v{VT+4}, v{VT+4}, v{VT+5}
    v_or3_b32 v{VT+4}, v{VT+4}, v{VT+6}, v{VT+7}
    s_nop 0
    v_readfirstlane_b32 s61, v{VT+4}
    s_nop 3
    s_cmp_eq_u32 s61, 0
    s_cbranch_scc1 {Lno}
    """)
    Lm = k.label("maxloop")
    k.e(f"""
    s_mov_b32 s70, 1
    s_lshl_b32 s60, s46, 18
    s_mov_b32 s61, 64
    v_mov_b32 v{VT}, 0xff800000
    v_mov_b32 v{VT+1}, 0xff800000
    {Lm}:
    buffer_load_dwordx4 {a(AK(0,0),4)}, v{VL16}, s[24:27], s60 offen
    buffer_load_dwordx4 {a(AK(0,1),4)}, v{VL16}, s[24:27], s60 offen offset:1024
    s_waitcnt vmcnt(0)
    """)
    for q in range(2):
        k.e(f"v_mfma_f32_32x32x16_bf16 {v(VS(q),16)}, {a(AK(0,0),4)}, {a(AQ(q,0),4)}, 0")
        k.e(f"v_mfma_f32_32x32x16_bf16 {v(VS(q),16)}, {a(AK(0,1),4)}, {a(AQ(q,1),4)}, {v(VS(q),16)}")
    k.e("s_nop 15")
    for q in range(2):
        for r in range(0, 16, 2): k.e(f"v_max3_f32 v{VT+q}, v{VT+q}, v{VS(q)+r}, v{VS(q)+r+1}")
    k.e(f"s_add_u32 s60, s60, 4096\ns_sub_u32 s61, s61, 1\ns_cmp_lg_u32 s61, 0\ns_cbranch_scc1 {Lm}")
    for q in range(2): maxfin(q, VT + q)
    k.e(f"s_branch {Lre}\n{Lno}:")
    srd(k, 40, 22, 23, S_*D_*2, WS_O)
    k.e(f"""
    v_and_b32 v{VT}, 15, v{VL}
    v_bfe_u32 v{VT+1}, v{VL}, 4, 1
    v_lshrrev_b32 v{VT+2}, 5, v{VL}
    v_lshlrev_b32 v{VT}, 4, v{VT}
    v_lshl_add_u32 v{VT}, v{VT+1}, 15, v{VT}
    v_lshl_add_u32 v{VT}, v{VT+2}, 8, v{VT}
    s_lshl_b32 s60, s48, 16
    s_lshl_b32 s61, s46, 10
    s_add_u32 s60, s60, s61
    s_add_u32 s61, s60, 65536
    s_nop 7
    """)
    for q in range(2):
        k.e(f"v_add_f32 v{VT+4}, v{VLs(q)}, v{VLs(q)+1}\nv_rcp_f32 v{VT+4}, v{VT+4}\ns_nop 0")
        b = VO(q)
        for r in range(16): k.e(f"v_mul_f32 v{b+r}, v{b+r}, v{VT+4}")
        for r in range(8): k.e(f"v_cvt_pk_bf16_f32 v{b+r}, v{b+2*r}, v{b+2*r+1}")
        for a_ in range(2):
            k.e(f"buffer_store_dwordx4 {v(b+4*a_,4)}, v{VT}, s[40:43], s{60+q} offen offset:{a_*512} {OPT.store_flags}")
    finish(k, 2)
    return k

def all_kernels():
    return [gen_k0(), gen_k1(), gen_k2(), gen_small(3), gen_k4(), gen_small(5)]

if __name__ == "__main__":
    hdr = "".join(l for l in open("sequential_preLN__softmax_full_mha__glu_gated_swiglu__prompt.s.ref") if l.startswith(";") and "@launch" not in l and "Override" not in l and "grid=ceil" not in l)
    print(build_file(all_kernels(), hdr))
```

```python
import sys, struct
from asmlib import *

S_, D_, F_ = 2048, 1024, 3584
MB = 1 << 20
PLANE = 16 * MB
WS_XN = 0; WS_Q = 4*MB; WS_KV = 8*MB; WS_H = 16*MB
WS_ST = 20*MB; WS_CS = WS_ST + 0x4000; WS_FLAG = WS_ST + 0x10000; ZERO_BYTES = 0x40000
WS_STAMP = 21*MB
WS_O = 32*MB; WS_WOT = 36*MB; WS_W2T = 38*MB
WS_G = 64*MB
WS_EX = 96*MB
RELOC = PLANE - 384
LOG2E = 1.4426950408889634
OOB = 0x40000000
def fbits(x): return hex(struct.unpack("<I", struct.pack("<f", x))[0])

class Opt:
    diag = False
    st = "sc1"
    reloc = True
    codepf = True
OPT = Opt()

def prologue(k, nwg=256):
    k.e(f"s_cmp_ge_u32 s2, {nwg}\ns_cbranch_scc1 L_{k.name}_end")
    if OPT.diag: k.e("s_memrealtime s[80:81]\ns_memtime s[82:83]")
    k.e("""
    s_load_dwordx16 s[4:19], s[0:1], 0
    s_load_dwordx4 s[20:23], s[0:1], 64
    v_lshrrev_b32 v1, 6, v0
    v_and_b32 v0, 63, v0
    v_readfirstlane_b32 s3, v1
    s_and_b32 s44, s2, 7
    s_lshr_b32 s45, s2, 3
    """)
def stamp(k, i):
    if OPT.diag:
        k.e(f"s_memrealtime s[{80+4*i}:{81+4*i}]\ns_memtime s[{82+4*i}:{83+4*i}]\ns_waitcnt lgkmcnt(0)")
def finish(k, kid):
    if OPT.diag:
        k.e("s_waitcnt vmcnt(0)")
        stamp(k, 3)
        srd(k, 96, 22, 23, MB, WS_STAMP)
        k.e(f"s_lshl_b32 s100, s2, 3\ns_add_u32 s100, s100, s3\ns_add_u32 s100, s100, {kid*2048}\ns_lshl_b32 s100, s100, 5")
        for i in range(4):
            k.e(f"v_mov_b32 v{2*i}, s{80+4*i}\nv_mov_b32 v{2*i+1}, s{82+4*i}")
        k.e("v_mov_b32 v8, s100\nbuffer_store_dwordx4 v[0:3], v8, s[96:99], 0 offen\nbuffer_store_dwordx4 v[4:7], v8, s[96:99], 0 offen offset:16")
    k.e(f"L_{k.name}_end:\ns_endpgm")

def udiv_const(k, dst, src, c):
    sh = 20
    m = (1 << sh) // c + 1
    for x in range(0, 4096): assert (x * m) >> sh == x // c
    k.e(f"v_mul_u32_u24 v{dst}, {m}, v{src}\nv_lshrrev_b32 v{dst}, {sh}, v{dst}")

def tile_map(k, nb_m, nb_x, sm, sn):
    k.e(f"""
    s_and_b32 s{sm}, s44, {(1<<nb_x)-1}
    s_lshl_b32 s{sm}, s{sm}, {nb_m}
    s_and_b32 s{sn}, s45, {(1<<nb_m)-1}
    s_add_u32 s{sm}, s{sm}, s{sn}
    s_lshr_b32 s{sn}, s44, {nb_x}
    s_lshl_b32 s{sn}, s{sn}, {5-nb_m}
    s_lshr_b32 s79, s45, {nb_m}
    s_add_u32 s{sn}, s{sn}, s79
    """)

def reloc(k, addr, tmp):
    if not OPT.reloc: return
    k.e(f"""
    v_bfe_u32 v{tmp}, v{addr}, 7, 2
    v_add_u32 v{tmp}, 1, v{tmp}
    v_lshrrev_b32 v{tmp}, 2, v{tmp}
    v_mul_u32_u24 v{tmp}, {RELOC}, v{tmp}
    v_add_u32 v{addr}, v{addr}, v{tmp}
    """)

def code_pf_addr(k, first, last, vaddr, lane, chunk_s):
    L = k.label("pc")
    k.e(f"""
    s_getpc_b64 s[76:77]
    {L}:
    s_add_u32 s76, s76, {first}-{L}
    s_addc_u32 s77, s77, ({first}-{L})>>32
    s_lshl_b32 s78, s45, 2
    s_add_u32 s78, s78, s3
    s_lshl_b32 s78, s78, 9
    v_and_b32 v{vaddr}, 3, v{lane}
    v_lshl_add_u32 v{vaddr}, v{vaddr}, 7, s78
    v_min_u32 v{vaddr}, {last}-{first}, v{vaddr}
    v_mov_b32 v{vaddr+1}, s77
    v_add_co_u32 v{vaddr}, vcc, s76, v{vaddr}
    s_nop 1
    v_addc_co_u32 v{vaddr+1}, vcc, 0, v{vaddr+1}, vcc
    """)
def code_pf(vdst, vaddr):
    return f"global_load_dword v{vdst}, v[{vaddr}:{vaddr+1}], off"

def pk(op, d, *srcs):
    ops = []; lo = []; hi = []; neg = []
    for s_ in srcs:
        if isinstance(s_, tuple):
            r = s_[1]; ops.append(v(r & ~1, 2)); lo.append(r & 1); hi.append(r & 1); neg.append(int(s_[0] == 'nb'))
        else:
            assert s_ % 2 == 0
            ops.append(v(s_, 2)); lo.append(0); hi.append(1); neg.append(0)
    f = lambda x: "[" + ",".join(map(str, x)) + "]"
    t = f"v_pk_{op}_f32 {v(d,2)}, " + ", ".join(ops) + f" op_sel:{f(lo)} op_sel_hi:{f(hi)}"
    if any(neg): t += f" neg_lo:{f(neg)} neg_hi:{f(neg)}"
    return t

def sprinkle(base, extra):
    out = []; n = len(base); m = len(extra); q = 0
    for i, b in enumerate(base):
        out.append(b)
        while q < m and (q + 1) * n <= (i + 1) * (m + 1):
            out += extra[q]; q += 1
    for x in extra[q:]: out += x
    return out
def with_nop(op):
    return [op[0], "s_nop 0", op[1]] if len(op) > 1 else list(op)

def allreduce64(k, regs, tmp):
    for sh in (8, 4, 2, 1):
        k.e("s_nop 1")
        for r in regs: k.e(f"v_add_f32_dpp v{r}, v{r}, v{r} row_ror:{sh} row_mask:0xf bank_mask:0xf")
    for sw in ("v_permlane16_swap_b32", "v_permlane32_swap_b32"):
        for q, r in enumerate(regs): k.e(f"v_mov_b32 v{tmp+q}, v{r}")
        k.e("s_nop 1")
        for q, r in enumerate(regs): k.e(f"{sw} v{r}, v{tmp+q}")
        k.e("s_nop 1")
        for q, r in enumerate(regs): k.e(f"v_add_f32 v{r}, v{r}, v{tmp+q}")

def gen_k0(first="k0_kernel", last="L_k5_kernel_end", wpf=True):
    k = KB("k0_kernel", 72, 0, 0)
    prologue(k)
    k.e("""
    v_lshlrev_b32 v1, 4, v0
    s_lshl_b32 s46, s2, 2
    s_add_u32 s46, s46, s3
    s_lshl_b32 s47, s46, 12
    s_and_b32 s48, s45, 1
    s_lshl_b32 s48, s48, 2
    s_add_u32 s48, s48, s3
    v_lshlrev_b32 v60, 6, v0
    s_mul_i32 s49, s46, 6144
    v_lshlrev_b32 v61, 2, v0
    s_lshl_b32 s50, s46, 8
    v_mov_b32 v62, 0
    """)
    if OPT.codepf: code_pf_addr(k, first, last, 64, 0, 48)
    k.e("s_waitcnt lgkmcnt(0)")
    srd(k, 24, 4, 5, S_*D_*2)
    for q in range(4): k.e(f"buffer_load_dwordx4 v[{4+4*q}:{7+4*q}], v1, s[24:27], s47 offen offset:{q*1024}")
    srd(k, 32, 6, 7, D_*3*D_*2)
    if OPT.codepf: k.e(code_pf(66, 64))
    k.e(f"v_min_u32 v60, {47 if wpf else 0}, v0\nv_lshlrev_b32 v60, 7, v60\nbuffer_load_dword v67, v60, s[32:35], s49 offen")
    srd(k, 28, 22, 23, S_*D_*2, WS_XN)
    srd(k, 36, 22, 23, ZERO_BYTES, WS_ST)
    k.e(f"buffer_store_dword v62, v61, s[36:39], s50 offen {OPT.st}")
    stamp(k, 1)
    k.e(f"s_waitcnt vmcnt({3 if OPT.codepf else 2})")
    for q in range(16):
        k.e(f"v_lshlrev_b32 v{24+2*q}, 16, v{4+q}\nv_and_b32 v{25+2*q}, 0xffff0000, v{4+q}")
    for r in range(2):
        b = 24 + 16 * r
        k.e(pk("add", 56, b, b+2))
        for q in range(4, 16, 2): k.e(pk("add", 56, 56, b+q))
        k.e(f"v_add_f32 v{2+r}, v56, v57")
    allreduce64(k, [2, 3], 20)
    for r in range(2):
        b = 24 + 16 * r
        k.e(f"v_mul_f32 v{2+r}, {fbits(1.0/D_)}, v{2+r}")
        for q in range(0, 16, 2): k.e(pk("add", b+q, b+q, ('nb', 2+r)))
        k.e(pk("mul", 56, b, b))
        for q in range(2, 16, 2): k.e(pk("fma", 56, b+q, b+q, 56))
        k.e(f"v_add_f32 v{2+r}, v56, v57")
    allreduce64(k, [2, 3], 20)
    k.e(f"v_mov_b32 v20, {fbits(1e-5)}\nv_mov_b32 v21, {fbits(1e-5)}")
    for r in range(2): k.e(f"v_fmac_f32 v{20+r}, {fbits(1.0/D_)}, v{2+r}")
    k.e("v_rsq_f32 v2, v20\nv_rsq_f32 v3, v21\ns_nop 0")
    stamp(k, 2)
    for r in range(2):
        b = 24 + 16 * r
        for h in range(2):
            for q in range(0, 8, 2): k.e(pk("mul", b+8*h+q, b+8*h+q, ('b', 2+r)))
            for q in range(4): k.e(f"v_cvt_pk_bf16_f32 v{4+8*r+4*h+q}, v{b+8*h+2*q}, v{b+8*h+2*q+1}")
            qq = 2*r + h
            k.e(f"buffer_store_dwordx4 v[{4+4*qq}:{7+4*qq}], v1, s[28:31], s47 offen offset:{qq*1024} {OPT.st}")
    finish(k, 0)
    return k

def gen_k1(D=2, ROT=1):
    STG = 40960
    k = KB("k1_kernel", 160, 112, 4 * STG)
    ACC = lambda j, i: (j * 4 + i) * 4
    VDX = 96
    VDW = 100
    VRX = 106
    VRW = 114
    VL = 122; VPF = 123; VT = 124; VPA = 132
    AX = lambda st, i, s_: (st % 2) * 32 + (i * 2 + s_) * 4
    AW = lambda j, s_: 64 + j * 8 + s_ * 4
    prologue(k)
    k.e(f"v_mov_b32 v{VL}, v0")
    if ROT:
        k.e("""
        s_and_b32 s46, s45, 7
        s_lshl_b32 s46, s46, 1
        s_and_b32 s47, s44, 1
        s_add_u32 s46, s46, s47
        s_lshr_b32 s47, s44, 1
        s_lshl_b32 s47, s47, 2
        s_lshr_b32 s48, s45, 3
        s_add_u32 s47, s47, s48
        """)
    else: tile_map(k, 3, 1, 46, 47)
    k.e(f"""
    s_lshr_b32 s48, s3, 1            ; wm
    s_and_b32 s49, s3, 1             ; wn
    v_lshrrev_b32 v{VT}, 3, v{VL}       ; l/8
    v_and_b32 v{VT+1}, 7, v{VL}         ; p
    v_lshrrev_b32 v{VT+2}, 1, v{VT}     ; (l/8)>>1  (0..3)
    v_xor_b32 v{VT+3}, v{VT+1}, v{VT+2}
    s_lshl_b32 s50, s46, 7
    s_lshl_b32 s51, s3, 5
    s_add_u32 s50, s50, s51
    s_lshl_b32 s50, s50, 11             ; (rb*128 + w*32)*2048
    v_lshlrev_b32 v{VT+4}, 11, v{VT}
    v_add_u32 v{VT+4}, s50, v{VT+4}
    v_lshl_add_u32 v{VDX}, v{VT+3}, 4, v{VT+4}
    v_xor_b32 v{VT+3}, 4, v{VT+3}
    v_lshl_add_u32 v{VDX+1}, v{VT+3}, 4, v{VT+4}
    v_add_u32 v{VDX+2}, {2*15360}, v{VDX}
    v_add_u32 v{VDX+3}, {3*15360}, v{VDX+1}
    v_add_u32 v{VDX+1}, {15360}, v{VDX+1}
    v_and_b32 v{VT+2}, 1, v{VT+2}
    v_lshlrev_b32 v{VT+2}, 1, v{VT+2}
    v_xor_b32 v{VT+3}, v{VT+1}, v{VT+2}
    v_mul_u32_u24 v{VT+4}, 6144, v{VT}
    s_mul_i32 s50, s3, {16*6144}
    s_lshl_b32 s51, s47, 7
    s_add_u32 s50, s50, s51
    v_add_u32 v{VT+4}, s50, v{VT+4}
    v_lshl_add_u32 v{VDW}, v{VT+3}, 4, v{VT+4}
    v_xor_b32 v{VT+3}, 4, v{VT+3}
    v_lshl_add_u32 v{VDW+1}, v{VT+3}, 4, v{VT+4}
    v_add_u32 v{VDW+1}, {8*6144 - 1024}, v{VDW+1}
    """)
    for sg in range(1, 3):
        k.e(f"v_add_u32 v{VDW+2*sg}, {2048*sg}, v{VDW}\nv_add_u32 v{VDW+2*sg+1}, {2048*sg}, v{VDW+1}")
    k.e(f"""
    s_lshl_b32 s53, s3, 12
    s_lshl_b32 s54, s3, 11
    s_add_u32 s54, s54, 16384
    s_mov_b32 s58, 0
    s_mov_b32 s59, {OOB}
    s_mov_b32 s63, {'s46' if ROT else '0'}
    s_mul_i32 s56, s63, {64*6144}
    s_lshl_b32 s57, s63, 7
    """)
    zero = [f"v_mov_b32 v{r}, 0" for r in range(96)]
    for x in zero[:40]: k.e(x)
    k.e("s_waitcnt lgkmcnt(0)")
    srd(k, 24, 6, 7, D_*3*D_*2)
    srd(k, 28, 22, 23, S_*D_*2, WS_XN)
    def vmem_ops(slot):
        ops = []
        for q in range(4):
            o = [f"buffer_load_dwordx4 v{VDX+q}, s[28:31], s57 offen offset:{q*1024} lds"]
            if q == 0: o = [f"s_add_u32 m0, s53, {slot*STG}"] + o
            ops.append(o)
        for sg in range(3):
            for q in range(2):
                o = [f"buffer_load_dwordx4 v{VDW+2*sg+q}, s[24:27], s56 offen offset:{q*1024} lds"]
                if q == 0: o = [f"s_add_u32 m0, s54, {slot*STG + sg*8192}"] + o
                ops.append(o)
        return ops
    adv = ["s_add_u32 s63, s63, 1", "s_and_b32 s63, s63, 15", f"s_mul_i32 s56, s63, {64*6144}", "s_lshl_b32 s57, s63, 7",
           "s_add_u32 s58, s58, 1", "s_cmp_lt_u32 s58, 16", "s_cselect_b32 s56, s56, s59", "s_cselect_b32 s57, s57, s59"]
    for o in vmem_ops(0): k.e("\n".join(with_nop(o)))
    k.e("\n".join(adv))
    setup = f"""
    v_and_b32 v{VT}, 15, v{VL}
    v_lshrrev_b32 v{VT+1}, 4, v{VL}
    v_lshrrev_b32 v{VT+2}, 1, v{VT}
    v_xor_b32 v{VT+2}, v{VT+1}, v{VT+2}
    s_lshl_b32 s50, s48, 13
    v_lshlrev_b32 v{VT+3}, 7, v{VT}
    v_add_u32 v{VT+3}, s50, v{VT+3}
    v_lshl_add_u32 v{VRX}, v{VT+2}, 4, v{VT+3}
    v_xor_b32 v{VRX+1}, 64, v{VRX}
    v_lshrrev_b32 v{VT+2}, 2, v{VT}
    v_lshl_add_u32 v{VT+3}, v{VT+1}, 3, v{VT+2}
    v_lshrrev_b32 v{VT+2}, 1, v{VT+2}
    v_and_b32 v{VT+4}, 1, v{VT+1}
    v_lshl_add_u32 v{VT+2}, v{VT+4}, 1, v{VT+2}
    s_lshl_b32 s50, s49, 1
    v_xor_b32 v{VT+2}, s50, v{VT+2}
    v_lshlrev_b32 v{VT+2}, 5, v{VT+2}
    v_lshl_add_u32 v{VT+2}, v{VT+3}, 7, v{VT+2}
    v_and_b32 v{VT+4}, 3, v{VL}
    v_lshl_add_u32 v{VT+2}, v{VT+4}, 3, v{VT+2}
    v_add_u32 v{VRW}, 16384, v{VT+2}
    v_xor_b32 v{VRW+1}, 32, v{VRW}
    """.strip().split("\n")
    setup = [x.strip() for x in setup]
    for sl in range(1, 4):
        for q in range(2):
            setup += [f"v_add_u32 v{VRX+2*sl+q}, {sl*STG}, v{VRX+q}", f"v_add_u32 v{VRW+2*sl+q}, {sl*STG}, v{VRW+q}"]
    setup += zero[40:]
    for x in sprinkle(setup, [with_nop(o) for o in vmem_ops(1)]): k.e(x)
    k.e("\n".join(adv))
    def wreads(slot, j):
        return [f"ds_read_b64_tr_b16 {a(AW(j,s_)+2*rd,2)}, v{VRW+2*slot+j%2} offset:{(j//2)*8192 + (32*s_+4*rd)*128}" for s_ in range(2) for rd in range(2)]
    def xreads(slot):
        return [f"ds_read_b128 {a(AX(slot,i,s_),4)}, v{VRX+2*slot+s_} offset:{i*2048}" for i in range(4) for s_ in range(2)]
    NH = 3
    body = []; tail_reads = []
    for st in range(4):
        main = []; side = {}
        vm_a = vmem_ops((st + 2) % 4)[NH:]
        vm_b = vmem_ops((st + 3) % 4)[:NH]
        xr = xreads((st + 1) % 4)
        for j in range(6):
            for i in range(4):
                for s_ in range(2):
                    w_, x_ = a(AW(j,s_),4), a(AX(st,i,s_),4)
                    if j >= 4: w_, x_ = x_, w_
                    main.append(f"v_mfma_f32_16x16x32_bf16 {v(ACC(j,i),4)}, {w_}, {x_}, {v(ACC(j,i),4)}")
        def place(o, pos):
            if len(o) > 1: side.setdefault(pos - 1, []).append(o[0])
            side.setdefault(pos, []).append(o[-1])
        nb = 8 * (6 - D)
        for q, o in enumerate(vm_a): place(o, 1 + q * (nb - 8) // len(vm_a))
        for q, x in enumerate(adv): side.setdefault(nb - 8 + q - 1, []).append(x)
        side.setdefault(nb - 1, []).extend(["s_waitcnt vmcnt(10)", "s_barrier"])
        for q, o in enumerate(vm_b): place(o, nb + 2 + q * (8 * D - 3) // len(vm_b))
        for j in range(6):
            g0 = 8 * j
            jj = j + D
            rd = wreads(st if jj < 6 else (st + 1) % 4, jj % 6)
            if j >= 6 - D:
                n = (8 + D - 1) // D
                rd = rd + xr[:n]; xr = xr[n:]
                if st == 3: tail_reads += rd
            for q, x in enumerate(rd): side.setdefault(g0 + q, []).append(x)
        if st == 3:
            side.setdefault(45, []).append("s_sub_u32 s62, s62, 1")
            side.setdefault(46, []).append("s_cmp_lg_u32 s62, 0")
        body += flatten(main, side)
    body = auto_lgkm(body, tail_reads)
    L = k.label("loop"); Lep = k.label("epi")
    if OPT.codepf: code_pf_addr(k, Lep, "L_k5_kernel_end", VPA, VL, 3)
    k.e("s_waitcnt vmcnt(10)\ns_barrier")
    stamp(k, 1)
    for x in tail_reads: k.e(x)
    if OPT.codepf: k.e(code_pf(VPF, VPA))
    for o in vmem_ops(2)[:NH]: k.e("\n".join(with_nop(o)))
    k.e("s_mov_b32 s62, 4")
    k.e(f".p2align 6\n{L}:")
    for x in body: k.e(x)
    k.e(f"s_cbranch_scc1 {L}\n{Lep}:")
    stamp(k, 2)
    srd(k, 32, 22, 23, S_*D_*2, WS_Q)
    srd(k, 36, 22, 23, S_*D_*4, WS_KV)
    k.e(f"""
    s_lshl_b32 s50, s47, 1
    s_add_u32 s50, s50, s49
    s_lshl_b32 s50, s50, 6
    s_lshl_b32 s51, s46, 2
    s_add_u32 s50, s50, s51
    s_lshl_b32 s51, s48, 1
    s_add_u32 s50, s50, s51
    s_lshl_b32 s60, s50, 11
    s_lshl_b32 s61, s50, 12
    s_add_u32 s63, s61, 4096
    v_and_b32 v{VT}, 15, v{VL}          ; t
    v_lshrrev_b32 v{VT+1}, 4, v{VL}     ; g
    v_lshlrev_b32 v{VT+1}, 9, v{VT+1}   ; g*512
    v_lshl_add_u32 v{VRX}, v{VT}, 4, v{VT+1}
    v_lshrrev_b32 v{VT+2}, 3, v{VT}
    v_and_b32 v{VT+3}, 7, v{VT}
    v_lshl_add_u32 v{VT+2}, v{VT+2}, 4, v{VT+3}   ; 16*(t/8) + t%8
    v_lshl_add_u32 v{VRX+1}, v{VT+2}, 4, v{VT+1}
    v_mov_b32 v{VT+4}, {fbits(LOG2E / 32 ** 0.5)}
    """)
    fl = OPT.st
    def cvt4(o, u):
        k.e(f"v_cvt_pk_bf16_f32 v{o}, v{o}, v{o+1}\nv_cvt_pk_bf16_f32 v{o+1}, v{o+2}, v{o+3}")
        k.e(f"v_cvt_pk_bf16_f32 v{o+2}, v{u}, v{u+1}\nv_cvt_pk_bf16_f32 v{o+3}, v{u+2}, v{u+3}")
    for i in range(4):
        o = ACC(2, i); cvt4(o, ACC(3, i))
        k.e(f"buffer_store_dwordx4 {v(o,4)}, v{VRX+1}, s[36:39], s{61 if i < 2 else 63} offen offset:{(i%2)*128} {fl}")
    for p in range(2):
        for fb in range(2):
            o = ACC(4 + fb, 2*p); cvt4(o, ACC(4 + fb, 2*p + 1))
            k.e(f"buffer_store_dwordx4 {v(o,4)}, v{VRX}, s[36:39], s{61 if p == 0 else 63} offen offset:{2048 + fb*256} {fl}")
    for i in range(4):
        o = ACC(0, i); u = ACC(1, i)
        for r in (0, 2): k.e(pk("mul", o+r, o+r, ('b', VT+4)) + "\n" + pk("mul", u+r, u+r, ('b', VT+4)))
        cvt4(o, u)
        k.e(f"buffer_store_dwordx4 {v(o,4)}, v{VRX}, s[32:35], s60 offen offset:{(i//2)*2048 + (i%2)*256} {fl}")
    finish(k, 1)
    return k

def gen_k2(force_fb=False, abl='', W2COLS=64):
    k = KB("k2_kernel", 180, 72, 65536 + 64)
    VS = lambda b: b * 16
    VC = lambda q: 32 + q * 16
    VP = lambda b: 64 + b * 8
    VO = lambda q: 80 + q * 16
    VLs = lambda q: 112 + q * 16
    VONE = 144
    VIDX = 148
    VKA = 149; VVA = 150; VL16 = 151; VL = 152
    VCSA = 153; VCPS = 154; VCPD = 155
    VSEL = 156
    VCSD = 160
    VT = 164
    VPA = 176; VPF = 178
    AQ = lambda q, s_: q * 8 + s_ * 4
    AK = lambda b, s_: 16 + b * 8 + s_ * 4
    AV = lambda b, s_: 32 + b * 8 + s_ * 4
    ACSL = lambda b: 48 + b * 4
    ACP = lambda b: 56 + b * 4
    prologue(k)
    k.e(f"""
    v_mov_b32 v{VL}, v0
    v_lshlrev_b32 v{VL16}, 4, v0
    s_lshl_b32 s46, s44, 2
    s_lshr_b32 s47, s45, 3
    s_add_u32 s46, s46, s47          ; head
    s_and_b32 s47, s45, 7            ; qblk (256)
    s_lshl_b32 s48, s47, 3
    s_lshl_b32 s49, s3, 1
    s_add_u32 s48, s48, s49
    s_lshl_b32 s49, s46, 6
    s_add_u32 s49, s49, s48
    s_lshl_b32 s49, s49, 11
    s_lshl_b32 s53, s3, 12           ; wave lds offset
    s_lshl_b32 s52, s46, 18
    s_add_u32 s52, s52, s53
    s_mov_b32 s59, {OOB}
    s_mov_b32 s70, 0
    v_and_b32 v{VT}, 15, v{VL}
    v_lshrrev_b32 v{VT+1}, 4, v{VL}
    v_mul_u32_u24 v{VT+2}, 7168, v{VT+1}
    v_lshl_add_u32 v{VCSA}, v{VT}, 4, v{VT+2}
    """)
    for r in range(4):
        k.e(f"""
        v_cmp_eq_u32 vcc, {2*r}, v{VT}
        v_mov_b32 v{VT+2}, 0x3f80
        v_cndmask_b32 v{VSEL+r}, 0, v{VT+2}, vcc
        v_cmp_eq_u32 vcc, {2*r+1}, v{VT}
        v_mov_b32 v{VT+2}, 0x3f800000
        v_cndmask_b32 v{VSEL+r}, v{VSEL+r}, v{VT+2}, vcc
        """.replace("v_cndmask", "s_nop 0\nv_cndmask"))
    k.e(f"""
    v_and_b32 v{VT+2}, 26, v{VL}
    v_cmp_eq_u32 vcc, 0, v{VT+2}
    v_mov_b32 v{VT+3}, 0x3f803f80
    s_nop 0
    v_cndmask_b32 v{VONE}, 0, v{VT+3}, vcc
    v_and_b32 v{VT+2}, 1, v{VL}
    v_cmp_eq_u32 vcc, 0, v{VT+2}
    v_mov_b32 v{VT+3}, 0x44444444
    v_mov_b32 v{VT+4}, 0xeeeeeeee
    v_cndmask_b32 v{VIDX}, v{VT+4}, v{VT+3}, vcc
    v_mov_b32 v{VONE+1}, v{VONE}
    v_mov_b32 v{VONE+2}, v{VONE}
    v_mov_b32 v{VONE+3}, v{VONE}
    """)
    k.e("s_waitcnt lgkmcnt(0)")
    srd(k, 24, 22, 23, S_*D_*4, WS_KV)
    srd(k, 28, 22, 23, S_*D_*2, WS_Q)
    for q in range(2):
        for s_ in range(2):
            k.e(f"buffer_load_dwordx4 {a(AQ(q,s_),4)}, v{VL16}, s[28:31], s49 offen offset:{q*2048+s_*1024}")
    def dma(): return [f"buffer_load_dwordx4 v{VL16}, s[24:27], s57 offen offset:{q*1024} lds" for q in range(4)]
    adv = ["s_add_u32 s56, s56, 16384", "s_add_u32 s57, s56, s52", "s_cmp_lt_u32 s56, 0x40000", "s_cselect_b32 s57, s57, s59",
           "s_add_u32 s58, s58, 16384", "s_and_b32 s58, s58, 0xffff", "s_mov_b32 m0, s58"]
    Lre = k.label("restart"); Lside = k.label("noside")
    k.e(f"{Lre}:\ns_mov_b32 s56, 0\ns_mov_b32 s57, s52\ns_mov_b32 s58, s53\ns_mov_b32 m0, s58\ns_nop 0")
    for st in range(3):
        k.e("\n".join(dma()))
        if st < 2: k.e("\n".join(adv) + "\ns_nop 0")
    assert W2COLS in (64, 128)
    M18 = (1 << 16) // 18 + 1
    for x in range(1024): assert (x * M18) >> 16 == x // 18
    k.e(f"""
    s_lshl_b32 s64, s2, 2
    s_add_u32 s64, s64, s3
    s_mul_i32 s68, s64, {M18}
    s_lshr_b32 s68, s68, 16          ; c
    s_mul_i32 s69, s68, 18
    s_sub_u32 s69, s64, s69          ; p
    s_lshl_b32 s71, s68, 9
    s_cmp_lt_u32 s68, 28
    s_cselect_b32 s32, s12, s14
    s_cselect_b32 s33, s13, s15
    s_cselect_b32 s65, 0, 28
    s_sub_u32 s68, s68, s65          ; chunk
    s_mul_i32 s66, s69, {60*7168}
    s_lshl_b32 s68, s68, 8
    s_add_u32 s66, s66, s68
    s_cmp_lt_u32 s64, 1008
    s_cselect_b32 s66, s66, s59
    s_cselect_b32 s71, s71, s59
    s_mov_b32 s34, {D_*F_*2}
    s_mov_b32 s35, 0x20000
    s_mov_b32 s38, {D_*D_*2}
    s_mov_b32 s74, {WS_WOT}
    s_mov_b32 s72, {D_//8}
    s_cmp_lt_u32 s64, 512
    s_cselect_b32 s36, s16, s8
    s_cselect_b32 s37, s17, s9
    s_cselect_b32 s38, {F_*D_*2}, s38
    s_cselect_b32 s74, {WS_W2T}, s74
    s_cselect_b32 s72, {F_//8}, s72
    s_cselect_b32 s75, 14, 8         ; units
    s_mov_b32 s39, 0x20000
    s_add_u32 s40, s22, s74
    s_addc_u32 s41, s23, 0
    s_mov_b32 s42, {PLANE + F_*D_*2}
    s_mov_b32 s43, 0x20000
    s_and_b32 s68, s64, 15
    s_bfe_u32 s69, s64, 0x50004
    s_mul_i32 s69, s69, s75
    s_add_u32 s54, s75, 2
    s_lshl_b32 s54, s54, 14
    v_lshrrev_b32 v{VT+2}, 3, v{VL}     ; r
    v_and_b32 v{VT+3}, 7, v{VL}         ; p
    v_and_b32 v{VT+4}, 6, v{VT+2}
    v_xor_b32 v{VT+4}, v{VT+4}, v{VT+3}
    v_lshlrev_b32 v{VT+4}, 4, v{VT+4}
    v_lshl_add_u32 v{VCPS}, v{VT+2}, 11, v{VT+4}
    v_mov_b32 v{VCPD}, v{VL16}
    s_lshl_b32 s67, s69, 14
    s_lshl_b32 s73, s68, 7
    s_add_u32 s67, s67, s73
    s_mul_i32 s72, s72, s68
    s_add_u32 s72, s72, s69
    s_lshl_b32 s73, s72, 10
    s_mov_b32 s55, 1024
    """)
    if W2COLS == 128:
        Lw = k.label("now2")
        k.e(f"""
        s_cmp_eq_u32 s75, 8
        s_cbranch_scc1 {Lw}
        v_lshrrev_b32 v{VT+4}, 1, v{VT+3}
        v_xor_b32 v{VT+4}, v{VT+4}, v{VT+2}
        v_lshlrev_b32 v{VT+4}, 5, v{VT+4}
        v_and_b32 v{VT+5}, 1, v{VT+3}
        v_lshl_add_u32 v{VT+4}, v{VT+5}, 4, v{VT+4}
        s_and_b32 s72, s68, 1
        s_lshl_b32 s72, s72, 7
        v_xor_b32 v{VT+4}, s72, v{VT+4}
        v_lshl_add_u32 v{VCPS}, v{VT+2}, 11, v{VT+4}
        v_lshlrev_b32 v{VT+4}, 8, v{VT+2}
        v_lshl_add_u32 v{VT+4}, v{VT+3}, 4, v{VT+4}
        v_add_u32 v{VCPD}, s72, v{VT+4}
        s_lshr_b32 s72, s68, 1
        s_lshl_b32 s67, s69, 14
        s_lshl_b32 s73, s72, 8
        s_add_u32 s67, s67, s73
        s_mul_i32 s72, s72, {F_*256}
        s_lshl_b32 s73, s69, 11
        s_add_u32 s73, s73, s72
        s_mov_b32 s55, 2048
        {Lw}:
        """)
    reloc(k, VCPD, VT+4)
    k.e(f"""
    s_cmp_lt_u32 s64, 768
    s_cselect_b32 s67, s67, s59
    s_cselect_b32 s73, s73, s59
    s_cmp_lg_u32 s70, 0
    s_cselect_b32 s66, s59, s66
    s_cselect_b32 s67, s59, s67
    s_cselect_b32 s73, s59, s73
    s_mov_b32 s74, s59
    s_mov_b32 s72, s59
    """)
    for r in range(4): k.e(f"v_mov_b32 v{VCSD+r}, 0")
    for r in range(8): k.e(f"v_accvgpr_write_b32 a{ACSL(0)+r}, 0")
    for r in list(range(72, 144)): k.e(f"v_mov_b32 v{r}, 0")
    for r in range(8): k.e(f"v_accvgpr_write_b32 a{AV(1,0)+r}, 0")
    k.e(f"v_mov_b32 v{VKA}, v{VL16}\nv_mov_b32 v{VVA}, v{VL16}")
    L = k.label("loop"); Lep = k.label("epi")
    if OPT.codepf: code_pf_addr(k, Lep, "L_k5_kernel_end", VPA, VL, 3)
    k.e("s_waitcnt vmcnt(8)\ns_barrier")
    stamp(k, 1)
    def kread(kb): return [f"ds_read_b128 {a(AK(kb%2,s_),4)}, v{VKA} offset:{(kb%4)*4096 + s_*1024}" for s_ in range(2)]
    def vread(kb): return [f"ds_read_b128 {a(AV(kb%2,s_),4)}, v{VVA} offset:{(kb%4)*4096 + 2048 + s_*1024}" for s_ in range(2)]
    for x in kread(0) + kread(1): k.e(x)
    Lskip = k.label("havemax")
    k.e(f"s_waitcnt lgkmcnt(0)\ns_cmp_lg_u32 s70, 0\ns_cbranch_scc1 {Lskip}")
    for q in range(2):
        k.e(f"v_mfma_f32_32x32x16_bf16 {v(VS(q),16)}, {a(AK(0,0),4)}, {a(AQ(q,0),4)}, 0")
        k.e(f"v_mfma_f32_32x32x16_bf16 {v(VS(q),16)}, {a(AK(0,1),4)}, {a(AQ(q,1),4)}, {v(VS(q),16)}")
    k.e("s_nop 9")
    def maxfin():
        k.e(f"v_mov_b32 v{VT+2}, v{VT}\nv_mov_b32 v{VT+3}, v{VT+1}\ns_nop 0")
        k.e(f"v_permlane32_swap_b32 v{VT}, v{VT+2}\nv_permlane32_swap_b32 v{VT+1}, v{VT+3}\ns_nop 0")
        k.e(f"v_max_f32 v{VT}, v{VT}, v{VT+2}\nv_max_f32 v{VT+1}, v{VT+1}, v{VT+3}\nv_mov_b32 v{VT+2}, -1.0")
        for q in range(2):
            for r in range(0, 16, 2): k.e(pk("mul", VC(q)+r, ('b', VT+q), ('b', VT+2)))
    for q in range(2):
        b = VS(q)
        k.e(f"v_max3_f32 v{VT+q}, v{b}, v{b+1}, v{b+2}\nv_max3_f32 v{VT+2}, v{b+3}, v{b+4}, v{b+5}")
        for r in range(6, 14, 4): k.e(f"v_max3_f32 v{VT+q}, v{VT+q}, v{b+r}, v{b+r+1}\nv_max3_f32 v{VT+2}, v{VT+2}, v{b+r+2}, v{b+r+3}")
        k.e(f"v_max3_f32 v{VT+q}, v{VT+q}, v{b+14}, v{b+15}\nv_max_f32 v{VT+q}, v{VT+q}, v{VT+2}")
        if q == 0: k.e("s_nop 3")
    maxfin()
    k.e(f"{Lskip}:\ns_nop 1")
    def qk(n):
        q = n % 2; kb = n // 2
        return [f"v_mfma_f32_32x32x16_bf16 {v(VS(q),16)}, {a(AK(kb%2,0),4)}, {a(AQ(q,0),4)}, {v(VC(q),16)}",
                f"v_mfma_f32_32x32x16_bf16 {v(VS(q),16)}, {a(AK(kb%2,1),4)}, {a(AQ(q,1),4)}, {v(VS(q),16)}"]
    def pv(n):
        q = n % 2; kb = n // 2
        return [f"v_mfma_f32_32x32x16_bf16 {v(VO(q),16)}, {a(AV(kb%2,s_),4)}, {v(VP(q)+4*s_,4)}, {v(VO(q),16)}" for s_ in range(2)] + \
               [f"v_smfmac_f32_32x32x32_bf16 {v(VLs(q),16)}, {v(VONE,4)}, {v(VP(q),8)}, v{VIDX}"]
    for x in qk(0): k.e(x)
    k.e("s_mov_b32 s62, 8\ns_waitcnt vmcnt(4)")
    if OPT.codepf: k.e(code_pf(VPF, VPA))
    k.e("s_nop 8")
    csm = lambda st: f"v_mfma_f32_16x16x32_bf16 {v(VCSD,4)}, {v(VSEL,4)}, {a(ACSL(st),4)}, {v(VCSD,4)}"
    cpst = lambda st, so: f"buffer_store_dwordx4 {a(ACP(st),4)}, v{VCPD}, s[40:43], s{so} offen {OPT.st}"
    body = []
    for st in range(2):
        for n in range(8):
            q = n % 2
            b = VS(q)
            ex = lambda r: f"v_exp_f32 v{b+r}, v{b+r}"
            cv = lambda r: f"v_cvt_pk_bf16_f32 v{VP(q)+r}, v{b+2*r}, v{b+2*r+1}"
            m = qk(n + 1) + pv(n - 1)
            seg = [[ex(0), ex(1), ex(2), ex(3)],
                   [ex(4), cv(0), ex(5), cv(1), ex(6)],
                   [ex(7), cv(2), ex(8), ex(9), cv(3)],
                   [ex(10), ex(11), cv(4), ex(12), cv(5)],
                   [ex(13), ex(14), ex(15), cv(6), cv(7)]]
            after = [[] for _ in range(5)]
            rd = kread((n + 3) // 2) if n % 2 == 1 else vread(n // 2)
            d = dma()
            csl = f"buffer_load_dwordx4 {a(ACSL(st),4)}, v{VCSA}, s[32:35], s66 offen"
            cpl = f"buffer_load_dwordx4 {a(ACP(st),4)}, v{VCPS}, s[36:39], s67 offen"
            plan = {
              0: {1: ["s_waitcnt vmcnt(11)"], 2: [adv[0]], 4: [adv[1]]},
              1: {2: [cpst(st, 74), cpl], 3: [adv[2]], 4: [adv[3]]},
              2: {1: [adv[4]], 2: [adv[5]], 4: [adv[6]]},
              3: {2: [csl], 3: [f"s_add_u32 s66, s66, {4*7168}"], 4: ["s_add_u32 s67, s67, 16384"]},
              4: {1: ["s_mov_b32 s74, s72"], 2: ["s_mov_b32 s72, s73"], 4: ["s_waitcnt vmcnt(10)"]},
              5: {0: ["s_barrier"], 2: d[:2], 3: ["s_add_u32 s73, s73, s55"], 4: [f"s_cmp_lt_u32 s56, {17*16384}"]},
              6: {1: ["s_cselect_b32 s66, s66, s59"], 2: ["s_cmp_lt_u32 s56, s54"], 4: ["s_cselect_b32 s67, s67, s59"]},
              7: {2: ["s_cselect_b32 s73, s73, s59"] + d[2:], 3: ["s_sub_u32 s62, s62, 1"] if st else [], 4: ["s_cmp_lg_u32 s62, 0"] if st else []},
            }[n]
            for j_, x in plan.items(): after[j_] += x
            after[0] += rd
            if n % 2 == 1: after[1].append("s_waitcnt lgkmcnt(2)")
            else: after[3].append("s_waitcnt lgkmcnt(2)")
            if n == 4: seg[2] = [f"v_add_u32 v{VKA}, 0x4000, v{VKA}", f"v_and_b32 v{VKA}, 0xffff, v{VKA}"] + seg[2]
            if n == 7: seg[2] = [f"v_add_u32 v{VVA}, 0x4000, v{VVA}", f"v_and_b32 v{VVA}, 0xffff, v{VVA}"] + seg[2]
            if n == 3: seg[1] = seg[1][:3] + [csm(st)] + seg[1][3:]
            for j_ in range(5):
                body.append(m[j_]); body += [x for x in after[j_] if x != "s_nop 0"]; body += seg[j_]
    if 'novm' in abl: body = [x for x in body if not x.startswith('buffer_')]
    if 'noside' in abl: body = [x.replace('vmcnt(10)', 'vmcnt(4)') for x in body if not (x.startswith('buffer_') and 'lds' not in x)]
    if 'nost' in abl: body = [x.replace('vmcnt(10)', 'vmcnt(8)') for x in body if not x.startswith('buffer_store')]
    if 'nowait' in abl: body = [x for x in body if 'vmcnt' not in x]
    body = auto_lgkm(body, kread(1))
    k.e(f".p2align 6\n{L}:")
    for x in body: k.e(x)
    k.e(f"s_cbranch_scc1 {L}\n{Lep}:")
    k.e("s_nop 1")
    for x in pv(7): k.e(x)
    k.e("s_waitcnt vmcnt(11) lgkmcnt(0)")
    stamp(k, 2)
    Lno = k.label("nofb")
    k.e(f"s_cmp_lg_u32 s70, 0\ns_cbranch_scc1 {Lno}")
    k.e(csm(0))
    srd(k, 28, 22, 23, 2*F_*4, WS_CS)
    k.e(f"""
    v_and_b32 v{VT+8}, 15, v{VL}
    v_lshrrev_b32 v{VT+1}, 4, v{VL}
    v_lshlrev_b32 v{VT+8}, 5, v{VT+8}
    v_lshl_add_u32 v{VT+8}, v{VT+1}, 4, v{VT+8}
    v_lshrrev_b32 v{VT+1}, 1, v{VT+1}
    v_lshl_add_u32 v{VT+8}, v{VT+1}, 29, v{VT+8}
    v_add_f32 v{VT}, v{VLs(0)}, v{VLs(0)+1}
    v_add_f32 v{VT+1}, v{VLs(1)}, v{VLs(1)+1}
    v_add_f32 v{VT}, v{VT}, v{VT+1}
    v_mov_b32 v{VT+2}, {fbits(2.0**40 if not force_fb else 0.5)}
    v_cmp_nlt_f32 vcc, v{VT}, v{VT+2}
    s_lshl_b32 s60, s3, 2
    s_add_u32 s60, s60, 65536
    v_mov_b32 v{VT+2}, s60
    s_cmp_lg_u64 vcc, 0
    s_cselect_b32 s61, 1, 0
    v_mov_b32 v{VT+3}, s61
    ds_write_b32 v{VT+2}, v{VT+3}
    v_mov_b32 v{VT+2}, 65536
    """)
    for r in range(4): k.e(f"buffer_atomic_add_f32 v{VCSD+r}, v{VT+8}, s[28:31], s71 offen offset:{4*r}")
    k.e(f"""
    s_waitcnt lgkmcnt(0)
    s_barrier
    ds_read_b128 {v(VT+4,4)}, v{VT+2}
    s_waitcnt lgkmcnt(0)
    v_or_b32 v{VT+4}, v{VT+4}, v{VT+5}
    v_or3_b32 v{VT+4}, v{VT+4}, v{VT+6}, v{VT+7}
    s_nop 0
    v_readfirstlane_b32 s61, v{VT+4}
    s_nop 3
    s_cmp_eq_u32 s61, 0
    s_cbranch_scc1 {Lno}
    """)
    Lm = k.label("maxloop")
    k.e(f"""
    s_mov_b32 s70, 1
    s_lshl_b32 s60, s46, 18
    s_mov_b32 s61, 64
    v_mov_b32 v{VT}, 0xff800000
    v_mov_b32 v{VT+1}, 0xff800000
    {Lm}:
    buffer_load_dwordx4 {a(AK(0,0),4)}, v{VL16}, s[24:27], s60 offen
    buffer_load_dwordx4 {a(AK(0,1),4)}, v{VL16}, s[24:27], s60 offen offset:1024
    s_waitcnt vmcnt(0)
    """)
    for q in range(2):
        k.e(f"v_mfma_f32_32x32x16_bf16 {v(VS(q),16)}, {a(AK(0,0),4)}, {a(AQ(q,0),4)}, 0")
        k.e(f"v_mfma_f32_32x32x16_bf16 {v(VS(q),16)}, {a(AK(0,1),4)}, {a(AQ(q,1),4)}, {v(VS(q),16)}")
    k.e("s_nop 15")
    for q in range(2):
        for r in range(0, 16, 2): k.e(f"v_max3_f32 v{VT+q}, v{VT+q}, v{VS(q)+r}, v{VS(q)+r+1}")
    k.e(f"s_add_u32 s60, s60, 4096\ns_sub_u32 s61, s61, 1\ns_cmp_lg_u32 s61, 0\ns_cbranch_scc1 {Lm}")
    maxfin()
    k.e(f"s_branch {Lre}\n{Lno}:")
    srd(k, 28, 22, 23, PLANE + S_*D_*2, WS_O)
    k.e(f"""
    v_and_b32 v{VT}, 15, v{VL}
    v_bfe_u32 v{VT+1}, v{VL}, 4, 1
    v_lshrrev_b32 v{VT+2}, 5, v{VL}
    v_lshlrev_b32 v{VT}, 4, v{VT}
    v_lshl_add_u32 v{VT}, v{VT+1}, 15, v{VT}
    v_lshl_add_u32 v{VT}, v{VT+2}, 8, v{VT}
    s_lshl_b32 s60, s48, 16
    s_lshl_b32 s61, s46, 10
    s_add_u32 s60, s60, s61
    s_add_u32 s61, s60, 65536
    """)
    reloc(k, VT, VT+1)
    k.e(f"v_add_f32 v{VT+4}, v{VLs(0)}, v{VLs(0)+1}\nv_add_f32 v{VT+5}, v{VLs(1)}, v{VLs(1)+1}\nv_rcp_f32 v{VT+4}, v{VT+4}\nv_rcp_f32 v{VT+5}, v{VT+5}\ns_nop 0")
    for q in range(2):
        b = VO(q)
        for a_ in range(2):
            for r in range(0, 8, 2): k.e(pk("mul", b+8*a_+r, b+8*a_+r, ('b', VT+4+q)))
            for r in range(4): k.e(f"v_cvt_pk_bf16_f32 v{b+8*a_+r}, v{b+8*a_+2*r}, v{b+8*a_+2*r+1}")
            k.e(f"buffer_store_dwordx4 {v(b+8*a_,4)}, v{VT}, s[28:31], s{60+q} offen offset:{a_*512} {OPT.st}")
    finish(k, 2)
    return k

def gen_small(which, D=3, TB=2, abl=''):
    k3 = which == 3
    K = D_ if k3 else F_
    NS = K // 128
    U = 4; STG = 16384; NH = 4
    k = KB(f"k{which}_kernel", 112, 128, U * STG)
    ACC = lambda j, i: (j * 2 + i) * 4
    VW = lambda g, s_: 32 + (g % 4) * 8 + s_ * 4
    VD = 64
    VX = 66
    VR = 68
    VRA = 72
    VPF = 73; VPA = 74
    VL = 78; VT = 80
    VRES = 88
    AX = lambda st, i, s_: st * 32 + (i * 4 + s_) * 4
    prologue(k)
    k.e(f"v_mov_b32 v{VL}, v0")
    tile_map(k, TB, 4 - TB, 46, 47)
    k.e(f"""
    s_lshl_b32 s48, s46, 3
    s_lshl_b32 s49, s3, 1
    s_add_u32 s48, s48, s49
    s_mul_i32 s49, s48, {K*32}
    v_lshlrev_b32 v{VT}, 4, v{VL}
    s_lshl_b32 s53, s3, 12
    s_mul_i32 s50, s47, {K*128}
    s_add_u32 s50, s50, s53
    s_lshl_b32 s51, s47, 7
    s_mov_b32 s56, 0
    s_mov_b32 s57, 0
    """)
    reloc(k, VT, VT+1)
    k.e(f"""
    v_add_u32 v{VX}, s49, v{VT}
    v_add_u32 v{VX+1}, {K*32}, v{VX}
    v_add_u32 v{VD}, s50, v{VT}
    v_and_b32 v{VT}, 31, v{VL}
    v_lshrrev_b32 v{VT}, 2, v{VT}        ; 4*(g%2)+i
    v_lshrrev_b32 v{VT+1}, 5, v{VL}
    v_lshl_add_u32 v{VT+1}, v{VT+1}, 4, v{VT}   ; row
    v_lshrrev_b32 v{VT}, 1, v{VT}        ; sw
    v_lshlrev_b32 v{VT}, 5, v{VT}
    v_lshl_add_u32 v{VT}, v{VT+1}, 7, v{VT}
    v_and_b32 v{VT+1}, 3, v{VL}
    v_lshl_add_u32 v{VR}, v{VT+1}, 3, v{VT}
    """)
    for fb in range(1, 4): k.e(f"v_xor_b32 v{VR+fb}, {fb*32}, v{VR}")
    for r in range(32): k.e(f"v_mov_b32 v{r}, 0")
    k.e(f"v_and_b32 v{VT}, 15, v{VL}\nv_lshrrev_b32 v{VT+1}, 4, v{VL}")
    L = k.label("loop"); Lt = k.label("tail")
    if OPT.codepf: code_pf_addr(k, Lt, "L_k5_kernel_end", VPA, VL, 3)
    if k3:
        k.e(f"""
        v_lshlrev_b32 v{VRA}, 11, v{VT}
        v_lshl_add_u32 v{VRA}, v{VT+1}, 3, v{VRA}
        s_lshl_b32 s60, s48, 15
        s_add_u32 s60, s60, s51
        s_add_u32 s61, s60, 32768
        """)
        res = [f"buffer_load_dwordx2 {v(VRES+i*8+fb*2,2)}, v{VRA}, s[32:35], s{60+i} offen offset:{fb*32}" for i in range(2) for fb in range(4)]
    else:
        k.e(f"""
        v_lshlrev_b32 v{VRA}, 4, v{VL}
        s_lshl_b32 s60, s48, 15
        s_lshl_b32 s61, s47, 11
        s_add_u32 s60, s60, s61
        s_add_u32 s61, s60, 32768
        """)
        res = [f"buffer_load_dwordx4 {v(VRES+i*8+p*4,4)}, v{VRA}, s[32:35], s{60+i} offen offset:{p*1024}" for i in range(2) for p in range(2)]
    k.e("s_waitcnt lgkmcnt(0)")
    srd(k, 24, 22, 23, PLANE + K*D_*2, WS_WOT if k3 else WS_W2T)
    srd(k, 28, 22, 23, PLANE + S_*K*2, WS_O if k3 else WS_G)
    def vmem_ops(slot):
        ops = []
        for q in range(4):
            o = [f"buffer_load_dwordx4 v{VD}, s[24:27], s56 offen offset:{q*1024} lds"]
            if q == 0: o = [f"s_add_u32 m0, s53, {slot*STG}"] + o
            ops.append(o)
            for i in range(2):
                ops.append([f"buffer_load_dwordx4 {a(AX(slot,i,q),4)}, v{VX+i}, s[28:31], s57 offen offset:{q*1024}"])
        return ops
    adv = ["s_add_u32 s56, s56, 16384", "s_add_u32 s57, s57, 4096"]
    for st in range(2):
        for o in vmem_ops(st): k.e("\n".join(with_nop(o)))
        k.e("\n".join(adv))
        if st == 0:
            if k3: srd(k, 32, 4, 5, S_*D_*2)
            else: srd(k, 32, 22, 23, S_*D_*2, WS_H)
    def wreads(slot, g):
        fb, sp = g % 4, g // 4
        return [f"ds_read_b64_tr_b16 {v(VW(g,s_)+2*rd,2)}, v{VR+fb} offset:{slot*STG + (2*sp+s_)*4096 + rd*1024}" for s_ in range(2) for rd in range(2)]
    def stage(st, left, loopend=False):
        main = []; side = {}
        vm_a = vmem_ops((st + 2) % U)[NH:] if left >= 2 else []
        vm_b = vmem_ops((st + 3) % U)[:NH] if left >= 3 else []
        nwait = 12 if left >= 2 else 0
        if left == 2: vm_b = [[x] for x in res]
        if left == 1: nwait = len(res)
        for g in range(8):
            fb, sp = g % 4, g // 4
            for i in range(2):
                for s_ in range(2):
                    main.append(f"v_mfma_f32_16x16x32_bf16 {v(ACC(fb,i),4)}, {v(VW(g,s_),4)}, {a(AX(st,i,2*sp+s_),4)}, {v(ACC(fb,i),4)}")
        def place(o, pos):
            if len(o) > 1: side.setdefault(pos - 1, []).append(o[0])
            side.setdefault(pos, []).append(o[-1])
        nb = 4 * (8 - D)
        for q, o in enumerate(vm_a): place(o, q * (nb - 2) // len(vm_a))
        if left >= 3:
            for q, x in enumerate(adv): side.setdefault(nb - 2, []).append(x)
        if left >= 1: side.setdefault(nb - 1, []).extend([f"s_waitcnt vmcnt({nwait})", "s_barrier"])
        for q, o in enumerate(vm_b): place(o, nb + 1 + q * (4 * D - 2) // len(vm_b))
        heads = []
        for g in range(8):
            gg = g + D
            if gg >= 8 and left == 0: continue
            rd = wreads(st if gg < 8 else (st + 1) % U, gg % 8)
            if gg >= 8: heads += rd
            for q, x in enumerate(rd): side.setdefault(4 * g + q, []).append(x)
        if loopend:
            side.setdefault(29, []).append("s_sub_u32 s62, s62, 1")
            side.setdefault(30, []).append("s_cmp_lg_u32 s62, 0")
        return flatten(main, side), heads
    body = []
    for st in range(U):
        b_, heads = stage(st, 99, st == U - 1); body += b_
    tail = []
    for st in range(U): tail += stage(st, U - 1 - st)[0]
    if 'nomfma' in abl:
        body = [x if 'mfma' not in x else 's_nop 0' for x in body]
    body = auto_lgkm(body, heads)
    tail = auto_lgkm(tail, heads, cyclic=False)
    k.e(f"s_waitcnt vmcnt(12)\ns_barrier")
    stamp(k, 1)
    for x in heads: k.e(x)
    if OPT.codepf: k.e(code_pf(VPF, VPA))
    for o in vmem_ops(2)[:NH]: k.e("\n".join(with_nop(o)))
    k.e(f"s_mov_b32 s62, {NS//U - 1}")
    k.e(f".p2align 6\n{L}:")
    for x in body: k.e(x)
    k.e(f"s_cbranch_scc1 {L}\n{Lt}:")
    for x in tail: k.e(x)
    stamp(k, 2)
    fl = OPT.st
    if k3:
        srd(k, 36, 22, 23, S_*D_*2, WS_H)
        srd(k, 40, 22, 23, S_*8, WS_ST)
        k.e(f"""
        v_lshlrev_b32 v{VT+2}, 4, v{VL}
        s_lshl_b32 s60, s48, 15
        s_lshl_b32 s61, s47, 11
        s_add_u32 s60, s60, s61
        s_add_u32 s61, s60, 32768
        """)
    else:
        srd(k, 36, 18, 19, S_*D_*2)
        k.e(f"""
        v_and_b32 v{VT+2}, 1, v{VT+1}
        v_lshrrev_b32 v{VT+3}, 1, v{VT+1}
        v_lshlrev_b32 v{VT+2}, 5, v{VT+2}
        v_lshl_add_u32 v{VT+2}, v{VT+3}, 4, v{VT+2}
        v_lshl_add_u32 v{VT+2}, v{VT}, 11, v{VT+2}
        s_lshl_b32 s60, s48, 15
        s_add_u32 s60, s60, s51
        s_add_u32 s61, s60, 32768
        """)
    k.e("s_waitcnt vmcnt(0)")
    for i in range(2):
        for p in range(2):
            for fb in (2*p, 2*p+1):
                o = ACC(fb, i); r = VRES + i*8 + fb*2
                k.e(f"""
                v_lshlrev_b32 v{VT+4}, 16, v{r}
                v_and_b32 v{VT+5}, 0xffff0000, v{r}
                v_lshlrev_b32 v{VT+6}, 16, v{r+1}
                v_and_b32 v{VT+7}, 0xffff0000, v{r+1}
                {pk("add", o, o, VT+4)}
                {pk("add", o+2, o+2, VT+6)}
                v_cvt_pk_bf16_f32 v{r}, v{o}, v{o+1}
                v_cvt_pk_bf16_f32 v{r+1}, v{o+2}, v{o+3}
                """)
            r = VRES + i*8 + p*4
            if k3:
                k.e(f"buffer_store_dwordx4 {v(r,4)}, v{VT+2}, s[36:39], s{60+i} offen offset:{p*1024} {fl}")
            else:
                k.e(f"s_nop 1\nv_permlane16_swap_b32 v{r}, v{r+2}\nv_permlane16_swap_b32 v{r+1}, v{r+3}")
                k.e(f"buffer_store_dwordx4 {v(r,4)}, v{VT+2}, s[36:39], s{60+i} offen offset:{p*64} {fl}")
    if k3:
        for i in range(2):
            regs = [ACC(fb, i) + r for fb in range(4) for r in (0, 2)]
            k.e(pk("add", 36, regs[0], regs[1]) + "\n" + pk("mul", 38, regs[0], regs[0]) + "\n" + pk("fma", 38, regs[1], regs[1], 38))
            for r in regs[2:]: k.e(pk("add", 36, 36, r) + "\n" + pk("fma", 38, r, r, 38))
            k.e(f"v_add_f32 v{32+2*i}, v36, v37\nv_add_f32 v{33+2*i}, v38, v39")
        k.e(f"""
        v_lshrrev_b32 v{VT+3}, 1, v{VT+1}
        v_lshl_add_u32 v{VT+3}, v{VT+3}, 4, v{VT}
        v_permlane32_swap_b32 v32, v34
        v_permlane32_swap_b32 v33, v35
        v_and_b32 v{VT+4}, 1, v{VT+1}
        v_add_f32 v32, v32, v34
        v_add_f32 v33, v33, v35
        v_lshlrev_b32 v{VT+3}, 3, v{VT+3}
        v_lshl_add_u32 v{VT+3}, v{VT+4}, 2, v{VT+3}
        v_permlane16_swap_b32 v32, v33
        s_lshl_b32 s60, s48, 7
        v_add_f32 v32, v32, v33
        buffer_atomic_add_f32 v32, v{VT+3}, s[40:43], s60 offen
        """)
    finish(k, which)
    return k

def gen_k4(D=3, abl=''):
    STG = 28672
    k = KB("k4_kernel", 256, 184, 4 * STG + 4096)
    ACC = lambda j, i: (j * 4 + i) * 4
    VD = 224
    VPF = 231
    VX = 232
    VR = 236
    VC1 = 238; VC2 = 242
    VL = 246; VT = 248
    AX = lambda st, i, s_: st * 32 + (i * 2 + s_) * 4
    AW = lambda slot, s_: 128 + slot * 8 + s_ * 4
    prologue(k)
    k.e(f"v_mov_b32 v{VL}, v0")
    tile_map(k, 2, 1, 46, 47)
    k.e(f"""
    s_lshl_b32 s48, s46, 4
    s_lshl_b32 s49, s3, 2
    s_add_u32 s48, s48, s49
    s_lshl_b32 s49, s48, 15
    v_lshlrev_b32 v{VT}, 4, v{VL}
    v_add_u32 v{VX}, s49, v{VT}
    s_and_b32 s50, s3, 1
    s_mul_i32 s50, s50, 448
    s_mul_i32 s51, s47, 224
    """)
    for i in range(1, 4): k.e(f"v_add_u32 v{VX+i}, {i*32768}, v{VX}")
    k.e(f"""
    v_cmp_lt_u32 vcc, 27, v{VL}
    v_mov_b32 v0, {F_*4 - 28*16}
    s_mul_i32 s60, s47, 448
    v_cndmask_b32 v0, 0, v0, vcc
    v_add_u32 v0, v0, v{VT}
    v_and_b32 v1, 15, v{VL}
    v_lshlrev_b32 v1, 3, v1
    s_lshl_b32 s61, s48, 7
    s_lshl_b32 s55, s3, 10
    s_add_u32 s55, s55, {4*STG}
    """)
    for i in range(7):
        k.e(f"v_add_u32 v{VT}, s50, v{VL}")
        if i: k.e(f"v_add_u32 v{VT}, {64*i}, v{VT}")
        udiv_const(k, VT+1, VT, 14)
        k.e(f"""
        v_mul_u32_u24 v{VT+1}, {7168 - 224}, v{VT+1}
        v_lshl_add_u32 v{VT+1}, v{VT}, 4, v{VT+1}
        v_add_u32 v{VD+i}, s51, v{VT+1}
        """)
        if i % 4: k.e(f"v_subrev_u32 v{VD+i}, {(i%4)*1024}, v{VD+i}")
    k.e(f"""
    s_mul_i32 s53, s3, 7168
    s_mov_b32 s56, 0
    s_mov_b32 s57, 0
    s_mov_b32 s58, 0
    s_mov_b32 s59, {OOB}
    s_mov_b32 m0, s55
    s_waitcnt lgkmcnt(0)
    """)
    srd(k, 40, 22, 23, 2*F_*4, WS_CS)
    srd(k, 36, 22, 23, S_*8, WS_ST)
    k.e("buffer_load_dwordx4 v0, s[40:43], s60 offen lds")
    for i in range(4): k.e(f"buffer_load_dwordx2 v[{VT+2*i}:{VT+2*i+1}], v1, s[36:39], s61 offen offset:{i*128}")
    k.e(f"""
    s_cmp_lt_u32 s3, 2
    s_cselect_b32 s24, s12, s14
    s_cselect_b32 s25, s13, s15
    s_mov_b32 s26, {D_*F_*2}
    s_mov_b32 s27, 0x20000
    """)
    srd(k, 28, 22, 23, S_*D_*2, WS_H)
    def parts(slot):
        d = []
        for i in range(7):
            o = [f"buffer_load_dwordx4 v{VD+i}, s[24:27], s56 offen offset:{(i%4)*1024} lds"]
            if i % 4 == 0: o = [f"s_add_u32 m0, s53, {slot*STG + i*1024}"] + o
            d.append(o)
        xs = [[f"buffer_load_dwordx4 {a(AX(slot, i, s_), 4)}, v{VX+i}, s[28:31], s57 offen offset:{s_*1024}"] for i in range(4) for s_ in range(2)]
        return d[:4] + xs[:4], d[4:] + xs[4:]
    adv = ["s_add_u32 s56, s56, %d" % (64*7168), "s_add_u32 s58, s58, 2048", "s_cmp_lt_u32 s58, 32768", f"s_cselect_b32 s57, s58, s59"]
    p1, p2 = parts(0)
    for o in p1 + p2: k.e("\n".join(with_nop(o)))
    k.e("\n".join(adv))
    L = k.label("loop"); Lep = k.label("epi")
    k.e(f"""
    v_lshrrev_b32 v4, 2, v{VL}
    v_mul_u32_u24 v4, 224, v4
    v_and_b32 v5, 3, v{VL}
    v_lshl_add_u32 v{VR}, v5, 3, v4
    v_add_u32 v{VR+1}, {2*STG}, v{VR}
    v_lshrrev_b32 v4, 4, v{VL}
    v_lshl_add_u32 v4, v4, 4, s55
    s_waitcnt vmcnt(15)
    """)
    for j in range(14): k.e(f"ds_read_b128 {v(ACC(j,0),4)}, v4 offset:{j*64}")
    init = []
    for i in range(4):
        b = VT + 2 * i
        init += f"""v_mul_f32 v{b}, {fbits(-1.0/D_)}, v{b}
        v_mul_f32 v{b+1}, {fbits(1.0/D_)}, v{b+1}
        v_fma_f32 v{b+1}, -v{b}, v{b}, v{b+1}
        v_max_f32 v{b+1}, 0, v{b+1}
        v_add_f32 v{VC2+i}, {fbits(1e-5)}, v{b+1}
        v_rsq_f32 v{b+1}, v{VC2+i}""".split("\n")
    for i in range(4): init.append(f"v_mul_f32 v{VC1+i}, {fbits(-LOG2E)}, v{VT+2*i+1}")
    init.append("s_waitcnt lgkmcnt(0)")
    for j in range(14):
        for i in (3, 2, 1, 0):
            for r in (0, 2): init.append(pk("mul", ACC(j,i)+r, ACC(j,0)+r, ('b', VT+2*i)))
    init = [x.strip() for x in init]
    for x in sprinkle(init, [with_nop(o) for o in parts(1)[0]]): k.e(x)
    if OPT.codepf: code_pf_addr(k, Lep, "L_k5_kernel_end", VT, VL, 3)
    def reads(stage_slot, j):
        base = VR + (stage_slot // 2)
        off0 = (stage_slot % 2) * STG + (j // 7) * 14336 + (j % 7) * 32
        return [f"ds_read_b64_tr_b16 {a(AW(j % 7, s_) + 2*rd, 2)}, v{base} offset:{off0 + (32*s_ + 16*rd)*224}" for s_ in range(2) for rd in range(2)]
    body = []; heads = []
    for st in range(4):
        main = []; side = {}
        cur = parts((st + 1) % 4)[1][D:]; nxt = parts((st + 2) % 4)[0]; post = parts((st + 2) % 4)[1][:D]
        for j in range(14):
            for i in range(4):
                for s_ in range(2):
                    main.append(f"v_mfma_f32_16x16x32_bf16 {v(ACC(j,i),4)}, {a(AW(j%7,s_),4)}, {a(AX(st,i,s_),4)}, {v(ACC(j,i),4)}")
        def place(o, pos):
            if len(o) > 1: side.setdefault(pos - 1, []).append(o[0])
            side.setdefault(pos, []).append(o[-1])
        nb = 8 * (14 - D)
        ops = cur + nxt
        pos = [5 + q * (nb - 6) // len(ops) for q in range(len(ops))]
        for q, o in enumerate(ops): place(o, pos[q])
        for q, x in enumerate(adv): side.setdefault(pos[len(cur) - 1] + 1 + q, []).append(x)
        assert pos[len(cur) - 1] + 4 < pos[len(cur)] - 1
        side.setdefault(nb - 1, []).extend(["s_waitcnt vmcnt(8)", "s_barrier"])
        for q, o in enumerate(post): place(o, nb + 5 + 8 * q)
        for j in range(14):
            jj = j + D
            rd = reads(st if jj < 14 else (st + 1) % 4, jj % 14)
            if jj >= 14 and st == 3: heads += rd
            for q, x in enumerate(rd): side.setdefault(8 * j + q, []).append(x)
        if st == 3:
            side.setdefault(109, []).append("s_sub_u32 s62, s62, 1")
            side.setdefault(110, []).append("s_cmp_lg_u32 s62, 0")
        body += flatten(main, side)
    body = auto_lgkm(body, heads)
    k.e("s_waitcnt vmcnt(8)\ns_barrier")
    stamp(k, 1)
    for x in heads: k.e(x)
    if OPT.codepf: k.e(code_pf(VPF, VT))
    for o in parts(1)[1][:D]: k.e("\n".join(with_nop(o)))
    k.e("s_mov_b32 s62, 4")
    k.e(f".p2align 6\n{L}:")
    for x in body: k.e(x)
    k.e(f"s_cbranch_scc1 {L}\n{Lep}:")
    stamp(k, 2)
    srd(k, 32, 22, 23, PLANE + S_*F_*2, WS_G)
    k.e(f"""
    v_and_b32 v{VT}, 31, v{VL}
    v_lshlrev_b32 v{VT}, 4, v{VT}
    """)
    reloc(k, VT, VT+1)
    k.e(f"""
    v_lshrrev_b32 v{VT+1}, 5, v{VL}
    v_mul_u32_u24 v{VT+1}, {224*512}, v{VT+1}
    v_add_u32 v{VT}, v{VT}, v{VT+1}
    s_mul_i32 s60, s48, {224*512}
    s_mul_i32 s61, s47, {7*512}
    s_add_u32 s60, s60, s61
    s_add_u32 s61, s60, {2*224*512}
    """)
    for j in range(7):
        for p in range(2):
            ii = (2*p, 2*p+1)
            G = lambda i: ACC(j, i); Uu = lambda i: ACC(j + 7, i)
            for i in ii:
                for r in (0, 2): k.e(pk("mul", Uu(i)+r, Uu(i)+r, G(i)+r))
                for r in (0, 2): k.e(pk("mul", G(i)+r, G(i)+r, ('b', VC1+i)))
            for i in ii:
                for r in range(4): k.e(f"v_exp_f32 v{G(i)+r}, v{G(i)+r}")
            for i in ii:
                for r in (0, 2): k.e(pk("fma", G(i)+r, G(i)+r, ('b', VC2+i), ('b', VC2+i)))
            for i in ii:
                for r in range(4): k.e(f"v_rcp_f32 v{G(i)+r}, v{G(i)+r}")
            for i in ii:
                for r in (0, 2): k.e(pk("mul", Uu(i)+r, Uu(i)+r, G(i)+r))
            o = G(2*p)
            k.e(f"v_cvt_pk_bf16_f32 v{o}, v{Uu(2*p)}, v{Uu(2*p)+1}\nv_cvt_pk_bf16_f32 v{o+2}, v{Uu(2*p+1)}, v{Uu(2*p+1)+1}")
            k.e(f"v_cvt_pk_bf16_f32 v{o+1}, v{Uu(2*p)+2}, v{Uu(2*p)+3}\nv_cvt_pk_bf16_f32 v{o+3}, v{Uu(2*p+1)+2}, v{Uu(2*p+1)+3}")
            k.e(f"v_permlane32_swap_b32 v{o}, v{o+2}\ns_nop 0\nv_permlane32_swap_b32 v{o+1}, v{o+3}")
            k.e(f"buffer_store_dwordx4 {v(o,4)}, v{VT}, s[32:35], s{60+p} offen offset:{j*512} {OPT.st}")
    finish(k, 4)
    return k

def all_kernels(**kw):
    g = lambda n: kw.get(n, {})
    return [gen_k0(**g('k0')), gen_k1(**g('k1')), gen_k2(**g('k2')), gen_small(3, **g('k3')), gen_k4(**g('k4')), gen_small(5, **g('k5'))]

if __name__ == "__main__":
    hdr = "".join(l for l in open("sequential_preLN__softmax_full_mha__glu_gated_swiglu__prompt.s.ref") if l.startswith(";") and "@launch" not in l and "Override" not in l and "grid=ceil" not in l)
    kw = eval("dict(" + (sys.argv[1] if len(sys.argv) > 1 else "") + ")")
    for a_, b_ in kw.pop("opt", {}).items(): setattr(OPT, a_, b_)
    print(build_file(all_kernels(**kw), hdr))
```

```python
import sys, struct
from asmlib import *

S_, D_, F_ = 2048, 1024, 3584
MB = 1 << 20
PLANE = 16 * MB
WS_XN = 0; WS_Q = 4*MB; WS_KV = 8*MB; WS_H = 16*MB
WS_ST = 20*MB; WS_CS = WS_ST + 0x4000; WS_FLAG = WS_ST + 0x10000; ZERO_BYTES = 0x40000
WS_STAMP = 21*MB
WS_O = 32*MB; WS_WOT = 36*MB; WS_W2T = 38*MB
WS_G = 64*MB
WS_EX = 96*MB
RELOC = PLANE - 384
LOG2E = 1.4426950408889634
OOB = 0x40000000
def fbits(x): return hex(struct.unpack("<I", struct.pack("<f", x))[0])

class Opt:
    diag = False
    st = "sc1"
    reloc = True
    codepf = True
OPT = Opt()

def prologue(k, nwg=256):
    k.e(f"s_cmp_ge_u32 s2, {nwg}\ns_cbranch_scc1 L_{k.name}_end")
    if OPT.diag: k.e("s_memrealtime s[80:81]\ns_memtime s[82:83]")
    k.e("""
    s_load_dwordx16 s[4:19], s[0:1], 0
    s_load_dwordx4 s[20:23], s[0:1], 64
    v_lshrrev_b32 v1, 6, v0
    v_and_b32 v0, 63, v0
    v_readfirstlane_b32 s3, v1
    s_and_b32 s44, s2, 7
    s_lshr_b32 s45, s2, 3
    """)
def stamp(k, i):
    if OPT.diag:
        k.e(f"s_memrealtime s[{80+4*i}:{81+4*i}]\ns_memtime s[{82+4*i}:{83+4*i}]\ns_waitcnt lgkmcnt(0)")
def finish(k, kid):
    if OPT.diag:
        k.e("s_waitcnt vmcnt(0)")
        stamp(k, 3)
        srd(k, 96, 22, 23, MB, WS_STAMP)
        k.e(f"s_lshl_b32 s100, s2, 3\ns_add_u32 s100, s100, s3\ns_add_u32 s100, s100, {kid*2048}\ns_lshl_b32 s100, s100, 5")
        for i in range(4):
            k.e(f"v_mov_b32 v{2*i}, s{80+4*i}\nv_mov_b32 v{2*i+1}, s{82+4*i}")
        k.e("v_mov_b32 v8, s100\nbuffer_store_dwordx4 v[0:3], v8, s[96:99], 0 offen\nbuffer_store_dwordx4 v[4:7], v8, s[96:99], 0 offen offset:16")
    k.e(f"L_{k.name}_end:\ns_endpgm")

def udiv_const(k, dst, src, c):
    sh = 20
    m = (1 << sh) // c + 1
    for x in range(0, 4096): assert (x * m) >> sh == x // c
    k.e(f"v_mul_u32_u24 v{dst}, {m}, v{src}\nv_lshrrev_b32 v{dst}, {sh}, v{dst}")

def tile_map(k, nb_m, nb_x, sm, sn):
    k.e(f"""
    s_and_b32 s{sm}, s44, {(1<<nb_x)-1}
    s_lshl_b32 s{sm}, s{sm}, {nb_m}
    s_and_b32 s{sn}, s45, {(1<<nb_m)-1}
    s_add_u32 s{sm}, s{sm}, s{sn}
    s_lshr_b32 s{sn}, s44, {nb_x}
    s_lshl_b32 s{sn}, s{sn}, {5-nb_m}
    s_lshr_b32 s79, s45, {nb_m}
    s_add_u32 s{sn}, s{sn}, s79
    """)

def reloc(k, addr, tmp):
    if not OPT.reloc: return
    k.e(f"""
    v_bfe_u32 v{tmp}, v{addr}, 7, 2
    v_add_u32 v{tmp}, 1, v{tmp}
    v_lshrrev_b32 v{tmp}, 2, v{tmp}
    v_mul_u32_u24 v{tmp}, {RELOC}, v{tmp}
    v_add_u32 v{addr}, v{addr}, v{tmp}
    """)

def code_pf_addr(k, first, last, vaddr, lane, chunk_s):
    L = k.label("pc")
    k.e(f"""
    s_getpc_b64 s[76:77]
    {L}:
    s_add_u32 s76, s76, {first}-{L}
    s_addc_u32 s77, s77, ({first}-{L})>>32
    s_lshl_b32 s78, s45, 2
    s_add_u32 s78, s78, s3
    s_lshl_b32 s78, s78, 9
    v_and_b32 v{vaddr}, 3, v{lane}
    v_lshl_add_u32 v{vaddr}, v{vaddr}, 7, s78
    v_min_u32 v{vaddr}, {last}-{first}, v{vaddr}
    v_mov_b32 v{vaddr+1}, s77
    v_add_co_u32 v{vaddr}, vcc, s76, v{vaddr}
    s_nop 1
    v_addc_co_u32 v{vaddr+1}, vcc, 0, v{vaddr+1}, vcc
    """)
def code_pf(vdst, vaddr):
    return f"global_load_dword v{vdst}, v[{vaddr}:{vaddr+1}], off"

def pk(op, d, *srcs):
    ops = []; lo = []; hi = []; neg = []
    for s_ in srcs:
        if isinstance(s_, tuple):
            r = s_[1]; ops.append(v(r & ~1, 2)); lo.append(r & 1); hi.append(r & 1); neg.append(int(s_[0] == 'nb'))
        else:
            assert s_ % 2 == 0
            ops.append(v(s_, 2)); lo.append(0); hi.append(1); neg.append(0)
    f = lambda x: "[" + ",".join(map(str, x)) + "]"
    t = f"v_pk_{op}_f32 {v(d,2)}, " + ", ".join(ops) + f" op_sel:{f(lo)} op_sel_hi:{f(hi)}"
    if any(neg): t += f" neg_lo:{f(neg)} neg_hi:{f(neg)}"
    return t

def sprinkle(base, extra):
    out = []; n = len(base); m = len(extra); q = 0
    for i, b in enumerate(base):
        out.append(b)
        while q < m and (q + 1) * n <= (i + 1) * (m + 1):
            out += extra[q]; q += 1
    for x in extra[q:]: out += x
    return out
def with_nop(op):
    return [op[0], "s_nop 0", op[1]] if len(op) > 1 else list(op)

def allreduce64(k, regs, tmp):
    for sh in (8, 4, 2, 1):
        k.e("s_nop 1")
        for r in regs: k.e(f"v_add_f32_dpp v{r}, v{r}, v{r} row_ror:{sh} row_mask:0xf bank_mask:0xf")
    for sw in ("v_permlane16_swap_b32", "v_permlane32_swap_b32"):
        for q, r in enumerate(regs): k.e(f"v_mov_b32 v{tmp+q}, v{r}")
        k.e("s_nop 1")
        for q, r in enumerate(regs): k.e(f"{sw} v{r}, v{tmp+q}")
        k.e("s_nop 1")
        for q, r in enumerate(regs): k.e(f"v_add_f32 v{r}, v{r}, v{tmp+q}")

def gen_k0(first="k0_kernel", last="L_k5_kernel_end", wpf=True, tlb=0):
    k = KB("k0_kernel", 72, 0, 0)
    prologue(k)
    k.e("""
    v_lshlrev_b32 v1, 4, v0
    s_lshl_b32 s46, s2, 2
    s_add_u32 s46, s46, s3
    s_lshl_b32 s47, s46, 12
    s_and_b32 s48, s45, 1
    s_lshl_b32 s48, s48, 2
    s_add_u32 s48, s48, s3
    v_lshlrev_b32 v60, 6, v0
    s_mul_i32 s49, s46, 6144
    v_lshlrev_b32 v61, 2, v0
    s_lshl_b32 s50, s46, 8
    v_mov_b32 v62, 0
    """)
    if OPT.codepf: code_pf_addr(k, first, last, 64, 0, 48)
    k.e("s_waitcnt lgkmcnt(0)")
    srd(k, 24, 4, 5, S_*D_*2)
    for q in range(4): k.e(f"buffer_load_dwordx4 v[{4+4*q}:{7+4*q}], v1, s[24:27], s47 offen offset:{q*1024}")
    srd(k, 32, 6, 7, D_*3*D_*2)
    if OPT.codepf: k.e(code_pf(66, 64))
    k.e(f"v_min_u32 v60, {47 if wpf else 0}, v0\nv_lshlrev_b32 v60, 7, v60\nbuffer_load_dword v67, v60, s[32:35], s49 offen")
    srd(k, 28, 22, 23, S_*D_*2, WS_XN)
    srd(k, 36, 22, 23, ZERO_BYTES, WS_ST)
    k.e(f"buffer_store_dword v62, v61, s[36:39], s50 offen {OPT.st}")
    ntl = 0
    if tlb:
        srd(k, 40, 22, 23, 128*MB)
        if tlb == 1:
            k.e("v_lshlrev_b32 v63, 21, v0\nbuffer_load_dword v69, v63, s[40:43], 0 offen")
        else:
            k.e("s_lshl_b32 s51, s45, 22\nv_lshlrev_b32 v63, 16, v0\nbuffer_load_dword v69, v63, s[40:43], s51 offen")
            k.e("s_and_b32 s51, s45, 1\ns_lshl_b32 s51, s51, 22")
        ntl = 1
        for (r, nb) in ((6, D_*3*D_*2), (8, D_*D_*2), (12, D_*F_*2), (14, D_*F_*2), (16, D_*F_*2), (18, S_*D_*2)):
            srd(k, 40, r, r+1, nb)
            k.e(f"buffer_load_dword v69, v63, s[40:43], {'0' if tlb == 1 else 's51'} offen"); ntl += 1
    stamp(k, 1)
    k.e(f"s_waitcnt vmcnt({ntl + (3 if OPT.codepf else 2)})")
    for q in range(16):
        k.e(f"v_lshlrev_b32 v{24+2*q}, 16, v{4+q}\nv_and_b32 v{25+2*q}, 0xffff0000, v{4+q}")
    for r in range(2):
        b = 24 + 16 * r
        k.e(pk("add", 56, b, b+2))
        for q in range(4, 16, 2): k.e(pk("add", 56, 56, b+q))
        k.e(f"v_add_f32 v{2+r}, v56, v57")
    allreduce64(k, [2, 3], 20)
    for r in range(2):
        b = 24 + 16 * r
        k.e(f"v_mul_f32 v{2+r}, {fbits(1.0/D_)}, v{2+r}")
        for q in range(0, 16, 2): k.e(pk("add", b+q, b+q, ('nb', 2+r)))
        k.e(pk("mul", 56, b, b))
        for q in range(2, 16, 2): k.e(pk("fma", 56, b+q, b+q, 56))
        k.e(f"v_add_f32 v{2+r}, v56, v57")
    allreduce64(k, [2, 3], 20)
    k.e(f"v_mov_b32 v20, {fbits(1e-5)}\nv_mov_b32 v21, {fbits(1e-5)}")
    for r in range(2): k.e(f"v_fmac_f32 v{20+r}, {fbits(1.0/D_)}, v{2+r}")
    k.e("v_rsq_f32 v2, v20\nv_rsq_f32 v3, v21\ns_nop 0")
    stamp(k, 2)
    for r in range(2):
        b = 24 + 16 * r
        for h in range(2):
            for q in range(0, 8, 2): k.e(pk("mul", b+8*h+q, b+8*h+q, ('b', 2+r)))
            for q in range(4): k.e(f"v_cvt_pk_bf16_f32 v{4+8*r+4*h+q}, v{b+8*h+2*q}, v{b+8*h+2*q+1}")
            qq = 2*r + h
            k.e(f"buffer_store_dwordx4 v[{4+4*qq}:{7+4*qq}], v1, s[28:31], s47 offen offset:{qq*1024} {OPT.st}")
    finish(k, 0)
    return k

def gen_k1(D=2, ROT=1):
    STG = 40960
    k = KB("k1_kernel", 160, 112, 4 * STG)
    ACC = lambda j, i: (j * 4 + i) * 4
    VDX = 96
    VDW = 100
    VRX = 106
    VRW = 114
    VL = 122; VPF = 123; VT = 124; VPA = 132
    AX = lambda st, i, s_: (st % 2) * 32 + (i * 2 + s_) * 4
    AW = lambda j, s_: 64 + j * 8 + s_ * 4
    prologue(k)
    k.e(f"v_mov_b32 v{VL}, v0")
    if ROT:
        k.e("""
        s_and_b32 s46, s45, 7
        s_lshl_b32 s46, s46, 1
        s_and_b32 s47, s44, 1
        s_add_u32 s46, s46, s47
        s_lshr_b32 s47, s44, 1
        s_lshl_b32 s47, s47, 2
        s_lshr_b32 s48, s45, 3
        s_add_u32 s47, s47, s48
        """)
    else: tile_map(k, 3, 1, 46, 47)
    k.e(f"""
    s_lshr_b32 s48, s3, 1            ; wm
    s_and_b32 s49, s3, 1             ; wn
    v_lshrrev_b32 v{VT}, 3, v{VL}       ; l/8
    v_and_b32 v{VT+1}, 7, v{VL}         ; p
    v_lshrrev_b32 v{VT+2}, 1, v{VT}     ; (l/8)>>1  (0..3)
    v_xor_b32 v{VT+3}, v{VT+1}, v{VT+2}
    s_lshl_b32 s50, s46, 7
    s_lshl_b32 s51, s3, 5
    s_add_u32 s50, s50, s51
    s_lshl_b32 s50, s50, 11             ; (rb*128 + w*32)*2048
    v_lshlrev_b32 v{VT+4}, 11, v{VT}
    v_add_u32 v{VT+4}, s50, v{VT+4}
    v_lshl_add_u32 v{VDX}, v{VT+3}, 4, v{VT+4}
    v_xor_b32 v{VT+3}, 4, v{VT+3}
    v_lshl_add_u32 v{VDX+1}, v{VT+3}, 4, v{VT+4}
    v_add_u32 v{VDX+2}, {2*15360}, v{VDX}
    v_add_u32 v{VDX+3}, {3*15360}, v{VDX+1}
    v_add_u32 v{VDX+1}, {15360}, v{VDX+1}
    v_and_b32 v{VT+2}, 1, v{VT+2}
    v_lshlrev_b32 v{VT+2}, 1, v{VT+2}
    v_xor_b32 v{VT+3}, v{VT+1}, v{VT+2}
    v_mul_u32_u24 v{VT+4}, 6144, v{VT}
    s_mul_i32 s50, s3, {16*6144}
    s_lshl_b32 s51, s47, 7
    s_add_u32 s50, s50, s51
    v_add_u32 v{VT+4}, s50, v{VT+4}
    v_lshl_add_u32 v{VDW}, v{VT+3}, 4, v{VT+4}
    v_xor_b32 v{VT+3}, 4, v{VT+3}
    v_lshl_add_u32 v{VDW+1}, v{VT+3}, 4, v{VT+4}
    v_add_u32 v{VDW+1}, {8*6144 - 1024}, v{VDW+1}
    """)
    for sg in range(1, 3):
        k.e(f"v_add_u32 v{VDW+2*sg}, {2048*sg}, v{VDW}\nv_add_u32 v{VDW+2*sg+1}, {2048*sg}, v{VDW+1}")
    k.e(f"""
    s_lshl_b32 s53, s3, 12
    s_lshl_b32 s54, s3, 11
    s_add_u32 s54, s54, 16384
    s_mov_b32 s58, 0
    s_mov_b32 s59, {OOB}
    s_mov_b32 s63, {'s46' if ROT else '0'}
    s_mul_i32 s56, s63, {64*6144}
    s_lshl_b32 s57, s63, 7
    """)
    zero = [f"v_mov_b32 v{r}, 0" for r in range(96)]
    for x in zero[:40]: k.e(x)
    k.e("s_waitcnt lgkmcnt(0)")
    srd(k, 24, 6, 7, D_*3*D_*2)
    srd(k, 28, 22, 23, S_*D_*2, WS_XN)
    def vmem_ops(slot):
        ops = []
        for q in range(4):
            o = [f"buffer_load_dwordx4 v{VDX+q}, s[28:31], s57 offen offset:{q*1024} lds"]
            if q == 0: o = [f"s_add_u32 m0, s53, {slot*STG}"] + o
            ops.append(o)
        for sg in range(3):
            for q in range(2):
                o = [f"buffer_load_dwordx4 v{VDW+2*sg+q}, s[24:27], s56 offen offset:{q*1024} lds"]
                if q == 0: o = [f"s_add_u32 m0, s54, {slot*STG + sg*8192}"] + o
                ops.append(o)
        return ops
    adv = ["s_add_u32 s63, s63, 1", "s_and_b32 s63, s63, 15", f"s_mul_i32 s56, s63, {64*6144}", "s_lshl_b32 s57, s63, 7",
           "s_add_u32 s58, s58, 1", "s_cmp_lt_u32 s58, 16", "s_cselect_b32 s56, s56, s59", "s_cselect_b32 s57, s57, s59"]
    for o in vmem_ops(0): k.e("\n".join(with_nop(o)))
    k.e("\n".join(adv))
    setup = f"""
    v_and_b32 v{VT}, 15, v{VL}
    v_lshrrev_b32 v{VT+1}, 4, v{VL}
    v_lshrrev_b32 v{VT+2}, 1, v{VT}
    v_xor_b32 v{VT+2}, v{VT+1}, v{VT+2}
    s_lshl_b32 s50, s48, 13
    v_lshlrev_b32 v{VT+3}, 7, v{VT}
    v_add_u32 v{VT+3}, s50, v{VT+3}
    v_lshl_add_u32 v{VRX}, v{VT+2}, 4, v{VT+3}
    v_xor_b32 v{VRX+1}, 64, v{VRX}
    v_lshrrev_b32 v{VT+2}, 2, v{VT}
    v_lshl_add_u32 v{VT+3}, v{VT+1}, 3, v{VT+2}
    v_lshrrev_b32 v{VT+2}, 1, v{VT+2}
    v_and_b32 v{VT+4}, 1, v{VT+1}
    v_lshl_add_u32 v{VT+2}, v{VT+4}, 1, v{VT+2}
    s_lshl_b32 s50, s49, 1
    v_xor_b32 v{VT+2}, s50, v{VT+2}
    v_lshlrev_b32 v{VT+2}, 5, v{VT+2}
    v_lshl_add_u32 v{VT+2}, v{VT+3}, 7, v{VT+2}
    v_and_b32 v{VT+4}, 3, v{VL}
    v_lshl_add_u32 v{VT+2}, v{VT+4}, 3, v{VT+2}
    v_add_u32 v{VRW}, 16384, v{VT+2}
    v_xor_b32 v{VRW+1}, 32, v{VRW}
    """.strip().split("\n")
    setup = [x.strip() for x in setup]
    for sl in range(1, 4):
        for q in range(2):
            setup += [f"v_add_u32 v{VRX+2*sl+q}, {sl*STG}, v{VRX+q}", f"v_add_u32 v{VRW+2*sl+q}, {sl*STG}, v{VRW+q}"]
    setup += zero[40:]
    for x in sprinkle(setup, [with_nop(o) for o in vmem_ops(1)]): k.e(x)
    k.e("\n".join(adv))
    def wreads(slot, j):
        return [f"ds_read_b64_tr_b16 {a(AW(j,s_)+2*rd,2)}, v{VRW+2*slot+j%2} offset:{(j//2)*8192 + (32*s_+4*rd)*128}" for s_ in range(2) for rd in range(2)]
    def xreads(slot):
        return [f"ds_read_b128 {a(AX(slot,i,s_),4)}, v{VRX+2*slot+s_} offset:{i*2048}" for i in range(4) for s_ in range(2)]
    NH = 3
    body = []; tail_reads = []
    for st in range(4):
        main = []; side = {}
        vm_a = vmem_ops((st + 2) % 4)[NH:]
        vm_b = vmem_ops((st + 3) % 4)[:NH]
        xr = xreads((st + 1) % 4)
        for j in range(6):
            for i in range(4):
                for s_ in range(2):
                    w_, x_ = a(AW(j,s_),4), a(AX(st,i,s_),4)
                    if j >= 4: w_, x_ = x_, w_
                    main.append(f"v_mfma_f32_16x16x32_bf16 {v(ACC(j,i),4)}, {w_}, {x_}, {v(ACC(j,i),4)}")
        def place(o, pos):
            if len(o) > 1: side.setdefault(pos - 1, []).append(o[0])
            side.setdefault(pos, []).append(o[-1])
        nb = 8 * (6 - D)
        for q, o in enumerate(vm_a): place(o, 1 + q * (nb - 8) // len(vm_a))
        for q, x in enumerate(adv): side.setdefault(nb - 8 + q - 1, []).append(x)
        side.setdefault(nb - 1, []).extend(["s_waitcnt vmcnt(10)", "s_barrier"])
        for q, o in enumerate(vm_b): place(o, nb + 2 + q * (8 * D - 3) // len(vm_b))
        for j in range(6):
            g0 = 8 * j
            jj = j + D
            rd = wreads(st if jj < 6 else (st + 1) % 4, jj % 6)
            if j >= 6 - D:
                n = (8 + D - 1) // D
                rd = rd + xr[:n]; xr = xr[n:]
                if st == 3: tail_reads += rd
            for q, x in enumerate(rd): side.setdefault(g0 + q, []).append(x)
        if st == 3:
            side.setdefault(45, []).append("s_sub_u32 s62, s62, 1")
            side.setdefault(46, []).append("s_cmp_lg_u32 s62, 0")
        body += flatten(main, side)
    body = auto_lgkm(body, tail_reads)
    L = k.label("loop"); Lep = k.label("epi")
    if OPT.codepf: code_pf_addr(k, Lep, "L_k5_kernel_end", VPA, VL, 3)
    k.e("s_waitcnt vmcnt(10)\ns_barrier")
    stamp(k, 1)
    for x in tail_reads: k.e(x)
    if OPT.codepf: k.e(code_pf(VPF, VPA))
    for o in vmem_ops(2)[:NH]: k.e("\n".join(with_nop(o)))
    k.e("s_mov_b32 s62, 4")
    k.e(f".p2align 6\n{L}:")
    for x in body: k.e(x)
    k.e(f"s_cbranch_scc1 {L}\n{Lep}:")
    stamp(k, 2)
    srd(k, 32, 22, 23, S_*D_*2, WS_Q)
    srd(k, 36, 22, 23, S_*D_*4, WS_KV)
    k.e(f"""
    s_lshl_b32 s50, s47, 1
    s_add_u32 s50, s50, s49
    s_lshl_b32 s50, s50, 6
    s_lshl_b32 s51, s46, 2
    s_add_u32 s50, s50, s51
    s_lshl_b32 s51, s48, 1
    s_add_u32 s50, s50, s51
    s_lshl_b32 s60, s50, 11
    s_lshl_b32 s61, s50, 12
    s_add_u32 s63, s61, 4096
    v_and_b32 v{VT}, 15, v{VL}          ; t
    v_lshrrev_b32 v{VT+1}, 4, v{VL}     ; g
    v_lshlrev_b32 v{VT+1}, 9, v{VT+1}   ; g*512
    v_lshl_add_u32 v{VRX}, v{VT}, 4, v{VT+1}
    v_lshrrev_b32 v{VT+2}, 3, v{VT}
    v_and_b32 v{VT+3}, 7, v{VT}
    v_lshl_add_u32 v{VT+2}, v{VT+2}, 4, v{VT+3}   ; 16*(t/8) + t%8
    v_lshl_add_u32 v{VRX+1}, v{VT+2}, 4, v{VT+1}
    v_mov_b32 v{VT+4}, {fbits(LOG2E / 32 ** 0.5)}
    """)
    fl = OPT.st
    def cvt4(o, u):
        k.e(f"v_cvt_pk_bf16_f32 v{o}, v{o}, v{o+1}\nv_cvt_pk_bf16_f32 v{o+1}, v{o+2}, v{o+3}")
        k.e(f"v_cvt_pk_bf16_f32 v{o+2}, v{u}, v{u+1}\nv_cvt_pk_bf16_f32 v{o+3}, v{u+2}, v{u+3}")
    for i in range(4):
        o = ACC(2, i); cvt4(o, ACC(3, i))
        k.e(f"buffer_store_dwordx4 {v(o,4)}, v{VRX+1}, s[36:39], s{61 if i < 2 else 63} offen offset:{(i%2)*128} {fl}")
    for p in range(2):
        for fb in range(2):
            o = ACC(4 + fb, 2*p); cvt4(o, ACC(4 + fb, 2*p + 1))
            k.e(f"buffer_store_dwordx4 {v(o,4)}, v{VRX}, s[36:39], s{61 if p == 0 else 63} offen offset:{2048 + fb*256} {fl}")
    for i in range(4):
        o = ACC(0, i); u = ACC(1, i)
        for r in (0, 2): k.e(pk("mul", o+r, o+r, ('b', VT+4)) + "\n" + pk("mul", u+r, u+r, ('b', VT+4)))
        cvt4(o, u)
        k.e(f"buffer_store_dwordx4 {v(o,4)}, v{VRX}, s[32:35], s60 offen offset:{(i//2)*2048 + (i%2)*256} {fl}")
    finish(k, 1)
    return k

def gen_k2(force_fb=False, abl='', W2COLS=64):
    k = KB("k2_kernel", 180, 72, 65536 + 64)
    VS = lambda b: b * 16
    VC = lambda q: 32 + q * 16
    VP = lambda b: 64 + b * 8
    VO = lambda q: 80 + q * 16
    VLs = lambda q: 112 + q * 16
    VONE = 144
    VIDX = 148
    VKA = 149; VVA = 150; VL16 = 151; VL = 152
    VCSA = 153; VCPS = 154; VCPD = 155
    VSEL = 156
    VCSD = 160
    VT = 164
    VPA = 176; VPF = 178
    AQ = lambda q, s_: q * 8 + s_ * 4
    AK = lambda b, s_: 16 + b * 8 + s_ * 4
    AV = lambda b, s_: 32 + b * 8 + s_ * 4
    ACSL = lambda b: 48 + b * 4
    ACP = lambda b: 56 + b * 4
    prologue(k)
    k.e(f"""
    v_mov_b32 v{VL}, v0
    v_lshlrev_b32 v{VL16}, 4, v0
    s_lshl_b32 s46, s44, 2
    s_lshr_b32 s47, s45, 3
    s_add_u32 s46, s46, s47          ; head
    s_and_b32 s47, s45, 7            ; qblk (256)
    s_lshl_b32 s48, s47, 3
    s_lshl_b32 s49, s3, 1
    s_add_u32 s48, s48, s49
    s_lshl_b32 s49, s46, 6
    s_add_u32 s49, s49, s48
    s_lshl_b32 s49, s49, 11
    s_lshl_b32 s53, s3, 12           ; wave lds offset
    s_lshl_b32 s52, s46, 18
    s_add_u32 s52, s52, s53
    s_mov_b32 s59, {OOB}
    s_mov_b32 s70, 0
    v_and_b32 v{VT}, 15, v{VL}
    v_lshrrev_b32 v{VT+1}, 4, v{VL}
    v_mul_u32_u24 v{VT+2}, 7168, v{VT+1}
    v_lshl_add_u32 v{VCSA}, v{VT}, 4, v{VT+2}
    """)
    for r in range(4):
        k.e(f"""
        v_cmp_eq_u32 vcc, {2*r}, v{VT}
        v_mov_b32 v{VT+2}, 0x3f80
        v_cndmask_b32 v{VSEL+r}, 0, v{VT+2}, vcc
        v_cmp_eq_u32 vcc, {2*r+1}, v{VT}
        v_mov_b32 v{VT+2}, 0x3f800000
        v_cndmask_b32 v{VSEL+r}, v{VSEL+r}, v{VT+2}, vcc
        """.replace("v_cndmask", "s_nop 0\nv_cndmask"))
    k.e(f"""
    v_and_b32 v{VT+2}, 26, v{VL}
    v_cmp_eq_u32 vcc, 0, v{VT+2}
    v_mov_b32 v{VT+3}, 0x3f803f80
    s_nop 0
    v_cndmask_b32 v{VONE}, 0, v{VT+3}, vcc
    v_and_b32 v{VT+2}, 1, v{VL}
    v_cmp_eq_u32 vcc, 0, v{VT+2}
    v_mov_b32 v{VT+3}, 0x44444444
    v_mov_b32 v{VT+4}, 0xeeeeeeee
    v_cndmask_b32 v{VIDX}, v{VT+4}, v{VT+3}, vcc
    v_mov_b32 v{VONE+1}, v{VONE}
    v_mov_b32 v{VONE+2}, v{VONE}
    v_mov_b32 v{VONE+3}, v{VONE}
    """)
    k.e("s_waitcnt lgkmcnt(0)")
    srd(k, 24, 22, 23, S_*D_*4, WS_KV)
    srd(k, 28, 22, 23, S_*D_*2, WS_Q)
    for q in range(2):
        for s_ in range(2):
            k.e(f"buffer_load_dwordx4 {a(AQ(q,s_),4)}, v{VL16}, s[28:31], s49 offen offset:{q*2048+s_*1024}")
    def dma(): return [f"buffer_load_dwordx4 v{VL16}, s[24:27], s57 offen offset:{q*1024} lds" for q in range(4)]
    adv = ["s_add_u32 s56, s56, 16384", "s_add_u32 s57, s56, s52", "s_cmp_lt_u32 s56, 0x40000", "s_cselect_b32 s57, s57, s59",
           "s_add_u32 s58, s58, 16384", "s_and_b32 s58, s58, 0xffff", "s_mov_b32 m0, s58"]
    Lre = k.label("restart"); Lside = k.label("noside")
    k.e(f"{Lre}:\ns_mov_b32 s56, 0\ns_mov_b32 s57, s52\ns_mov_b32 s58, s53\ns_mov_b32 m0, s58\ns_nop 0")
    for st in range(3):
        k.e("\n".join(dma()))
        if st < 2: k.e("\n".join(adv) + "\ns_nop 0")
    assert W2COLS in (64, 128)
    M18 = (1 << 16) // 18 + 1
    for x in range(1024): assert (x * M18) >> 16 == x // 18
    k.e(f"""
    s_lshl_b32 s64, s2, 2
    s_add_u32 s64, s64, s3
    s_mul_i32 s68, s64, {M18}
    s_lshr_b32 s68, s68, 16          ; c
    s_mul_i32 s69, s68, 18
    s_sub_u32 s69, s64, s69          ; p
    s_lshl_b32 s71, s68, 9
    s_cmp_lt_u32 s68, 28
    s_cselect_b32 s32, s12, s14
    s_cselect_b32 s33, s13, s15
    s_cselect_b32 s65, 0, 28
    s_sub_u32 s68, s68, s65          ; chunk
    s_mul_i32 s66, s69, {60*7168}
    s_lshl_b32 s68, s68, 8
    s_add_u32 s66, s66, s68
    s_cmp_lt_u32 s64, 1008
    s_cselect_b32 s66, s66, s59
    s_cselect_b32 s71, s71, s59
    s_mov_b32 s34, {D_*F_*2}
    s_mov_b32 s35, 0x20000
    s_mov_b32 s38, {D_*D_*2}
    s_mov_b32 s74, {WS_WOT}
    s_mov_b32 s72, {D_//8}
    s_cmp_lt_u32 s64, 512
    s_cselect_b32 s36, s16, s8
    s_cselect_b32 s37, s17, s9
    s_cselect_b32 s38, {F_*D_*2}, s38
    s_cselect_b32 s74, {WS_W2T}, s74
    s_cselect_b32 s72, {F_//8}, s72
    s_cselect_b32 s75, 14, 8         ; units
    s_mov_b32 s39, 0x20000
    s_add_u32 s40, s22, s74
    s_addc_u32 s41, s23, 0
    s_mov_b32 s42, {PLANE + F_*D_*2}
    s_mov_b32 s43, 0x20000
    s_and_b32 s68, s64, 15
    s_bfe_u32 s69, s64, 0x50004
    s_mul_i32 s69, s69, s75
    s_add_u32 s54, s75, 2
    s_lshl_b32 s54, s54, 14
    v_lshrrev_b32 v{VT+2}, 3, v{VL}     ; r
    v_and_b32 v{VT+3}, 7, v{VL}         ; p
    v_and_b32 v{VT+4}, 6, v{VT+2}
    v_xor_b32 v{VT+4}, v{VT+4}, v{VT+3}
    v_lshlrev_b32 v{VT+4}, 4, v{VT+4}
    v_lshl_add_u32 v{VCPS}, v{VT+2}, 11, v{VT+4}
    v_mov_b32 v{VCPD}, v{VL16}
    s_lshl_b32 s67, s69, 14
    s_lshl_b32 s73, s68, 7
    s_add_u32 s67, s67, s73
    s_mul_i32 s72, s72, s68
    s_add_u32 s72, s72, s69
    s_lshl_b32 s73, s72, 10
    s_mov_b32 s55, 1024
    """)
    if W2COLS == 128:
        Lw = k.label("now2")
        k.e(f"""
        s_cmp_eq_u32 s75, 8
        s_cbranch_scc1 {Lw}
        v_lshrrev_b32 v{VT+4}, 1, v{VT+3}
        v_xor_b32 v{VT+4}, v{VT+4}, v{VT+2}
        v_lshlrev_b32 v{VT+4}, 5, v{VT+4}
        v_and_b32 v{VT+5}, 1, v{VT+3}
        v_lshl_add_u32 v{VT+4}, v{VT+5}, 4, v{VT+4}
        s_and_b32 s72, s68, 1
        s_lshl_b32 s72, s72, 7
        v_xor_b32 v{VT+4}, s72, v{VT+4}
        v_lshl_add_u32 v{VCPS}, v{VT+2}, 11, v{VT+4}
        v_lshlrev_b32 v{VT+4}, 8, v{VT+2}
        v_lshl_add_u32 v{VT+4}, v{VT+3}, 4, v{VT+4}
        v_add_u32 v{VCPD}, s72, v{VT+4}
        s_lshr_b32 s72, s68, 1
        s_lshl_b32 s67, s69, 14
        s_lshl_b32 s73, s72, 8
        s_add_u32 s67, s67, s73
        s_mul_i32 s72, s72, {F_*256}
        s_lshl_b32 s73, s69, 11
        s_add_u32 s73, s73, s72
        s_mov_b32 s55, 2048
        {Lw}:
        """)
    reloc(k, VCPD, VT+4)
    k.e(f"""
    s_cmp_lt_u32 s64, 768
    s_cselect_b32 s67, s67, s59
    s_cselect_b32 s73, s73, s59
    s_cmp_lg_u32 s70, 0
    s_cselect_b32 s66, s59, s66
    s_cselect_b32 s67, s59, s67
    s_cselect_b32 s73, s59, s73
    s_mov_b32 s74, s59
    s_mov_b32 s72, s59
    """)
    for r in range(4): k.e(f"v_mov_b32 v{VCSD+r}, 0")
    for r in range(8): k.e(f"v_accvgpr_write_b32 a{ACSL(0)+r}, 0")
    for r in list(range(72, 144)): k.e(f"v_mov_b32 v{r}, 0")
    for r in range(8): k.e(f"v_accvgpr_write_b32 a{AV(1,0)+r}, 0")
    k.e(f"v_mov_b32 v{VKA}, v{VL16}\nv_mov_b32 v{VVA}, v{VL16}")
    L = k.label("loop"); Lep = k.label("epi")
    if OPT.codepf: code_pf_addr(k, Lep, "L_k5_kernel_end", VPA, VL, 3)
    k.e("s_waitcnt vmcnt(8)\ns_barrier")
    stamp(k, 1)
    def kread(kb): return [f"ds_read_b128 {a(AK(kb%2,s_),4)}, v{VKA} offset:{(kb%4)*4096 + s_*1024}" for s_ in range(2)]
    def vread(kb): return [f"ds_read_b128 {a(AV(kb%2,s_),4)}, v{VVA} offset:{(kb%4)*4096 + 2048 + s_*1024}" for s_ in range(2)]
    for x in kread(0) + kread(1): k.e(x)
    Lskip = k.label("havemax")
    k.e(f"s_waitcnt lgkmcnt(0)\ns_cmp_lg_u32 s70, 0\ns_cbranch_scc1 {Lskip}")
    for q in range(2):
        k.e(f"v_mfma_f32_32x32x16_bf16 {v(VS(q),16)}, {a(AK(0,0),4)}, {a(AQ(q,0),4)}, 0")
        k.e(f"v_mfma_f32_32x32x16_bf16 {v(VS(q),16)}, {a(AK(0,1),4)}, {a(AQ(q,1),4)}, {v(VS(q),16)}")
    k.e("s_nop 9")
    def maxfin():
        k.e(f"v_mov_b32 v{VT+2}, v{VT}\nv_mov_b32 v{VT+3}, v{VT+1}\ns_nop 0")
        k.e(f"v_permlane32_swap_b32 v{VT}, v{VT+2}\nv_permlane32_swap_b32 v{VT+1}, v{VT+3}\ns_nop 0")
        k.e(f"v_max_f32 v{VT}, v{VT}, v{VT+2}\nv_max_f32 v{VT+1}, v{VT+1}, v{VT+3}\nv_mov_b32 v{VT+2}, -1.0")
        for q in range(2):
            for r in range(0, 16, 2): k.e(pk("mul", VC(q)+r, ('b', VT+q), ('b', VT+2)))
    for q in range(2):
        b = VS(q)
        k.e(f"v_max3_f32 v{VT+q}, v{b}, v{b+1}, v{b+2}\nv_max3_f32 v{VT+2}, v{b+3}, v{b+4}, v{b+5}")
        for r in range(6, 14, 4): k.e(f"v_max3_f32 v{VT+q}, v{VT+q}, v{b+r}, v{b+r+1}\nv_max3_f32 v{VT+2}, v{VT+2}, v{b+r+2}, v{b+r+3}")
        k.e(f"v_max3_f32 v{VT+q}, v{VT+q}, v{b+14}, v{b+15}\nv_max_f32 v{VT+q}, v{VT+q}, v{VT+2}")
        if q == 0: k.e("s_nop 3")
    maxfin()
    k.e(f"{Lskip}:\ns_nop 1")
    def qk(n):
        q = n % 2; kb = n // 2
        return [f"v_mfma_f32_32x32x16_bf16 {v(VS(q),16)}, {a(AK(kb%2,0),4)}, {a(AQ(q,0),4)}, {v(VC(q),16)}",
                f"v_mfma_f32_32x32x16_bf16 {v(VS(q),16)}, {a(AK(kb%2,1),4)}, {a(AQ(q,1),4)}, {v(VS(q),16)}"]
    def pv(n):
        q = n % 2; kb = n // 2
        return [f"v_mfma_f32_32x32x16_bf16 {v(VO(q),16)}, {a(AV(kb%2,s_),4)}, {v(VP(q)+4*s_,4)}, {v(VO(q),16)}" for s_ in range(2)] + \
               [f"v_smfmac_f32_32x32x32_bf16 {v(VLs(q),16)}, {v(VONE,4)}, {v(VP(q),8)}, v{VIDX}"]
    for x in qk(0): k.e(x)
    k.e("s_mov_b32 s62, 8\ns_waitcnt vmcnt(4)")
    if OPT.codepf: k.e(code_pf(VPF, VPA))
    k.e("s_nop 8")
    csm = lambda st: f"v_mfma_f32_16x16x32_bf16 {v(VCSD,4)}, {v(VSEL,4)}, {a(ACSL(st),4)}, {v(VCSD,4)}"
    cpst = lambda st, so: f"buffer_store_dwordx4 {a(ACP(st),4)}, v{VCPD}, s[40:43], s{so} offen {OPT.st}"
    body = []
    for st in range(2):
        for n in range(8):
            q = n % 2
            b = VS(q)
            ex = lambda r: f"v_exp_f32 v{b+r}, v{b+r}"
            cv = lambda r: f"v_cvt_pk_bf16_f32 v{VP(q)+r}, v{b+2*r}, v{b+2*r+1}"
            m = qk(n + 1) + pv(n - 1)
            seg = [[ex(0), ex(1), ex(2), ex(3)],
                   [ex(4), cv(0), ex(5), cv(1), ex(6)],
                   [ex(7), cv(2), ex(8), ex(9), cv(3)],
                   [ex(10), ex(11), cv(4), ex(12), cv(5)],
                   [ex(13), ex(14), ex(15), cv(6), cv(7)]]
            after = [[] for _ in range(5)]
            rd = kread((n + 3) // 2) if n % 2 == 1 else vread(n // 2)
            d = dma()
            csl = f"buffer_load_dwordx4 {a(ACSL(st),4)}, v{VCSA}, s[32:35], s66 offen"
            cpl = f"buffer_load_dwordx4 {a(ACP(st),4)}, v{VCPS}, s[36:39], s67 offen"
            plan = {
              0: {1: ["s_waitcnt vmcnt(11)"], 2: [adv[0]], 4: [adv[1]]},
              1: {2: [cpst(st, 74), cpl], 3: [adv[2]], 4: [adv[3]]},
              2: {1: [adv[4]], 2: [adv[5]], 4: [adv[6]]},
              3: {2: [csl], 3: [f"s_add_u32 s66, s66, {4*7168}"], 4: ["s_add_u32 s67, s67, 16384"]},
              4: {1: ["s_mov_b32 s74, s72"], 2: ["s_mov_b32 s72, s73"], 4: ["s_waitcnt vmcnt(10)"]},
              5: {0: ["s_barrier"], 2: d[:2], 3: ["s_add_u32 s73, s73, s55"], 4: [f"s_cmp_lt_u32 s56, {17*16384}"]},
              6: {1: ["s_cselect_b32 s66, s66, s59"], 2: ["s_cmp_lt_u32 s56, s54"], 4: ["s_cselect_b32 s67, s67, s59"]},
              7: {2: ["s_cselect_b32 s73, s73, s59"] + d[2:], 3: ["s_sub_u32 s62, s62, 1"] if st else [], 4: ["s_cmp_lg_u32 s62, 0"] if st else []},
            }[n]
            for j_, x in plan.items(): after[j_] += x
            after[0] += rd
            if n % 2 == 1: after[1].append("s_waitcnt lgkmcnt(2)")
            else: after[3].append("s_waitcnt lgkmcnt(2)")
            if n == 4: seg[2] = [f"v_add_u32 v{VKA}, 0x4000, v{VKA}", f"v_and_b32 v{VKA}, 0xffff, v{VKA}"] + seg[2]
            if n == 7: seg[2] = [f"v_add_u32 v{VVA}, 0x4000, v{VVA}", f"v_and_b32 v{VVA}, 0xffff, v{VVA}"] + seg[2]
            if n == 3: seg[1] = seg[1][:3] + [csm(st)] + seg[1][3:]
            for j_ in range(5):
                body.append(m[j_]); body += [x for x in after[j_] if x != "s_nop 0"]; body += seg[j_]
    if 'novm' in abl: body = [x for x in body if not x.startswith('buffer_')]
    if 'noside' in abl: body = [x.replace('vmcnt(10)', 'vmcnt(4)') for x in body if not (x.startswith('buffer_') and 'lds' not in x)]
    if 'nost' in abl: body = [x.replace('vmcnt(10)', 'vmcnt(8)') for x in body if not x.startswith('buffer_store')]
    if 'nowait' in abl: body = [x for x in body if 'vmcnt' not in x]
    body = auto_lgkm(body, kread(1))
    k.e(f".p2align 6\n{L}:")
    for x in body: k.e(x)
    k.e(f"s_cbranch_scc1 {L}\n{Lep}:")
    k.e("s_nop 1")
    for x in pv(7): k.e(x)
    k.e("s_waitcnt vmcnt(11) lgkmcnt(0)")
    stamp(k, 2)
    Lno = k.label("nofb")
    k.e(f"s_cmp_lg_u32 s70, 0\ns_cbranch_scc1 {Lno}")
    k.e(csm(0))
    srd(k, 28, 22, 23, 2*F_*4, WS_CS)
    k.e(f"""
    v_and_b32 v{VT+8}, 15, v{VL}
    v_lshrrev_b32 v{VT+1}, 4, v{VL}
    v_lshlrev_b32 v{VT+8}, 5, v{VT+8}
    v_lshl_add_u32 v{VT+8}, v{VT+1}, 4, v{VT+8}
    v_lshrrev_b32 v{VT+1}, 1, v{VT+1}
    v_lshl_add_u32 v{VT+8}, v{VT+1}, 29, v{VT+8}
    v_add_f32 v{VT}, v{VLs(0)}, v{VLs(0)+1}
    v_add_f32 v{VT+1}, v{VLs(1)}, v{VLs(1)+1}
    v_add_f32 v{VT}, v{VT}, v{VT+1}
    v_mov_b32 v{VT+2}, {fbits(2.0**40 if not force_fb else 0.5)}
    v_cmp_nlt_f32 vcc, v{VT}, v{VT+2}
    s_lshl_b32 s60, s3, 2
    s_add_u32 s60, s60, 65536
    v_mov_b32 v{VT+2}, s60
    s_cmp_lg_u64 vcc, 0
    s_cselect_b32 s61, 1, 0
    v_mov_b32 v{VT+3}, s61
    ds_write_b32 v{VT+2}, v{VT+3}
    v_mov_b32 v{VT+2}, 65536
    """)
    for r in range(4): k.e(f"buffer_atomic_add_f32 v{VCSD+r}, v{VT+8}, s[28:31], s71 offen offset:{4*r}")
    k.e(f"""
    s_waitcnt lgkmcnt(0)
    s_barrier
    ds_read_b128 {v(VT+4,4)}, v{VT+2}
    s_waitcnt lgkmcnt(0)
    v_or_b32 v{VT+4}, v{VT+4}, v{VT+5}
    v_or3_b32 v{VT+4}, v{VT+4}, v{VT+6}, v{VT+7}
    s_nop 0
    v_readfirstlane_b32 s61, v{VT+4}
    s_nop 3
    s_cmp_eq_u32 s61, 0
    s_cbranch_scc1 {Lno}
    """)
    Lm = k.label("maxloop")
    k.e(f"""
    s_mov_b32 s70, 1
    s_lshl_b32 s60, s46, 18
    s_mov_b32 s61, 64
    v_mov_b32 v{VT}, 0xff800000
    v_mov_b32 v{VT+1}, 0xff800000
    {Lm}:
    buffer_load_dwordx4 {a(AK(0,0),4)}, v{VL16}, s[24:27], s60 offen
    buffer_load_dwordx4 {a(AK(0,1),4)}, v{VL16}, s[24:27], s60 offen offset:1024
    s_waitcnt vmcnt(0)
    """)
    for q in range(2):
        k.e(f"v_mfma_f32_32x32x16_bf16 {v(VS(q),16)}, {a(AK(0,0),4)}, {a(AQ(q,0),4)}, 0")
        k.e(f"v_mfma_f32_32x32x16_bf16 {v(VS(q),16)}, {a(AK(0,1),4)}, {a(AQ(q,1),4)}, {v(VS(q),16)}")
    k.e("s_nop 15")
    for q in range(2):
        for r in range(0, 16, 2): k.e(f"v_max3_f32 v{VT+q}, v{VT+q}, v{VS(q)+r}, v{VS(q)+r+1}")
    k.e(f"s_add_u32 s60, s60, 4096\ns_sub_u32 s61, s61, 1\ns_cmp_lg_u32 s61, 0\ns_cbranch_scc1 {Lm}")
    maxfin()
    k.e(f"s_branch {Lre}\n{Lno}:")
    srd(k, 28, 22, 23, PLANE + S_*D_*2, WS_O)
    k.e(f"""
    v_and_b32 v{VT}, 15, v{VL}
    v_bfe_u32 v{VT+1}, v{VL}, 4, 1
    v_lshrrev_b32 v{VT+2}, 5, v{VL}
    v_lshlrev_b32 v{VT}, 4, v{VT}
    v_lshl_add_u32 v{VT}, v{VT+1}, 15, v{VT}
    v_lshl_add_u32 v{VT}, v{VT+2}, 8, v{VT}
    s_lshl_b32 s60, s48, 16
    s_lshl_b32 s61, s46, 10
    s_add_u32 s60, s60, s61
    s_add_u32 s61, s60, 65536
    """)
    reloc(k, VT, VT+1)
    k.e(f"v_add_f32 v{VT+4}, v{VLs(0)}, v{VLs(0)+1}\nv_add_f32 v{VT+5}, v{VLs(1)}, v{VLs(1)+1}\nv_rcp_f32 v{VT+4}, v{VT+4}\nv_rcp_f32 v{VT+5}, v{VT+5}\ns_nop 0")
    for q in range(2):
        b = VO(q)
        for a_ in range(2):
            for r in range(0, 8, 2): k.e(pk("mul", b+8*a_+r, b+8*a_+r, ('b', VT+4+q)))
            for r in range(4): k.e(f"v_cvt_pk_bf16_f32 v{b+8*a_+r}, v{b+8*a_+2*r}, v{b+8*a_+2*r+1}")
            k.e(f"buffer_store_dwordx4 {v(b+8*a_,4)}, v{VT}, s[28:31], s{60+q} offen offset:{a_*512} {OPT.st}")
    finish(k, 2)
    return k

def gen_small(which, D=3, TB=2, abl=''):
    k3 = which == 3
    K = D_ if k3 else F_
    NS = K // 128
    U = 4; STG = 16384; NH = 4
    k = KB(f"k{which}_kernel", 112, 128, U * STG)
    ACC = lambda j, i: (j * 2 + i) * 4
    VW = lambda g, s_: 32 + (g % 4) * 8 + s_ * 4
    VD = 64
    VX = 66
    VR = 68
    VRA = 72
    VPF = 73; VPA = 74
    VL = 78; VT = 80
    VRES = 88
    AX = lambda st, i, s_: st * 32 + (i * 4 + s_) * 4
    prologue(k)
    k.e(f"v_mov_b32 v{VL}, v0")
    tile_map(k, TB, 4 - TB, 46, 47)
    k.e(f"""
    s_lshl_b32 s48, s46, 3
    s_lshl_b32 s49, s3, 1
    s_add_u32 s48, s48, s49
    s_mul_i32 s49, s48, {K*32}
    v_lshlrev_b32 v{VT}, 4, v{VL}
    s_lshl_b32 s53, s3, 12
    s_mul_i32 s50, s47, {K*128}
    s_add_u32 s50, s50, s53
    s_lshl_b32 s51, s47, 7
    s_mov_b32 s56, 0
    s_mov_b32 s57, 0
    """)
    reloc(k, VT, VT+1)
    k.e(f"""
    v_add_u32 v{VX}, s49, v{VT}
    v_add_u32 v{VX+1}, {K*32}, v{VX}
    v_add_u32 v{VD}, s50, v{VT}
    v_and_b32 v{VT}, 31, v{VL}
    v_lshrrev_b32 v{VT}, 2, v{VT}        ; 4*(g%2)+i
    v_lshrrev_b32 v{VT+1}, 5, v{VL}
    v_lshl_add_u32 v{VT+1}, v{VT+1}, 4, v{VT}   ; row
    v_lshrrev_b32 v{VT}, 1, v{VT}        ; sw
    v_lshlrev_b32 v{VT}, 5, v{VT}
    v_lshl_add_u32 v{VT}, v{VT+1}, 7, v{VT}
    v_and_b32 v{VT+1}, 3, v{VL}
    v_lshl_add_u32 v{VR}, v{VT+1}, 3, v{VT}
    """)
    for fb in range(1, 4): k.e(f"v_xor_b32 v{VR+fb}, {fb*32}, v{VR}")
    for r in range(32): k.e(f"v_mov_b32 v{r}, 0")
    k.e(f"v_and_b32 v{VT}, 15, v{VL}\nv_lshrrev_b32 v{VT+1}, 4, v{VL}")
    L = k.label("loop"); Lt = k.label("tail")
    if OPT.codepf: code_pf_addr(k, Lt, "L_k5_kernel_end", VPA, VL, 3)
    if k3:
        k.e(f"""
        v_lshlrev_b32 v{VRA}, 11, v{VT}
        v_lshl_add_u32 v{VRA}, v{VT+1}, 3, v{VRA}
        s_lshl_b32 s60, s48, 15
        s_add_u32 s60, s60, s51
        s_add_u32 s61, s60, 32768
        """)
        res = [f"buffer_load_dwordx2 {v(VRES+i*8+fb*2,2)}, v{VRA}, s[32:35], s{60+i} offen offset:{fb*32}" for i in range(2) for fb in range(4)]
    else:
        k.e(f"""
        v_lshlrev_b32 v{VRA}, 4, v{VL}
        s_lshl_b32 s60, s48, 15
        s_lshl_b32 s61, s47, 11
        s_add_u32 s60, s60, s61
        s_add_u32 s61, s60, 32768
        """)
        res = [f"buffer_load_dwordx4 {v(VRES+i*8+p*4,4)}, v{VRA}, s[32:35], s{60+i} offen offset:{p*1024}" for i in range(2) for p in range(2)]
    k.e("s_waitcnt lgkmcnt(0)")
    srd(k, 24, 22, 23, PLANE + K*D_*2, WS_WOT if k3 else WS_W2T)
    srd(k, 28, 22, 23, PLANE + S_*K*2, WS_O if k3 else WS_G)
    def vmem_ops(slot):
        ops = []
        for q in range(4):
            o = [f"buffer_load_dwordx4 v{VD}, s[24:27], s56 offen offset:{q*1024} lds"]
            if q == 0: o = [f"s_add_u32 m0, s53, {slot*STG}"] + o
            ops.append(o)
            for i in range(2):
                ops.append([f"buffer_load_dwordx4 {a(AX(slot,i,q),4)}, v{VX+i}, s[28:31], s57 offen offset:{q*1024}"])
        return ops
    adv = ["s_add_u32 s56, s56, 16384", "s_add_u32 s57, s57, 4096"]
    for st in range(2):
        for o in vmem_ops(st): k.e("\n".join(with_nop(o)))
        k.e("\n".join(adv))
        if st == 0:
            if k3: srd(k, 32, 4, 5, S_*D_*2)
            else: srd(k, 32, 22, 23, S_*D_*2, WS_H)
    def wreads(slot, g):
        fb, sp = g % 4, g // 4
        return [f"ds_read_b64_tr_b16 {v(VW(g,s_)+2*rd,2)}, v{VR+fb} offset:{slot*STG + (2*sp+s_)*4096 + rd*1024}" for s_ in range(2) for rd in range(2)]
    def stage(st, left, loopend=False):
        main = []; side = {}
        vm_a = vmem_ops((st + 2) % U)[NH:] if left >= 2 else []
        vm_b = vmem_ops((st + 3) % U)[:NH] if left >= 3 else []
        nwait = 12 if left >= 2 else 0
        if left == 2: vm_b = [[x] for x in res]
        if left == 1: nwait = len(res)
        for g in range(8):
            fb, sp = g % 4, g // 4
            for i in range(2):
                for s_ in range(2):
                    main.append(f"v_mfma_f32_16x16x32_bf16 {v(ACC(fb,i),4)}, {v(VW(g,s_),4)}, {a(AX(st,i,2*sp+s_),4)}, {v(ACC(fb,i),4)}")
        def place(o, pos):
            if len(o) > 1: side.setdefault(pos - 1, []).append(o[0])
            side.setdefault(pos, []).append(o[-1])
        nb = 4 * (8 - D)
        for q, o in enumerate(vm_a): place(o, q * (nb - 2) // len(vm_a))
        if left >= 3:
            for q, x in enumerate(adv): side.setdefault(nb - 2, []).append(x)
        if left >= 1: side.setdefault(nb - 1, []).extend([f"s_waitcnt vmcnt({nwait})", "s_barrier"])
        for q, o in enumerate(vm_b): place(o, nb + 1 + q * (4 * D - 2) // len(vm_b))
        heads = []
        for g in range(8):
            gg = g + D
            if gg >= 8 and left == 0: continue
            rd = wreads(st if gg < 8 else (st + 1) % U, gg % 8)
            if gg >= 8: heads += rd
            for q, x in enumerate(rd): side.setdefault(4 * g + q, []).append(x)
        if loopend:
            side.setdefault(29, []).append("s_sub_u32 s62, s62, 1")
            side.setdefault(30, []).append("s_cmp_lg_u32 s62, 0")
        return flatten(main, side), heads
    body = []
    for st in range(U):
        b_, heads = stage(st, 99, st == U - 1); body += b_
    tail = []
    for st in range(U): tail += stage(st, U - 1 - st)[0]
    if 'nomfma' in abl:
        body = [x if 'mfma' not in x else 's_nop 0' for x in body]
    body = auto_lgkm(body, heads)
    tail = auto_lgkm(tail, heads, cyclic=False)
    k.e(f"s_waitcnt vmcnt(12)\ns_barrier")
    stamp(k, 1)
    for x in heads: k.e(x)
    if OPT.codepf: k.e(code_pf(VPF, VPA))
    for o in vmem_ops(2)[:NH]: k.e("\n".join(with_nop(o)))
    k.e(f"s_mov_b32 s62, {NS//U - 1}")
    k.e(f".p2align 6\n{L}:")
    for x in body: k.e(x)
    k.e(f"s_cbranch_scc1 {L}\n{Lt}:")
    for x in tail: k.e(x)
    stamp(k, 2)
    fl = OPT.st
    if k3:
        srd(k, 36, 22, 23, S_*D_*2, WS_H)
        srd(k, 40, 22, 23, S_*8, WS_ST)
        k.e(f"""
        v_lshlrev_b32 v{VT+2}, 4, v{VL}
        s_lshl_b32 s60, s48, 15
        s_lshl_b32 s61, s47, 11
        s_add_u32 s60, s60, s61
        s_add_u32 s61, s60, 32768
        """)
    else:
        srd(k, 36, 18, 19, S_*D_*2)
        k.e(f"""
        v_and_b32 v{VT+2}, 1, v{VT+1}
        v_lshrrev_b32 v{VT+3}, 1, v{VT+1}
        v_lshlrev_b32 v{VT+2}, 5, v{VT+2}
        v_lshl_add_u32 v{VT+2}, v{VT+3}, 4, v{VT+2}
        v_lshl_add_u32 v{VT+2}, v{VT}, 11, v{VT+2}
        s_lshl_b32 s60, s48, 15
        s_add_u32 s60, s60, s51
        s_add_u32 s61, s60, 32768
        """)
    k.e("s_waitcnt vmcnt(0)")
    for i in range(2):
        for p in range(2):
            for fb in (2*p, 2*p+1):
                o = ACC(fb, i); r = VRES + i*8 + fb*2
                k.e(f"""
                v_lshlrev_b32 v{VT+4}, 16, v{r}
                v_and_b32 v{VT+5}, 0xffff0000, v{r}
                v_lshlrev_b32 v{VT+6}, 16, v{r+1}
                v_and_b32 v{VT+7}, 0xffff0000, v{r+1}
                {pk("add", o, o, VT+4)}
                {pk("add", o+2, o+2, VT+6)}
                v_cvt_pk_bf16_f32 v{r}, v{o}, v{o+1}
                v_cvt_pk_bf16_f32 v{r+1}, v{o+2}, v{o+3}
                """)
            r = VRES + i*8 + p*4
            if k3:
                k.e(f"buffer_store_dwordx4 {v(r,4)}, v{VT+2}, s[36:39], s{60+i} offen offset:{p*1024} {fl}")
            else:
                k.e(f"s_nop 1\nv_permlane16_swap_b32 v{r}, v{r+2}\nv_permlane16_swap_b32 v{r+1}, v{r+3}")
                k.e(f"buffer_store_dwordx4 {v(r,4)}, v{VT+2}, s[36:39], s{60+i} offen offset:{p*64} {fl}")
    if k3:
        for i in range(2):
            regs = [ACC(fb, i) + r for fb in range(4) for r in (0, 2)]
            k.e(pk("add", 36, regs[0], regs[1]) + "\n" + pk("mul", 38, regs[0], regs[0]) + "\n" + pk("fma", 38, regs[1], regs[1], 38))
            for r in regs[2:]: k.e(pk("add", 36, 36, r) + "\n" + pk("fma", 38, r, r, 38))
            k.e(f"v_add_f32 v{32+2*i}, v36, v37\nv_add_f32 v{33+2*i}, v38, v39")
        k.e(f"""
        v_lshrrev_b32 v{VT+3}, 1, v{VT+1}
        v_lshl_add_u32 v{VT+3}, v{VT+3}, 4, v{VT}
        v_permlane32_swap_b32 v32, v34
        v_permlane32_swap_b32 v33, v35
        v_and_b32 v{VT+4}, 1, v{VT+1}
        v_add_f32 v32, v32, v34
        v_add_f32 v33, v33, v35
        v_lshlrev_b32 v{VT+3}, 3, v{VT+3}
        v_lshl_add_u32 v{VT+3}, v{VT+4}, 2, v{VT+3}
        v_permlane16_swap_b32 v32, v33
        s_lshl_b32 s60, s48, 7
        v_add_f32 v32, v32, v33
        buffer_atomic_add_f32 v32, v{VT+3}, s[40:43], s60 offen
        """)
    finish(k, which)
    return k

def gen_k4(D=3, abl=''):
    STG = 28672
    k = KB("k4_kernel", 256, 184, 4 * STG + 4096)
    ACC = lambda j, i: (j * 4 + i) * 4
    VD = 224
    VPF = 231
    VX = 232
    VR = 236
    VC1 = 238; VC2 = 242
    VL = 246; VT = 248
    AX = lambda st, i, s_: st * 32 + (i * 2 + s_) * 4
    AW = lambda slot, s_: 128 + slot * 8 + s_ * 4
    prologue(k)
    k.e(f"v_mov_b32 v{VL}, v0")
    tile_map(k, 2, 1, 46, 47)
    k.e(f"""
    s_lshl_b32 s48, s46, 4
    s_lshl_b32 s49, s3, 2
    s_add_u32 s48, s48, s49
    s_lshl_b32 s49, s48, 15
    v_lshlrev_b32 v{VT}, 4, v{VL}
    v_add_u32 v{VX}, s49, v{VT}
    s_and_b32 s50, s3, 1
    s_mul_i32 s50, s50, 448
    s_mul_i32 s51, s47, 224
    """)
    for i in range(1, 4): k.e(f"v_add_u32 v{VX+i}, {i*32768}, v{VX}")
    k.e(f"""
    v_cmp_lt_u32 vcc, 27, v{VL}
    v_mov_b32 v0, {F_*4 - 28*16}
    s_mul_i32 s60, s47, 448
    v_cndmask_b32 v0, 0, v0, vcc
    v_add_u32 v0, v0, v{VT}
    v_and_b32 v1, 15, v{VL}
    v_lshlrev_b32 v1, 3, v1
    s_lshl_b32 s61, s48, 7
    s_lshl_b32 s55, s3, 10
    s_add_u32 s55, s55, {4*STG}
    """)
    for i in range(7):
        k.e(f"v_add_u32 v{VT}, s50, v{VL}")
        if i: k.e(f"v_add_u32 v{VT}, {64*i}, v{VT}")
        udiv_const(k, VT+1, VT, 14)
        k.e(f"""
        v_mul_u32_u24 v{VT+1}, {7168 - 224}, v{VT+1}
        v_lshl_add_u32 v{VT+1}, v{VT}, 4, v{VT+1}
        v_add_u32 v{VD+i}, s51, v{VT+1}
        """)
        if i % 4: k.e(f"v_subrev_u32 v{VD+i}, {(i%4)*1024}, v{VD+i}")
    k.e(f"""
    s_mul_i32 s53, s3, 7168
    s_mov_b32 s56, 0
    s_mov_b32 s57, 0
    s_mov_b32 s58, 0
    s_mov_b32 s59, {OOB}
    s_mov_b32 m0, s55
    s_waitcnt lgkmcnt(0)
    """)
    srd(k, 40, 22, 23, 2*F_*4, WS_CS)
    srd(k, 36, 22, 23, S_*8, WS_ST)
    k.e("buffer_load_dwordx4 v0, s[40:43], s60 offen lds")
    for i in range(4): k.e(f"buffer_load_dwordx2 v[{VT+2*i}:{VT+2*i+1}], v1, s[36:39], s61 offen offset:{i*128}")
    k.e(f"""
    s_cmp_lt_u32 s3, 2
    s_cselect_b32 s24, s12, s14
    s_cselect_b32 s25, s13, s15
    s_mov_b32 s26, {D_*F_*2}
    s_mov_b32 s27, 0x20000
    """)
    srd(k, 28, 22, 23, S_*D_*2, WS_H)
    def parts(slot):
        d = []
        for i in range(7):
            o = [f"buffer_load_dwordx4 v{VD+i}, s[24:27], s56 offen offset:{(i%4)*1024} lds"]
            if i % 4 == 0: o = [f"s_add_u32 m0, s53, {slot*STG + i*1024}"] + o
            d.append(o)
        xs = [[f"buffer_load_dwordx4 {a(AX(slot, i, s_), 4)}, v{VX+i}, s[28:31], s57 offen offset:{s_*1024}"] for i in range(4) for s_ in range(2)]
        return d[:4] + xs[:4], d[4:] + xs[4:]
    adv = ["s_add_u32 s56, s56, %d" % (64*7168), "s_add_u32 s58, s58, 2048", "s_cmp_lt_u32 s58, 32768", f"s_cselect_b32 s57, s58, s59"]
    p1, p2 = parts(0)
    for o in p1 + p2: k.e("\n".join(with_nop(o)))
    k.e("\n".join(adv))
    L = k.label("loop"); Lep = k.label("epi")
    k.e(f"""
    v_lshrrev_b32 v4, 2, v{VL}
    v_mul_u32_u24 v4, 224, v4
    v_and_b32 v5, 3, v{VL}
    v_lshl_add_u32 v{VR}, v5, 3, v4
    v_add_u32 v{VR+1}, {2*STG}, v{VR}
    v_lshrrev_b32 v4, 4, v{VL}
    v_lshl_add_u32 v4, v4, 4, s55
    s_waitcnt vmcnt(15)
    """)
    for j in range(14): k.e(f"ds_read_b128 {v(ACC(j,0),4)}, v4 offset:{j*64}")
    init = []
    for i in range(4):
        b = VT + 2 * i
        init += f"""v_mul_f32 v{b}, {fbits(-1.0/D_)}, v{b}
        v_mul_f32 v{b+1}, {fbits(1.0/D_)}, v{b+1}
        v_fma_f32 v{b+1}, -v{b}, v{b}, v{b+1}
        v_max_f32 v{b+1}, 0, v{b+1}
        v_add_f32 v{VC2+i}, {fbits(1e-5)}, v{b+1}
        v_rsq_f32 v{b+1}, v{VC2+i}""".split("\n")
    for i in range(4): init.append(f"v_mul_f32 v{VC1+i}, {fbits(-LOG2E)}, v{VT+2*i+1}")
    init.append("s_waitcnt lgkmcnt(0)")
    for j in range(14):
        for i in (3, 2, 1, 0):
            for r in (0, 2): init.append(pk("mul", ACC(j,i)+r, ACC(j,0)+r, ('b', VT+2*i)))
    init = [x.strip() for x in init]
    for x in sprinkle(init, [with_nop(o) for o in parts(1)[0]]): k.e(x)
    if OPT.codepf: code_pf_addr(k, Lep, "L_k5_kernel_end", VT, VL, 3)
    def reads(stage_slot, j):
        base = VR + (stage_slot // 2)
        off0 = (stage_slot % 2) * STG + (j // 7) * 14336 + (j % 7) * 32
        return [f"ds_read_b64_tr_b16 {a(AW(j % 7, s_) + 2*rd, 2)}, v{base} offset:{off0 + (32*s_ + 16*rd)*224}" for s_ in range(2) for rd in range(2)]
    body = []; heads = []
    for st in range(4):
        main = []; side = {}
        cur = parts((st + 1) % 4)[1][D:]; nxt = parts((st + 2) % 4)[0]; post = parts((st + 2) % 4)[1][:D]
        for j in range(14):
            for i in range(4):
                for s_ in range(2):
                    main.append(f"v_mfma_f32_16x16x32_bf16 {v(ACC(j,i),4)}, {a(AW(j%7,s_),4)}, {a(AX(st,i,s_),4)}, {v(ACC(j,i),4)}")
        def place(o, pos):
            if len(o) > 1: side.setdefault(pos - 1, []).append(o[0])
            side.setdefault(pos, []).append(o[-1])
        nb = 8 * (14 - D)
        ops = cur + nxt
        pos = [5 + q * (nb - 6) // len(ops) for q in range(len(ops))]
        for q, o in enumerate(ops): place(o, pos[q])
        for q, x in enumerate(adv): side.setdefault(pos[len(cur) - 1] + 1 + q, []).append(x)
        assert pos[len(cur) - 1] + 4 < pos[len(cur)] - 1
        side.setdefault(nb - 1, []).extend(["s_waitcnt vmcnt(8)", "s_barrier"])
        for q, o in enumerate(post): place(o, nb + 5 + 8 * q)
        for j in range(14):
            jj = j + D
            rd = reads(st if jj < 14 else (st + 1) % 4, jj % 14)
            if jj >= 14 and st == 3: heads += rd
            for q, x in enumerate(rd): side.setdefault(8 * j + q, []).append(x)
        if st == 3:
            side.setdefault(109, []).append("s_sub_u32 s62, s62, 1")
            side.setdefault(110, []).append("s_cmp_lg_u32 s62, 0")
        body += flatten(main, side)
    body = auto_lgkm(body, heads)
    k.e("s_waitcnt vmcnt(8)\ns_barrier")
    stamp(k, 1)
    for x in heads: k.e(x)
    if OPT.codepf: k.e(code_pf(VPF, VT))
    for o in parts(1)[1][:D]: k.e("\n".join(with_nop(o)))
    k.e("s_mov_b32 s62, 4")
    k.e(f".p2align 6\n{L}:")
    for x in body: k.e(x)
    k.e(f"s_cbranch_scc1 {L}\n{Lep}:")
    stamp(k, 2)
    srd(k, 32, 22, 23, PLANE + S_*F_*2, WS_G)
    k.e(f"""
    v_and_b32 v{VT}, 31, v{VL}
    v_lshlrev_b32 v{VT}, 4, v{VT}
    """)
    reloc(k, VT, VT+1)
    k.e(f"""
    v_lshrrev_b32 v{VT+1}, 5, v{VL}
    v_mul_u32_u24 v{VT+1}, {224*512}, v{VT+1}
    v_add_u32 v{VT}, v{VT}, v{VT+1}
    s_mul_i32 s60, s48, {224*512}
    s_mul_i32 s61, s47, {7*512}
    s_add_u32 s60, s60, s61
    s_add_u32 s61, s60, {2*224*512}
    """)
    for j in range(7):
        for p in range(2):
            ii = (2*p, 2*p+1)
            G = lambda i: ACC(j, i); Uu = lambda i: ACC(j + 7, i)
            for i in ii:
                for r in (0, 2): k.e(pk("mul", Uu(i)+r, Uu(i)+r, G(i)+r))
                for r in (0, 2): k.e(pk("mul", G(i)+r, G(i)+r, ('b', VC1+i)))
            for i in ii:
                for r in range(4): k.e(f"v_exp_f32 v{G(i)+r}, v{G(i)+r}")
            for i in ii:
                for r in (0, 2): k.e(pk("fma", G(i)+r, G(i)+r, ('b', VC2+i), ('b', VC2+i)))
            for i in ii:
                for r in range(4): k.e(f"v_rcp_f32 v{G(i)+r}, v{G(i)+r}")
            for i in ii:
                for r in (0, 2): k.e(pk("mul", Uu(i)+r, Uu(i)+r, G(i)+r))
            o = G(2*p)
            k.e(f"v_cvt_pk_bf16_f32 v{o}, v{Uu(2*p)}, v{Uu(2*p)+1}\nv_cvt_pk_bf16_f32 v{o+2}, v{Uu(2*p+1)}, v{Uu(2*p+1)+1}")
            k.e(f"v_cvt_pk_bf16_f32 v{o+1}, v{Uu(2*p)+2}, v{Uu(2*p)+3}\nv_cvt_pk_bf16_f32 v{o+3}, v{Uu(2*p+1)+2}, v{Uu(2*p+1)+3}")
            k.e(f"v_permlane32_swap_b32 v{o}, v{o+2}\ns_nop 0\nv_permlane32_swap_b32 v{o+1}, v{o+3}")
            k.e(f"buffer_store_dwordx4 {v(o,4)}, v{VT}, s[32:35], s{60+p} offen offset:{j*512} {OPT.st}")
    finish(k, 4)
    return k

def gen_nop():
    k = KB("k9_kernel", 8, 0, 0)
    k.e("s_endpgm")
    return k

def all_kernels(**kw):
    g = lambda n: kw.get(n, {})
    if kw.get('dup'):
        ks = all_kernels(**{a_: b_ for a_, b_ in kw.items() if a_ != 'dup'})
        return sum([[x] * (2 if int(x.name[1]) in kw['dup'] else 1) for x in ks], [])
    if kw.get('nops'):
        ks = all_kernels(**{a_: b_ for a_, b_ in kw.items() if a_ != 'nops'}); n = gen_nop()
        return ks[:3] + [n] * kw['nops'] + ks[3:]
    return [gen_k0(**g('k0')), gen_k1(**g('k1')), gen_k2(**g('k2')), gen_small(3, **g('k3')), gen_k4(**g('k4')), gen_small(5, **g('k5'))]

if __name__ == "__main__":
    hdr = "".join(l for l in open("sequential_preLN__softmax_full_mha__glu_gated_swiglu__prompt.s.ref") if l.startswith(";") and "@launch" not in l and "Override" not in l and "grid=ceil" not in l)
    kw = eval("dict(" + (sys.argv[1] if len(sys.argv) > 1 else "") + ")")
    for a_, b_ in kw.pop("opt", {}).items(): setattr(OPT, a_, b_)
    print(build_file(all_kernels(**kw), hdr))
```

```python
import sys, struct
from asmlib import *

S_, D_, F_ = 2048, 1024, 3584
MB = 1 << 20
PLANE = 16 * MB
WS_XN = 0; WS_Q = 4*MB; WS_KV = 8*MB; WS_H = 16*MB
WS_ST = 20*MB; WS_CS = WS_ST + 0x4000; WS_FLAG = WS_ST + 0x10000; ZERO_BYTES = 0x40000
WS_STAMP = 21*MB
WS_O = 32*MB; WS_WOT = 36*MB; WS_W2T = 38*MB
WS_G = 64*MB
WS_EX = 96*MB
RELOC = PLANE - 384
LOG2E = 1.4426950408889634
OOB = 0x40000000
def fbits(x): return hex(struct.unpack("<I", struct.pack("<f", x))[0])

class Opt:
    diag = False
    st = "sc1"
    reloc = True
    codepf = True
    probe = None
OPT = Opt()

def prologue(k, nwg=256):
    k.e(f"s_cmp_ge_u32 s2, {nwg}\ns_cbranch_scc1 L_{k.name}_end")
    if OPT.diag: k.e("s_memrealtime s[80:81]\ns_memtime s[82:83]")
    if OPT.probe: k.e("s_memrealtime s[80:81]")
    k.e("""
    s_load_dwordx16 s[4:19], s[0:1], 0
    s_load_dwordx4 s[20:23], s[0:1], 64
    v_lshrrev_b32 v1, 6, v0
    v_and_b32 v0, 63, v0
    v_readfirstlane_b32 s3, v1
    s_and_b32 s44, s2, 7
    s_lshr_b32 s45, s2, 3
    """)
def stamp(k, i):
    if OPT.diag:
        k.e(f"s_memrealtime s[{80+4*i}:{81+4*i}]\ns_memtime s[{82+4*i}:{83+4*i}]\ns_waitcnt lgkmcnt(0)")
def finish(k, kid):
    if OPT.diag:
        k.e("s_waitcnt vmcnt(0)")
        stamp(k, 3)
        srd(k, 96, 22, 23, MB, WS_STAMP)
        k.e(f"s_lshl_b32 s100, s2, 3\ns_add_u32 s100, s100, s3\ns_add_u32 s100, s100, {kid*2048}\ns_lshl_b32 s100, s100, 5")
        for i in range(4):
            k.e(f"v_mov_b32 v{2*i}, s{80+4*i}\nv_mov_b32 v{2*i+1}, s{82+4*i}")
        k.e("v_mov_b32 v8, s100\nbuffer_store_dwordx4 v[0:3], v8, s[96:99], 0 offen\nbuffer_store_dwordx4 v[4:7], v8, s[96:99], 0 offen offset:16")
    if OPT.probe:
        srd(k, 96, 22, 23, MB, WS_STAMP)
        k.e(f"s_lshl_b32 s100, s2, 2\ns_add_u32 s100, s100, {kid*1024}\nv_mov_b32 v0, s80\nv_mov_b32 v1, s100\nbuffer_store_dword v0, v1, s[96:99], 0 offen")
    k.e(f"L_{k.name}_end:\ns_endpgm")

def gen_probe(i, wi, j, wj, mult=8):
    k = KB("k8_kernel", 8, 0, 0, block=64, grid=1)
    k.e(f"""
    s_cmp_ge_u32 s2, 1
    s_cbranch_scc1 L_k8_end
    s_memrealtime s[30:31]
    s_load_dwordx2 s[22:23], s[0:1], 72
    s_waitcnt lgkmcnt(0)
    s_add_u32 s24, s22, {WS_STAMP}
    s_addc_u32 s25, s23, 0
    s_load_dword s26, s[24:25], {i*1024 + 4*wi}
    s_load_dword s27, s[24:25], {(j if j < 9 else 0)*1024 + 4*wj}
    s_waitcnt lgkmcnt(0)
    s_sub_u32 s28, {'s27' if j < 9 else 's30'}, s26
    s_add_u32 s28, s28, 500
    s_min_u32 s28, s28, 20000
    s_mul_i32 s28, s28, {mult}
    L_k8_spin:
    s_memrealtime s[32:33]
    s_waitcnt lgkmcnt(0)
    s_sub_u32 s29, s32, s30
    s_cmp_lt_u32 s29, s28
    s_cbranch_scc1 L_k8_spin
    L_k8_end:
    s_endpgm
    """)
    return k

def udiv_const(k, dst, src, c):
    sh = 20
    m = (1 << sh) // c + 1
    for x in range(0, 4096): assert (x * m) >> sh == x // c
    k.e(f"v_mul_u32_u24 v{dst}, {m}, v{src}\nv_lshrrev_b32 v{dst}, {sh}, v{dst}")

def tile_map(k, nb_m, nb_x, sm, sn):
    k.e(f"""
    s_and_b32 s{sm}, s44, {(1<<nb_x)-1}
    s_lshl_b32 s{sm}, s{sm}, {nb_m}
    s_and_b32 s{sn}, s45, {(1<<nb_m)-1}
    s_add_u32 s{sm}, s{sm}, s{sn}
    s_lshr_b32 s{sn}, s44, {nb_x}
    s_lshl_b32 s{sn}, s{sn}, {5-nb_m}
    s_lshr_b32 s79, s45, {nb_m}
    s_add_u32 s{sn}, s{sn}, s79
    """)

def reloc(k, addr, tmp):
    if not OPT.reloc: return
    k.e(f"""
    v_bfe_u32 v{tmp}, v{addr}, 7, 2
    v_add_u32 v{tmp}, 1, v{tmp}
    v_lshrrev_b32 v{tmp}, 2, v{tmp}
    v_mul_u32_u24 v{tmp}, {RELOC}, v{tmp}
    v_add_u32 v{addr}, v{addr}, v{tmp}
    """)

def code_pf_addr(k, first, last, vaddr, lane, chunk_s):
    L = k.label("pc")
    k.e(f"""
    s_getpc_b64 s[76:77]
    {L}:
    s_add_u32 s76, s76, {first}-{L}
    s_addc_u32 s77, s77, ({first}-{L})>>32
    s_lshl_b32 s78, s45, 2
    s_add_u32 s78, s78, s3
    s_lshl_b32 s78, s78, 9
    v_and_b32 v{vaddr}, 3, v{lane}
    v_lshl_add_u32 v{vaddr}, v{vaddr}, 7, s78
    v_min_u32 v{vaddr}, {last}-{first}, v{vaddr}
    v_mov_b32 v{vaddr+1}, s77
    v_add_co_u32 v{vaddr}, vcc, s76, v{vaddr}
    s_nop 1
    v_addc_co_u32 v{vaddr+1}, vcc, 0, v{vaddr+1}, vcc
    """)
def code_pf(vdst, vaddr):
    return f"global_load_dword v{vdst}, v[{vaddr}:{vaddr+1}], off"

def pk(op, d, *srcs):
    ops = []; lo = []; hi = []; neg = []
    for s_ in srcs:
        if isinstance(s_, tuple):
            r = s_[1]; ops.append(v(r & ~1, 2)); lo.append(r & 1); hi.append(r & 1); neg.append(int(s_[0] == 'nb'))
        else:
            assert s_ % 2 == 0
            ops.append(v(s_, 2)); lo.append(0); hi.append(1); neg.append(0)
    f = lambda x: "[" + ",".join(map(str, x)) + "]"
    t = f"v_pk_{op}_f32 {v(d,2)}, " + ", ".join(ops) + f" op_sel:{f(lo)} op_sel_hi:{f(hi)}"
    if any(neg): t += f" neg_lo:{f(neg)} neg_hi:{f(neg)}"
    return t

def sprinkle(base, extra):
    out = []; n = len(base); m = len(extra); q = 0
    for i, b in enumerate(base):
        out.append(b)
        while q < m and (q + 1) * n <= (i + 1) * (m + 1):
            out += extra[q]; q += 1
    for x in extra[q:]: out += x
    return out
def with_nop(op):
    return [op[0], "s_nop 0", op[1]] if len(op) > 1 else list(op)

def allreduce64(k, regs, tmp):
    for sh in (8, 4, 2, 1):
        k.e("s_nop 1")
        for r in regs: k.e(f"v_add_f32_dpp v{r}, v{r}, v{r} row_ror:{sh} row_mask:0xf bank_mask:0xf")
    for sw in ("v_permlane16_swap_b32", "v_permlane32_swap_b32"):
        for q, r in enumerate(regs): k.e(f"v_mov_b32 v{tmp+q}, v{r}")
        k.e("s_nop 1")
        for q, r in enumerate(regs): k.e(f"{sw} v{r}, v{tmp+q}")
        k.e("s_nop 1")
        for q, r in enumerate(regs): k.e(f"v_add_f32 v{r}, v{r}, v{tmp+q}")

def gen_k0(first="k0_kernel", last="L_k5_kernel_end", wpf=True, tlb=0):
    k = KB("k0_kernel", 72, 0, 0)
    prologue(k)
    k.e("""
    v_lshlrev_b32 v1, 4, v0
    s_lshl_b32 s46, s2, 2
    s_add_u32 s46, s46, s3
    s_lshl_b32 s47, s46, 12
    s_and_b32 s48, s45, 1
    s_lshl_b32 s48, s48, 2
    s_add_u32 s48, s48, s3
    v_lshlrev_b32 v60, 6, v0
    s_mul_i32 s49, s46, 6144
    v_lshlrev_b32 v61, 2, v0
    s_lshl_b32 s50, s46, 8
    v_mov_b32 v62, 0
    """)
    if OPT.codepf: code_pf_addr(k, first, last, 64, 0, 48)
    k.e("s_waitcnt lgkmcnt(0)")
    srd(k, 24, 4, 5, S_*D_*2)
    for q in range(4): k.e(f"buffer_load_dwordx4 v[{4+4*q}:{7+4*q}], v1, s[24:27], s47 offen offset:{q*1024}")
    srd(k, 32, 6, 7, D_*3*D_*2)
    if OPT.codepf: k.e(code_pf(66, 64))
    k.e(f"v_min_u32 v60, {47 if wpf else 0}, v0\nv_lshlrev_b32 v60, 7, v60\nbuffer_load_dword v67, v60, s[32:35], s49 offen")
    srd(k, 28, 22, 23, S_*D_*2, WS_XN)
    srd(k, 36, 22, 23, ZERO_BYTES, WS_ST)
    k.e(f"buffer_store_dword v62, v61, s[36:39], s50 offen {OPT.st}")
    ntl = 0
    if tlb:
        srd(k, 40, 22, 23, 128*MB)
        if tlb == 1:
            k.e("v_lshlrev_b32 v63, 21, v0\nbuffer_load_dword v69, v63, s[40:43], 0 offen")
        else:
            k.e("s_lshl_b32 s51, s45, 22\nv_lshlrev_b32 v63, 16, v0\nbuffer_load_dword v69, v63, s[40:43], s51 offen")
            k.e("s_and_b32 s51, s45, 1\ns_lshl_b32 s51, s51, 22")
        ntl = 1
        for (r, nb) in ((6, D_*3*D_*2), (8, D_*D_*2), (12, D_*F_*2), (14, D_*F_*2), (16, D_*F_*2), (18, S_*D_*2)):
            srd(k, 40, r, r+1, nb)
            k.e(f"buffer_load_dword v69, v63, s[40:43], {'0' if tlb == 1 else 's51'} offen"); ntl += 1
    stamp(k, 1)
    k.e(f"s_waitcnt vmcnt({ntl + (3 if OPT.codepf else 2)})")
    for q in range(16):
        k.e(f"v_lshlrev_b32 v{24+2*q}, 16, v{4+q}\nv_and_b32 v{25+2*q}, 0xffff0000, v{4+q}")
    for r in range(2):
        b = 24 + 16 * r
        k.e(pk("add", 56, b, b+2))
        for q in range(4, 16, 2): k.e(pk("add", 56, 56, b+q))
        k.e(f"v_add_f32 v{2+r}, v56, v57")
    allreduce64(k, [2, 3], 20)
    for r in range(2):
        b = 24 + 16 * r
        k.e(f"v_mul_f32 v{2+r}, {fbits(1.0/D_)}, v{2+r}")
        for q in range(0, 16, 2): k.e(pk("add", b+q, b+q, ('nb', 2+r)))
        k.e(pk("mul", 56, b, b))
        for q in range(2, 16, 2): k.e(pk("fma", 56, b+q, b+q, 56))
        k.e(f"v_add_f32 v{2+r}, v56, v57")
    allreduce64(k, [2, 3], 20)
    k.e(f"v_mov_b32 v20, {fbits(1e-5)}\nv_mov_b32 v21, {fbits(1e-5)}")
    for r in range(2): k.e(f"v_fmac_f32 v{20+r}, {fbits(1.0/D_)}, v{2+r}")
    k.e("v_rsq_f32 v2, v20\nv_rsq_f32 v3, v21\ns_nop 0")
    stamp(k, 2)
    for r in range(2):
        b = 24 + 16 * r
        for h in range(2):
            for q in range(0, 8, 2): k.e(pk("mul", b+8*h+q, b+8*h+q, ('b', 2+r)))
            for q in range(4): k.e(f"v_cvt_pk_bf16_f32 v{4+8*r+4*h+q}, v{b+8*h+2*q}, v{b+8*h+2*q+1}")
            qq = 2*r + h
            k.e(f"buffer_store_dwordx4 v[{4+4*qq}:{7+4*qq}], v1, s[28:31], s47 offen offset:{qq*1024} {OPT.st}")
    finish(k, 0)
    return k

def gen_k1(D=2, ROT=1):
    STG = 40960
    k = KB("k1_kernel", 160, 112, 4 * STG)
    ACC = lambda j, i: (j * 4 + i) * 4
    VDX = 96
    VDW = 100
    VRX = 106
    VRW = 114
    VL = 122; VPF = 123; VT = 124; VPA = 132
    AX = lambda st, i, s_: (st % 2) * 32 + (i * 2 + s_) * 4
    AW = lambda j, s_: 64 + j * 8 + s_ * 4
    prologue(k)
    k.e(f"v_mov_b32 v{VL}, v0")
    if ROT:
        k.e("""
        s_and_b32 s46, s45, 7
        s_lshl_b32 s46, s46, 1
        s_and_b32 s47, s44, 1
        s_add_u32 s46, s46, s47
        s_lshr_b32 s47, s44, 1
        s_lshl_b32 s47, s47, 2
        s_lshr_b32 s48, s45, 3
        s_add_u32 s47, s47, s48
        """)
    else: tile_map(k, 3, 1, 46, 47)
    k.e(f"""
    s_lshr_b32 s48, s3, 1            ; wm
    s_and_b32 s49, s3, 1             ; wn
    v_lshrrev_b32 v{VT}, 3, v{VL}       ; l/8
    v_and_b32 v{VT+1}, 7, v{VL}         ; p
    v_lshrrev_b32 v{VT+2}, 1, v{VT}     ; (l/8)>>1  (0..3)
    v_xor_b32 v{VT+3}, v{VT+1}, v{VT+2}
    s_lshl_b32 s50, s46, 7
    s_lshl_b32 s51, s3, 5
    s_add_u32 s50, s50, s51
    s_lshl_b32 s50, s50, 11             ; (rb*128 + w*32)*2048
    v_lshlrev_b32 v{VT+4}, 11, v{VT}
    v_add_u32 v{VT+4}, s50, v{VT+4}
    v_lshl_add_u32 v{VDX}, v{VT+3}, 4, v{VT+4}
    v_xor_b32 v{VT+3}, 4, v{VT+3}
    v_lshl_add_u32 v{VDX+1}, v{VT+3}, 4, v{VT+4}
    v_add_u32 v{VDX+2}, {2*15360}, v{VDX}
    v_add_u32 v{VDX+3}, {3*15360}, v{VDX+1}
    v_add_u32 v{VDX+1}, {15360}, v{VDX+1}
    v_and_b32 v{VT+2}, 1, v{VT+2}
    v_lshlrev_b32 v{VT+2}, 1, v{VT+2}
    v_xor_b32 v{VT+3}, v{VT+1}, v{VT+2}
    v_mul_u32_u24 v{VT+4}, 6144, v{VT}
    s_mul_i32 s50, s3, {16*6144}
    s_lshl_b32 s51, s47, 7
    s_add_u32 s50, s50, s51
    v_add_u32 v{VT+4}, s50, v{VT+4}
    v_lshl_add_u32 v{VDW}, v{VT+3}, 4, v{VT+4}
    v_xor_b32 v{VT+3}, 4, v{VT+3}
    v_lshl_add_u32 v{VDW+1}, v{VT+3}, 4, v{VT+4}
    v_add_u32 v{VDW+1}, {8*6144 - 1024}, v{VDW+1}
    """)
    for sg in range(1, 3):
        k.e(f"v_add_u32 v{VDW+2*sg}, {2048*sg}, v{VDW}\nv_add_u32 v{VDW+2*sg+1}, {2048*sg}, v{VDW+1}")
    k.e(f"""
    s_lshl_b32 s53, s3, 12
    s_lshl_b32 s54, s3, 11
    s_add_u32 s54, s54, 16384
    s_mov_b32 s58, 0
    s_mov_b32 s59, {OOB}
    s_mov_b32 s63, {'s46' if ROT else '0'}
    s_mul_i32 s56, s63, {64*6144}
    s_lshl_b32 s57, s63, 7
    """)
    zero = [f"v_mov_b32 v{r}, 0" for r in range(96)]
    for x in zero[:40]: k.e(x)
    k.e("s_waitcnt lgkmcnt(0)")
    srd(k, 24, 6, 7, D_*3*D_*2)
    srd(k, 28, 22, 23, S_*D_*2, WS_XN)
    def vmem_ops(slot):
        ops = []
        for q in range(4):
            o = [f"buffer_load_dwordx4 v{VDX+q}, s[28:31], s57 offen offset:{q*1024} lds"]
            if q == 0: o = [f"s_add_u32 m0, s53, {slot*STG}"] + o
            ops.append(o)
        for sg in range(3):
            for q in range(2):
                o = [f"buffer_load_dwordx4 v{VDW+2*sg+q}, s[24:27], s56 offen offset:{q*1024} lds"]
                if q == 0: o = [f"s_add_u32 m0, s54, {slot*STG + sg*8192}"] + o
                ops.append(o)
        return ops
    adv = ["s_add_u32 s63, s63, 1", "s_and_b32 s63, s63, 15", f"s_mul_i32 s56, s63, {64*6144}", "s_lshl_b32 s57, s63, 7",
           "s_add_u32 s58, s58, 1", "s_cmp_lt_u32 s58, 16", "s_cselect_b32 s56, s56, s59", "s_cselect_b32 s57, s57, s59"]
    for o in vmem_ops(0): k.e("\n".join(with_nop(o)))
    k.e("\n".join(adv))
    setup = f"""
    v_and_b32 v{VT}, 15, v{VL}
    v_lshrrev_b32 v{VT+1}, 4, v{VL}
    v_lshrrev_b32 v{VT+2}, 1, v{VT}
    v_xor_b32 v{VT+2}, v{VT+1}, v{VT+2}
    s_lshl_b32 s50, s48, 13
    v_lshlrev_b32 v{VT+3}, 7, v{VT}
    v_add_u32 v{VT+3}, s50, v{VT+3}
    v_lshl_add_u32 v{VRX}, v{VT+2}, 4, v{VT+3}
    v_xor_b32 v{VRX+1}, 64, v{VRX}
    v_lshrrev_b32 v{VT+2}, 2, v{VT}
    v_lshl_add_u32 v{VT+3}, v{VT+1}, 3, v{VT+2}
    v_lshrrev_b32 v{VT+2}, 1, v{VT+2}
    v_and_b32 v{VT+4}, 1, v{VT+1}
    v_lshl_add_u32 v{VT+2}, v{VT+4}, 1, v{VT+2}
    s_lshl_b32 s50, s49, 1
    v_xor_b32 v{VT+2}, s50, v{VT+2}
    v_lshlrev_b32 v{VT+2}, 5, v{VT+2}
    v_lshl_add_u32 v{VT+2}, v{VT+3}, 7, v{VT+2}
    v_and_b32 v{VT+4}, 3, v{VL}
    v_lshl_add_u32 v{VT+2}, v{VT+4}, 3, v{VT+2}
    v_add_u32 v{VRW}, 16384, v{VT+2}
    v_xor_b32 v{VRW+1}, 32, v{VRW}
    """.strip().split("\n")
    setup = [x.strip() for x in setup]
    for sl in range(1, 4):
        for q in range(2):
            setup += [f"v_add_u32 v{VRX+2*sl+q}, {sl*STG}, v{VRX+q}", f"v_add_u32 v{VRW+2*sl+q}, {sl*STG}, v{VRW+q}"]
    setup += zero[40:]
    for x in sprinkle(setup, [with_nop(o) for o in vmem_ops(1)]): k.e(x)
    k.e("\n".join(adv))
    def wreads(slot, j):
        return [f"ds_read_b64_tr_b16 {a(AW(j,s_)+2*rd,2)}, v{VRW+2*slot+j%2} offset:{(j//2)*8192 + (32*s_+4*rd)*128}" for s_ in range(2) for rd in range(2)]
    def xreads(slot):
        return [f"ds_read_b128 {a(AX(slot,i,s_),4)}, v{VRX+2*slot+s_} offset:{i*2048}" for i in range(4) for s_ in range(2)]
    NH = 3
    body = []; tail_reads = []
    for st in range(4):
        main = []; side = {}
        vm_a = vmem_ops((st + 2) % 4)[NH:]
        vm_b = vmem_ops((st + 3) % 4)[:NH]
        xr = xreads((st + 1) % 4)
        for j in range(6):
            for i in range(4):
                for s_ in range(2):
                    w_, x_ = a(AW(j,s_),4), a(AX(st,i,s_),4)
                    if j >= 4: w_, x_ = x_, w_
                    main.append(f"v_mfma_f32_16x16x32_bf16 {v(ACC(j,i),4)}, {w_}, {x_}, {v(ACC(j,i),4)}")
        def place(o, pos):
            if len(o) > 1: side.setdefault(pos - 1, []).append(o[0])
            side.setdefault(pos, []).append(o[-1])
        nb = 8 * (6 - D)
        for q, o in enumerate(vm_a): place(o, 1 + q * (nb - 8) // len(vm_a))
        for q, x in enumerate(adv): side.setdefault(nb - 8 + q - 1, []).append(x)
        side.setdefault(nb - 1, []).extend(["s_waitcnt vmcnt(10)", "s_barrier"])
        for q, o in enumerate(vm_b): place(o, nb + 2 + q * (8 * D - 3) // len(vm_b))
        for j in range(6):
            g0 = 8 * j
            jj = j + D
            rd = wreads(st if jj < 6 else (st + 1) % 4, jj % 6)
            if j >= 6 - D:
                n = (8 + D - 1) // D
                rd = rd + xr[:n]; xr = xr[n:]
                if st == 3: tail_reads += rd
            for q, x in enumerate(rd): side.setdefault(g0 + q, []).append(x)
        if st == 3:
            side.setdefault(45, []).append("s_sub_u32 s62, s62, 1")
            side.setdefault(46, []).append("s_cmp_lg_u32 s62, 0")
        body += flatten(main, side)
    body = auto_lgkm(body, tail_reads)
    L = k.label("loop"); Lep = k.label("epi")
    if OPT.codepf: code_pf_addr(k, Lep, "L_k5_kernel_end", VPA, VL, 3)
    k.e("s_waitcnt vmcnt(10)\ns_barrier")
    stamp(k, 1)
    for x in tail_reads: k.e(x)
    if OPT.codepf: k.e(code_pf(VPF, VPA))
    for o in vmem_ops(2)[:NH]: k.e("\n".join(with_nop(o)))
    k.e("s_mov_b32 s62, 4")
    k.e(f".p2align 6\n{L}:")
    for x in body: k.e(x)
    k.e(f"s_cbranch_scc1 {L}\n{Lep}:")
    stamp(k, 2)
    srd(k, 32, 22, 23, S_*D_*2, WS_Q)
    srd(k, 36, 22, 23, S_*D_*4, WS_KV)
    k.e(f"""
    s_lshl_b32 s50, s47, 1
    s_add_u32 s50, s50, s49
    s_lshl_b32 s50, s50, 6
    s_lshl_b32 s51, s46, 2
    s_add_u32 s50, s50, s51
    s_lshl_b32 s51, s48, 1
    s_add_u32 s50, s50, s51
    s_lshl_b32 s60, s50, 11
    s_lshl_b32 s61, s50, 12
    s_add_u32 s63, s61, 4096
    v_and_b32 v{VT}, 15, v{VL}          ; t
    v_lshrrev_b32 v{VT+1}, 4, v{VL}     ; g
    v_lshlrev_b32 v{VT+1}, 9, v{VT+1}   ; g*512
    v_lshl_add_u32 v{VRX}, v{VT}, 4, v{VT+1}
    v_lshrrev_b32 v{VT+2}, 3, v{VT}
    v_and_b32 v{VT+3}, 7, v{VT}
    v_lshl_add_u32 v{VT+2}, v{VT+2}, 4, v{VT+3}   ; 16*(t/8) + t%8
    v_lshl_add_u32 v{VRX+1}, v{VT+2}, 4, v{VT+1}
    v_mov_b32 v{VT+4}, {fbits(LOG2E / 32 ** 0.5)}
    """)
    fl = OPT.st
    def cvt4(o, u):
        k.e(f"v_cvt_pk_bf16_f32 v{o}, v{o}, v{o+1}\nv_cvt_pk_bf16_f32 v{o+1}, v{o+2}, v{o+3}")
        k.e(f"v_cvt_pk_bf16_f32 v{o+2}, v{u}, v{u+1}\nv_cvt_pk_bf16_f32 v{o+3}, v{u+2}, v{u+3}")
    for i in range(4):
        o = ACC(2, i); cvt4(o, ACC(3, i))
        k.e(f"buffer_store_dwordx4 {v(o,4)}, v{VRX+1}, s[36:39], s{61 if i < 2 else 63} offen offset:{(i%2)*128} {fl}")
    for p in range(2):
        for fb in range(2):
            o = ACC(4 + fb, 2*p); cvt4(o, ACC(4 + fb, 2*p + 1))
            k.e(f"buffer_store_dwordx4 {v(o,4)}, v{VRX}, s[36:39], s{61 if p == 0 else 63} offen offset:{2048 + fb*256} {fl}")
    for i in range(4):
        o = ACC(0, i); u = ACC(1, i)
        for r in (0, 2): k.e(pk("mul", o+r, o+r, ('b', VT+4)) + "\n" + pk("mul", u+r, u+r, ('b', VT+4)))
        cvt4(o, u)
        k.e(f"buffer_store_dwordx4 {v(o,4)}, v{VRX}, s[32:35], s60 offen offset:{(i//2)*2048 + (i%2)*256} {fl}")
    finish(k, 1)
    return k

def gen_k2(force_fb=False, abl='', W2COLS=64):
    k = KB("k2_kernel", 180, 72, 65536 + 64)
    VS = lambda b: b * 16
    VC = lambda q: 32 + q * 16
    VP = lambda b: 64 + b * 8
    VO = lambda q: 80 + q * 16
    VLs = lambda q: 112 + q * 16
    VONE = 144
    VIDX = 148
    VKA = 149; VVA = 150; VL16 = 151; VL = 152
    VCSA = 153; VCPS = 154; VCPD = 155
    VSEL = 156
    VCSD = 160
    VT = 164
    VPA = 176; VPF = 178
    AQ = lambda q, s_: q * 8 + s_ * 4
    AK = lambda b, s_: 16 + b * 8 + s_ * 4
    AV = lambda b, s_: 32 + b * 8 + s_ * 4
    ACSL = lambda b: 48 + b * 4
    ACP = lambda b: 56 + b * 4
    prologue(k)
    k.e(f"""
    v_mov_b32 v{VL}, v0
    v_lshlrev_b32 v{VL16}, 4, v0
    s_lshl_b32 s46, s44, 2
    s_lshr_b32 s47, s45, 3
    s_add_u32 s46, s46, s47          ; head
    s_and_b32 s47, s45, 7            ; qblk (256)
    s_lshl_b32 s48, s47, 3
    s_lshl_b32 s49, s3, 1
    s_add_u32 s48, s48, s49
    s_lshl_b32 s49, s46, 6
    s_add_u32 s49, s49, s48
    s_lshl_b32 s49, s49, 11
    s_lshl_b32 s53, s3, 12           ; wave lds offset
    s_lshl_b32 s52, s46, 18
    s_add_u32 s52, s52, s53
    s_mov_b32 s59, {OOB}
    s_mov_b32 s70, 0
    v_and_b32 v{VT}, 15, v{VL}
    v_lshrrev_b32 v{VT+1}, 4, v{VL}
    v_mul_u32_u24 v{VT+2}, 7168, v{VT+1}
    v_lshl_add_u32 v{VCSA}, v{VT}, 4, v{VT+2}
    """)
    for r in range(4):
        k.e(f"""
        v_cmp_eq_u32 vcc, {2*r}, v{VT}
        v_mov_b32 v{VT+2}, 0x3f80
        v_cndmask_b32 v{VSEL+r}, 0, v{VT+2}, vcc
        v_cmp_eq_u32 vcc, {2*r+1}, v{VT}
        v_mov_b32 v{VT+2}, 0x3f800000
        v_cndmask_b32 v{VSEL+r}, v{VSEL+r}, v{VT+2}, vcc
        """.replace("v_cndmask", "s_nop 0\nv_cndmask"))
    k.e(f"""
    v_and_b32 v{VT+2}, 26, v{VL}
    v_cmp_eq_u32 vcc, 0, v{VT+2}
    v_mov_b32 v{VT+3}, 0x3f803f80
    s_nop 0
    v_cndmask_b32 v{VONE}, 0, v{VT+3}, vcc
    v_and_b32 v{VT+2}, 1, v{VL}
    v_cmp_eq_u32 vcc, 0, v{VT+2}
    v_mov_b32 v{VT+3}, 0x44444444
    v_mov_b32 v{VT+4}, 0xeeeeeeee
    v_cndmask_b32 v{VIDX}, v{VT+4}, v{VT+3}, vcc
    v_mov_b32 v{VONE+1}, v{VONE}
    v_mov_b32 v{VONE+2}, v{VONE}
    v_mov_b32 v{VONE+3}, v{VONE}
    """)
    k.e("s_waitcnt lgkmcnt(0)")
    srd(k, 24, 22, 23, S_*D_*4, WS_KV)
    srd(k, 28, 22, 23, S_*D_*2, WS_Q)
    for q in range(2):
        for s_ in range(2):
            k.e(f"buffer_load_dwordx4 {a(AQ(q,s_),4)}, v{VL16}, s[28:31], s49 offen offset:{q*2048+s_*1024}")
    def dma(): return [f"buffer_load_dwordx4 v{VL16}, s[24:27], s57 offen offset:{q*1024} lds" for q in range(4)]
    adv = ["s_add_u32 s56, s56, 16384", "s_add_u32 s57, s56, s52", "s_cmp_lt_u32 s56, 0x40000", "s_cselect_b32 s57, s57, s59",
           "s_add_u32 s58, s58, 16384", "s_and_b32 s58, s58, 0xffff", "s_mov_b32 m0, s58"]
    Lre = k.label("restart"); Lside = k.label("noside")
    k.e(f"{Lre}:\ns_mov_b32 s56, 0\ns_mov_b32 s57, s52\ns_mov_b32 s58, s53\ns_mov_b32 m0, s58\ns_nop 0")
    for st in range(3):
        k.e("\n".join(dma()))
        if st < 2: k.e("\n".join(adv) + "\ns_nop 0")
    assert W2COLS in (64, 128)
    M18 = (1 << 16) // 18 + 1
    for x in range(1024): assert (x * M18) >> 16 == x // 18
    k.e(f"""
    s_lshl_b32 s64, s2, 2
    s_add_u32 s64, s64, s3
    s_mul_i32 s68, s64, {M18}
    s_lshr_b32 s68, s68, 16          ; c
    s_mul_i32 s69, s68, 18
    s_sub_u32 s69, s64, s69          ; p
    s_lshl_b32 s71, s68, 9
    s_cmp_lt_u32 s68, 28
    s_cselect_b32 s32, s12, s14
    s_cselect_b32 s33, s13, s15
    s_cselect_b32 s65, 0, 28
    s_sub_u32 s68, s68, s65          ; chunk
    s_mul_i32 s66, s69, {60*7168}
    s_lshl_b32 s68, s68, 8
    s_add_u32 s66, s66, s68
    s_cmp_lt_u32 s64, 1008
    s_cselect_b32 s66, s66, s59
    s_cselect_b32 s71, s71, s59
    s_mov_b32 s34, {D_*F_*2}
    s_mov_b32 s35, 0x20000
    s_mov_b32 s38, {D_*D_*2}
    s_mov_b32 s74, {WS_WOT}
    s_mov_b32 s72, {D_//8}
    s_cmp_lt_u32 s64, 512
    s_cselect_b32 s36, s16, s8
    s_cselect_b32 s37, s17, s9
    s_cselect_b32 s38, {F_*D_*2}, s38
    s_cselect_b32 s74, {WS_W2T}, s74
    s_cselect_b32 s72, {F_//8}, s72
    s_cselect_b32 s75, 14, 8         ; units
    s_mov_b32 s39, 0x20000
    s_add_u32 s40, s22, s74
    s_addc_u32 s41, s23, 0
    s_mov_b32 s42, {PLANE + F_*D_*2}
    s_mov_b32 s43, 0x20000
    s_and_b32 s68, s64, 15
    s_bfe_u32 s69, s64, 0x50004
    s_mul_i32 s69, s69, s75
    s_add_u32 s54, s75, 2
    s_lshl_b32 s54, s54, 14
    v_lshrrev_b32 v{VT+2}, 3, v{VL}     ; r
    v_and_b32 v{VT+3}, 7, v{VL}         ; p
    v_and_b32 v{VT+4}, 6, v{VT+2}
    v_xor_b32 v{VT+4}, v{VT+4}, v{VT+3}
    v_lshlrev_b32 v{VT+4}, 4, v{VT+4}
    v_lshl_add_u32 v{VCPS}, v{VT+2}, 11, v{VT+4}
    v_mov_b32 v{VCPD}, v{VL16}
    s_lshl_b32 s67, s69, 14
    s_lshl_b32 s73, s68, 7
    s_add_u32 s67, s67, s73
    s_mul_i32 s72, s72, s68
    s_add_u32 s72, s72, s69
    s_lshl_b32 s73, s72, 10
    s_mov_b32 s55, 1024
    """)
    if W2COLS == 128:
        Lw = k.label("now2")
        k.e(f"""
        s_cmp_eq_u32 s75, 8
        s_cbranch_scc1 {Lw}
        v_lshrrev_b32 v{VT+4}, 1, v{VT+3}
        v_xor_b32 v{VT+4}, v{VT+4}, v{VT+2}
        v_lshlrev_b32 v{VT+4}, 5, v{VT+4}
        v_and_b32 v{VT+5}, 1, v{VT+3}
        v_lshl_add_u32 v{VT+4}, v{VT+5}, 4, v{VT+4}
        s_and_b32 s72, s68, 1
        s_lshl_b32 s72, s72, 7
        v_xor_b32 v{VT+4}, s72, v{VT+4}
        v_lshl_add_u32 v{VCPS}, v{VT+2}, 11, v{VT+4}
        v_lshlrev_b32 v{VT+4}, 8, v{VT+2}
        v_lshl_add_u32 v{VT+4}, v{VT+3}, 4, v{VT+4}
        v_add_u32 v{VCPD}, s72, v{VT+4}
        s_lshr_b32 s72, s68, 1
        s_lshl_b32 s67, s69, 14
        s_lshl_b32 s73, s72, 8
        s_add_u32 s67, s67, s73
        s_mul_i32 s72, s72, {F_*256}
        s_lshl_b32 s73, s69, 11
        s_add_u32 s73, s73, s72
        s_mov_b32 s55, 2048
        {Lw}:
        """)
    reloc(k, VCPD, VT+4)
    k.e(f"""
    s_cmp_lt_u32 s64, 768
    s_cselect_b32 s67, s67, s59
    s_cselect_b32 s73, s73, s59
    s_cmp_lg_u32 s70, 0
    s_cselect_b32 s66, s59, s66
    s_cselect_b32 s67, s59, s67
    s_cselect_b32 s73, s59, s73
    s_mov_b32 s74, s59
    s_mov_b32 s72, s59
    """)
    for r in range(4): k.e(f"v_mov_b32 v{VCSD+r}, 0")
    for r in range(8): k.e(f"v_accvgpr_write_b32 a{ACSL(0)+r}, 0")
    for r in list(range(72, 144)): k.e(f"v_mov_b32 v{r}, 0")
    for r in range(8): k.e(f"v_accvgpr_write_b32 a{AV(1,0)+r}, 0")
    k.e(f"v_mov_b32 v{VKA}, v{VL16}\nv_mov_b32 v{VVA}, v{VL16}")
    L = k.label("loop"); Lep = k.label("epi")
    if OPT.codepf: code_pf_addr(k, Lep, "L_k5_kernel_end", VPA, VL, 3)
    k.e("s_waitcnt vmcnt(8)\ns_barrier")
    stamp(k, 1)
    def kread(kb): return [f"ds_read_b128 {a(AK(kb%2,s_),4)}, v{VKA} offset:{(kb%4)*4096 + s_*1024}" for s_ in range(2)]
    def vread(kb): return [f"ds_read_b128 {a(AV(kb%2,s_),4)}, v{VVA} offset:{(kb%4)*4096 + 2048 + s_*1024}" for s_ in range(2)]
    for x in kread(0) + kread(1): k.e(x)
    Lskip = k.label("havemax")
    k.e(f"s_waitcnt lgkmcnt(0)\ns_cmp_lg_u32 s70, 0\ns_cbranch_scc1 {Lskip}")
    for q in range(2):
        k.e(f"v_mfma_f32_32x32x16_bf16 {v(VS(q),16)}, {a(AK(0,0),4)}, {a(AQ(q,0),4)}, 0")
        k.e(f"v_mfma_f32_32x32x16_bf16 {v(VS(q),16)}, {a(AK(0,1),4)}, {a(AQ(q,1),4)}, {v(VS(q),16)}")
    k.e("s_nop 9")
    def maxfin():
        k.e(f"v_mov_b32 v{VT+2}, v{VT}\nv_mov_b32 v{VT+3}, v{VT+1}\ns_nop 0")
        k.e(f"v_permlane32_swap_b32 v{VT}, v{VT+2}\nv_permlane32_swap_b32 v{VT+1}, v{VT+3}\ns_nop 0")
        k.e(f"v_max_f32 v{VT}, v{VT}, v{VT+2}\nv_max_f32 v{VT+1}, v{VT+1}, v{VT+3}\nv_mov_b32 v{VT+2}, -1.0")
        for q in range(2):
            for r in range(0, 16, 2): k.e(pk("mul", VC(q)+r, ('b', VT+q), ('b', VT+2)))
    for q in range(2):
        b = VS(q)
        k.e(f"v_max3_f32 v{VT+q}, v{b}, v{b+1}, v{b+2}\nv_max3_f32 v{VT+2}, v{b+3}, v{b+4}, v{b+5}")
        for r in range(6, 14, 4): k.e(f"v_max3_f32 v{VT+q}, v{VT+q}, v{b+r}, v{b+r+1}\nv_max3_f32 v{VT+2}, v{VT+2}, v{b+r+2}, v{b+r+3}")
        k.e(f"v_max3_f32 v{VT+q}, v{VT+q}, v{b+14}, v{b+15}\nv_max_f32 v{VT+q}, v{VT+q}, v{VT+2}")
        if q == 0: k.e("s_nop 3")
    maxfin()
    k.e(f"{Lskip}:\ns_nop 1")
    def qk(n):
        q = n % 2; kb = n // 2
        return [f"v_mfma_f32_32x32x16_bf16 {v(VS(q),16)}, {a(AK(kb%2,0),4)}, {a(AQ(q,0),4)}, {v(VC(q),16)}",
                f"v_mfma_f32_32x32x16_bf16 {v(VS(q),16)}, {a(AK(kb%2,1),4)}, {a(AQ(q,1),4)}, {v(VS(q),16)}"]
    def pv(n):
        q = n % 2; kb = n // 2
        return [f"v_mfma_f32_32x32x16_bf16 {v(VO(q),16)}, {a(AV(kb%2,s_),4)}, {v(VP(q)+4*s_,4)}, {v(VO(q),16)}" for s_ in range(2)] + \
               [f"v_smfmac_f32_32x32x32_bf16 {v(VLs(q),16)}, {v(VONE,4)}, {v(VP(q),8)}, v{VIDX}"]
    for x in qk(0): k.e(x)
    k.e("s_mov_b32 s62, 8\ns_waitcnt vmcnt(4)")
    if OPT.codepf: k.e(code_pf(VPF, VPA))
    k.e("s_nop 8")
    csm = lambda st: f"v_mfma_f32_16x16x32_bf16 {v(VCSD,4)}, {v(VSEL,4)}, {a(ACSL(st),4)}, {v(VCSD,4)}"
    cpst = lambda st, so: f"buffer_store_dwordx4 {a(ACP(st),4)}, v{VCPD}, s[40:43], s{so} offen {OPT.st}"
    body = []
    for st in range(2):
        for n in range(8):
            q = n % 2
            b = VS(q)
            ex = lambda r: f"v_exp_f32 v{b+r}, v{b+r}"
            cv = lambda r: f"v_cvt_pk_bf16_f32 v{VP(q)+r}, v{b+2*r}, v{b+2*r+1}"
            m = qk(n + 1) + pv(n - 1)
            seg = [[ex(0), ex(1), ex(2), ex(3)],
                   [ex(4), cv(0), ex(5), cv(1), ex(6)],
                   [ex(7), cv(2), ex(8), ex(9), cv(3)],
                   [ex(10), ex(11), cv(4), ex(12), cv(5)],
                   [ex(13), ex(14), ex(15), cv(6), cv(7)]]
            after = [[] for _ in range(5)]
            rd = kread((n + 3) // 2) if n % 2 == 1 else vread(n // 2)
            d = dma()
            csl = f"buffer_load_dwordx4 {a(ACSL(st),4)}, v{VCSA}, s[32:35], s66 offen"
            cpl = f"buffer_load_dwordx4 {a(ACP(st),4)}, v{VCPS}, s[36:39], s67 offen"
            plan = {
              0: {1: ["s_waitcnt vmcnt(11)"], 2: [adv[0]], 4: [adv[1]]},
              1: {2: [cpst(st, 74), cpl], 3: [adv[2]], 4: [adv[3]]},
              2: {1: [adv[4]], 2: [adv[5]], 4: [adv[6]]},
              3: {2: [csl], 3: [f"s_add_u32 s66, s66, {4*7168}"], 4: ["s_add_u32 s67, s67, 16384"]},
              4: {1: ["s_mov_b32 s74, s72"], 2: ["s_mov_b32 s72, s73"], 4: ["s_waitcnt vmcnt(10)"]},
              5: {0: ["s_barrier"], 2: d[:2], 3: ["s_add_u32 s73, s73, s55"], 4: [f"s_cmp_lt_u32 s56, {17*16384}"]},
              6: {1: ["s_cselect_b32 s66, s66, s59"], 2: ["s_cmp_lt_u32 s56, s54"], 4: ["s_cselect_b32 s67, s67, s59"]},
              7: {2: ["s_cselect_b32 s73, s73, s59"] + d[2:], 3: ["s_sub_u32 s62, s62, 1"] if st else [], 4: ["s_cmp_lg_u32 s62, 0"] if st else []},
            }[n]
            for j_, x in plan.items(): after[j_] += x
            after[0] += rd
            if n % 2 == 1: after[1].append("s_waitcnt lgkmcnt(2)")
            else: after[3].append("s_waitcnt lgkmcnt(2)")
            if n == 4: seg[2] = [f"v_add_u32 v{VKA}, 0x4000, v{VKA}", f"v_and_b32 v{VKA}, 0xffff, v{VKA}"] + seg[2]
            if n == 7: seg[2] = [f"v_add_u32 v{VVA}, 0x4000, v{VVA}", f"v_and_b32 v{VVA}, 0xffff, v{VVA}"] + seg[2]
            if n == 3: seg[1] = seg[1][:3] + [csm(st)] + seg[1][3:]
            for j_ in range(5):
                body.append(m[j_]); body += [x for x in after[j_] if x != "s_nop 0"]; body += seg[j_]
    if 'novm' in abl: body = [x for x in body if not x.startswith('buffer_')]
    if 'noside' in abl: body = [x.replace('vmcnt(10)', 'vmcnt(4)') for x in body if not (x.startswith('buffer_') and 'lds' not in x)]
    if 'nost' in abl: body = [x.replace('vmcnt(10)', 'vmcnt(8)') for x in body if not x.startswith('buffer_store')]
    if 'nowait' in abl: body = [x for x in body if 'vmcnt' not in x]
    body = auto_lgkm(body, kread(1))
    k.e(f".p2align 6\n{L}:")
    for x in body: k.e(x)
    k.e(f"s_cbranch_scc1 {L}\n{Lep}:")
    k.e("s_nop 1")
    for x in pv(7): k.e(x)
    k.e("s_waitcnt vmcnt(11) lgkmcnt(0)")
    stamp(k, 2)
    Lno = k.label("nofb")
    k.e(f"s_cmp_lg_u32 s70, 0\ns_cbranch_scc1 {Lno}")
    k.e(csm(0))
    srd(k, 28, 22, 23, 2*F_*4, WS_CS)
    k.e(f"""
    v_and_b32 v{VT+8}, 15, v{VL}
    v_lshrrev_b32 v{VT+1}, 4, v{VL}
    v_lshlrev_b32 v{VT+8}, 5, v{VT+8}
    v_lshl_add_u32 v{VT+8}, v{VT+1}, 4, v{VT+8}
    v_lshrrev_b32 v{VT+1}, 1, v{VT+1}
    v_lshl_add_u32 v{VT+8}, v{VT+1}, 29, v{VT+8}
    v_add_f32 v{VT}, v{VLs(0)}, v{VLs(0)+1}
    v_add_f32 v{VT+1}, v{VLs(1)}, v{VLs(1)+1}
    v_add_f32 v{VT}, v{VT}, v{VT+1}
    v_mov_b32 v{VT+2}, {fbits(2.0**40 if not force_fb else 0.5)}
    v_cmp_nlt_f32 vcc, v{VT}, v{VT+2}
    s_lshl_b32 s60, s3, 2
    s_add_u32 s60, s60, 65536
    v_mov_b32 v{VT+2}, s60
    s_cmp_lg_u64 vcc, 0
    s_cselect_b32 s61, 1, 0
    v_mov_b32 v{VT+3}, s61
    ds_write_b32 v{VT+2}, v{VT+3}
    v_mov_b32 v{VT+2}, 65536
    """)
    for r in range(4): k.e(f"buffer_atomic_add_f32 v{VCSD+r}, v{VT+8}, s[28:31], s71 offen offset:{4*r}")
    k.e(f"""
    s_waitcnt lgkmcnt(0)
    s_barrier
    ds_read_b128 {v(VT+4,4)}, v{VT+2}
    s_waitcnt lgkmcnt(0)
    v_or_b32 v{VT+4}, v{VT+4}, v{VT+5}
    v_or3_b32 v{VT+4}, v{VT+4}, v{VT+6}, v{VT+7}
    s_nop 0
    v_readfirstlane_b32 s61, v{VT+4}
    s_nop 3
    s_cmp_eq_u32 s61, 0
    s_cbranch_scc1 {Lno}
    """)
    Lm = k.label("maxloop")
    k.e(f"""
    s_mov_b32 s70, 1
    s_lshl_b32 s60, s46, 18
    s_mov_b32 s61, 64
    v_mov_b32 v{VT}, 0xff800000
    v_mov_b32 v{VT+1}, 0xff800000
    {Lm}:
    buffer_load_dwordx4 {a(AK(0,0),4)}, v{VL16}, s[24:27], s60 offen
    buffer_load_dwordx4 {a(AK(0,1),4)}, v{VL16}, s[24:27], s60 offen offset:1024
    s_waitcnt vmcnt(0)
    """)
    for q in range(2):
        k.e(f"v_mfma_f32_32x32x16_bf16 {v(VS(q),16)}, {a(AK(0,0),4)}, {a(AQ(q,0),4)}, 0")
        k.e(f"v_mfma_f32_32x32x16_bf16 {v(VS(q),16)}, {a(AK(0,1),4)}, {a(AQ(q,1),4)}, {v(VS(q),16)}")
    k.e("s_nop 15")
    for q in range(2):
        for r in range(0, 16, 2): k.e(f"v_max3_f32 v{VT+q}, v{VT+q}, v{VS(q)+r}, v{VS(q)+r+1}")
    k.e(f"s_add_u32 s60, s60, 4096\ns_sub_u32 s61, s61, 1\ns_cmp_lg_u32 s61, 0\ns_cbranch_scc1 {Lm}")
    maxfin()
    k.e(f"s_branch {Lre}\n{Lno}:")
    srd(k, 28, 22, 23, PLANE + S_*D_*2, WS_O)
    k.e(f"""
    v_and_b32 v{VT}, 15, v{VL}
    v_bfe_u32 v{VT+1}, v{VL}, 4, 1
    v_lshrrev_b32 v{VT+2}, 5, v{VL}
    v_lshlrev_b32 v{VT}, 4, v{VT}
    v_lshl_add_u32 v{VT}, v{VT+1}, 15, v{VT}
    v_lshl_add_u32 v{VT}, v{VT+2}, 8, v{VT}
    s_lshl_b32 s60, s48, 16
    s_lshl_b32 s61, s46, 10
    s_add_u32 s60, s60, s61
    s_add_u32 s61, s60, 65536
    """)
    reloc(k, VT, VT+1)
    k.e(f"v_add_f32 v{VT+4}, v{VLs(0)}, v{VLs(0)+1}\nv_add_f32 v{VT+5}, v{VLs(1)}, v{VLs(1)+1}\nv_rcp_f32 v{VT+4}, v{VT+4}\nv_rcp_f32 v{VT+5}, v{VT+5}\ns_nop 0")
    for q in range(2):
        b = VO(q)
        for a_ in range(2):
            for r in range(0, 8, 2): k.e(pk("mul", b+8*a_+r, b+8*a_+r, ('b', VT+4+q)))
            for r in range(4): k.e(f"v_cvt_pk_bf16_f32 v{b+8*a_+r}, v{b+8*a_+2*r}, v{b+8*a_+2*r+1}")
            k.e(f"buffer_store_dwordx4 {v(b+8*a_,4)}, v{VT}, s[28:31], s{60+q} offen offset:{a_*512} {OPT.st}")
    finish(k, 2)
    return k

def gen_small(which, D=3, TB=2, abl=''):
    k3 = which == 3
    K = D_ if k3 else F_
    NS = K // 128
    U = 4; STG = 16384; NH = 4
    k = KB(f"k{which}_kernel", 112, 128, U * STG)
    ACC = lambda j, i: (j * 2 + i) * 4
    VW = lambda g, s_: 32 + (g % 4) * 8 + s_ * 4
    VD = 64
    VX = 66
    VR = 68
    VRA = 72
    VPF = 73; VPA = 74
    VL = 78; VT = 80
    VRES = 88
    AX = lambda st, i, s_: st * 32 + (i * 4 + s_) * 4
    prologue(k)
    k.e(f"v_mov_b32 v{VL}, v0")
    tile_map(k, TB, 4 - TB, 46, 47)
    k.e(f"""
    s_lshl_b32 s48, s46, 3
    s_lshl_b32 s49, s3, 1
    s_add_u32 s48, s48, s49
    s_mul_i32 s49, s48, {K*32}
    v_lshlrev_b32 v{VT}, 4, v{VL}
    s_lshl_b32 s53, s3, 12
    s_mul_i32 s50, s47, {K*128}
    s_add_u32 s50, s50, s53
    s_lshl_b32 s51, s47, 7
    s_mov_b32 s56, 0
    s_mov_b32 s57, 0
    """)
    reloc(k, VT, VT+1)
    k.e(f"""
    v_add_u32 v{VX}, s49, v{VT}
    v_add_u32 v{VX+1}, {K*32}, v{VX}
    v_add_u32 v{VD}, s50, v{VT}
    v_and_b32 v{VT}, 31, v{VL}
    v_lshrrev_b32 v{VT}, 2, v{VT}        ; 4*(g%2)+i
    v_lshrrev_b32 v{VT+1}, 5, v{VL}
    v_lshl_add_u32 v{VT+1}, v{VT+1}, 4, v{VT}   ; row
    v_lshrrev_b32 v{VT}, 1, v{VT}        ; sw
    v_lshlrev_b32 v{VT}, 5, v{VT}
    v_lshl_add_u32 v{VT}, v{VT+1}, 7, v{VT}
    v_and_b32 v{VT+1}, 3, v{VL}
    v_lshl_add_u32 v{VR}, v{VT+1}, 3, v{VT}
    """)
    for fb in range(1, 4): k.e(f"v_xor_b32 v{VR+fb}, {fb*32}, v{VR}")
    for r in range(32): k.e(f"v_mov_b32 v{r}, 0")
    k.e(f"v_and_b32 v{VT}, 15, v{VL}\nv_lshrrev_b32 v{VT+1}, 4, v{VL}")
    L = k.label("loop"); Lt = k.label("tail")
    if OPT.codepf: code_pf_addr(k, Lt, "L_k5_kernel_end", VPA, VL, 3)
    if k3:
        k.e(f"""
        v_lshlrev_b32 v{VRA}, 11, v{VT}
        v_lshl_add_u32 v{VRA}, v{VT+1}, 3, v{VRA}
        s_lshl_b32 s60, s48, 15
        s_add_u32 s60, s60, s51
        s_add_u32 s61, s60, 32768
        """)
        res = [f"buffer_load_dwordx2 {v(VRES+i*8+fb*2,2)}, v{VRA}, s[32:35], s{60+i} offen offset:{fb*32}" for i in range(2) for fb in range(4)]
    else:
        k.e(f"""
        v_lshlrev_b32 v{VRA}, 4, v{VL}
        s_lshl_b32 s60, s48, 15
        s_lshl_b32 s61, s47, 11
        s_add_u32 s60, s60, s61
        s_add_u32 s61, s60, 32768
        """)
        res = [f"buffer_load_dwordx4 {v(VRES+i*8+p*4,4)}, v{VRA}, s[32:35], s{60+i} offen offset:{p*1024}" for i in range(2) for p in range(2)]
    k.e("s_waitcnt lgkmcnt(0)")
    srd(k, 24, 22, 23, PLANE + K*D_*2, WS_WOT if k3 else WS_W2T)
    srd(k, 28, 22, 23, PLANE + S_*K*2, WS_O if k3 else WS_G)
    def vmem_ops(slot):
        ops = []
        for q in range(4):
            o = [f"buffer_load_dwordx4 v{VD}, s[24:27], s56 offen offset:{q*1024} lds"]
            if q == 0: o = [f"s_add_u32 m0, s53, {slot*STG}"] + o
            ops.append(o)
            for i in range(2):
                ops.append([f"buffer_load_dwordx4 {a(AX(slot,i,q),4)}, v{VX+i}, s[28:31], s57 offen offset:{q*1024}"])
        return ops
    adv = ["s_add_u32 s56, s56, 16384", "s_add_u32 s57, s57, 4096"]
    for st in range(2):
        for o in vmem_ops(st): k.e("\n".join(with_nop(o)))
        k.e("\n".join(adv))
        if st == 0:
            if k3: srd(k, 32, 4, 5, S_*D_*2)
            else: srd(k, 32, 22, 23, S_*D_*2, WS_H)
    def wreads(slot, g):
        fb, sp = g % 4, g // 4
        return [f"ds_read_b64_tr_b16 {v(VW(g,s_)+2*rd,2)}, v{VR+fb} offset:{slot*STG + (2*sp+s_)*4096 + rd*1024}" for s_ in range(2) for rd in range(2)]
    def stage(st, left, loopend=False):
        main = []; side = {}
        vm_a = vmem_ops((st + 2) % U)[NH:] if left >= 2 else []
        vm_b = vmem_ops((st + 3) % U)[:NH] if left >= 3 else []
        nwait = 12 if left >= 2 else 0
        if left == 2: vm_b = [[x] for x in res]
        if left == 1: nwait = len(res)
        for g in range(8):
            fb, sp = g % 4, g // 4
            for i in range(2):
                for s_ in range(2):
                    main.append(f"v_mfma_f32_16x16x32_bf16 {v(ACC(fb,i),4)}, {v(VW(g,s_),4)}, {a(AX(st,i,2*sp+s_),4)}, {v(ACC(fb,i),4)}")
        def place(o, pos):
            if len(o) > 1: side.setdefault(pos - 1, []).append(o[0])
            side.setdefault(pos, []).append(o[-1])
        nb = 4 * (8 - D)
        for q, o in enumerate(vm_a): place(o, q * (nb - 2) // len(vm_a))
        if left >= 3:
            for q, x in enumerate(adv): side.setdefault(nb - 2, []).append(x)
        if left >= 1: side.setdefault(nb - 1, []).extend([f"s_waitcnt vmcnt({nwait})", "s_barrier"])
        for q, o in enumerate(vm_b): place(o, nb + 1 + q * (4 * D - 2) // len(vm_b))
        heads = []
        for g in range(8):
            gg = g + D
            if gg >= 8 and left == 0: continue
            rd = wreads(st if gg < 8 else (st + 1) % U, gg % 8)
            if gg >= 8: heads += rd
            for q, x in enumerate(rd): side.setdefault(4 * g + q, []).append(x)
        if loopend:
            side.setdefault(29, []).append("s_sub_u32 s62, s62, 1")
            side.setdefault(30, []).append("s_cmp_lg_u32 s62, 0")
        return flatten(main, side), heads
    body = []
    for st in range(U):
        b_, heads = stage(st, 99, st == U - 1); body += b_
    tail = []
    for st in range(U): tail += stage(st, U - 1 - st)[0]
    if 'nomfma' in abl:
        body = [x if 'mfma' not in x else 's_nop 0' for x in body]
    body = auto_lgkm(body, heads)
    tail = auto_lgkm(tail, heads, cyclic=False)
    k.e(f"s_waitcnt vmcnt(12)\ns_barrier")
    stamp(k, 1)
    for x in heads: k.e(x)
    if OPT.codepf: k.e(code_pf(VPF, VPA))
    for o in vmem_ops(2)[:NH]: k.e("\n".join(with_nop(o)))
    k.e(f"s_mov_b32 s62, {NS//U - 1}")
    k.e(f".p2align 6\n{L}:")
    for x in body: k.e(x)
    k.e(f"s_cbranch_scc1 {L}\n{Lt}:")
    for x in tail: k.e(x)
    stamp(k, 2)
    fl = OPT.st
    if k3:
        srd(k, 36, 22, 23, S_*D_*2, WS_H)
        srd(k, 40, 22, 23, S_*8, WS_ST)
        k.e(f"""
        v_lshlrev_b32 v{VT+2}, 4, v{VL}
        s_lshl_b32 s60, s48, 15
        s_lshl_b32 s61, s47, 11
        s_add_u32 s60, s60, s61
        s_add_u32 s61, s60, 32768
        """)
    else:
        srd(k, 36, 18, 19, S_*D_*2)
        k.e(f"""
        v_and_b32 v{VT+2}, 1, v{VT+1}
        v_lshrrev_b32 v{VT+3}, 1, v{VT+1}
        v_lshlrev_b32 v{VT+2}, 5, v{VT+2}
        v_lshl_add_u32 v{VT+2}, v{VT+3}, 4, v{VT+2}
        v_lshl_add_u32 v{VT+2}, v{VT}, 11, v{VT+2}
        s_lshl_b32 s60, s48, 15
        s_add_u32 s60, s60, s51
        s_add_u32 s61, s60, 32768
        """)
    k.e("s_waitcnt vmcnt(0)")
    for i in range(2):
        for p in range(2):
            for fb in (2*p, 2*p+1):
                o = ACC(fb, i); r = VRES + i*8 + fb*2
                k.e(f"""
                v_lshlrev_b32 v{VT+4}, 16, v{r}
                v_and_b32 v{VT+5}, 0xffff0000, v{r}
                v_lshlrev_b32 v{VT+6}, 16, v{r+1}
                v_and_b32 v{VT+7}, 0xffff0000, v{r+1}
                {pk("add", o, o, VT+4)}
                {pk("add", o+2, o+2, VT+6)}
                v_cvt_pk_bf16_f32 v{r}, v{o}, v{o+1}
                v_cvt_pk_bf16_f32 v{r+1}, v{o+2}, v{o+3}
                """)
            r = VRES + i*8 + p*4
            if k3:
                k.e(f"buffer_store_dwordx4 {v(r,4)}, v{VT+2}, s[36:39], s{60+i} offen offset:{p*1024} {fl}")
            else:
                k.e(f"s_nop 1\nv_permlane16_swap_b32 v{r}, v{r+2}\nv_permlane16_swap_b32 v{r+1}, v{r+3}")
                k.e(f"buffer_store_dwordx4 {v(r,4)}, v{VT+2}, s[36:39], s{60+i} offen offset:{p*64} {fl}")
    if k3:
        for i in range(2):
            regs = [ACC(fb, i) + r for fb in range(4) for r in (0, 2)]
            k.e(pk("add", 36, regs[0], regs[1]) + "\n" + pk("mul", 38, regs[0], regs[0]) + "\n" + pk("fma", 38, regs[1], regs[1], 38))
            for r in regs[2:]: k.e(pk("add", 36, 36, r) + "\n" + pk("fma", 38, r, r, 38))
            k.e(f"v_add_f32 v{32+2*i}, v36, v37\nv_add_f32 v{33+2*i}, v38, v39")
        k.e(f"""
        v_lshrrev_b32 v{VT+3}, 1, v{VT+1}
        v_lshl_add_u32 v{VT+3}, v{VT+3}, 4, v{VT}
        v_permlane32_swap_b32 v32, v34
        v_permlane32_swap_b32 v33, v35
        v_and_b32 v{VT+4}, 1, v{VT+1}
        v_add_f32 v32, v32, v34
        v_add_f32 v33, v33, v35
        v_lshlrev_b32 v{VT+3}, 3, v{VT+3}
        v_lshl_add_u32 v{VT+3}, v{VT+4}, 2, v{VT+3}
        v_permlane16_swap_b32 v32, v33
        s_lshl_b32 s60, s48, 7
        v_add_f32 v32, v32, v33
        buffer_atomic_add_f32 v32, v{VT+3}, s[40:43], s60 offen
        """)
    finish(k, which)
    return k

def gen_k4(D=3, abl=''):
    STG = 28672
    k = KB("k4_kernel", 256, 184, 4 * STG + 4096)
    ACC = lambda j, i: (j * 4 + i) * 4
    VD = 224
    VPF = 231
    VX = 232
    VR = 236
    VC1 = 238; VC2 = 242
    VL = 246; VT = 248
    AX = lambda st, i, s_: st * 32 + (i * 2 + s_) * 4
    AW = lambda slot, s_: 128 + slot * 8 + s_ * 4
    prologue(k)
    k.e(f"v_mov_b32 v{VL}, v0")
    tile_map(k, 2, 1, 46, 47)
    k.e(f"""
    s_lshl_b32 s48, s46, 4
    s_lshl_b32 s49, s3, 2
    s_add_u32 s48, s48, s49
    s_lshl_b32 s49, s48, 15
    v_lshlrev_b32 v{VT}, 4, v{VL}
    v_add_u32 v{VX}, s49, v{VT}
    s_and_b32 s50, s3, 1
    s_mul_i32 s50, s50, 448
    s_mul_i32 s51, s47, 224
    """)
    for i in range(1, 4): k.e(f"v_add_u32 v{VX+i}, {i*32768}, v{VX}")
    k.e(f"""
    v_cmp_lt_u32 vcc, 27, v{VL}
    v_mov_b32 v0, {F_*4 - 28*16}
    s_mul_i32 s60, s47, 448
    v_cndmask_b32 v0, 0, v0, vcc
    v_add_u32 v0, v0, v{VT}
    v_and_b32 v1, 15, v{VL}
    v_lshlrev_b32 v1, 3, v1
    s_lshl_b32 s61, s48, 7
    s_lshl_b32 s55, s3, 10
    s_add_u32 s55, s55, {4*STG}
    """)
    for i in range(7):
        k.e(f"v_add_u32 v{VT}, s50, v{VL}")
        if i: k.e(f"v_add_u32 v{VT}, {64*i}, v{VT}")
        udiv_const(k, VT+1, VT, 14)
        k.e(f"""
        v_mul_u32_u24 v{VT+1}, {7168 - 224}, v{VT+1}
        v_lshl_add_u32 v{VT+1}, v{VT}, 4, v{VT+1}
        v_add_u32 v{VD+i}, s51, v{VT+1}
        """)
        if i % 4: k.e(f"v_subrev_u32 v{VD+i}, {(i%4)*1024}, v{VD+i}")
    k.e(f"""
    s_mul_i32 s53, s3, 7168
    s_mov_b32 s56, 0
    s_mov_b32 s57, 0
    s_mov_b32 s58, 0
    s_mov_b32 s59, {OOB}
    s_mov_b32 m0, s55
    s_waitcnt lgkmcnt(0)
    """)
    srd(k, 40, 22, 23, 2*F_*4, WS_CS)
    srd(k, 36, 22, 23, S_*8, WS_ST)
    k.e("buffer_load_dwordx4 v0, s[40:43], s60 offen lds")
    for i in range(4): k.e(f"buffer_load_dwordx2 v[{VT+2*i}:{VT+2*i+1}], v1, s[36:39], s61 offen offset:{i*128}")
    k.e(f"""
    s_cmp_lt_u32 s3, 2
    s_cselect_b32 s24, s12, s14
    s_cselect_b32 s25, s13, s15
    s_mov_b32 s26, {D_*F_*2}
    s_mov_b32 s27, 0x20000
    """)
    srd(k, 28, 22, 23, S_*D_*2, WS_H)
    def parts(slot):
        d = []
        for i in range(7):
            o = [f"buffer_load_dwordx4 v{VD+i}, s[24:27], s56 offen offset:{(i%4)*1024} lds"]
            if i % 4 == 0: o = [f"s_add_u32 m0, s53, {slot*STG + i*1024}"] + o
            d.append(o)
        xs = [[f"buffer_load_dwordx4 {a(AX(slot, i, s_), 4)}, v{VX+i}, s[28:31], s57 offen offset:{s_*1024}"] for i in range(4) for s_ in range(2)]
        return d[:4] + xs[:4], d[4:] + xs[4:]
    adv = ["s_add_u32 s56, s56, %d" % (64*7168), "s_add_u32 s58, s58, 2048", "s_cmp_lt_u32 s58, 32768", f"s_cselect_b32 s57, s58, s59"]
    p1, p2 = parts(0)
    for o in p1 + p2: k.e("\n".join(with_nop(o)))
    k.e("\n".join(adv))
    L = k.label("loop"); Lep = k.label("epi")
    k.e(f"""
    v_lshrrev_b32 v4, 2, v{VL}
    v_mul_u32_u24 v4, 224, v4
    v_and_b32 v5, 3, v{VL}
    v_lshl_add_u32 v{VR}, v5, 3, v4
    v_add_u32 v{VR+1}, {2*STG}, v{VR}
    v_lshrrev_b32 v4, 4, v{VL}
    v_lshl_add_u32 v4, v4, 4, s55
    s_waitcnt vmcnt(15)
    """)
    for j in range(14): k.e(f"ds_read_b128 {v(ACC(j,0),4)}, v4 offset:{j*64}")
    init = []
    for i in range(4):
        b = VT + 2 * i
        init += f"""v_mul_f32 v{b}, {fbits(-1.0/D_)}, v{b}
        v_mul_f32 v{b+1}, {fbits(1.0/D_)}, v{b+1}
        v_fma_f32 v{b+1}, -v{b}, v{b}, v{b+1}
        v_max_f32 v{b+1}, 0, v{b+1}
        v_add_f32 v{VC2+i}, {fbits(1e-5)}, v{b+1}
        v_rsq_f32 v{b+1}, v{VC2+i}""".split("\n")
    for i in range(4): init.append(f"v_mul_f32 v{VC1+i}, {fbits(-LOG2E)}, v{VT+2*i+1}")
    init.append("s_waitcnt lgkmcnt(0)")
    for j in range(14):
        for i in (3, 2, 1, 0):
            for r in (0, 2): init.append(pk("mul", ACC(j,i)+r, ACC(j,0)+r, ('b', VT+2*i)))
    init = [x.strip() for x in init]
    for x in sprinkle(init, [with_nop(o) for o in parts(1)[0]]): k.e(x)
    if OPT.codepf: code_pf_addr(k, Lep, "L_k5_kernel_end", VT, VL, 3)
    def reads(stage_slot, j):
        base = VR + (stage_slot // 2)
        off0 = (stage_slot % 2) * STG + (j // 7) * 14336 + (j % 7) * 32
        return [f"ds_read_b64_tr_b16 {a(AW(j % 7, s_) + 2*rd, 2)}, v{base} offset:{off0 + (32*s_ + 16*rd)*224}" for s_ in range(2) for rd in range(2)]
    body = []; heads = []
    for st in range(4):
        main = []; side = {}
        cur = parts((st + 1) % 4)[1][D:]; nxt = parts((st + 2) % 4)[0]; post = parts((st + 2) % 4)[1][:D]
        for j in range(14):
            for i in range(4):
                for s_ in range(2):
                    main.append(f"v_mfma_f32_16x16x32_bf16 {v(ACC(j,i),4)}, {a(AW(j%7,s_),4)}, {a(AX(st,i,s_),4)}, {v(ACC(j,i),4)}")
        def place(o, pos):
            if len(o) > 1: side.setdefault(pos - 1, []).append(o[0])
            side.setdefault(pos, []).append(o[-1])
        nb = 8 * (14 - D)
        ops = cur + nxt
        pos = [5 + q * (nb - 6) // len(ops) for q in range(len(ops))]
        for q, o in enumerate(ops): place(o, pos[q])
        for q, x in enumerate(adv): side.setdefault(pos[len(cur) - 1] + 1 + q, []).append(x)
        assert pos[len(cur) - 1] + 4 < pos[len(cur)] - 1
        side.setdefault(nb - 1, []).extend(["s_waitcnt vmcnt(8)", "s_barrier"])
        for q, o in enumerate(post): place(o, nb + 5 + 8 * q)
        for j in range(14):
            jj = j + D
            rd = reads(st if jj < 14 else (st + 1) % 4, jj % 14)
            if jj >= 14 and st == 3: heads += rd
            for q, x in enumerate(rd): side.setdefault(8 * j + q, []).append(x)
        if st == 3:
            side.setdefault(109, []).append("s_sub_u32 s62, s62, 1")
            side.setdefault(110, []).append("s_cmp_lg_u32 s62, 0")
        body += flatten(main, side)
    body = auto_lgkm(body, heads)
    k.e("s_waitcnt vmcnt(8)\ns_barrier")
    stamp(k, 1)
    for x in heads: k.e(x)
    if OPT.codepf: k.e(code_pf(VPF, VT))
    for o in parts(1)[1][:D]: k.e("\n".join(with_nop(o)))
    k.e("s_mov_b32 s62, 4")
    k.e(f".p2align 6\n{L}:")
    for x in body: k.e(x)
    k.e(f"s_cbranch_scc1 {L}\n{Lep}:")
    stamp(k, 2)
    srd(k, 32, 22, 23, PLANE + S_*F_*2, WS_G)
    k.e(f"""
    v_and_b32 v{VT}, 31, v{VL}
    v_lshlrev_b32 v{VT}, 4, v{VT}
    """)
    reloc(k, VT, VT+1)
    k.e(f"""
    v_lshrrev_b32 v{VT+1}, 5, v{VL}
    v_mul_u32_u24 v{VT+1}, {224*512}, v{VT+1}
    v_add_u32 v{VT}, v{VT}, v{VT+1}
    s_mul_i32 s60, s48, {224*512}
    s_mul_i32 s61, s47, {7*512}
    s_add_u32 s60, s60, s61
    s_add_u32 s61, s60, {2*224*512}
    """)
    for j in range(7):
        for p in range(2):
            ii = (2*p, 2*p+1)
            G = lambda i: ACC(j, i); Uu = lambda i: ACC(j + 7, i)
            for i in ii:
                for r in (0, 2): k.e(pk("mul", Uu(i)+r, Uu(i)+r, G(i)+r))
                for r in (0, 2): k.e(pk("mul", G(i)+r, G(i)+r, ('b', VC1+i)))
            for i in ii:
                for r in range(4): k.e(f"v_exp_f32 v{G(i)+r}, v{G(i)+r}")
            for i in ii:
                for r in (0, 2): k.e(pk("fma", G(i)+r, G(i)+r, ('b', VC2+i), ('b', VC2+i)))
            for i in ii:
                for r in range(4): k.e(f"v_rcp_f32 v{G(i)+r}, v{G(i)+r}")
            for i in ii:
                for r in (0, 2): k.e(pk("mul", Uu(i)+r, Uu(i)+r, G(i)+r))
            o = G(2*p)
            k.e(f"v_cvt_pk_bf16_f32 v{o}, v{Uu(2*p)}, v{Uu(2*p)+1}\nv_cvt_pk_bf16_f32 v{o+2}, v{Uu(2*p+1)}, v{Uu(2*p+1)+1}")
            k.e(f"v_cvt_pk_bf16_f32 v{o+1}, v{Uu(2*p)+2}, v{Uu(2*p)+3}\nv_cvt_pk_bf16_f32 v{o+3}, v{Uu(2*p+1)+2}, v{Uu(2*p+1)+3}")
            k.e(f"v_permlane32_swap_b32 v{o}, v{o+2}\ns_nop 0\nv_permlane32_swap_b32 v{o+1}, v{o+3}")
            k.e(f"buffer_store_dwordx4 {v(o,4)}, v{VT}, s[32:35], s{60+p} offen offset:{j*512} {OPT.st}")
    finish(k, 4)
    return k

def gen_nop():
    k = KB("k9_kernel", 8, 0, 0)
    k.e("s_endpgm")
    return k

def all_kernels(**kw):
    g = lambda n: kw.get(n, {})
    if kw.get('probe'):
        OPT.probe = True
        return all_kernels(**{a_: b_ for a_, b_ in kw.items() if a_ != 'probe'}) + [gen_probe(*kw['probe'])]
    if kw.get('dup'):
        ks = all_kernels(**{a_: b_ for a_, b_ in kw.items() if a_ != 'dup'})
        return sum([[x] * (2 if int(x.name[1]) in kw['dup'] else 1) for x in ks], [])
    if kw.get('nops'):
        ks = all_kernels(**{a_: b_ for a_, b_ in kw.items() if a_ != 'nops'}); n = gen_nop()
        return ks[:3] + [n] * kw['nops'] + ks[3:]
    return [gen_k0(**g('k0')), gen_k1(**g('k1')), gen_k2(**g('k2')), gen_small(3, **g('k3')), gen_k4(**g('k4')), gen_small(5, **g('k5'))]

if __name__ == "__main__":
    hdr = "".join(l for l in open("sequential_preLN__softmax_full_mha__glu_gated_swiglu__prompt.s.ref") if l.startswith(";") and "@launch" not in l and "Override" not in l and "grid=ceil" not in l)
    kw = eval("dict(" + (sys.argv[1] if len(sys.argv) > 1 else "") + ")")
    for a_, b_ in kw.pop("opt", {}).items(): setattr(OPT, a_, b_)
    print(build_file(all_kernels(**kw), hdr))
```

```python
class KB:
    def __init__(self, name, nvgpr, nagpr, lds, block=256, grid=256):
        self.name = name; self.lines = []; self.nvgpr = nvgpr; self.nagpr = nagpr
        self.lds = lds; self.block = block; self.grid = grid; self._lab = 0
    def e(self, s):
        for l in s.strip("\n").split("\n"):
            l = l.strip()
            if not l: continue
            if l.endswith(":") or l.startswith("."): self.lines.append(l)
            else: self.lines.append("    " + l)
    def label(self, base):
        self._lab += 1
        return f"L_{self.name}_{base}_{self._lab}"
    def text(self):
        h = f".globl {self.name}\n.p2align 8\n.type {self.name},@function\n{self.name}:\n"
        return h + "\n".join(self.lines) + "\n"
    def desc(self):
        acc = (self.nvgpr + 3) // 4 * 4
        nfv = acc + self.nagpr if self.nagpr else self.nvgpr
        return f""".p2align 6
.amdhsa_kernel {self.name}
  .amdhsa_next_free_vgpr {nfv}
  .amdhsa_next_free_sgpr 102
  .amdhsa_accum_offset {acc}
  .amdhsa_group_segment_fixed_size 0
  .amdhsa_kernarg_size 80
  .amdhsa_user_sgpr_count 2
  .amdhsa_user_sgpr_kernarg_segment_ptr 1
  .amdhsa_system_sgpr_workgroup_id_x 1
.end_amdhsa_kernel
"""
    def launch(self):
        return f"; @launch kernel={self.name} grid=({self.grid},1,1) block=({self.block},1,1) lds={self.lds}\n"

def v(i, n=1): return f"v{i}" if n == 1 else f"v[{i}:{i+n-1}]"
def a(i, n=1): return f"a{i}" if n == 1 else f"a[{i}:{i+n-1}]"
def s(i, n=1): return f"s{i}" if n == 1 else f"s[{i}:{i+n-1}]"

def srd(k, r, lo, hi, nbytes, off=0):
    if off:
        k.e(f"s_add_u32 s{r}, s{lo}, {hex(off)}\ns_addc_u32 s{r+1}, s{hi}, 0")
    else:
        k.e(f"s_mov_b32 s{r}, s{lo}\ns_mov_b32 s{r+1}, s{hi}")
    k.e(f"s_mov_b32 s{r+2}, {hex(nbytes)}\ns_mov_b32 s{r+3}, 0x20000")

def interleave(k, main, side):
    for x in side.get(-1, []): k.e(x)
    for i, m in enumerate(main):
        k.e(m)
        for x in side.get(i, []): k.e(x)

def build_file(kernels, header=""):
    out = header
    for k in kernels: out += k.launch()
    out += '.amdgcn_target "amdgcn-amd-amdhsa--gfx950"\n.text\n'
    seen = []
    for k in kernels:
        if k in seen: continue
        seen.append(k); out += k.text()
    out += '.section .rodata,"a"\n'
    for k in seen: out += k.desc()
    return out

import re
_reg = re.compile(r"\b([va])(?:\[(\d+):(\d+)\]|(\d+))")
def regs_of(opnd):
    out = set()
    for m in _reg.finditer(opnd):
        if m.group(2) is not None:
            for i in range(int(m.group(2)), int(m.group(3)) + 1): out.add((m.group(1), i))
        else: out.add((m.group(1), int(m.group(4))))
    return out
def flatten(main, side):
    out = list(side.get(-1, []))
    for i, m in enumerate(main):
        out.append(m); out += side.get(i, [])
    return out
def _is_mfma(x): return x.startswith(("v_mfma", "v_smfmac"))
def auto_lgkm(body, pre=(), cyclic=True, merge=0, hoist=False):
    def uses(ins):
        op = ins.split()[0]; ops = ins[len(op):].split(",")
        if op.startswith("ds_read"): return regs_of(",".join(ops[1:])), regs_of(ops[0])
        if op.startswith("ds_write"): return regs_of(",".join(ops)), set()
        if op.startswith("ds_"): return regs_of(",".join(ops[1:])), regs_of(ops[0])
        return regs_of(",".join(ops)), None
    def run(seq, pend):
        out = []
        for idx, ins in enumerate(seq):
            op = ins.split()[0]
            if op == "s_waitcnt":
                m = re.search(r"lgkmcnt\((\d+)\)", ins)
                if m:
                    n = int(m.group(1)); pend = pend[len(pend) - n:] if n < len(pend) else pend
                    if n == 0: pend = []
                out.append(ins); continue
            if op.startswith("s_"):
                out.append(ins); continue
            used, dst = uses(ins)
            last = -1
            for q, d in enumerate(pend):
                if d & used: last = q
            if last >= 0:
                pos = len(out); skipped = 0
                if hoist and _is_mfma(ins):
                    p2 = pos; sk = 0; ok = False
                    while p2 > 0:
                        y = out[p2 - 1]
                        if _is_mfma(y): ok = True; break
                        if y.startswith(("s_cbranch", "s_branch")) or "\n" in y or y.endswith(":"): break
                        if y.startswith("ds_"): sk += 1
                        p2 -= 1
                    if ok and last < len(pend) - sk: pos, skipped = p2, sk
                if merge:
                    cnt = 0
                    for y in seq[idx + 1:]:
                        if _is_mfma(y):
                            u2, _ = uses(y)
                            for q, d in enumerate(pend[:len(pend) - skipped]):
                                if d & u2: last = max(last, q)
                            cnt += 1
                            if cnt >= merge: break
                n = len(pend) - 1 - last
                nn = min(n - skipped, 15)
                out.insert(pos, f"s_waitcnt lgkmcnt({nn})")
                keep = nn + skipped
                pend = pend[len(pend) - keep:] if keep else []
            out.append(ins)
            if dst is not None: pend = pend + [dst]
        return out, pend
    _, p0 = run(list(pre), [])
    o1, p1 = run(body, p0)
    if not cyclic:
        assert run(o1, p0)[0] == o1
        return o1
    o2, p2 = run(o1, p1)
    o3, p3 = run(o2, p2)
    assert o3 == o2
    o4, _ = run(o2, p0)
    assert o4 == o2
    return o2

def salu_first(seq):
    out = []; i = 0; n = len(seq)
    while i < n:
        out.append(seq[i])
        if _is_mfma(seq[i]):
            j = i + 1
            while j < n and not _is_mfma(seq[j]): j += 1
            gap = seq[i+1:j]
            if gap and not gap[0].startswith("s_"):
                for q, y in enumerate(gap):
                    if y.startswith("s_"):
                        if y.startswith(("s_waitcnt", "s_barrier", "s_cbranch", "s_branch", "s_nop", "s_STAMP", "s_mem")): break
                        if all(z.startswith("ds_") for z in gap[:q]): gap = [y] + gap[:q] + gap[q+1:]
                        break
            out += gap; i = j
        else: i += 1
    return out

def slot_report(seq, per=16):
    tot = 0; exc = 0; i = 0; n = len(seq)
    while i < n and not _is_mfma(seq[i]): i += 1
    while i < n:
        j = i + 1
        while j < n and not _is_mfma(seq[j]): j += 1
        gap = seq[i+1:j]
        c = 8 + sum(8 if y.startswith(("v_exp", "v_rcp", "v_rsq")) else 4 for y in gap) - (4 if gap and gap[0].startswith("s_") else 0)
        tot += max(c, per); exc += max(0, c - per); i = j
    return tot, exc

def resolve_vm(seq):
    out = []; ops = []; done = 0
    for ins in seq:
        if ins.startswith("WAITVM"):
            tags = set(ins.split()[1:])
            last = max([i for i, t in enumerate(ops) if t in tags], default=-1)
            assert last >= 0, ins
            if last + 1 > done:
                n = len(ops) - 1 - last
                assert n <= 63
                out.append(f"s_waitcnt vmcnt({n})"); done = last + 1
            continue
        tag = None
        if " @" in ins: ins, tag = ins.rsplit(" @", 1)
        op = ins.split()[0]
        if op.startswith(("buffer_load", "buffer_store", "buffer_atomic", "global_load", "global_store")): ops.append(tag)
        m = re.match(r"s_waitcnt.*vmcnt\((\d+)\)", ins)
        if m: done = max(done, len(ops) - int(m.group(1)))
        out.append(ins)
    return out
def lines(s): return [x.split(";")[0].strip() for x in s.strip().split("\n") if x.split(";")[0].strip()]
```

```python
import sys, struct
from asmlib import *

S_, D_, F_ = 2048, 1024, 3584
MB = 1 << 20
PLANE = 16 * MB
WS_XN = 0; WS_Q = 4*MB; WS_KV = 8*MB; WS_H = 16*MB
WS_ST = 20*MB; WS_CS = WS_ST + 0x4000; WS_FLAG = WS_ST + 0x10000; ZERO_BYTES = 0x40000
WS_STAMP = 21*MB
WS_O = 32*MB; WS_WOT = 36*MB; WS_W2T = 38*MB
WS_G = 64*MB
WS_EX = 96*MB
RELOC = PLANE - 384
LOG2E = 1.4426950408889634
OOB = 0x40000000
def fbits(x): return hex(struct.unpack("<I", struct.pack("<f", x))[0])

class Opt:
    diag = False
    st = "sc1"
    reloc = True
    codepf = True
    probe = None
    mega = False
    rep = False
OPT = Opt()

KNAME = "sequential_preLN__softmax_full_mha__glu_gated_swiglu__prompt_kernel"
def prologue(k, nwg=256):
    if OPT.mega and k.name != "k0_kernel":
        if OPT.diag: k.e("s_memrealtime s[80:81]\ns_memtime s[82:83]")
        k.e("v_mbcnt_lo_u32_b32 v0, -1, 0\nv_mbcnt_hi_u32_b32 v0, -1, v0")
        return
    if OPT.mega: k.e(f"s_cmp_lt_u32 s2, {nwg}\ns_cbranch_scc1 L_go\ns_endpgm\nL_go:")
    else: k.e(f"s_cmp_ge_u32 s2, {nwg}\ns_cbranch_scc1 L_{k.name}_end")
    if OPT.diag: k.e("s_memrealtime s[80:81]\ns_memtime s[82:83]")
    if OPT.probe: k.e("s_memrealtime s[80:81]")
    k.e("""
    s_load_dwordx16 s[4:19], s[0:1], 0
    s_load_dwordx4 s[20:23], s[0:1], 64
    v_lshrrev_b32 v1, 6, v0
    v_and_b32 v0, 63, v0
    v_readfirstlane_b32 s3, v1
    s_and_b32 s44, s2, 7
    s_lshr_b32 s45, s2, 3
    """)
def stamp(k, i):
    if OPT.diag:
        k.e(f"s_memrealtime s[{80+4*i}:{81+4*i}]\ns_memtime s[{82+4*i}:{83+4*i}]\ns_waitcnt lgkmcnt(0)")
def finish(k, kid):
    if OPT.diag:
        k.e("s_waitcnt vmcnt(0)")
        stamp(k, 3)
        srd(k, 96, 22, 23, MB, WS_STAMP)
        k.e(f"s_lshl_b32 s100, s2, 3\ns_add_u32 s100, s100, s3\ns_add_u32 s100, s100, {kid*2048}\ns_lshl_b32 s100, s100, 5")
        for i in range(4):
            k.e(f"v_mov_b32 v{2*i}, s{80+4*i}\nv_mov_b32 v{2*i+1}, s{82+4*i}")
        k.e("v_mov_b32 v8, s100\nbuffer_store_dwordx4 v[0:3], v8, s[96:99], 0 offen\nbuffer_store_dwordx4 v[4:7], v8, s[96:99], 0 offen offset:16")
    if OPT.probe:
        srd(k, 96, 22, 23, MB, WS_STAMP)
        k.e(f"s_lshl_b32 s100, s2, 2\ns_add_u32 s100, s100, {kid*1024}\nv_mov_b32 v0, s80\nv_mov_b32 v1, s100\nbuffer_store_dword v0, v1, s[96:99], 0 offen")
    if OPT.mega and kid != 5:
        srd(k, 96, 20, 21, 256)
        k.e(f"""
        s_waitcnt vmcnt(0) lgkmcnt(0)
        s_barrier
        s_cmp_lg_u32 s3, 0
        s_cbranch_scc1 L_{k.name}_gw
        v_mov_b32 v0, 1
        s_and_b32 s100, s2, 3
        s_lshl_b32 s100, s100, 6
        s_add_u32 s100, s100, {4*kid}
        v_mov_b32 v1, s100
        s_mov_b64 exec, 1
        buffer_atomic_add v0, v1, s[96:99], 0 offen sc1
        s_mov_b64 exec, 15
        v_mbcnt_lo_u32_b32 v1, -1, 0
        v_lshlrev_b32 v1, 6, v1
        s_mov_b32 s100, 100000
        L_{k.name}_poll:
        buffer_load_dword v2, v1, s[96:99], 0 offen offset:{4*kid} sc1
        s_waitcnt vmcnt(0)
        v_cmp_gt_u32 vcc, 64, v2
        s_sub_u32 s100, s100, 1
        s_cmp_eq_u32 s100, 0
        s_cbranch_scc1 L_{k.name}_pd
        s_cmp_lg_u64 vcc, 0
        s_cbranch_scc1 L_{k.name}_poll
        L_{k.name}_pd:
        s_mov_b64 exec, -1
        buffer_inv sc1
        s_waitcnt vmcnt(0)
        L_{k.name}_gw:
        s_barrier
        """)
        return
    k.e(f"L_{k.name}_end:\ns_endpgm")

def merge(ks):
    m = KB(KNAME, 256, 256, 163840)
    for x in ks: m.lines += [f"{x.name}:"] + x.lines
    m.launch = lambda: "; @launch grid=(256,1,1) block=(256,1,1) lds=163840\n"
    m.single = True
    return [m]

def gen_probe(i, wi, j, wj, mult=8):
    k = KB("k8_kernel", 8, 0, 0, block=64, grid=1)
    k.e(f"""
    s_cmp_ge_u32 s2, 1
    s_cbranch_scc1 L_k8_end
    s_memrealtime s[30:31]
    s_load_dwordx2 s[22:23], s[0:1], 72
    s_waitcnt lgkmcnt(0)
    s_add_u32 s24, s22, {WS_STAMP}
    s_addc_u32 s25, s23, 0
    s_load_dword s26, s[24:25], {i*1024 + 4*wi}
    s_load_dword s27, s[24:25], {(j if j < 9 else 0)*1024 + 4*wj}
    s_waitcnt lgkmcnt(0)
    s_sub_u32 s28, {'s27' if j < 9 else 's30'}, s26
    s_add_u32 s28, s28, 500
    s_min_u32 s28, s28, 20000
    s_mul_i32 s28, s28, {mult}
    L_k8_spin:
    s_memrealtime s[32:33]
    s_waitcnt lgkmcnt(0)
    s_sub_u32 s29, s32, s30
    s_cmp_lt_u32 s29, s28
    s_cbranch_scc1 L_k8_spin
    L_k8_end:
    s_endpgm
    """)
    return k

def udiv_const(k, dst, src, c):
    sh = 20
    m = (1 << sh) // c + 1
    for x in range(0, 4096): assert (x * m) >> sh == x // c
    k.e(f"v_mul_u32_u24 v{dst}, {m}, v{src}\nv_lshrrev_b32 v{dst}, {sh}, v{dst}")

def tile_map(k, nb_m, nb_x, sm, sn):
    k.e(f"""
    s_and_b32 s{sm}, s44, {(1<<nb_x)-1}
    s_lshl_b32 s{sm}, s{sm}, {nb_m}
    s_and_b32 s{sn}, s45, {(1<<nb_m)-1}
    s_add_u32 s{sm}, s{sm}, s{sn}
    s_lshr_b32 s{sn}, s44, {nb_x}
    s_lshl_b32 s{sn}, s{sn}, {5-nb_m}
    s_lshr_b32 s79, s45, {nb_m}
    s_add_u32 s{sn}, s{sn}, s79
    """)

def reloc(k, addr, tmp):
    if not OPT.reloc: return
    k.e(f"""
    v_bfe_u32 v{tmp}, v{addr}, 7, 2
    v_add_u32 v{tmp}, 1, v{tmp}
    v_lshrrev_b32 v{tmp}, 2, v{tmp}
    v_mul_u32_u24 v{tmp}, {RELOC}, v{tmp}
    v_add_u32 v{addr}, v{addr}, v{tmp}
    """)

def code_pf_addr(k, first, last, vaddr, lane, chunk_s):
    L = k.label("pc")
    k.e(f"""
    s_getpc_b64 s[76:77]
    {L}:
    s_add_u32 s76, s76, {first}-{L}
    s_addc_u32 s77, s77, ({first}-{L})>>32
    s_lshl_b32 s78, s45, 2
    s_add_u32 s78, s78, s3
    s_lshl_b32 s78, s78, 9
    v_and_b32 v{vaddr}, 3, v{lane}
    v_lshl_add_u32 v{vaddr}, v{vaddr}, 7, s78
    v_min_u32 v{vaddr}, {last}-{first}, v{vaddr}
    v_mov_b32 v{vaddr+1}, s77
    v_add_co_u32 v{vaddr}, vcc, s76, v{vaddr}
    s_nop 1
    v_addc_co_u32 v{vaddr+1}, vcc, 0, v{vaddr+1}, vcc
    """)
def code_pf(vdst, vaddr):
    return f"global_load_dword v{vdst}, v[{vaddr}:{vaddr+1}], off"

def pk(op, d, *srcs):
    ops = []; lo = []; hi = []; neg = []
    for s_ in srcs:
        if isinstance(s_, tuple):
            r = s_[1]; ops.append(v(r & ~1, 2)); lo.append(r & 1); hi.append(r & 1); neg.append(int(s_[0] == 'nb'))
        else:
            assert s_ % 2 == 0
            ops.append(v(s_, 2)); lo.append(0); hi.append(1); neg.append(0)
    f = lambda x: "[" + ",".join(map(str, x)) + "]"
    t = f"v_pk_{op}_f32 {v(d,2)}, " + ", ".join(ops) + f" op_sel:{f(lo)} op_sel_hi:{f(hi)}"
    if any(neg): t += f" neg_lo:{f(neg)} neg_hi:{f(neg)}"
    return t

def sprinkle(base, extra):
    out = []; n = len(base); m = len(extra); q = 0
    for i, b in enumerate(base):
        out.append(b)
        while q < m and (q + 1) * n <= (i + 1) * (m + 1):
            out += extra[q]; q += 1
    for x in extra[q:]: out += x
    return out
def with_nop(op):
    return [op[0], "s_nop 0", op[1]] if len(op) > 1 else list(op)

def lead_adv(NS, LEAD, st, srho, su):
    if not LEAD: return [f"s_add_u32 s{st}, s{st}, 1", f"s_mov_b32 s{su}, s{st}"]
    return [f"s_add_u32 s{st}, s{st}, 1", f"s_and_b32 s{su}, s{st}, {LEAD-1}", f"s_cmp_eq_u32 s{su}, s{srho}", f"s_cselect_b32 s{su}, {LEAD}, 0",
            f"s_add_u32 s{su}, s{su}, s{st}", f"s_cmp_ge_u32 s{su}, {NS}", f"s_cselect_b32 s79, {NS}, 0", f"s_sub_u32 s{su}, s{su}, s79"]

def allreduce64(k, regs, tmp):
    for sh in (8, 4, 2, 1):
        k.e("s_nop 1")
        for r in regs: k.e(f"v_add_f32_dpp v{r}, v{r}, v{r} row_ror:{sh} row_mask:0xf bank_mask:0xf")
    for sw in ("v_permlane16_swap_b32", "v_permlane32_swap_b32"):
        for q, r in enumerate(regs): k.e(f"v_mov_b32 v{tmp+q}, v{r}")
        k.e("s_nop 1")
        for q, r in enumerate(regs): k.e(f"{sw} v{r}, v{tmp+q}")
        k.e("s_nop 1")
        for q, r in enumerate(regs): k.e(f"v_add_f32 v{r}, v{r}, v{tmp+q}")

def gen_k0(first="k0_kernel", last="L_k5_kernel_end", wpf=False, tlb=0):
    k = KB("k0_kernel", 72, 0, 0)
    prologue(k)
    k.e("""
    v_lshlrev_b32 v1, 4, v0
    s_lshl_b32 s46, s2, 2
    s_add_u32 s46, s46, s3
    s_lshl_b32 s47, s46, 12
    s_and_b32 s48, s45, 1
    s_lshl_b32 s48, s48, 2
    s_add_u32 s48, s48, s3
    v_lshlrev_b32 v60, 6, v0
    s_mul_i32 s49, s46, 6144
    v_lshlrev_b32 v61, 2, v0
    s_lshl_b32 s50, s46, 8
    v_mov_b32 v62, 0
    """)
    if OPT.codepf: code_pf_addr(k, first, last, 64, 0, 48)
    k.e("s_waitcnt lgkmcnt(0)")
    srd(k, 24, 4, 5, S_*D_*2)
    for q in range(4): k.e(f"buffer_load_dwordx4 v[{4+4*q}:{7+4*q}], v1, s[24:27], s47 offen offset:{q*1024}")
    srd(k, 32, 6, 7, D_*3*D_*2)
    if OPT.codepf: k.e(code_pf(66, 64))
    k.e(f"v_min_u32 v60, {47 if wpf else 0}, v0\nv_lshlrev_b32 v60, 7, v60\nbuffer_load_dword v67, v60, s[32:35], s49 offen")
    srd(k, 28, 22, 23, S_*D_*2, WS_XN)
    srd(k, 36, 22, 23, ZERO_BYTES, WS_ST)
    k.e(f"buffer_store_dword v62, v61, s[36:39], s50 offen {OPT.st}")
    ntl = 0
    if tlb:
        srd(k, 40, 22, 23, 128*MB)
        if tlb == 1:
            k.e("v_lshlrev_b32 v63, 21, v0\nbuffer_load_dword v69, v63, s[40:43], 0 offen")
        else:
            k.e("s_lshl_b32 s51, s45, 22\nv_lshlrev_b32 v63, 16, v0\nbuffer_load_dword v69, v63, s[40:43], s51 offen")
            k.e("s_and_b32 s51, s45, 1\ns_lshl_b32 s51, s51, 22")
        ntl = 1
        for (r, nb) in ((6, D_*3*D_*2), (8, D_*D_*2), (12, D_*F_*2), (14, D_*F_*2), (16, D_*F_*2), (18, S_*D_*2)):
            srd(k, 40, r, r+1, nb)
            k.e(f"buffer_load_dword v69, v63, s[40:43], {'0' if tlb == 1 else 's51'} offen"); ntl += 1
    stamp(k, 1)
    k.e(f"s_waitcnt vmcnt({ntl + (3 if OPT.codepf else 2)})")
    for q in range(16):
        k.e(f"v_lshlrev_b32 v{24+2*q}, 16, v{4+q}\nv_and_b32 v{25+2*q}, 0xffff0000, v{4+q}")
    for r in range(2):
        b = 24 + 16 * r
        k.e(pk("add", 56, b, b+2))
        for q in range(4, 16, 2): k.e(pk("add", 56, 56, b+q))
        k.e(f"v_add_f32 v{2+r}, v56, v57")
    allreduce64(k, [2, 3], 20)
    for r in range(2):
        b = 24 + 16 * r
        k.e(f"v_mul_f32 v{2+r}, {fbits(1.0/D_)}, v{2+r}")
        for q in range(0, 16, 2): k.e(pk("add", b+q, b+q, ('nb', 2+r)))
        k.e(pk("mul", 56, b, b))
        for q in range(2, 16, 2): k.e(pk("fma", 56, b+q, b+q, 56))
        k.e(f"v_add_f32 v{2+r}, v56, v57")
    allreduce64(k, [2, 3], 20)
    k.e(f"v_mov_b32 v20, {fbits(1e-5)}\nv_mov_b32 v21, {fbits(1e-5)}")
    for r in range(2): k.e(f"v_fmac_f32 v{20+r}, {fbits(1.0/D_)}, v{2+r}")
    k.e("v_rsq_f32 v2, v20\nv_rsq_f32 v3, v21\ns_nop 0")
    stamp(k, 2)
    for r in range(2):
        b = 24 + 16 * r
        for h in range(2):
            for q in range(0, 8, 2): k.e(pk("mul", b+8*h+q, b+8*h+q, ('b', 2+r)))
            for q in range(4): k.e(f"v_cvt_pk_bf16_f32 v{4+8*r+4*h+q}, v{b+8*h+2*q}, v{b+8*h+2*q+1}")
            qq = 2*r + h
            k.e(f"buffer_store_dwordx4 v[{4+4*qq}:{7+4*qq}], v1, s[28:31], s47 offen offset:{qq*1024} {OPT.st}")
    finish(k, 0)
    return k

def gen_k1(D=2, ROT=1, LEAD=0):
    STG = 40960
    k = KB("k1_kernel", 160, 112, 4 * STG)
    ACC = lambda j, i: (j * 4 + i) * 4
    VDX = 96
    VDW = 100
    VRX = 106
    VRW = 114
    VL = 122; VPF = 123; VT = 124; VPA = 132
    AX = lambda st, i, s_: (st % 2) * 32 + (i * 2 + s_) * 4
    AW = lambda j, s_: 64 + j * 8 + s_ * 4
    prologue(k)
    k.e(f"v_mov_b32 v{VL}, v0")
    if ROT:
        k.e("""
        s_and_b32 s46, s45, 7
        s_lshl_b32 s46, s46, 1
        s_and_b32 s47, s44, 1
        s_add_u32 s46, s46, s47
        s_lshr_b32 s47, s44, 1
        s_lshl_b32 s47, s47, 2
        s_lshr_b32 s48, s45, 3
        s_add_u32 s47, s47, s48
        """)
    else: tile_map(k, 3, 1, 46, 47)
    k.e(f"""
    s_lshr_b32 s48, s3, 1            ; wm
    s_and_b32 s49, s3, 1             ; wn
    v_lshrrev_b32 v{VT}, 3, v{VL}       ; l/8
    v_and_b32 v{VT+1}, 7, v{VL}         ; p
    v_lshrrev_b32 v{VT+2}, 1, v{VT}     ; (l/8)>>1  (0..3)
    v_xor_b32 v{VT+3}, v{VT+1}, v{VT+2}
    s_lshl_b32 s50, s46, 7
    s_lshl_b32 s51, s3, 5
    s_add_u32 s50, s50, s51
    s_lshl_b32 s50, s50, 11             ; (rb*128 + w*32)*2048
    v_lshlrev_b32 v{VT+4}, 11, v{VT}
    v_add_u32 v{VT+4}, s50, v{VT+4}
    v_lshl_add_u32 v{VDX}, v{VT+3}, 4, v{VT+4}
    v_xor_b32 v{VT+3}, 4, v{VT+3}
    v_lshl_add_u32 v{VDX+1}, v{VT+3}, 4, v{VT+4}
    v_add_u32 v{VDX+2}, {2*15360}, v{VDX}
    v_add_u32 v{VDX+3}, {3*15360}, v{VDX+1}
    v_add_u32 v{VDX+1}, {15360}, v{VDX+1}
    v_and_b32 v{VT+2}, 1, v{VT+2}
    v_lshlrev_b32 v{VT+2}, 1, v{VT+2}
    v_xor_b32 v{VT+3}, v{VT+1}, v{VT+2}
    v_mul_u32_u24 v{VT+4}, 6144, v{VT}
    s_mul_i32 s50, s3, {16*6144}
    s_lshl_b32 s51, s47, 7
    s_add_u32 s50, s50, s51
    v_add_u32 v{VT+4}, s50, v{VT+4}
    v_lshl_add_u32 v{VDW}, v{VT+3}, 4, v{VT+4}
    v_xor_b32 v{VT+3}, 4, v{VT+3}
    v_lshl_add_u32 v{VDW+1}, v{VT+3}, 4, v{VT+4}
    v_add_u32 v{VDW+1}, {8*6144 - 1024}, v{VDW+1}
    """)
    for sg in range(1, 3):
        k.e(f"v_add_u32 v{VDW+2*sg}, {2048*sg}, v{VDW}\nv_add_u32 v{VDW+2*sg+1}, {2048*sg}, v{VDW+1}")
    k.e(f"""
    s_lshl_b32 s53, s3, 12
    s_lshl_b32 s54, s3, 11
    s_add_u32 s54, s54, 16384
    s_mov_b32 s58, -1
    s_mov_b32 s59, {OOB}
    s_mov_b32 s63, {'s46' if ROT else '0'}
    s_add_u32 s70, s47, {'0' if ROT else 's46'}
    s_and_b32 s70, s70, {max(LEAD-1,0)}
    """)
    zero = [f"v_mov_b32 v{r}, 0" for r in range(96)]
    for x in zero[:40]: k.e(x)
    k.e("s_waitcnt lgkmcnt(0)")
    srd(k, 24, 6, 7, D_*3*D_*2)
    srd(k, 28, 22, 23, S_*D_*2, WS_XN)
    def vmem_ops(slot):
        ops = []
        for q in range(4):
            o = [f"buffer_load_dwordx4 v{VDX+q}, s[28:31], s57 offen offset:{q*1024} lds"]
            if q == 0: o = [f"s_add_u32 m0, s53, {slot*STG}"] + o
            ops.append(o)
        for sg in range(3):
            for q in range(2):
                o = [f"buffer_load_dwordx4 v{VDW+2*sg+q}, s[24:27], s56 offen offset:{q*1024} lds"]
                if q == 0: o = [f"s_add_u32 m0, s54, {slot*STG + sg*8192}"] + o
                ops.append(o)
        return ops
    adv = lead_adv(16, LEAD, 58, 70, 69)[:5] + ["s_add_u32 s69, s69, s63", "s_and_b32 s69, s69, 15", f"s_mul_i32 s71, s69, {64*6144}", "s_lshl_b32 s72, s69, 7",
           "s_cmp_lt_u32 s58, 16", "s_cselect_b32 s56, s71, s59", "s_cselect_b32 s57, s72, s59"]
    k.e("\n".join(adv))
    for o in vmem_ops(0): k.e("\n".join(with_nop(o)))
    k.e("\n".join(adv))
    setup = f"""
    v_and_b32 v{VT}, 15, v{VL}
    v_lshrrev_b32 v{VT+1}, 4, v{VL}
    v_lshrrev_b32 v{VT+2}, 1, v{VT}
    v_xor_b32 v{VT+2}, v{VT+1}, v{VT+2}
    s_lshl_b32 s50, s48, 13
    v_lshlrev_b32 v{VT+3}, 7, v{VT}
    v_add_u32 v{VT+3}, s50, v{VT+3}
    v_lshl_add_u32 v{VRX}, v{VT+2}, 4, v{VT+3}
    v_xor_b32 v{VRX+1}, 64, v{VRX}
    v_lshrrev_b32 v{VT+2}, 2, v{VT}
    v_lshl_add_u32 v{VT+3}, v{VT+1}, 3, v{VT+2}
    v_lshrrev_b32 v{VT+2}, 1, v{VT+2}
    v_and_b32 v{VT+4}, 1, v{VT+1}
    v_lshl_add_u32 v{VT+2}, v{VT+4}, 1, v{VT+2}
    s_lshl_b32 s50, s49, 1
    v_xor_b32 v{VT+2}, s50, v{VT+2}
    v_lshlrev_b32 v{VT+2}, 5, v{VT+2}
    v_lshl_add_u32 v{VT+2}, v{VT+3}, 7, v{VT+2}
    v_and_b32 v{VT+4}, 3, v{VL}
    v_lshl_add_u32 v{VT+2}, v{VT+4}, 3, v{VT+2}
    v_add_u32 v{VRW}, 16384, v{VT+2}
    v_xor_b32 v{VRW+1}, 32, v{VRW}
    """.strip().split("\n")
    setup = [x.strip() for x in setup]
    for sl in range(1, 4):
        for q in range(2):
            setup += [f"v_add_u32 v{VRX+2*sl+q}, {sl*STG}, v{VRX+q}", f"v_add_u32 v{VRW+2*sl+q}, {sl*STG}, v{VRW+q}"]
    setup += zero[40:]
    for x in sprinkle(setup, [with_nop(o) for o in vmem_ops(1)]): k.e(x)
    k.e("\n".join(adv))
    def wreads(slot, j):
        return [f"ds_read_b64_tr_b16 {a(AW(j,s_)+2*rd,2)}, v{VRW+2*slot+j%2} offset:{(j//2)*8192 + (32*s_+4*rd)*128}" for s_ in range(2) for rd in range(2)]
    def xreads(slot):
        return [f"ds_read_b128 {a(AX(slot,i,s_),4)}, v{VRX+2*slot+s_} offset:{i*2048}" for i in range(4) for s_ in range(2)]
    NH = 3
    body = []; tail_reads = []
    for st in range(4):
        main = []; side = {}
        vm_a = vmem_ops((st + 2) % 4)[NH:]
        vm_b = vmem_ops((st + 3) % 4)[:NH]
        xr = xreads((st + 1) % 4)
        for j in range(6):
            for i in range(4):
                for s_ in range(2):
                    w_, x_ = a(AW(j,s_),4), a(AX(st,i,s_),4)
                    if j >= 4: w_, x_ = x_, w_
                    main.append(f"v_mfma_f32_16x16x32_bf16 {v(ACC(j,i),4)}, {w_}, {x_}, {v(ACC(j,i),4)}")
        def place(o, pos):
            if len(o) > 1: side.setdefault(pos - 1, []).append(o[0])
            side.setdefault(pos, []).append(o[-1])
        nb = 8 * (6 - D)
        for q, o in enumerate(vm_a): place(o, 1 + q * (nb - 8) // len(vm_a))
        for q, x in enumerate(adv): side.setdefault(nb - 9 + (q * 8) // len(adv), []).append(x)
        side.setdefault(nb - 1, []).extend(["s_waitcnt vmcnt(10)", "s_barrier"])
        for q, o in enumerate(vm_b): place(o, nb + 2 + q * (8 * D - 3) // len(vm_b))
        for j in range(6):
            g0 = 8 * j
            jj = j + D
            rd = wreads(st if jj < 6 else (st + 1) % 4, jj % 6)
            if j >= 6 - D:
                n = (8 + D - 1) // D
                rd = rd + xr[:n]; xr = xr[n:]
                if st == 3: tail_reads += rd
            for q, x in enumerate(rd): side.setdefault(g0 + q, []).append(x)
        if st == 3:
            side.setdefault(45, []).append("s_sub_u32 s62, s62, 1")
            side.setdefault(46, []).append("s_cmp_lg_u32 s62, 0")
        body += flatten(main, side)
    body = auto_lgkm(body, tail_reads)
    L = k.label("loop"); Lep = k.label("epi")
    if OPT.codepf: code_pf_addr(k, Lep, "L_k5_kernel_end", VPA, VL, 3)
    k.e("s_waitcnt vmcnt(10)\ns_barrier")
    stamp(k, 1)
    for x in tail_reads: k.e(x)
    if OPT.codepf: k.e(code_pf(VPF, VPA))
    for o in vmem_ops(2)[:NH]: k.e("\n".join(with_nop(o)))
    k.e("s_mov_b32 s62, 4")
    k.e(f".p2align 6\n{L}:")
    for x in body: k.e(x)
    k.e(f"s_cbranch_scc1 {L}\n{Lep}:")
    stamp(k, 2)
    srd(k, 32, 22, 23, S_*D_*2, WS_Q)
    srd(k, 36, 22, 23, S_*D_*4, WS_KV)
    k.e(f"""
    s_lshl_b32 s50, s47, 1
    s_add_u32 s50, s50, s49
    s_lshl_b32 s50, s50, 6
    s_lshl_b32 s51, s46, 2
    s_add_u32 s50, s50, s51
    s_lshl_b32 s51, s48, 1
    s_add_u32 s50, s50, s51
    s_lshl_b32 s60, s50, 11
    s_lshl_b32 s61, s50, 12
    s_add_u32 s63, s61, 4096
    v_and_b32 v{VT}, 15, v{VL}          ; t
    v_lshrrev_b32 v{VT+1}, 4, v{VL}     ; g
    v_lshlrev_b32 v{VT+1}, 9, v{VT+1}   ; g*512
    v_lshl_add_u32 v{VRX}, v{VT}, 4, v{VT+1}
    v_lshrrev_b32 v{VT+2}, 3, v{VT}
    v_and_b32 v{VT+3}, 7, v{VT}
    v_lshl_add_u32 v{VT+2}, v{VT+2}, 4, v{VT+3}   ; 16*(t/8) + t%8
    v_lshl_add_u32 v{VRX+1}, v{VT+2}, 4, v{VT+1}
    v_mov_b32 v{VT+4}, {fbits(LOG2E / 32 ** 0.5)}
    """)
    fl = OPT.st
    def cvt4(o, u):
        k.e(f"v_cvt_pk_bf16_f32 v{o}, v{o}, v{o+1}\nv_cvt_pk_bf16_f32 v{o+1}, v{o+2}, v{o+3}")
        k.e(f"v_cvt_pk_bf16_f32 v{o+2}, v{u}, v{u+1}\nv_cvt_pk_bf16_f32 v{o+3}, v{u+2}, v{u+3}")
    for i in range(4):
        o = ACC(2, i); cvt4(o, ACC(3, i))
        k.e(f"buffer_store_dwordx4 {v(o,4)}, v{VRX+1}, s[36:39], s{61 if i < 2 else 63} offen offset:{(i%2)*128} {fl}")
    for p in range(2):
        for fb in range(2):
            o = ACC(4 + fb, 2*p); cvt4(o, ACC(4 + fb, 2*p + 1))
            k.e(f"buffer_store_dwordx4 {v(o,4)}, v{VRX}, s[36:39], s{61 if p == 0 else 63} offen offset:{2048 + fb*256} {fl}")
    for i in range(4):
        o = ACC(0, i); u = ACC(1, i)
        for r in (0, 2): k.e(pk("mul", o+r, o+r, ('b', VT+4)) + "\n" + pk("mul", u+r, u+r, ('b', VT+4)))
        cvt4(o, u)
        k.e(f"buffer_store_dwordx4 {v(o,4)}, v{VRX}, s[32:35], s60 offen offset:{(i//2)*2048 + (i%2)*256} {fl}")
    finish(k, 1)
    return k

def gen_k2(force_fb=False, abl='', W2COLS=64):
    k = KB("k2_kernel", 180, 72, 65536 + 64)
    VS = lambda b: b * 16
    VC = lambda q: 32 + q * 16
    VP = lambda b: 64 + b * 8
    VO = lambda q: 80 + q * 16
    VLs = lambda q: 112 + q * 16
    VONE = 144
    VIDX = 148
    VKA = 149; VVA = 150; VL16 = 151; VL = 152
    VCSA = 153; VCPS = 154; VCPD = 155
    VSEL = 156
    VCSD = 160
    VT = 164
    VPA = 176; VPF = 178
    AQ = lambda q, s_: q * 8 + s_ * 4
    AK = lambda b, s_: 16 + b * 8 + s_ * 4
    AV = lambda b, s_: 32 + b * 8 + s_ * 4
    ACSL = lambda b: 48 + b * 4
    ACP = lambda b: 56 + b * 4
    prologue(k)
    k.e(f"""
    v_mov_b32 v{VL}, v0
    v_lshlrev_b32 v{VL16}, 4, v0
    s_lshl_b32 s46, s44, 2
    s_lshr_b32 s47, s45, 3
    s_add_u32 s46, s46, s47          ; head
    s_and_b32 s47, s45, 7            ; qblk (256)
    s_lshl_b32 s48, s47, 3
    s_lshl_b32 s49, s3, 1
    s_add_u32 s48, s48, s49
    s_lshl_b32 s49, s46, 6
    s_add_u32 s49, s49, s48
    s_lshl_b32 s49, s49, 11
    s_lshl_b32 s53, s3, 12           ; wave lds offset
    s_lshl_b32 s52, s46, 18
    s_add_u32 s52, s52, s53
    s_mov_b32 s59, {OOB}
    s_mov_b32 s70, 0
    v_and_b32 v{VT}, 15, v{VL}
    v_lshrrev_b32 v{VT+1}, 4, v{VL}
    v_mul_u32_u24 v{VT+2}, 7168, v{VT+1}
    v_lshl_add_u32 v{VCSA}, v{VT}, 4, v{VT+2}
    """)
    for r in range(4):
        k.e(f"""
        v_cmp_eq_u32 vcc, {2*r}, v{VT}
        v_mov_b32 v{VT+2}, 0x3f80
        v_cndmask_b32 v{VSEL+r}, 0, v{VT+2}, vcc
        v_cmp_eq_u32 vcc, {2*r+1}, v{VT}
        v_mov_b32 v{VT+2}, 0x3f800000
        v_cndmask_b32 v{VSEL+r}, v{VSEL+r}, v{VT+2}, vcc
        """.replace("v_cndmask", "s_nop 0\nv_cndmask"))
    k.e(f"""
    v_and_b32 v{VT+2}, 26, v{VL}
    v_cmp_eq_u32 vcc, 0, v{VT+2}
    v_mov_b32 v{VT+3}, 0x3f803f80
    s_nop 0
    v_cndmask_b32 v{VONE}, 0, v{VT+3}, vcc
    v_and_b32 v{VT+2}, 1, v{VL}
    v_cmp_eq_u32 vcc, 0, v{VT+2}
    v_mov_b32 v{VT+3}, 0x44444444
    v_mov_b32 v{VT+4}, 0xeeeeeeee
    v_cndmask_b32 v{VIDX}, v{VT+4}, v{VT+3}, vcc
    v_mov_b32 v{VONE+1}, v{VONE}
    v_mov_b32 v{VONE+2}, v{VONE}
    v_mov_b32 v{VONE+3}, v{VONE}
    """)
    k.e("s_waitcnt lgkmcnt(0)")
    srd(k, 24, 22, 23, S_*D_*4, WS_KV)
    srd(k, 28, 22, 23, S_*D_*2, WS_Q)
    for q in range(2):
        for s_ in range(2):
            k.e(f"buffer_load_dwordx4 {a(AQ(q,s_),4)}, v{VL16}, s[28:31], s49 offen offset:{q*2048+s_*1024}")
    def dma(): return [f"buffer_load_dwordx4 v{VL16}, s[24:27], s57 offen offset:{q*1024} lds" for q in range(4)]
    adv = ["s_add_u32 s56, s56, 16384", "s_add_u32 s57, s56, s52", "s_cmp_lt_u32 s56, 0x40000", "s_cselect_b32 s57, s57, s59",
           "s_add_u32 s58, s58, 16384", "s_and_b32 s58, s58, 0xffff", "s_mov_b32 m0, s58"]
    Lre = k.label("restart"); Lside = k.label("noside")
    k.e(f"{Lre}:\ns_mov_b32 s56, 0\ns_mov_b32 s57, s52\ns_mov_b32 s58, s53\ns_mov_b32 m0, s58\ns_nop 0")
    for st in range(3):
        k.e("\n".join(dma()))
        if st < 2: k.e("\n".join(adv) + "\ns_nop 0")
    assert W2COLS in (64, 128)
    M18 = (1 << 16) // 18 + 1
    for x in range(1024): assert (x * M18) >> 16 == x // 18
    k.e(f"""
    s_lshl_b32 s64, s2, 2
    s_add_u32 s64, s64, s3
    s_mul_i32 s68, s64, {M18}
    s_lshr_b32 s68, s68, 16          ; c
    s_mul_i32 s69, s68, 18
    s_sub_u32 s69, s64, s69          ; p
    s_lshl_b32 s71, s68, 9
    s_cmp_lt_u32 s68, 28
    s_cselect_b32 s32, s12, s14
    s_cselect_b32 s33, s13, s15
    s_cselect_b32 s65, 0, 28
    s_sub_u32 s68, s68, s65          ; chunk
    s_mul_i32 s66, s69, {60*7168}
    s_lshl_b32 s68, s68, 8
    s_add_u32 s66, s66, s68
    s_cmp_lt_u32 s64, 1008
    s_cselect_b32 s66, s66, s59
    s_cselect_b32 s71, s71, s59
    s_mov_b32 s34, {D_*F_*2}
    s_mov_b32 s35, 0x20000
    s_mov_b32 s38, {D_*D_*2}
    s_mov_b32 s74, {WS_WOT}
    s_mov_b32 s72, {D_//8}
    s_cmp_lt_u32 s64, 512
    s_cselect_b32 s36, s16, s8
    s_cselect_b32 s37, s17, s9
    s_cselect_b32 s38, {F_*D_*2}, s38
    s_cselect_b32 s74, {WS_W2T}, s74
    s_cselect_b32 s72, {F_//8}, s72
    s_cselect_b32 s75, 14, 8         ; units
    s_mov_b32 s39, 0x20000
    s_add_u32 s40, s22, s74
    s_addc_u32 s41, s23, 0
    s_mov_b32 s42, {PLANE + F_*D_*2}
    s_mov_b32 s43, 0x20000
    s_and_b32 s68, s64, 15
    s_bfe_u32 s69, s64, 0x50004
    s_mul_i32 s69, s69, s75
    s_add_u32 s54, s75, 2
    s_lshl_b32 s54, s54, 14
    v_lshrrev_b32 v{VT+2}, 3, v{VL}     ; r
    v_and_b32 v{VT+3}, 7, v{VL}         ; p
    v_and_b32 v{VT+4}, 6, v{VT+2}
    v_xor_b32 v{VT+4}, v{VT+4}, v{VT+3}
    v_lshlrev_b32 v{VT+4}, 4, v{VT+4}
    v_lshl_add_u32 v{VCPS}, v{VT+2}, 11, v{VT+4}
    v_mov_b32 v{VCPD}, v{VL16}
    s_lshl_b32 s67, s69, 14
    s_lshl_b32 s73, s68, 7
    s_add_u32 s67, s67, s73
    s_mul_i32 s72, s72, s68
    s_add_u32 s72, s72, s69
    s_lshl_b32 s73, s72, 10
    s_mov_b32 s55, 1024
    """)
    if W2COLS == 128:
        Lw = k.label("now2")
        k.e(f"""
        s_cmp_eq_u32 s75, 8
        s_cbranch_scc1 {Lw}
        v_lshrrev_b32 v{VT+4}, 1, v{VT+3}
        v_xor_b32 v{VT+4}, v{VT+4}, v{VT+2}
        v_lshlrev_b32 v{VT+4}, 5, v{VT+4}
        v_and_b32 v{VT+5}, 1, v{VT+3}
        v_lshl_add_u32 v{VT+4}, v{VT+5}, 4, v{VT+4}
        s_and_b32 s72, s68, 1
        s_lshl_b32 s72, s72, 7
        v_xor_b32 v{VT+4}, s72, v{VT+4}
        v_lshl_add_u32 v{VCPS}, v{VT+2}, 11, v{VT+4}
        v_lshlrev_b32 v{VT+4}, 8, v{VT+2}
        v_lshl_add_u32 v{VT+4}, v{VT+3}, 4, v{VT+4}
        v_add_u32 v{VCPD}, s72, v{VT+4}
        s_lshr_b32 s72, s68, 1
        s_lshl_b32 s67, s69, 14
        s_lshl_b32 s73, s72, 8
        s_add_u32 s67, s67, s73
        s_mul_i32 s72, s72, {F_*256}
        s_lshl_b32 s73, s69, 11
        s_add_u32 s73, s73, s72
        s_mov_b32 s55, 2048
        {Lw}:
        """)
    reloc(k, VCPD, VT+4)
    k.e(f"""
    s_cmp_lt_u32 s64, 768
    s_cselect_b32 s67, s67, s59
    s_cselect_b32 s73, s73, s59
    s_cmp_lg_u32 s70, 0
    s_cselect_b32 s66, s59, s66
    s_cselect_b32 s67, s59, s67
    s_cselect_b32 s73, s59, s73
    s_mov_b32 s74, s59
    s_mov_b32 s72, s59
    """)
    for r in range(4): k.e(f"v_mov_b32 v{VCSD+r}, 0")
    for r in range(8): k.e(f"v_accvgpr_write_b32 a{ACSL(0)+r}, 0")
    for r in list(range(72, 144)): k.e(f"v_mov_b32 v{r}, 0")
    for r in range(8): k.e(f"v_accvgpr_write_b32 a{AV(1,0)+r}, 0")
    k.e(f"v_mov_b32 v{VKA}, v{VL16}\nv_mov_b32 v{VVA}, v{VL16}")
    L = k.label("loop"); Lep = k.label("epi")
    if OPT.codepf: code_pf_addr(k, Lep, "L_k5_kernel_end", VPA, VL, 3)
    k.e("s_waitcnt vmcnt(8)\ns_barrier")
    stamp(k, 1)
    def kread(kb): return [f"ds_read_b128 {a(AK(kb%2,s_),4)}, v{VKA} offset:{(kb%4)*4096 + s_*1024}" for s_ in range(2)]
    def vread(kb): return [f"ds_read_b128 {a(AV(kb%2,s_),4)}, v{VVA} offset:{(kb%4)*4096 + 2048 + s_*1024}" for s_ in range(2)]
    for x in kread(0) + kread(1): k.e(x)
    Lskip = k.label("havemax")
    k.e(f"s_waitcnt lgkmcnt(0)\ns_cmp_lg_u32 s70, 0\ns_cbranch_scc1 {Lskip}")
    for q in range(2):
        k.e(f"v_mfma_f32_32x32x16_bf16 {v(VS(q),16)}, {a(AK(0,0),4)}, {a(AQ(q,0),4)}, 0")
        k.e(f"v_mfma_f32_32x32x16_bf16 {v(VS(q),16)}, {a(AK(0,1),4)}, {a(AQ(q,1),4)}, {v(VS(q),16)}")
    k.e("s_nop 9")
    def maxfin():
        k.e(f"v_mov_b32 v{VT+2}, v{VT}\nv_mov_b32 v{VT+3}, v{VT+1}\ns_nop 0")
        k.e(f"v_permlane32_swap_b32 v{VT}, v{VT+2}\nv_permlane32_swap_b32 v{VT+1}, v{VT+3}\ns_nop 0")
        k.e(f"v_max_f32 v{VT}, v{VT}, v{VT+2}\nv_max_f32 v{VT+1}, v{VT+1}, v{VT+3}\nv_mov_b32 v{VT+2}, -1.0")
        for q in range(2):
            for r in range(0, 16, 2): k.e(pk("mul", VC(q)+r, ('b', VT+q), ('b', VT+2)))
    for q in range(2):
        b = VS(q)
        k.e(f"v_max3_f32 v{VT+q}, v{b}, v{b+1}, v{b+2}\nv_max3_f32 v{VT+2}, v{b+3}, v{b+4}, v{b+5}")
        for r in range(6, 14, 4): k.e(f"v_max3_f32 v{VT+q}, v{VT+q}, v{b+r}, v{b+r+1}\nv_max3_f32 v{VT+2}, v{VT+2}, v{b+r+2}, v{b+r+3}")
        k.e(f"v_max3_f32 v{VT+q}, v{VT+q}, v{b+14}, v{b+15}\nv_max_f32 v{VT+q}, v{VT+q}, v{VT+2}")
        if q == 0: k.e("s_nop 3")
    maxfin()
    k.e(f"{Lskip}:\ns_nop 1")
    def qk(n):
        q = n % 2; kb = n // 2
        return [f"v_mfma_f32_32x32x16_bf16 {v(VS(q),16)}, {a(AK(kb%2,0),4)}, {a(AQ(q,0),4)}, {v(VC(q),16)}",
                f"v_mfma_f32_32x32x16_bf16 {v(VS(q),16)}, {a(AK(kb%2,1),4)}, {a(AQ(q,1),4)}, {v(VS(q),16)}"]
    def pv(n):
        q = n % 2; kb = n // 2
        return [f"v_mfma_f32_32x32x16_bf16 {v(VO(q),16)}, {a(AV(kb%2,s_),4)}, {v(VP(q)+4*s_,4)}, {v(VO(q),16)}" for s_ in range(2)] + \
               [f"v_smfmac_f32_32x32x32_bf16 {v(VLs(q),16)}, {v(VONE,4)}, {v(VP(q),8)}, v{VIDX}"]
    for x in qk(0): k.e(x)
    k.e("s_mov_b32 s62, 8\ns_waitcnt vmcnt(4)")
    if OPT.codepf: k.e(code_pf(VPF, VPA))
    k.e("s_nop 8")
    csm = lambda st: f"v_mfma_f32_16x16x32_bf16 {v(VCSD,4)}, {v(VSEL,4)}, {a(ACSL(st),4)}, {v(VCSD,4)}"
    cpst = lambda st, so: f"buffer_store_dwordx4 {a(ACP(st),4)}, v{VCPD}, s[40:43], s{so} offen {OPT.st}"
    body = []
    for st in range(2):
        for n in range(8):
            q = n % 2
            b = VS(q)
            ex = lambda r: f"v_exp_f32 v{b+r}, v{b+r}"
            cv = lambda r: f"v_cvt_pk_bf16_f32 v{VP(q)+r}, v{b+2*r}, v{b+2*r+1}"
            m = qk(n + 1) + pv(n - 1)
            seg = [[ex(0), ex(1), ex(2), ex(3)],
                   [ex(4), cv(0), ex(5), cv(1), ex(6)],
                   [ex(7), cv(2), ex(8), ex(9), cv(3)],
                   [ex(10), ex(11), cv(4), ex(12), cv(5)],
                   [ex(13), ex(14), ex(15), cv(6), cv(7)]]
            after = [[] for _ in range(5)]
            rd = kread((n + 3) // 2) if n % 2 == 1 else vread(n // 2)
            d = dma()
            csl = f"buffer_load_dwordx4 {a(ACSL(st),4)}, v{VCSA}, s[32:35], s66 offen"
            cpl = f"buffer_load_dwordx4 {a(ACP(st),4)}, v{VCPS}, s[36:39], s67 offen"
            plan = {
              0: {1: ["s_waitcnt vmcnt(11)"], 2: [adv[0]], 4: [adv[1]]},
              1: {2: [cpst(st, 74), cpl], 3: [adv[2]], 4: [adv[3]]},
              2: {1: [adv[4]], 2: [adv[5]], 4: [adv[6]]},
              3: {2: [csl], 3: [f"s_add_u32 s66, s66, {4*7168}"], 4: ["s_add_u32 s67, s67, 16384"]},
              4: {1: ["s_mov_b32 s74, s72"], 2: ["s_mov_b32 s72, s73"], 4: ["s_waitcnt vmcnt(10)"]},
              5: {0: ["s_barrier"], 2: d[:2], 3: ["s_add_u32 s73, s73, s55"], 4: [f"s_cmp_lt_u32 s56, {17*16384}"]},
              6: {1: ["s_cselect_b32 s66, s66, s59"], 2: ["s_cmp_lt_u32 s56, s54"], 4: ["s_cselect_b32 s67, s67, s59"]},
              7: {2: ["s_cselect_b32 s73, s73, s59"] + d[2:], 3: ["s_sub_u32 s62, s62, 1"] if st else [], 4: ["s_cmp_lg_u32 s62, 0"] if st else []},
            }[n]
            for j_, x in plan.items(): after[j_] += x
            after[0] += rd
            if n % 2 == 1: after[1].append("s_waitcnt lgkmcnt(2)")
            else: after[3].append("s_waitcnt lgkmcnt(2)")
            if n == 4: seg[2] = [f"v_add_u32 v{VKA}, 0x4000, v{VKA}", f"v_and_b32 v{VKA}, 0xffff, v{VKA}"] + seg[2]
            if n == 7: seg[2] = [f"v_add_u32 v{VVA}, 0x4000, v{VVA}", f"v_and_b32 v{VVA}, 0xffff, v{VVA}"] + seg[2]
            if n == 3: seg[1] = seg[1][:3] + [csm(st)] + seg[1][3:]
            for j_ in range(5):
                body.append(m[j_]); body += [x for x in after[j_] if x != "s_nop 0"]; body += seg[j_]
    if 'novm' in abl: body = [x for x in body if not x.startswith('buffer_')]
    if 'noside' in abl: body = [x.replace('vmcnt(10)', 'vmcnt(4)') for x in body if not (x.startswith('buffer_') and 'lds' not in x)]
    if 'nost' in abl: body = [x.replace('vmcnt(10)', 'vmcnt(8)') for x in body if not x.startswith('buffer_store')]
    if 'nowait' in abl: body = [x for x in body if 'vmcnt' not in x]
    body = auto_lgkm(body, kread(1))
    k.e(f".p2align 6\n{L}:")
    for x in body: k.e(x)
    k.e(f"s_cbranch_scc1 {L}\n{Lep}:")
    k.e("s_nop 1")
    for x in pv(7): k.e(x)
    k.e("s_waitcnt vmcnt(11) lgkmcnt(0)")
    stamp(k, 2)
    Lno = k.label("nofb")
    k.e(f"s_cmp_lg_u32 s70, 0\ns_cbranch_scc1 {Lno}")
    k.e(csm(0))
    srd(k, 28, 22, 23, 2*F_*4, WS_CS)
    k.e(f"""
    v_and_b32 v{VT+8}, 15, v{VL}
    v_lshrrev_b32 v{VT+1}, 4, v{VL}
    v_lshlrev_b32 v{VT+8}, 5, v{VT+8}
    v_lshl_add_u32 v{VT+8}, v{VT+1}, 4, v{VT+8}
    v_lshrrev_b32 v{VT+1}, 1, v{VT+1}
    v_lshl_add_u32 v{VT+8}, v{VT+1}, 29, v{VT+8}
    v_add_f32 v{VT}, v{VLs(0)}, v{VLs(0)+1}
    v_add_f32 v{VT+1}, v{VLs(1)}, v{VLs(1)+1}
    v_add_f32 v{VT}, v{VT}, v{VT+1}
    v_mov_b32 v{VT+2}, {fbits(2.0**40 if not force_fb else 0.5)}
    v_cmp_nlt_f32 vcc, v{VT}, v{VT+2}
    s_lshl_b32 s60, s3, 2
    s_add_u32 s60, s60, 65536
    v_mov_b32 v{VT+2}, s60
    s_cmp_lg_u64 vcc, 0
    s_cselect_b32 s61, 1, 0
    v_mov_b32 v{VT+3}, s61
    ds_write_b32 v{VT+2}, v{VT+3}
    v_mov_b32 v{VT+2}, 65536
    """)
    for r in range(4): k.e(f"buffer_atomic_add_f32 v{VCSD+r}, v{VT+8}, s[28:31], s71 offen offset:{4*r}")
    k.e(f"""
    s_waitcnt lgkmcnt(0)
    s_barrier
    ds_read_b128 {v(VT+4,4)}, v{VT+2}
    s_waitcnt lgkmcnt(0)
    v_or_b32 v{VT+4}, v{VT+4}, v{VT+5}
    v_or3_b32 v{VT+4}, v{VT+4}, v{VT+6}, v{VT+7}
    s_nop 0
    v_readfirstlane_b32 s61, v{VT+4}
    s_nop 3
    s_cmp_eq_u32 s61, 0
    s_cbranch_scc1 {Lno}
    """)
    Lm = k.label("maxloop")
    k.e(f"""
    s_mov_b32 s70, 1
    s_lshl_b32 s60, s46, 18
    s_mov_b32 s61, 64
    v_mov_b32 v{VT}, 0xff800000
    v_mov_b32 v{VT+1}, 0xff800000
    {Lm}:
    buffer_load_dwordx4 {a(AK(0,0),4)}, v{VL16}, s[24:27], s60 offen
    buffer_load_dwordx4 {a(AK(0,1),4)}, v{VL16}, s[24:27], s60 offen offset:1024
    s_waitcnt vmcnt(0)
    """)
    for q in range(2):
        k.e(f"v_mfma_f32_32x32x16_bf16 {v(VS(q),16)}, {a(AK(0,0),4)}, {a(AQ(q,0),4)}, 0")
        k.e(f"v_mfma_f32_32x32x16_bf16 {v(VS(q),16)}, {a(AK(0,1),4)}, {a(AQ(q,1),4)}, {v(VS(q),16)}")
    k.e("s_nop 15")
    for q in range(2):
        for r in range(0, 16, 2): k.e(f"v_max3_f32 v{VT+q}, v{VT+q}, v{VS(q)+r}, v{VS(q)+r+1}")
    k.e(f"s_add_u32 s60, s60, 4096\ns_sub_u32 s61, s61, 1\ns_cmp_lg_u32 s61, 0\ns_cbranch_scc1 {Lm}")
    maxfin()
    k.e(f"s_branch {Lre}\n{Lno}:")
    srd(k, 28, 22, 23, PLANE + S_*D_*2, WS_O)
    k.e(f"""
    v_and_b32 v{VT}, 15, v{VL}
    v_bfe_u32 v{VT+1}, v{VL}, 4, 1
    v_lshrrev_b32 v{VT+2}, 5, v{VL}
    v_lshlrev_b32 v{VT}, 4, v{VT}
    v_lshl_add_u32 v{VT}, v{VT+1}, 15, v{VT}
    v_lshl_add_u32 v{VT}, v{VT+2}, 8, v{VT}
    s_lshl_b32 s60, s48, 16
    s_lshl_b32 s61, s46, 10
    s_add_u32 s60, s60, s61
    s_add_u32 s61, s60, 65536
    """)
    reloc(k, VT, VT+1)
    k.e(f"v_add_f32 v{VT+4}, v{VLs(0)}, v{VLs(0)+1}\nv_add_f32 v{VT+5}, v{VLs(1)}, v{VLs(1)+1}\nv_rcp_f32 v{VT+4}, v{VT+4}\nv_rcp_f32 v{VT+5}, v{VT+5}\ns_nop 0")
    for q in range(2):
        b = VO(q)
        for a_ in range(2):
            for r in range(0, 8, 2): k.e(pk("mul", b+8*a_+r, b+8*a_+r, ('b', VT+4+q)))
            for r in range(4): k.e(f"v_cvt_pk_bf16_f32 v{b+8*a_+r}, v{b+8*a_+2*r}, v{b+8*a_+2*r+1}")
            k.e(f"buffer_store_dwordx4 {v(b+8*a_,4)}, v{VT}, s[28:31], s{60+q} offen offset:{a_*512} {OPT.st}")
    finish(k, 2)
    return k

def gen_small(which, D=3, TB=2, LEAD=0, MG=1, abl=''):
    k3 = which == 3
    K = D_ if k3 else F_
    NS = K // 128
    U = 4; STG = 16384; NH = 4
    k = KB(f"k{which}_kernel", 112, 128, U * STG)
    ACC = lambda j, i: (j * 2 + i) * 4
    VW = lambda g, s_: 32 + (g % 4) * 8 + s_ * 4
    VD = 64
    VX = 66
    VR = 68
    VRA = 72
    VPF = 73; VPA = 74
    VL = 78; VT = 80
    VRES = 88
    AX = lambda st, i, s_: st * 32 + (i * 4 + s_) * 4
    prologue(k)
    k.e(f"v_mov_b32 v{VL}, v0")
    tile_map(k, TB, 4 - TB, 46, 47)
    k.e(f"""
    s_lshl_b32 s48, s46, 3
    s_lshl_b32 s49, s3, 1
    s_add_u32 s48, s48, s49
    s_mul_i32 s49, s48, {K*32}
    v_lshlrev_b32 v{VT}, 4, v{VL}
    s_lshl_b32 s53, s3, 12
    s_mul_i32 s50, s47, {K*128}
    s_add_u32 s50, s50, s53
    s_lshl_b32 s51, s47, 7
    s_add_u32 s70, s46, s47
    s_and_b32 s70, s70, {max(LEAD-1,0)}
    s_mov_b32 s58, -1
    """)
    reloc(k, VT, VT+1)
    k.e(f"""
    v_add_u32 v{VX}, s49, v{VT}
    v_add_u32 v{VX+1}, {K*32}, v{VX}
    v_add_u32 v{VD}, s50, v{VT}
    v_and_b32 v{VT}, 31, v{VL}
    v_lshrrev_b32 v{VT}, 2, v{VT}        ; 4*(g%2)+i
    v_lshrrev_b32 v{VT+1}, 5, v{VL}
    v_lshl_add_u32 v{VT+1}, v{VT+1}, 4, v{VT}   ; row
    v_lshrrev_b32 v{VT}, 1, v{VT}        ; sw
    v_lshlrev_b32 v{VT}, 5, v{VT}
    v_lshl_add_u32 v{VT}, v{VT+1}, 7, v{VT}
    v_and_b32 v{VT+1}, 3, v{VL}
    v_lshl_add_u32 v{VR}, v{VT+1}, 3, v{VT}
    """)
    for fb in range(1, 4): k.e(f"v_xor_b32 v{VR+fb}, {fb*32}, v{VR}")
    for r in range(32): k.e(f"v_mov_b32 v{r}, 0")
    k.e(f"v_and_b32 v{VT}, 15, v{VL}\nv_lshrrev_b32 v{VT+1}, 4, v{VL}")
    L = k.label("loop"); Lt = k.label("tail")
    if OPT.codepf: code_pf_addr(k, Lt, "L_k5_kernel_end", VPA, VL, 3)
    if k3:
        k.e(f"""
        v_lshlrev_b32 v{VRA}, 11, v{VT}
        v_lshl_add_u32 v{VRA}, v{VT+1}, 3, v{VRA}
        s_lshl_b32 s60, s48, 15
        s_add_u32 s60, s60, s51
        s_add_u32 s61, s60, 32768
        """)
        res = [f"buffer_load_dwordx2 {v(VRES+i*8+fb*2,2)}, v{VRA}, s[32:35], s{60+i} offen offset:{fb*32}" for i in range(2) for fb in range(4)]
    else:
        k.e(f"""
        v_lshlrev_b32 v{VRA}, 4, v{VL}
        s_lshl_b32 s60, s48, 15
        s_lshl_b32 s61, s47, 11
        s_add_u32 s60, s60, s61
        s_add_u32 s61, s60, 32768
        """)
        res = [f"buffer_load_dwordx4 {v(VRES+i*8+p*4,4)}, v{VRA}, s[32:35], s{60+i} offen offset:{p*1024}" for i in range(2) for p in range(2)]
    k.e("s_waitcnt lgkmcnt(0)")
    srd(k, 24, 22, 23, PLANE + K*D_*2, WS_WOT if k3 else WS_W2T)
    srd(k, 28, 22, 23, PLANE + S_*K*2, WS_O if k3 else WS_G)
    def vmem_ops(slot):
        ops = []
        for q in range(4):
            o = [f"buffer_load_dwordx4 v{VD}, s[24:27], s56 offen offset:{q*1024} lds"]
            if q == 0: o = [f"s_add_u32 m0, s53, {slot*STG}"] + o
            ops.append(o)
            for i in range(2):
                ops.append([f"buffer_load_dwordx4 {a(AX(slot,i,q),4)}, v{VX+i}, s[28:31], s57 offen offset:{q*1024}"])
        return ops
    adv = lead_adv(NS, LEAD, 58, 70, 69) + ["s_lshl_b32 s56, s69, 14", "s_lshl_b32 s57, s69, 12"]
    k.e("\n".join(adv))
    for st in range(2):
        for o in vmem_ops(st): k.e("\n".join(with_nop(o)))
        k.e("\n".join(adv))
        if st == 0:
            if k3: srd(k, 32, 4, 5, S_*D_*2)
            else: srd(k, 32, 22, 23, S_*D_*2, WS_H)
    def wreads(slot, g):
        fb, sp = g % 4, g // 4
        return [f"ds_read_b64_tr_b16 {v(VW(g,s_)+2*rd,2)}, v{VR+fb} offset:{slot*STG + (2*sp+s_)*4096 + rd*1024}" for s_ in range(2) for rd in range(2)]
    def stage(st, left, loopend=False):
        main = []; side = {}
        vm_a = vmem_ops((st + 2) % U)[NH:] if left >= 2 else []
        vm_b = vmem_ops((st + 3) % U)[:NH] if left >= 3 else []
        nwait = 12 if left >= 2 else 0
        if left == 2: vm_b = [[x] for x in res]
        if left == 1: nwait = len(res)
        for g in range(8):
            fb, sp = g % 4, g // 4
            for i in range(2):
                for s_ in range(2):
                    main.append(f"v_mfma_f32_16x16x32_bf16 {v(ACC(fb,i),4)}, {v(VW(g,s_),4)}, {a(AX(st,i,2*sp+s_),4)}, {v(ACC(fb,i),4)}")
        def place(o, pos):
            if len(o) > 1: side.setdefault(pos - 1, []).append(o[0])
            side.setdefault(pos, []).append(o[-1])
        nb = 4 * (8 - D)
        for q, o in enumerate(vm_a): place(o, q * (nb - 2) // len(vm_a))
        if left >= 3:
            for q, x in enumerate(adv): side.setdefault(nb - 1 - len(adv) + q, []).append(x)
        if left >= 1: side.setdefault(nb - 1, []).extend([f"s_waitcnt vmcnt({nwait})", "s_barrier"])
        for q, o in enumerate(vm_b): place(o, nb + 1 + q * (4 * D - 2) // len(vm_b))
        heads = []
        for g in range(8):
            gg = g + D
            if gg >= 8 and left == 0: continue
            rd = wreads(st if gg < 8 else (st + 1) % U, gg % 8)
            if gg >= 8: heads += rd
            for q, x in enumerate(rd): side.setdefault(4 * g + q, []).append(x)
        if loopend:
            side.setdefault(29, []).append("s_sub_u32 s62, s62, 1")
            side.setdefault(30, []).append("s_cmp_lg_u32 s62, 0")
        return flatten(main, side), heads
    body = []
    for st in range(U):
        b_, heads = stage(st, 99, st == U - 1); body += b_
    tail = []
    for st in range(U): tail += stage(st, U - 1 - st)[0]
    if 'nomfma' in abl:
        body = [x if 'mfma' not in x else 's_nop 0' for x in body]
    body = salu_first(auto_lgkm(body, heads, merge=MG, hoist=True))
    tail = salu_first(auto_lgkm(tail, heads, cyclic=False, merge=MG, hoist=True))
    if OPT.rep: print(k.name, slot_report(body), file=sys.stderr)
    k.e(f"s_waitcnt vmcnt(12)\ns_barrier")
    stamp(k, 1)
    for x in heads: k.e(x)
    if OPT.codepf: k.e(code_pf(VPF, VPA))
    for o in vmem_ops(2)[:NH]: k.e("\n".join(with_nop(o)))
    k.e(f"s_mov_b32 s62, {NS//U - 1}")
    k.e(f".p2align 6\n{L}:")
    for x in body: k.e(x)
    k.e(f"s_cbranch_scc1 {L}\n{Lt}:")
    for x in tail: k.e(x)
    stamp(k, 2)
    fl = OPT.st
    if k3:
        srd(k, 36, 22, 23, S_*D_*2, WS_H)
        srd(k, 40, 22, 23, S_*8, WS_ST)
        k.e(f"""
        v_lshlrev_b32 v{VT+2}, 4, v{VL}
        s_lshl_b32 s60, s48, 15
        s_lshl_b32 s61, s47, 11
        s_add_u32 s60, s60, s61
        s_add_u32 s61, s60, 32768
        """)
    else:
        srd(k, 36, 18, 19, S_*D_*2)
        k.e(f"""
        v_and_b32 v{VT+2}, 1, v{VT+1}
        v_lshrrev_b32 v{VT+3}, 1, v{VT+1}
        v_lshlrev_b32 v{VT+2}, 5, v{VT+2}
        v_lshl_add_u32 v{VT+2}, v{VT+3}, 4, v{VT+2}
        v_lshl_add_u32 v{VT+2}, v{VT}, 11, v{VT+2}
        s_lshl_b32 s60, s48, 15
        s_add_u32 s60, s60, s51
        s_add_u32 s61, s60, 32768
        """)
    k.e("s_waitcnt vmcnt(0)")
    for i in range(2):
        for p in range(2):
            for fb in (2*p, 2*p+1):
                o = ACC(fb, i); r = VRES + i*8 + fb*2
                k.e(f"""
                v_lshlrev_b32 v{VT+4}, 16, v{r}
                v_and_b32 v{VT+5}, 0xffff0000, v{r}
                v_lshlrev_b32 v{VT+6}, 16, v{r+1}
                v_and_b32 v{VT+7}, 0xffff0000, v{r+1}
                {pk("add", o, o, VT+4)}
                {pk("add", o+2, o+2, VT+6)}
                v_cvt_pk_bf16_f32 v{r}, v{o}, v{o+1}
                v_cvt_pk_bf16_f32 v{r+1}, v{o+2}, v{o+3}
                """)
            r = VRES + i*8 + p*4
            if k3:
                k.e(f"buffer_store_dwordx4 {v(r,4)}, v{VT+2}, s[36:39], s{60+i} offen offset:{p*1024} {fl}")
            else:
                k.e(f"s_nop 1\nv_permlane16_swap_b32 v{r}, v{r+2}\nv_permlane16_swap_b32 v{r+1}, v{r+3}")
                k.e(f"buffer_store_dwordx4 {v(r,4)}, v{VT+2}, s[36:39], s{60+i} offen offset:{p*64} {fl}")
    if k3:
        for i in range(2):
            regs = [ACC(fb, i) + r for fb in range(4) for r in (0, 2)]
            k.e(pk("add", 36, regs[0], regs[1]) + "\n" + pk("mul", 38, regs[0], regs[0]) + "\n" + pk("fma", 38, regs[1], regs[1], 38))
            for r in regs[2:]: k.e(pk("add", 36, 36, r) + "\n" + pk("fma", 38, r, r, 38))
            k.e(f"v_add_f32 v{32+2*i}, v36, v37\nv_add_f32 v{33+2*i}, v38, v39")
        k.e(f"""
        v_lshrrev_b32 v{VT+3}, 1, v{VT+1}
        v_lshl_add_u32 v{VT+3}, v{VT+3}, 4, v{VT}
        v_permlane32_swap_b32 v32, v34
        v_permlane32_swap_b32 v33, v35
        v_and_b32 v{VT+4}, 1, v{VT+1}
        v_add_f32 v32, v32, v34
        v_add_f32 v33, v33, v35
        v_lshlrev_b32 v{VT+3}, 3, v{VT+3}
        v_lshl_add_u32 v{VT+3}, v{VT+4}, 2, v{VT+3}
        v_permlane16_swap_b32 v32, v33
        s_lshl_b32 s60, s48, 7
        v_add_f32 v32, v32, v33
        buffer_atomic_add_f32 v32, v{VT+3}, s[40:43], s60 offen
        """)
    finish(k, which)
    return k

def gen_k4(D=3, MG=1, SP=2, abl=''):
    STG = 28672
    k = KB("k4_kernel", 256, 184, 4 * STG + 4096)
    ACC = lambda j, i: (j * 4 + i) * 4
    VD = 224
    VPF = 231
    VX = 232
    VR = 236
    VC1 = 238; VC2 = 242
    VL = 246; VT = 248
    AX = lambda st, i, s_: st * 32 + (i * 2 + s_) * 4
    AW = lambda slot, s_: 128 + slot * 8 + s_ * 4
    prologue(k)
    k.e(f"v_mov_b32 v{VL}, v0")
    tile_map(k, 2, 1, 46, 47)
    k.e(f"""
    s_lshl_b32 s48, s46, 4
    s_lshl_b32 s49, s3, 2
    s_add_u32 s48, s48, s49
    s_lshl_b32 s49, s48, 15
    v_lshlrev_b32 v{VT}, 4, v{VL}
    v_add_u32 v{VX}, s49, v{VT}
    s_and_b32 s50, s3, 1
    s_mul_i32 s50, s50, 448
    s_mul_i32 s51, s47, 224
    """)
    for i in range(1, 4): k.e(f"v_add_u32 v{VX+i}, {i*32768}, v{VX}")
    k.e(f"""
    v_cmp_lt_u32 vcc, 27, v{VL}
    v_mov_b32 v0, {F_*4 - 28*16}
    s_mul_i32 s60, s47, 448
    v_cndmask_b32 v0, 0, v0, vcc
    v_add_u32 v0, v0, v{VT}
    v_and_b32 v1, 15, v{VL}
    v_lshlrev_b32 v1, 3, v1
    s_lshl_b32 s61, s48, 7
    s_lshl_b32 s55, s3, 10
    s_add_u32 s55, s55, {4*STG}
    """)
    for i in range(7):
        k.e(f"v_add_u32 v{VT}, s50, v{VL}")
        if i: k.e(f"v_add_u32 v{VT}, {64*i}, v{VT}")
        udiv_const(k, VT+1, VT, 14)
        k.e(f"""
        v_mul_u32_u24 v{VT+1}, {7168 - 224}, v{VT+1}
        v_lshl_add_u32 v{VT+1}, v{VT}, 4, v{VT+1}
        v_add_u32 v{VD+i}, s51, v{VT+1}
        """)
        if i % 4: k.e(f"v_subrev_u32 v{VD+i}, {(i%4)*1024}, v{VD+i}")
    k.e(f"""
    s_mul_i32 s53, s3, 7168
    s_mov_b32 s56, 0
    s_mov_b32 s57, 0
    s_mov_b32 s58, 0
    s_mov_b32 s59, {OOB}
    s_mov_b32 m0, s55
    s_waitcnt lgkmcnt(0)
    """)
    srd(k, 40, 22, 23, 2*F_*4, WS_CS)
    srd(k, 36, 22, 23, S_*8, WS_ST)
    k.e("buffer_load_dwordx4 v0, s[40:43], s60 offen lds")
    for i in range(4): k.e(f"buffer_load_dwordx2 v[{VT+2*i}:{VT+2*i+1}], v1, s[36:39], s61 offen offset:{i*128}")
    k.e(f"""
    s_cmp_lt_u32 s3, 2
    s_cselect_b32 s24, s12, s14
    s_cselect_b32 s25, s13, s15
    s_mov_b32 s26, {D_*F_*2}
    s_mov_b32 s27, 0x20000
    """)
    srd(k, 28, 22, 23, S_*D_*2, WS_H)
    def parts(slot):
        d = []
        for i in range(7):
            o = [f"buffer_load_dwordx4 v{VD+i}, s[24:27], s56 offen offset:{(i%4)*1024} lds"]
            if i % 4 == 0: o = [f"s_add_u32 m0, s53, {slot*STG + i*1024}"] + o
            d.append(o)
        xs = [[f"buffer_load_dwordx4 {a(AX(slot, i, s_), 4)}, v{VX+i}, s[28:31], s57 offen offset:{s_*1024}"] for i in range(4) for s_ in range(2)]
        return d[:4] + xs[:4], d[4:] + xs[4:]
    adv = ["s_add_u32 s56, s56, %d" % (64*7168), "s_add_u32 s58, s58, 2048", "s_cmp_lt_u32 s58, 32768", f"s_cselect_b32 s57, s58, s59"]
    p1, p2 = parts(0)
    for o in p1 + p2: k.e("\n".join(with_nop(o)))
    k.e("\n".join(adv))
    L = k.label("loop"); Lep = k.label("epi")
    k.e(f"""
    v_lshrrev_b32 v4, 2, v{VL}
    v_mul_u32_u24 v4, 224, v4
    v_and_b32 v5, 3, v{VL}
    v_lshl_add_u32 v{VR}, v5, 3, v4
    v_add_u32 v{VR+1}, {2*STG}, v{VR}
    v_lshrrev_b32 v4, 4, v{VL}
    v_lshl_add_u32 v4, v4, 4, s55
    s_waitcnt vmcnt(15)
    """)
    for j in range(14): k.e(f"ds_read_b128 {v(ACC(j,0),4)}, v4 offset:{j*64}")
    init = []
    for i in range(4):
        b = VT + 2 * i
        init += f"""v_mul_f32 v{b}, {fbits(-1.0/D_)}, v{b}
        v_mul_f32 v{b+1}, {fbits(1.0/D_)}, v{b+1}
        v_fma_f32 v{b+1}, -v{b}, v{b}, v{b+1}
        v_max_f32 v{b+1}, 0, v{b+1}
        v_add_f32 v{VC2+i}, {fbits(1e-5)}, v{b+1}
        v_rsq_f32 v{b+1}, v{VC2+i}""".split("\n")
    for i in range(4): init.append(f"v_mul_f32 v{VC1+i}, {fbits(-LOG2E)}, v{VT+2*i+1}")
    init.append("s_waitcnt lgkmcnt(0)")
    for j in range(14):
        for i in (3, 2, 1, 0):
            for r in (0, 2): init.append(pk("mul", ACC(j,i)+r, ACC(j,0)+r, ('b', VT+2*i)))
    init = [x.strip() for x in init]
    for x in sprinkle(init, [with_nop(o) for o in parts(1)[0]]): k.e(x)
    if OPT.codepf: code_pf_addr(k, Lep, "L_k5_kernel_end", VT, VL, 3)
    def reads(stage_slot, j):
        base = VR + (stage_slot // 2)
        off0 = (stage_slot % 2) * STG + (j // 7) * 14336 + (j % 7) * 32
        return [f"ds_read_b64_tr_b16 {a(AW(j % 7, s_) + 2*rd, 2)}, v{base} offset:{off0 + (32*s_ + 16*rd)*224}" for s_ in range(2) for rd in range(2)]
    body = []; heads = []
    for st in range(4):
        main = []; side = {}
        cur = parts((st + 1) % 4)[1][D:]; nxt = parts((st + 2) % 4)[0]; post = parts((st + 2) % 4)[1][:D]
        for j in range(14):
            for i in range(4):
                for s_ in range(2):
                    main.append(f"v_mfma_f32_16x16x32_bf16 {v(ACC(j,i),4)}, {a(AW(j%7,s_),4)}, {a(AX(st,i,s_),4)}, {v(ACC(j,i),4)}")
        def place(o, pos):
            if len(o) > 1: side.setdefault(pos - 1, []).append(o[0])
            side.setdefault(pos, []).append(o[-1])
        nb = 8 * (14 - D)
        ops = cur + nxt
        pos = [(5 + q * (nb - 6) // len(ops)) | 1 for q in range(len(ops))]
        for q, o in enumerate(ops): place(o, pos[q])
        for q, x in enumerate(adv): side.setdefault(pos[len(cur) - 1] + 1 + q, []).append(x)
        assert pos[len(cur) - 1] + 4 < pos[len(cur)] - 1
        side.setdefault(nb - 1, []).extend(["s_waitcnt vmcnt(8)", "s_barrier"])
        for q, o in enumerate(post): place(o, nb + 5 + 8 * q)
        for j in range(14):
            jj = j + D
            rd = reads(st if jj < 14 else (st + 1) % 4, jj % 14)
            if jj >= 14 and st == 3: heads += rd
            for q, x in enumerate(rd): side.setdefault(8 * j + q * SP, []).append(x)
        if st == 3:
            side.setdefault(109, []).append("s_sub_u32 s62, s62, 1")
            side.setdefault(110, []).append("s_cmp_lg_u32 s62, 0")
        body += flatten(main, side)
    body = salu_first(auto_lgkm(body, heads, merge=MG, hoist=True))
    if OPT.rep: print(k.name, slot_report(body), file=sys.stderr)
    k.e("s_waitcnt vmcnt(8)\ns_barrier")
    stamp(k, 1)
    for x in heads: k.e(x)
    if OPT.codepf: k.e(code_pf(VPF, VT))
    for o in parts(1)[1][:D]: k.e("\n".join(with_nop(o)))
    k.e("s_mov_b32 s62, 4")
    k.e(f".p2align 6\n{L}:")
    for x in body: k.e(x)
    k.e(f"s_cbranch_scc1 {L}\n{Lep}:")
    stamp(k, 2)
    srd(k, 32, 22, 23, PLANE + S_*F_*2, WS_G)
    k.e(f"""
    v_and_b32 v{VT}, 31, v{VL}
    v_lshlrev_b32 v{VT}, 4, v{VT}
    """)
    reloc(k, VT, VT+1)
    k.e(f"""
    v_lshrrev_b32 v{VT+1}, 5, v{VL}
    v_mul_u32_u24 v{VT+1}, {224*512}, v{VT+1}
    v_add_u32 v{VT}, v{VT}, v{VT+1}
    s_mul_i32 s60, s48, {224*512}
    s_mul_i32 s61, s47, {7*512}
    s_add_u32 s60, s60, s61
    s_add_u32 s61, s60, {2*224*512}
    """)
    for j in range(7):
        for p in range(2):
            ii = (2*p, 2*p+1)
            G = lambda i: ACC(j, i); Uu = lambda i: ACC(j + 7, i)
            for i in ii:
                for r in (0, 2): k.e(pk("mul", Uu(i)+r, Uu(i)+r, G(i)+r))
                for r in (0, 2): k.e(pk("mul", G(i)+r, G(i)+r, ('b', VC1+i)))
            for i in ii:
                for r in range(4): k.e(f"v_exp_f32 v{G(i)+r}, v{G(i)+r}")
            for i in ii:
                for r in (0, 2): k.e(pk("fma", G(i)+r, G(i)+r, ('b', VC2+i), ('b', VC2+i)))
            for i in ii:
                for r in range(4): k.e(f"v_rcp_f32 v{G(i)+r}, v{G(i)+r}")
            for i in ii:
                for r in (0, 2): k.e(pk("mul", Uu(i)+r, Uu(i)+r, G(i)+r))
            o = G(2*p)
            k.e(f"v_cvt_pk_bf16_f32 v{o}, v{Uu(2*p)}, v{Uu(2*p)+1}\nv_cvt_pk_bf16_f32 v{o+2}, v{Uu(2*p+1)}, v{Uu(2*p+1)+1}")
            k.e(f"v_cvt_pk_bf16_f32 v{o+1}, v{Uu(2*p)+2}, v{Uu(2*p)+3}\nv_cvt_pk_bf16_f32 v{o+3}, v{Uu(2*p+1)+2}, v{Uu(2*p+1)+3}")
            k.e(f"v_permlane32_swap_b32 v{o}, v{o+2}\ns_nop 0\nv_permlane32_swap_b32 v{o+1}, v{o+3}")
            k.e(f"buffer_store_dwordx4 {v(o,4)}, v{VT}, s[32:35], s{60+p} offen offset:{j*512} {OPT.st}")
    finish(k, 4)
    return k

def gen_k5s(D=3, DIST=3, U=6, MAP=0, LEAD=0, MG=1, abl=''):
    NS = 28; STG = 16384; NH = 3
    NT = DIST + 1
    assert (NS - NT) % U == 0 and U >= DIST + 2
    k = KB("k5_kernel", 160, 16 * U, U * STG)
    ACC = lambda j, i: (j * 2 + i) * 4
    VW = lambda g, s_: 64 + (g % 4) * 8 + s_ * 4
    VD = 96; VX = 98; VRA = 100; VPF = 101; VPA = 102
    VR = 104
    VL = 120; VL16 = 121; VT = 122
    VRES = 132
    AX = lambda st, i, s_: st * 16 + (i * 2 + s_) * 4
    prologue(k)
    k.e(f"v_mov_b32 v{VL}, v0")
    if MAP == 0:
        k.e("""
        s_and_b32 s52, s44, 1
        s_bfe_u32 s46, s44, 0x10001
        s_lshl_b32 s46, s46, 3
        s_and_b32 s47, s45, 7
        s_add_u32 s46, s46, s47
        s_lshr_b32 s47, s44, 2
        s_lshl_b32 s47, s47, 2
        s_lshr_b32 s48, s45, 3
        s_add_u32 s47, s47, s48
        s_xor_b32 s63, s2, 1
        """)
    elif MAP == 1:
        k.e("""
        s_and_b32 s52, s44, 1
        s_lshr_b32 s46, s44, 1
        s_lshl_b32 s46, s46, 2
        s_and_b32 s47, s45, 3
        s_add_u32 s46, s46, s47
        s_lshr_b32 s47, s45, 2
        s_xor_b32 s63, s2, 1
        """)
    else:
        k.e("""
        s_and_b32 s52, s45, 1
        s_and_b32 s46, s44, 3
        s_lshl_b32 s46, s46, 2
        s_bfe_u32 s47, s45, 0x20001
        s_add_u32 s46, s46, s47
        s_lshr_b32 s47, s44, 2
        s_lshl_b32 s47, s47, 2
        s_lshr_b32 s48, s45, 3
        s_add_u32 s47, s47, s48
        s_xor_b32 s63, s2, 8
        """)
    k.e(f"""
    s_lshl_b32 s48, s46, 3
    s_lshl_b32 s49, s3, 1
    s_add_u32 s48, s48, s49
    s_mul_i32 s49, s48, {F_*32}
    v_lshlrev_b32 v{VL16}, 4, v{VL}
    v_mov_b32 v{VT}, v{VL16}
    s_lshl_b32 s53, s3, 12
    s_mul_i32 s50, s47, {F_*256}
    s_add_u32 s50, s50, s53
    s_mul_i32 s71, s52, 28
    s_add_u32 s70, s46, s47
    s_and_b32 s70, s70, {max(LEAD-1,0)}
    s_mov_b32 s58, -1
    s_lshl_b32 s51, s47, 1
    s_add_u32 s51, s51, s52
    """)
    reloc(k, VT, VT+1)
    k.e(f"""
    v_add_u32 v{VX}, s49, v{VT}
    v_add_u32 v{VX+1}, {F_*32}, v{VX}
    v_add_u32 v{VD}, s50, v{VT}
    v_and_b32 v{VT}, 31, v{VL}
    v_lshrrev_b32 v{VT}, 2, v{VT}        ; 4*(g%2)+i = row&7
    v_lshrrev_b32 v{VT+1}, 5, v{VL}
    v_lshl_add_u32 v{VT+1}, v{VT+1}, 4, v{VT}   ; row
    s_lshl_b32 s54, s52, 2
    v_xor_b32 v{VT}, s54, v{VT}
    v_lshlrev_b32 v{VT}, 5, v{VT}
    v_lshl_add_u32 v{VT}, v{VT+1}, 8, v{VT}
    v_and_b32 v{VT+1}, 3, v{VL}
    v_lshl_add_u32 v{VR}, v{VT+1}, 3, v{VT}
    """)
    for fb in range(1, 8): k.e(f"v_xor_b32 v{VR+fb}, {fb*32}, v{VR}")
    for fb in range(8): k.e(f"v_add_u32 v{VR+8+fb}, 0x10000, v{VR+fb}")
    zero = [f"v_mov_b32 v{r}, 0" for r in range(64)]
    for x in zero[:24]: k.e(x)
    L = k.label("loop"); Lt = k.label("tail")
    k.e(f"""
    s_lshl_b32 s60, s48, 15
    s_lshl_b32 s61, s51, 11
    s_add_u32 s60, s60, s61
    s_add_u32 s61, s60, 32768
    s_waitcnt lgkmcnt(0)
    """)
    res = [f"buffer_load_dwordx4 {v(VRES+i*8+p*4,4)}, v{VL16}, s[32:35], s{60+i} offen offset:{p*1024}" for i in range(2) for p in range(2)]
    srd(k, 24, 22, 23, PLANE + F_*D_*2, WS_W2T)
    srd(k, 28, 22, 23, PLANE + S_*F_*2, WS_G)
    def vmem_ops(slot):
        ops = []
        for q in range(4):
            o = [f"buffer_load_dwordx4 v{VD}, s[24:27], s56 offen offset:{q*1024} lds"]
            if q == 0: o = [f"s_add_u32 m0, s53, {slot*STG}"] + o
            ops.append(o)
            ops.append([f"buffer_load_dwordx4 {a(AX(slot,q//2,q%2),4)}, v{VX+q//2}, s[28:31], s57 offen offset:{(q%2)*1024}"])
        return ops
    adv = lead_adv(NS, LEAD, 58, 70, 69) + ["s_add_u32 s69, s69, s71", "s_lshl_b32 s56, s69, 14", "s_lshl_b32 s57, s69, 11"]
    k.e("\n".join(adv))
    for o in vmem_ops(0): k.e("\n".join(with_nop(o)))
    k.e("\n".join(adv))
    for x in zero[24:]: k.e(x)
    if OPT.codepf: code_pf_addr(k, Lt, "L_k5_kernel_end", VPA, VL, 3)
    srd(k, 32, 22, 23, S_*D_*2, WS_H)
    for o in vmem_ops(1): k.e("\n".join(with_nop(o)))
    k.e("\n".join(adv))
    def wreads(slot, g):
        return [f"ds_read_b64_tr_b16 {v(VW(g,s_)+2*rd,2)}, v{VR+8*(slot//4)+g} offset:{(slot%4)*STG + s_*8192 + rd*2048}" for s_ in range(2) for rd in range(2)]
    def stage(n, left, loopend=False):
        st = n % U
        main = []; side = {}
        vm_a = vmem_ops((st + DIST) % U)[NH:] if left >= DIST else []
        vm_b = vmem_ops((st + DIST + 1) % U)[:NH] if left >= DIST + 1 else []
        nwait = 8 * (min(left, DIST) - 1)
        if left == DIST: vm_b = [[x] for x in res]
        if left < DIST: nwait += len(res)
        for g in range(8):
            for i in range(2):
                for s_ in range(2):
                    main.append(f"v_mfma_f32_16x16x32_bf16 {v(ACC(g,i),4)}, {v(VW(g,s_),4)}, {a(AX(st,i,s_),4)}, {v(ACC(g,i),4)}")
        def place(o, pos):
            if len(o) > 1: side.setdefault(pos - 1, []).append(o[0])
            side.setdefault(pos, []).append(o[-1])
        nb = 4 * (8 - D)
        for q, o in enumerate(vm_a): place(o, 1 + q * (nb - 2) // len(vm_a))
        if left >= DIST + 1:
            for q, x in enumerate(adv): side.setdefault(nb - 1 - len(adv) + q, []).append(x)
        if left >= 1: side.setdefault(nb - 1, []).extend([f"s_waitcnt vmcnt({nwait})", "s_barrier"])
        for q, o in enumerate(vm_b): place(o, nb + 1 + q * (4 * D - 1) // len(vm_b))
        heads = []
        for g in range(8):
            gg = g + D
            if gg >= 8 and left == 0: continue
            rd = wreads(st if gg < 8 else (st + 1) % U, gg % 8)
            if gg >= 8: heads += rd
            for q, x in enumerate(rd): side.setdefault(4 * g + q, []).append(x)
        if loopend:
            side.setdefault(29, []).append("s_sub_u32 s62, s62, 1")
            side.setdefault(30, []).append("s_cmp_lg_u32 s62, 0")
        return flatten(main, side), heads
    body = []
    for st in range(U):
        b_, heads = stage(st, 99, st == U - 1); body += b_
    tail = []
    for st in range(NT): tail += stage(st, NT - 1 - st)[0]
    if 'nomfma' in abl: body = [x if 'mfma' not in x else 's_nop 0' for x in body]
    if 'nods' in abl: body = [x for x in body if not x.startswith('ds_read')]
    if 'hot' in abl: body = [x.replace('s_add_u32 s69, s69, s71', 's_and_b32 s69, s69, 3') for x in body]
    if 'nobar' in abl: body = [x for x in body if not x.startswith('s_barrier')]
    if 'novm' in abl: body = [x for x in body if not x.startswith('buffer_load')]
    if 'nox' in abl: body = [x for x in body if not (x.startswith('buffer_load') and 'lds' not in x)]
    if 'nodma' in abl: body = [x for x in body if not (x.startswith('buffer_load') and 'lds' in x)]
    body = salu_first(auto_lgkm(body, heads, merge=MG, hoist=True))
    tail = salu_first(auto_lgkm(tail, heads, cyclic=False, merge=MG, hoist=True))
    if OPT.rep: print(k.name, slot_report(body), file=sys.stderr)
    k.e(f"s_waitcnt vmcnt(8)\ns_barrier")
    stamp(k, 1)
    for x in heads: k.e(x)
    for st in range(2, DIST):
        for o in vmem_ops(st): k.e("\n".join(with_nop(o)))
        k.e("\n".join(adv))
    if OPT.codepf: k.e(code_pf(VPF, VPA))
    for o in vmem_ops(DIST)[:NH]: k.e("\n".join(with_nop(o)))
    k.e(f"s_mov_b32 s62, {(NS - NT)//U}")
    k.e(f".p2align 6\n{L}:")
    for x in body: k.e(x)
    k.e(f"s_cbranch_scc1 {L}\n{Lt}:")
    for x in tail: k.e(x)
    stamp(k, 2)
    fl = OPT.st
    srd(k, 40, 22, 23, 4*MB, WS_EX)
    srd(k, 24, 22, 23, 1024*128, WS_FLAG)
    k.e(f"""
    s_lshl_b32 s64, s2, 2
    s_add_u32 s64, s64, s3
    s_lshl_b32 s65, s63, 2
    s_add_u32 s65, s65, s3
    s_lshl_b32 s66, s64, 12
    s_lshl_b32 s67, s65, 12
    s_lshl_b32 s64, s64, 7
    s_lshl_b32 s65, s65, 7
    """)
    for p in range(2):
        for i in range(2):
            o = ACC(4+2*p, i); u = ACC(5+2*p, i)
            k.e(f"v_cvt_pk_bf16_f32 v{o}, v{o}, v{o+1}\nv_cvt_pk_bf16_f32 v{o+1}, v{o+2}, v{o+3}")
            k.e(f"v_cvt_pk_bf16_f32 v{o+2}, v{u}, v{u+1}\nv_cvt_pk_bf16_f32 v{o+3}, v{u+2}, v{u+3}")
            k.e(f"buffer_store_dwordx4 {v(o,4)}, v{VL16}, s[40:43], s66 offen offset:{(i*2+p)*1024} sc1")
    def addin(base):
        for i in range(2):
            for fb in range(4):
                o = ACC(fb, i); r = base + i*8 + fb*2
                k.e(f"""
                v_lshlrev_b32 v{VT+4}, 16, v{r}
                v_and_b32 v{VT+5}, 0xffff0000, v{r}
                v_lshlrev_b32 v{VT+6}, 16, v{r+1}
                v_and_b32 v{VT+7}, 0xffff0000, v{r+1}
                {pk("add", o, o, VT+4)}
                {pk("add", o+2, o+2, VT+6)}
                """)
                yield i, fb
    k.e("s_waitcnt vmcnt(4)")
    for _ in addin(VRES): pass
    srd(k, 36, 18, 19, S_*D_*2)
    Lp = k.label("poll")
    k.e(f"""
    v_and_b32 v{VT}, 15, v{VL}
    v_lshrrev_b32 v{VT+1}, 4, v{VL}
    v_and_b32 v{VT+2}, 1, v{VT+1}
    v_lshrrev_b32 v{VT+3}, 1, v{VT+1}
    v_lshlrev_b32 v{VT+2}, 5, v{VT+2}
    v_lshl_add_u32 v{VT+2}, v{VT+3}, 4, v{VT+2}
    v_lshl_add_u32 v{VT+2}, v{VT}, 11, v{VT+2}
    s_lshl_b32 s60, s48, 15
    s_lshl_b32 s61, s51, 7
    s_add_u32 s60, s60, s61
    s_add_u32 s61, s60, 32768
    v_mov_b32 v{VT}, 1
    v_mov_b32 v{VT+1}, 0
    s_waitcnt vmcnt(0)
    s_mov_b64 exec, 1
    buffer_store_dword v{VT}, v{VT+1}, s[24:27], s64 offen sc1
    {Lp}:
    buffer_load_dword v{VT+3}, v{VT+1}, s[24:27], s65 offen sc1
    s_waitcnt vmcnt(0)
    v_readfirstlane_b32 s68, v{VT+3}
    s_nop 3
    s_cmp_eq_u32 s68, 0
    s_cbranch_scc1 {Lp}
    s_mov_b64 exec, -1
    """)
    for i in range(2):
        for p in range(2):
            k.e(f"buffer_load_dwordx4 {v(VRES+i*8+p*4,4)}, v{VL16}, s[40:43], s67 offen offset:{(i*2+p)*1024} sc1")
    k.e("s_waitcnt vmcnt(3)")
    nst = 0
    for i, fb in addin(VRES):
        o = ACC(fb, i); r = 64 + i*8 + fb*2
        k.e(f"v_cvt_pk_bf16_f32 v{r}, v{o}, v{o+1}\nv_cvt_pk_bf16_f32 v{r+1}, v{o+2}, v{o+3}")
        if fb % 2:
            p = fb // 2; r = 64 + i*8 + p*4
            k.e(f"s_nop 1\nv_permlane16_swap_b32 v{r}, v{r+2}\nv_permlane16_swap_b32 v{r+1}, v{r+3}")
            k.e(f"buffer_store_dwordx4 {v(r,4)}, v{VT+2}, s[36:39], s{60+i} offen offset:{p*64} {fl}")
            nst += 1
            if nst < 4: k.e(f"s_waitcnt vmcnt(3)")
    finish(k, 5)
    return k

WS_CSP1 = 22*MB; WS_MU = WS_CSP1 + 0x40000; WS_RS = WS_MU + 0x2000
def gen_k1f(NB=22, POLL=12, NSH=4, NBG=4, MG=3, abl=''):
    STG = 40960
    k = KB("k1_kernel", 256, 112, 4 * STG)
    ACC = lambda j, i: (j * 4 + i) * 4
    VDX = 96; VDW = 100; VRX = 106; VRW = 114
    VL = 122; VPF = 123; VT = 124; VPA = 132; VZ = 134; VSA = 135
    VRAW = 136; VU = 152; VSUM = 156; VRT = 160
    VSEL = 164; VCD = 180; VCD2 = 184
    VCQ = 192; VCV = 208; VMT = 216; VRSt = 220; VMR = 224; VRR = 228
    AX = lambda st, i, s_: (st % 2) * 32 + (i * 2 + s_) * 4
    AW = lambda j, s_: 64 + j * 8 + s_ * 4
    prologue(k)
    k.e(f"""
    v_mov_b32 v{VL}, v0
    s_and_b32 s46, s45, 7
    s_lshl_b32 s46, s46, 1
    s_and_b32 s47, s44, 1
    s_add_u32 s46, s46, s47          ; rb
    s_lshr_b32 s47, s44, 1
    s_lshl_b32 s47, s47, 2
    s_lshr_b32 s48, s45, 3
    s_add_u32 s47, s47, s48          ; cb
    s_lshr_b32 s48, s3, 1            ; wm
    s_and_b32 s49, s3, 1             ; wn
    v_lshrrev_b32 v{VT}, 3, v{VL}       ; l/8
    v_and_b32 v{VT+1}, 7, v{VL}         ; p
    v_lshrrev_b32 v{VT+2}, 1, v{VT}     ; (l/8)>>1  (0..3)
    v_xor_b32 v{VT+3}, v{VT+1}, v{VT+2}
    s_lshl_b32 s50, s46, 7
    s_lshl_b32 s51, s3, 5
    s_add_u32 s50, s50, s51
    s_lshl_b32 s50, s50, 11             ; (rb*128 + w*32)*2048
    v_lshlrev_b32 v{VT+4}, 11, v{VT}
    v_add_u32 v{VT+4}, s50, v{VT+4}
    v_lshl_add_u32 v{VDX}, v{VT+3}, 4, v{VT+4}
    v_xor_b32 v{VT+3}, 4, v{VT+3}
    v_lshl_add_u32 v{VDX+1}, v{VT+3}, 4, v{VT+4}
    v_add_u32 v{VDX+2}, {2*15360}, v{VDX}
    v_add_u32 v{VDX+3}, {3*15360}, v{VDX+1}
    v_add_u32 v{VDX+1}, {15360}, v{VDX+1}
    v_and_b32 v{VT+2}, 1, v{VT+2}
    v_lshlrev_b32 v{VT+2}, 1, v{VT+2}
    v_xor_b32 v{VT+3}, v{VT+1}, v{VT+2}
    v_mul_u32_u24 v{VT+4}, 6144, v{VT}
    s_mul_i32 s50, s3, {16*6144}
    s_lshl_b32 s51, s47, 7
    s_add_u32 s50, s50, s51
    v_add_u32 v{VT+4}, s50, v{VT+4}
    v_lshl_add_u32 v{VDW}, v{VT+3}, 4, v{VT+4}
    v_xor_b32 v{VT+3}, 4, v{VT+3}
    v_lshl_add_u32 v{VDW+1}, v{VT+3}, 4, v{VT+4}
    v_add_u32 v{VDW+1}, {8*6144 - 1024}, v{VDW+1}
    """)
    for sg in range(1, 3):
        k.e(f"v_add_u32 v{VDW+2*sg}, {2048*sg}, v{VDW}\nv_add_u32 v{VDW+2*sg+1}, {2048*sg}, v{VDW+1}")
    k.e(f"""
    s_lshl_b32 s53, s3, 12
    s_lshl_b32 s54, s3, 11
    s_add_u32 s54, s54, 16384
    s_mov_b32 s59, {OOB}
    s_mov_b32 s63, s46
    s_mul_i32 s56, s63, {64*6144}
    s_lshl_b32 s57, s63, 7
    v_lshlrev_b32 v{VSA}, 4, v{VL}
    s_lshl_b32 s64, s46, 4
    s_add_u32 s64, s64, s47
    s_lshl_b32 s64, s64, 2
    s_add_u32 s64, s64, s3
    s_lshl_b32 s65, s64, 12
    s_lshl_b32 s66, s64, 8
    s_lshl_b32 s67, s47, 1
    s_add_u32 s67, s67, s49          ; head
    """)
    if OPT.codepf: code_pf_addr(k, "k1_kernel", "L_k5_kernel_end", VPA, VL, 3)
    k.e("s_waitcnt lgkmcnt(0)")
    srd(k, 24, 6, 7, D_*3*D_*2)
    srd(k, 28, 4, 5, S_*D_*2)
    def vmem_ops(n):
        slot = n % 4; ops = []
        for q in range(4):
            o = [f"buffer_load_dwordx4 v{VDX+q}, s[28:31], s57 offen offset:{q*1024} lds @s{n}"]
            if q == 0: o = [f"s_add_u32 m0, s53, {slot*STG}"] + o
            ops.append(o)
        for sg in range(3):
            for q in range(2):
                o = [f"buffer_load_dwordx4 v{VDW+2*sg+q}, s[24:27], s56 offen offset:{q*1024} lds @s{n}"]
                if q == 0: o = [f"s_add_u32 m0, s54, {slot*STG + sg*8192}"] + o
                ops.append(o)
        return ops
    adv = ["s_add_u32 s63, s63, 1", "s_and_b32 s63, s63, 15", f"s_mul_i32 s56, s63, {64*6144}", "s_lshl_b32 s57, s63, 7"]
    P = []
    if OPT.codepf: P.append(code_pf(VPF, VPA))
    for o in vmem_ops(0): P += with_nop(o)
    for q in range(4): P.append(f"buffer_load_dwordx4 {v(VRAW+4*q,4)}, v{VSA}, s[28:31], s65 offen offset:{q*1024} @raw")
    P += adv
    setup = lines(f"""
    v_and_b32 v{VT}, 15, v{VL}
    v_lshrrev_b32 v{VT+1}, 4, v{VL}
    v_lshrrev_b32 v{VT+2}, 1, v{VT}
    v_xor_b32 v{VT+2}, v{VT+1}, v{VT+2}
    s_lshl_b32 s50, s48, 13
    v_lshlrev_b32 v{VT+3}, 7, v{VT}
    v_add_u32 v{VT+3}, s50, v{VT+3}
    v_lshl_add_u32 v{VRX}, v{VT+2}, 4, v{VT+3}
    v_xor_b32 v{VRX+1}, 64, v{VRX}
    v_lshrrev_b32 v{VT+2}, 2, v{VT}
    v_lshl_add_u32 v{VT+3}, v{VT+1}, 3, v{VT+2}
    v_lshrrev_b32 v{VT+2}, 1, v{VT+2}
    v_and_b32 v{VT+4}, 1, v{VT+1}
    v_lshl_add_u32 v{VT+2}, v{VT+4}, 1, v{VT+2}
    s_lshl_b32 s50, s49, 1
    v_xor_b32 v{VT+2}, s50, v{VT+2}
    v_lshlrev_b32 v{VT+2}, 5, v{VT+2}
    v_lshl_add_u32 v{VT+2}, v{VT+3}, 7, v{VT+2}
    v_and_b32 v{VT+4}, 3, v{VL}
    v_lshl_add_u32 v{VT+2}, v{VT+4}, 3, v{VT+2}
    v_add_u32 v{VRW}, 16384, v{VT+2}
    v_xor_b32 v{VRW+1}, 32, v{VRW}
    v_mov_b32 v{VT+5}, 0x3f803f80
    """)
    for sl in range(1, 4):
        for q in range(2):
            setup += [f"v_add_u32 v{VRX+2*sl+q}, {sl*STG}, v{VRX+q}", f"v_add_u32 v{VRW+2*sl+q}, {sl*STG}, v{VRW+q}"]
    for j in range(4):
        setup += [f"v_cmp_eq_u32 vcc, {j}, v{VT}", "s_nop 1", f"v_cndmask_b32 v{VSEL+4*j}, 0, v{VT+5}, vcc"]
        setup += [f"v_mov_b32 v{VSEL+4*j+r}, v{VSEL+4*j}" for r in (1, 2, 3)]
    kk = KB("t", 0, 0, 0)
    srd(kk, 36, 22, 23, ZERO_BYTES, WS_ST); srd(kk, 40, 22, 23, 0x44000, WS_CSP1); srd(kk, 32, 20, 21, 256)
    P += [x.strip() for x in kk.lines]
    P += [f"v_mov_b32 v{VZ}, 0", f"v_lshlrev_b32 v{VT+6}, 2, v{VL}", f"buffer_store_dword v{VZ}, v{VT+6}, s[36:39], s66 offen sc1 @pub"]
    P += setup
    for o in vmem_ops(1): P += with_nop(o)
    P += adv
    def wreads(slot, j):
        return [f"ds_read_b64_tr_b16 {a(AW(j,s_)+2*rd,2)}, v{VRW+2*slot+j%2} offset:{(j//2)*8192 + (32*s_+4*rd)*128}" for s_ in range(2) for rd in range(2)]
    def xreads(slot):
        return [f"ds_read_b128 {a(AX(slot,i,s_),4)}, v{VRX+2*slot+s_} offset:{i*2048}" for i in range(4) for s_ in range(2)]
    def allreads(slot):
        xr = xreads(slot)
        return xr[:2] + wreads(slot, 0) + xr[2:] + sum([wreads(slot, j) for j in range(1, 6)], [])
    rpos = [NB + q + q // 2 for q in range(32)]
    free = [p for p in range(NB, NB + 48) if p not in rpos]
    vpos = [free[(q * 15) // 10] for q in range(10)]
    NHR = sum(p < 48 for p in rpos); NH = sum(p < 48 for p in vpos)
    P += ["WAITVM s0", "s_barrier", "STAMP1"]
    P += allreads(0)[:NHR]
    for o in vmem_ops(2)[:NH]: P += with_nop(o)
    st1 = ["WAITVM raw"]
    for r in range(2):
        for q in range(8):
            x = VRAW + 8*r + q; u = VU + 2*(q % 2)
            st1 += [f"v_lshlrev_b32 v{u}, 16, v{x}", f"v_and_b32 v{u+1}, 0xffff0000, v{x}"]
            if q == 0:
                st1 += [f"v_add_f32 v{VSUM+2*r}, v{u}, v{u+1}", f"v_mul_f32 v{VSUM+2*r+1}, v{u}, v{u}", f"v_fmac_f32 v{VSUM+2*r+1}, v{u+1}, v{u+1}"]
            else:
                st1 += [f"v_add_f32 v{VSUM+2*r}, v{VSUM+2*r}, v{u}", f"v_fmac_f32 v{VSUM+2*r+1}, v{u}, v{u}",
                        f"v_add_f32 v{VSUM+2*r}, v{VSUM+2*r}, v{u+1}", f"v_fmac_f32 v{VSUM+2*r+1}, v{u+1}, v{u+1}"]
    kk = KB("t", 0, 0, 0); allreduce64(kk, [VSUM, VSUM+1, VSUM+2, VSUM+3], VRT); st1 += [x.strip() for x in kk.lines]
    for r in range(2):
        b = VSUM + 2*r
        st1 += lines(f"""
        v_mul_f32 v{b}, {fbits(-1.0/D_)}, v{b}
        v_mul_f32 v{b+1}, {fbits(1.0/D_)}, v{b+1}
        v_fma_f32 v{b+1}, -v{b}, v{b}, v{b+1}
        v_max_f32 v{b+1}, 0, v{b+1}
        v_add_f32 v{b+1}, {fbits(1e-5)}, v{b+1}
        v_rsq_f32 v{b+1}, v{b+1}
        """)
    st1 += lines(f"""
    v_and_b32 v{VRT+2}, 1, v{VL}
    v_cmp_eq_u32 vcc, 0, v{VRT+2}
    v_lshrrev_b32 v{VRT+3}, 1, v{VL}
    s_lshr_b32 s68, s64, 5
    v_cndmask_b32 v{VRT}, v{VSUM+2}, v{VSUM}, vcc
    v_cndmask_b32 v{VRT+1}, v{VSUM+3}, v{VSUM+1}, vcc
    v_cmp_eq_u32 vcc, 0, v{VRT+3}
    v_lshlrev_b32 v{VRT+3}, 13, v{VRT+3}
    v_lshl_add_u32 v{VRT+2}, v{VRT+2}, 4, v{VRT+3}
    v_cndmask_b32 v{VRT}, v{VRT+1}, v{VRT}, vcc
    s_lshl_b32 s68, s68, 8
    s_and_b32 s75, s64, 7
    s_lshl_b32 s75, s75, 5
    s_add_u32 s68, s68, s75
    s_bfe_u32 s75, s64, 0x20003
    s_lshl_b32 s75, s75, 2
    s_add_u32 s68, s68, s75
    s_add_u32 s68, s68, {WS_MU - WS_CSP1}
    buffer_store_dword v{VRT}, v{VRT+2}, s[40:43], s68 offen sc1 @pub
    """)
    cst = lines(f"""
    v_lshlrev_b32 v{VT+6}, 10, v{VT}
    v_lshl_add_u32 v{VT+6}, v{VT+1}, 8, v{VT+6}
    v_cmp_gt_u32 vcc, 4, v{VT}
    v_mov_b32 v{VT+7}, {OOB}
    s_mul_i32 s69, s67, 6144
    v_cndmask_b32 v{VT+6}, v{VT+7}, v{VT+6}, vcc
    s_lshl_b32 s70, s48, 29
    s_add_u32 s69, s69, s70
    s_lshl_b32 s70, s46, 4
    s_add_u32 s70, s70, s69
    buffer_store_dwordx4 {v(VCD,4)}, v{VT+6}, s[40:43], s70 offen sc1 @pub
    v_lshlrev_b32 v{VT+7}, 4, v{VT}
    v_lshl_add_u32 v{VT+7}, v{VT+1}, 27, v{VT+7}
    s_lshr_b32 s70, s46, 2
    s_lshl_b32 s70, s70, 8
    s_add_u32 s69, s69, s70
    s_bfe_u32 s70, s46, 0x10001
    s_lshl_b32 s70, s70, 10
    s_add_u32 s69, s69, s70
    s_and_b32 s70, s46, 1
    s_lshl_b32 s70, s70, 3
    s_add_u32 s69, s69, s70
    s_add_u32 s69, s69, 4096
    buffer_store_dwordx2 {v(VCD2,2)}, v{VT+7}, s[40:43], s69 offen sc1 @pub
    """)
    sig = lines(f"""
    v_mov_b32 v{VT+6}, 1
    v_lshlrev_b32 v{VT+7}, 8, v{VL}
    s_lshl_b32 s70, s3, 8
    s_and_b32 s71, s45, {NSH-1}
    s_mul_i32 s71, s71, {256//NSH}
    s_add_u32 s70, s70, s71
    buffer_atomic_add v{VT+6}, v{VT+7}, s[32:35], s70 offen sc1
    """)
    Lsp = k.label("spin"); Lok = k.label("ok")
    pol = lines(f"""
    v_mov_b32 v{VT+5}, {256//NSH}
    v_and_b32 v{VT+7}, {NSH-1}, v{VL}
    v_mul_u32_u24 v{VT+7}, {256//NSH}, v{VT+7}
    buffer_load_dword v{VT+6}, v{VT+7}, s[32:35], 0 offen sc1 @poll
    """)
    chk = ["WAITVM poll", f"v_cmp_ne_u32 vcc, v{VT+5}, v{VT+6}", "s_nop 4", f"s_cbranch_vccnz {Lsp}\n{Lok}:"]
    A = VRAW
    ld = lines(f"""
    v_lshlrev_b32 v{A+2}, 4, v{VT}
    v_and_b32 v{A+3}, 3, v{VT}
    v_lshl_add_u32 v{A+3}, v{VT+1}, 2, v{A+3}
    v_lshlrev_b32 v{A+3}, 4, v{A+3}
    s_mul_i32 s69, s67, 6144
    s_add_u32 s72, s69, 4096
    s_lshl_b32 s70, s46, 9
    s_lshl_b32 s71, s48, 8
    s_add_u32 s70, s70, s71
    s_add_u32 s70, s70, {WS_MU - WS_CSP1}
    s_add_u32 s71, s70, {WS_RS - WS_MU}
    """)
    nld0 = len(ld)
    for j in range(4): ld.append(f"buffer_load_dwordx4 {v(VCQ+4*j,4)}, v{VSA}, s[40:43], s69 offen offset:{j*1024} sc1 @cs")
    for j in range(2): ld.append(f"buffer_load_dwordx4 {v(VCV+4*j,4)}, v{VSA}, s[40:43], s72 offen offset:{j*1024} sc1 @cs")
    ld.append(f"buffer_load_dwordx4 {v(VMT,4)}, v{A+2}, s[40:43], s70 offen sc1 @st")
    ld.append(f"buffer_load_dwordx4 {v(VRSt,4)}, v{A+2}, s[40:43], s71 offen sc1 @st")
    ld.append(f"buffer_load_dwordx4 {v(VMR,4)}, v{A+3}, s[40:43], s70 offen sc1 @st")
    ld.append(f"buffer_load_dwordx4 {v(VRR,4)}, v{A+3}, s[40:43], s71 offen sc1 @st")
    red = ["WAITVM cs"]
    for j in range(2):
        b = VCV + j
        red += [f"v_add_f32 v{b}, v{b}, v{b+2}", f"v_add_f32 v{b+4}, v{b+4}, v{b+6}", f"v_add_f32 v{b}, v{b}, v{b+4}"]
    for sw in ("v_permlane16_swap_b32", "v_permlane32_swap_b32"):
        red += [f"v_mov_b32 v{VCV+2}, v{VCV}", f"v_mov_b32 v{VCV+3}, v{VCV+1}", "s_nop 1", f"{sw} v{VCV}, v{VCV+2}", f"{sw} v{VCV+1}, v{VCV+3}",
                f"v_add_f32 v{VCV}, v{VCV}, v{VCV+2}", f"v_add_f32 v{VCV+1}, v{VCV+1}, v{VCV+3}"]
    for sh in (8, 4, 2, 1):
        for r in range(16): red.append(f"v_add_f32_dpp v{VCQ+r}, v{VCQ+r}, v{VCQ+r} row_ror:{sh} row_mask:0xf bank_mask:0xf")
    epi_setup = lines(f"""
    s_lshl_b32 s50, s67, 6
    s_lshl_b32 s51, s46, 2
    s_add_u32 s50, s50, s51
    s_lshl_b32 s51, s48, 1
    s_add_u32 s50, s50, s51
    s_lshl_b32 s60, s50, 11
    s_lshl_b32 s61, s50, 12
    s_add_u32 s62, s61, 4096
    v_lshlrev_b32 v{A+4}, 9, v{VT+1}
    v_lshl_add_u32 v{A+5}, v{VT}, 4, v{A+4}
    v_lshrrev_b32 v{A+6}, 3, v{VT}
    v_and_b32 v{A+7}, 7, v{VT}
    v_lshl_add_u32 v{A+6}, v{A+6}, 4, v{A+7}
    v_lshl_add_u32 v{A+6}, v{A+6}, 4, v{A+4}
    """)
    n1 = len(st1)
    bg = {}
    bg[1] = cst + st1[:n1//8]
    for q in range(NBG): bg[2+q] = st1[n1//8 + q*(n1 - n1//8)//NBG : n1//8 + (q+1)*(n1 - n1//8)//NBG]
    bg[NBG + 4] = sig
    bg[POLL - 2] = pol[:3] + ld[:nld0] + epi_setup; bg[POLL - 1] = pol[3:]; bg[POLL] = chk + ld[nld0:nld0+6]; bg[POLL + 1] = ld[nld0+6:]
    bg[14] = bg.get(14, []) + red[:len(red)//2]; bg[15] = red[len(red)//2:]
    if 'nobg' in abl:
        for n in list(bg): bg[n] = [x for x in bg[n] if not x.startswith(('v_add_f32', 'v_fmac', 'v_lshlrev_b32 v15', 'v_and_b32 v15', 's_nop', 'v_perm'))]
    for n in range(16):
        st = n % 4
        main = []; side = {}
        vm_a = vmem_ops(n + 2)[NH:] if n + 2 < 16 else []
        vm_b = vmem_ops(n + 3)[:NH] if n + 3 < 16 else []
        for j in range(6):
            for i in range(4):
                for s_ in range(2):
                    w_, x_ = a(AW(j,s_),4), a(AX(st,i,s_),4)
                    if j >= 4: w_, x_ = x_, w_
                    c_ = v(ACC(j,i),4) if (n or s_) else "0"
                    main.append(f"v_mfma_f32_16x16x32_bf16 {v(ACC(j,i),4)}, {w_}, {x_}, {c_}")
            if n == 0:
                for s_ in range(2):
                    d_ = v(VCD if j < 4 else VCD2, 4)
                    c_ = d_ if (j % 4 or s_) else "0"
                    o1, o2 = a(AW(j,s_),4), v(VSEL+4*(j%4),4)
                    if j >= 4: o1, o2 = o2, o1
                    side.setdefault(8*j + 7, []).append(f"v_mfma_f32_16x16x32_bf16 {d_}, {o1}, {o2}, {c_}")
        def place(o, pos):
            if len(o) > 1: side.setdefault(pos - 1, []).append(o[0])
            side.setdefault(pos, []).append(o[-1])
        nb = NB
        for q, o in enumerate(vm_a): place(o, vpos[NH + q] - 48)
        if vm_b:
            assert vpos[9] - 48 < nb - 4
            for q, x in enumerate(adv): side.setdefault(nb - 5 + q, []).append(x)
        if n < 15:
            side.setdefault(nb - 1, []).extend([f"WAITVM s{n+1}" + (" pub" if n == NBG + 3 else ""), "s_barrier"])
        if 'fine' in abl:
            side.setdefault(nb - 1, []).append("s_memtime s[94:95]")
            side.setdefault(46, []).append(f"v_writelane_b32 v{VZ}, s94, {n}")
        for q, o in enumerate(vm_b): place(o, vpos[q])
        for q, x in enumerate(allreads(st)[NHR:]): side.setdefault(rpos[NHR + q] - 48, []).insert(0, x)
        if n < 15:
            for q, x in enumerate(allreads((st + 1) % 4)[:NHR]): side.setdefault(rpos[q], []).insert(0, x)
        b_ = bg.get(n, [])
        for q, x in enumerate(b_): side.setdefault(8 + (q * 39) // len(b_) if n == 1 else (q * 47) // len(b_), []).append(x)
        P += flatten(main, side)
    P.append("STAMP2")
    kk = KB("t", 0, 0, 0); srd(kk, 32, 22, 23, S_*D_*2, WS_Q); srd(kk, 36, 22, 23, S_*D_*4, WS_KV); P += [x.strip() for x in kk.lines]
    P.append("WAITVM st")
    fl = OPT.st
    def cvt4(o, u):
        return [f"v_cvt_pk_bf16_f32 v{o}, v{o}, v{o+1}", f"v_cvt_pk_bf16_f32 v{o+1}, v{o+2}, v{o+3}",
                f"v_cvt_pk_bf16_f32 v{o+2}, v{u}, v{u+1}", f"v_cvt_pk_bf16_f32 v{o+3}, v{u+2}, v{u+3}"]
    def normqk(j, i):
        o = ACC(j, i)
        return [pk("fma", o+r, VCQ+4*j+r, ('b', VMT+i), o+r) for r in (0, 2)] + [pk("mul", o+r, o+r, ('b', VRSt+i)) for r in (0, 2)]
    def normv(j, i):
        o = ACC(j, i)
        q_ = lambda r: f"quad_perm:[{r},{r},{r},{r}] row_mask:0xf bank_mask:0xf"
        return [f"v_fmac_f32_dpp v{o+r}, v{VMR+i}, v{VCV+j-4} {q_(r)}" for r in range(4)] + [f"v_mul_f32_dpp v{o+r}, v{VRR+i}, v{o+r} {q_(r)}" for r in range(4)]
    for i in range(4):
        o = ACC(2, i); P += normqk(2, i) + normqk(3, i) + cvt4(o, ACC(3, i))
        P.append(f"buffer_store_dwordx4 {v(o,4)}, v{A+6}, s[36:39], s{61 if i < 2 else 62} offen offset:{(i%2)*128} {fl}")
    for p in range(2):
        for fb in range(2):
            o = ACC(4 + fb, 2*p); P += normv(4+fb, 2*p) + normv(4+fb, 2*p+1) + cvt4(o, ACC(4 + fb, 2*p + 1))
            P.append(f"buffer_store_dwordx4 {v(o,4)}, v{A+5}, s[36:39], s{61 if p == 0 else 62} offen offset:{2048 + fb*256} {fl}")
    for i in range(4): P.append(f"v_mul_f32 v{VRSt+i}, {fbits(LOG2E / 32 ** 0.5)}, v{VRSt+i}")
    for i in range(4):
        o = ACC(0, i); P += normqk(0, i) + normqk(1, i) + cvt4(o, ACC(1, i))
        P.append(f"buffer_store_dwordx4 {v(o,4)}, v{A+5}, s[32:35], s60 offen offset:{(i//2)*2048 + (i%2)*256} {fl}")
    if 'nomfma' in abl: P = [x if 'mfma' not in x else 's_nop 0' for x in P]
    P = resolve_vm(P)
    P = salu_first(auto_lgkm([x if not x.startswith("STAMP") else "s_" + x for x in P], cyclic=False, merge=MG, hoist=True))
    if OPT.rep: print("k1", slot_report(P[:P.index("s_STAMP2")]), file=sys.stderr)
    for x in P:
        if x.startswith("s_STAMP"): stamp(k, int(x[-1]))
        else: k.e(x)
    if 'fine' in abl:
        srd(k, 96, 22, 23, MB, WS_STAMP + 0x80000)
        k.e(f"v_lshlrev_b32 v{VT}, 2, v{VL}\ns_lshl_b32 s100, s2, 2\ns_add_u32 s100, s100, s3\ns_lshl_b32 s100, s100, 8\nbuffer_store_dword v{VZ}, v{VT}, s[96:99], s100 offen")
    Lfin = k.label("fin")
    k.e(f"""
    s_branch {Lfin}
    {Lsp}:
    s_sleep 2
    buffer_load_dword v{VT+6}, v{VT+7}, s[32:35], 0 offen sc1
    s_waitcnt vmcnt(0)
    v_cmp_ne_u32 vcc, v{VT+5}, v{VT+6}
    s_nop 4
    s_cbranch_vccnz {Lsp}
    s_branch {Lok}
    {Lfin}:
    """)
    finish(k, 1)
    return k

def gen_nop():
    k = KB("k9_kernel", 8, 0, 0)
    k.e("s_endpgm")
    return k

def all_kernels(**kw):
    g = lambda n: kw.get(n, {})
    if kw.get('mega'):
        OPT.mega = True
        return merge(all_kernels(**{a_: b_ for a_, b_ in kw.items() if a_ != 'mega'}))
    if kw.get('probe'):
        OPT.probe = True
        return all_kernels(**{a_: b_ for a_, b_ in kw.items() if a_ != 'probe'}) + [gen_probe(*kw['probe'])]
    if kw.get('dup'):
        ks = all_kernels(**{a_: b_ for a_, b_ in kw.items() if a_ != 'dup'})
        return sum([[x] * (2 if int(x.name[1]) in kw['dup'] else 1) for x in ks], [])
    if kw.get('nops'):
        ks = all_kernels(**{a_: b_ for a_, b_ in kw.items() if a_ != 'nops'}); n = gen_nop()
        return ks[:3] + [n] * kw['nops'] + ks[3:]
    if kw.get('nosplit'):
        return [gen_k0(**g('k0')), gen_k1(**g('k1')), gen_k2(**g('k2')), gen_small(3, **g('k3')), gen_k4(**g('k4')), gen_small(5, **g('k5'))]
    first = [gen_k0(**g('k0')), gen_k1(**g('k1'))] if kw.get('nofuse1') else [gen_k1f(**g('k1'))]
    return first + [gen_k2(W2COLS=128, **g('k2')), gen_small(3, **g('k3')), gen_k4(**g('k4')), gen_k5s(**g('k5'))]

if __name__ == "__main__":
    hdr = "".join(l for l in open("sequential_preLN__softmax_full_mha__glu_gated_swiglu__prompt.s.ref") if l.startswith(";") and "@launch" not in l and "Override" not in l and "grid=ceil" not in l)
    kw = eval("dict(" + (sys.argv[1] if len(sys.argv) > 1 else "") + ")")
    for a_, b_ in kw.pop("opt", {}).items(): setattr(OPT, a_, b_)
    print(build_file(all_kernels(**kw), hdr))
```

```python
class KB:
    def __init__(self, name, nvgpr, nagpr, lds, block=256, grid=256):
        self.name = name; self.lines = []; self.nvgpr = nvgpr; self.nagpr = nagpr
        self.lds = lds; self.block = block; self.grid = grid; self._lab = 0
    def e(self, s):
        for l in s.strip("\n").split("\n"):
            l = l.strip()
            if not l: continue
            if l.endswith(":") or l.startswith("."): self.lines.append(l)
            else: self.lines.append("    " + l)
    def label(self, base):
        self._lab += 1
        return f"L_{self.name}_{base}_{self._lab}"
    def text(self):
        h = f".globl {self.name}\n" + (".p2align 12\n" if getattr(self, "page", False) else "") + f".p2align 8\n.type {self.name},@function\n{self.name}:\n"
        return h + "\n".join(self.lines) + "\n"
    def desc(self):
        acc = (self.nvgpr + 3) // 4 * 4
        nfv = acc + self.nagpr if self.nagpr else self.nvgpr
        return f""".p2align 6
.amdhsa_kernel {self.name}
  .amdhsa_next_free_vgpr {nfv}
  .amdhsa_next_free_sgpr 102
  .amdhsa_accum_offset {acc}
  .amdhsa_group_segment_fixed_size 0
  .amdhsa_kernarg_size 80
  .amdhsa_user_sgpr_count 2
  .amdhsa_user_sgpr_kernarg_segment_ptr 1
  .amdhsa_system_sgpr_workgroup_id_x 1
.end_amdhsa_kernel
"""
    def launch(self):
        return f"; @launch kernel={self.name} grid=({self.grid},1,1) block=({self.block},1,1) lds={self.lds}\n"

def v(i, n=1): return f"v{i}" if n == 1 else f"v[{i}:{i+n-1}]"
def a(i, n=1): return f"a{i}" if n == 1 else f"a[{i}:{i+n-1}]"
def s(i, n=1): return f"s{i}" if n == 1 else f"s[{i}:{i+n-1}]"

def srd(k, r, lo, hi, nbytes, off=0):
    if off:
        k.e(f"s_add_u32 s{r}, s{lo}, {hex(off)}\ns_addc_u32 s{r+1}, s{hi}, 0")
    else:
        k.e(f"s_mov_b32 s{r}, s{lo}\ns_mov_b32 s{r+1}, s{hi}")
    k.e(f"s_mov_b32 s{r+2}, {hex(nbytes)}\ns_mov_b32 s{r+3}, 0x20000")

def interleave(k, main, side):
    for x in side.get(-1, []): k.e(x)
    for i, m in enumerate(main):
        k.e(m)
        for x in side.get(i, []): k.e(x)

def build_file(kernels, header=""):
    out = header
    for k in kernels: out += k.launch()
    out += '.amdgcn_target "amdgcn-amd-amdhsa--gfx950"\n.text\n'
    seen = []
    for k in kernels:
        if k in seen: continue
        seen.append(k); out += k.text()
    out += '.section .rodata,"a"\n'
    for k in seen: out += k.desc()
    return out

import re
_reg = re.compile(r"\b([va])(?:\[(\d+):(\d+)\]|(\d+))")
def regs_of(opnd):
    out = set()
    for m in _reg.finditer(opnd):
        if m.group(2) is not None:
            for i in range(int(m.group(2)), int(m.group(3)) + 1): out.add((m.group(1), i))
        else: out.add((m.group(1), int(m.group(4))))
    return out
def flatten(main, side):
    out = list(side.get(-1, []))
    for i, m in enumerate(main):
        out.append(m); out += side.get(i, [])
    return out
def _is_mfma(x): return x.startswith(("v_mfma", "v_smfmac"))
def auto_lgkm(body, pre=(), cyclic=True, merge=0, hoist=False):
    def uses(ins):
        op = ins.split()[0]; ops = ins[len(op):].split(",")
        if op.startswith("ds_read"): return regs_of(",".join(ops[1:])), regs_of(ops[0])
        if op.startswith("ds_write"): return regs_of(",".join(ops)), set()
        if op.startswith("ds_"): return regs_of(",".join(ops[1:])), regs_of(ops[0])
        return regs_of(",".join(ops)), None
    def run(seq, pend):
        out = []
        for idx, ins in enumerate(seq):
            op = ins.split()[0]
            if op == "s_waitcnt":
                m = re.search(r"lgkmcnt\((\d+)\)", ins)
                if m:
                    n = int(m.group(1)); pend = pend[len(pend) - n:] if n < len(pend) else pend
                    if n == 0: pend = []
                out.append(ins); continue
            if op.startswith("s_"):
                out.append(ins); continue
            used, dst = uses(ins)
            last = -1
            for q, d in enumerate(pend):
                if d & used: last = q
            if last >= 0:
                pos = len(out); skipped = 0
                if hoist and _is_mfma(ins):
                    p2 = pos; sk = 0; ok = False
                    while p2 > 0:
                        y = out[p2 - 1]
                        if _is_mfma(y): ok = True; break
                        if y.startswith(("s_cbranch", "s_branch")) or y.endswith(":"): break
                        if y.startswith("ds_"): sk += 1
                        p2 -= 1
                    if ok and last < len(pend) - sk: pos, skipped = p2, sk
                if merge:
                    cnt = 0
                    for y in seq[idx + 1:]:
                        if _is_mfma(y):
                            u2, _ = uses(y)
                            for q, d in enumerate(pend[:len(pend) - skipped]):
                                if d & u2: last = max(last, q)
                            cnt += 1
                            if cnt >= merge: break
                n = len(pend) - 1 - last
                nn = min(n - skipped, 15)
                out.insert(pos, f"s_waitcnt lgkmcnt({nn})")
                keep = nn + skipped
                pend = pend[len(pend) - keep:] if keep else []
            out.append(ins)
            if dst is not None: pend = pend + [dst]
        return out, pend
    _, p0 = run(list(pre), [])
    o1, p1 = run(body, p0)
    if not cyclic:
        assert run(o1, p0)[0] == o1
        return o1
    o2, p2 = run(o1, p1)
    o3, p3 = run(o2, p2)
    assert o3 == o2
    o4, _ = run(o2, p0)
    assert o4 == o2
    return o2

def salu_first(seq):
    out = []; i = 0; n = len(seq)
    while i < n:
        out.append(seq[i])
        if _is_mfma(seq[i]):
            j = i + 1
            while j < n and not _is_mfma(seq[j]): j += 1
            gap = seq[i+1:j]
            if gap and not gap[0].startswith("s_"):
                for q, y in enumerate(gap):
                    if y.startswith("s_"):
                        if y.startswith(("s_waitcnt", "s_barrier", "s_cbranch", "s_branch", "s_nop", "s_STAMP", "s_mem")): break
                        if all(z.startswith("ds_") for z in gap[:q]): gap = [y] + gap[:q] + gap[q+1:]
                        break
            out += gap; i = j
        else: i += 1
    return out

def slot_report(seq, per=16):
    tot = 0; exc = 0; i = 0; n = len(seq)
    while i < n and not _is_mfma(seq[i]): i += 1
    while i < n:
        j = i + 1
        while j < n and not _is_mfma(seq[j]): j += 1
        gap = seq[i+1:j]
        c = 8 + sum(8 if y.startswith(("v_exp", "v_rcp", "v_rsq")) else 4 for y in gap) - (4 if gap and gap[0].startswith("s_") else 0)
        tot += max(c, per); exc += max(0, c - per); i = j
    return tot, exc

def resolve_vm(seq):
    out = []; ops = []; done = 0
    for ins in seq:
        if ins.startswith("WAITVM"):
            tags = set(ins.split()[1:])
            last = max([i for i, t in enumerate(ops) if t in tags], default=-1)
            assert last >= 0, ins
            if last + 1 > done:
                n = len(ops) - 1 - last
                assert n <= 63
                out.append(f"s_waitcnt vmcnt({n})"); done = last + 1
            continue
        tag = None
        if " @" in ins: ins, tag = ins.rsplit(" @", 1)
        op = ins.split()[0]
        if op.startswith(("buffer_load", "buffer_store", "buffer_atomic", "global_load", "global_store")): ops.append(tag)
        m = re.match(r"s_waitcnt.*vmcnt\((\d+)\)", ins)
        if m: done = max(done, len(ops) - int(m.group(1)))
        out.append(ins)
    return out
def lines(s): return [x.split(";")[0].strip() for x in s.strip().split("\n") if x.split(";")[0].strip()]

import subprocess, os, tempfile
def line_sizes(k):
    txt = '.amdgcn_target "amdgcn-amd-amdhsa--gfx950"\n.text\n' + f"{k.name}:\n" + "\n".join(l for l in k.lines if not l.startswith(".p2align")) + "\n"
    d = tempfile.mkdtemp(); s_ = os.path.join(d, "a.s"); o_ = os.path.join(d, "a.o")
    open(s_, "w").write(txt)
    subprocess.check_call(["clang", "-x", "assembler", "-target", "amdgcn-amd-amdhsa", "-mcpu=gfx950", "-c", s_, "-o", o_])
    dis = subprocess.check_output(["llvm-objdump", "-d", "--mcpu=gfx950", o_]).decode()
    sz = [4 * len(l.split("//")[1].split(":")[1].split("<")[0].split()) for l in dis.split("\n") if "//" in l]
    out = []; q = 0
    for l in k.lines:
        if l.startswith("    ") and not l.strip().startswith(";"): out.append(sz[q]); q += 1
        else: out.append(0)
    assert q == len(sz), (q, len(sz))
    return out

def add_warm_chains(k):
    L = []; marks = []
    for l in k.lines:
        t = l.strip()
        if t.startswith(";WARM "):
            _, name, nw, w0 = t.split(); nw = int(nw); w0 = int(w0); marks.append((name, nw))
            L.append("    s_mov_b64 exec, 0")
            for w in range(nw - 1): L += [f"    s_cmp_eq_u32 s3, {w0 + w}", f"    s_cbranch_scc1 @{name}@{w}"]
            L += [f"    s_branch @{name}@{nw-1}", f"L_warm_{name}_ret:", "    s_mov_b64 exec, -1", f"    ;MARK {name}"]
        else: L.append(l)
    k.lines = [re.sub(r"@(\w+)@\d+", r"L_warm_\1_ret", l) for l in L]
    sz = line_sizes(k)
    out = []; addr = None; cur = None; stubs = {n: [] for n, _ in marks}; page = 0; on = True
    for l, n in zip(L, sz):
        t = l.strip()
        if t.startswith(".p2align"):
            al = 1 << int(t.split()[1])
            if al == 4096 and addr is None: addr = 0; page = 0
            elif addr is not None: addr = (addr + al - 1) // al * al
            out.append(l); continue
        if t.startswith(";MARK"): cur = t.split()[1]; continue
        if t == ";WARMEND": on = False; continue
        force = t == ";STUB"
        if addr is not None and on and cur and (force or (n and addr // 4096 > page)):
            page = max(page, addr // 4096)
            lab = f"L_stub_{sum(len(x) for x in stubs.values())}"; stubs[cur].append(lab)
            out += [f"{lab}:", f"    s_cbranch_execz @@{lab}"]; addr += 4
        if force: continue
        out.append(l)
        if addr is not None: addr += n
    nxt = {}; first = {}
    for name, nw in marks:
        for w in range(nw):
            ch = stubs[name][w::nw]
            first[(name, w)] = ch[0] if ch else f"L_warm_{name}_ret"
            for q, lab in enumerate(ch): nxt[lab] = ch[q+1] if q + 1 < len(ch) else f"L_warm_{name}_ret"
    res = []
    for l in out:
        l = re.sub(r"@@(\w+)", lambda m: nxt[m.group(1)], l)
        l = re.sub(r"@(\w+)@(\d+)", lambda m: first[(m.group(1), int(m.group(2)))], l)
        res.append(l)
    k.lines = res
    return stubs
```

```python
import sys, struct
from asmlib import *

S_, D_, F_ = 2048, 1024, 3584
MB = 1 << 20
PLANE = 16 * MB
WS_XN = 0; WS_Q = 4*MB; WS_KV = 8*MB; WS_H = 16*MB
WS_ST = 20*MB; WS_CS = WS_ST + 0x4000; WS_FLAG = WS_ST + 0x10000; ZERO_BYTES = 0x40000
WS_STAMP = 21*MB
WS_O = 32*MB; WS_WOT = 36*MB; WS_W2T = 38*MB
WS_G = 64*MB
WS_EX = 96*MB
RELOC = PLANE - 384
LOG2E = 1.4426950408889634
OOB = 0x40000000
SPIN = 0x40000
def fbits(x): return hex(struct.unpack("<I", struct.pack("<f", x))[0])

class Opt:
    diag = False
    st = "sc1"
    reloc = True
    codepf = True
    probe = None
    mega = False
    rep = False
    only = None
    warm = True
OPT = Opt()

KNAME = "sequential_preLN__softmax_full_mha__glu_gated_swiglu__prompt_kernel"
def prologue(k, nwg=256):
    if OPT.mega and k.name != "k0_kernel":
        if OPT.diag: k.e("s_memrealtime s[80:81]\ns_memtime s[82:83]")
        k.e("v_mbcnt_lo_u32_b32 v0, -1, 0\nv_mbcnt_hi_u32_b32 v0, -1, v0")
        return
    if OPT.mega: k.e(f"s_cmp_lt_u32 s2, {nwg}\ns_cbranch_scc1 L_go\ns_endpgm\nL_go:")
    else: k.e(f"s_cmp_ge_u32 s2, {nwg}\ns_cbranch_scc1 L_{k.name}_end")
    if OPT.diag and not getattr(k, "fine", False): k.e("s_memrealtime s[80:81]\ns_memtime s[82:83]")
    if OPT.probe: k.e("s_memrealtime s[80:81]")
    k.e("""
    s_load_dwordx16 s[4:19], s[0:1], 0
    s_load_dwordx4 s[20:23], s[0:1], 64
    v_lshrrev_b32 v1, 6, v0
    v_and_b32 v0, 63, v0
    v_readfirstlane_b32 s3, v1
    s_and_b32 s44, s2, 7
    s_lshr_b32 s45, s2, 3
    """)
def stamp(k, i):
    if OPT.diag:
        k.e(f"s_memrealtime s[{80+4*i}:{81+4*i}]\ns_memtime s[{82+4*i}:{83+4*i}]\ns_waitcnt lgkmcnt(0)")
def finish(k, kid):
    if OPT.diag:
        k.e("s_waitcnt vmcnt(0)")
        stamp(k, 3)
        srd(k, 96, 22, 23, MB, WS_STAMP)
        k.e(f"s_lshl_b32 s100, s2, 3\ns_add_u32 s100, s100, s3\ns_add_u32 s100, s100, {kid*2048}\ns_lshl_b32 s100, s100, 5")
        for i in range(4):
            k.e(f"v_mov_b32 v{2*i}, s{80+4*i}\nv_mov_b32 v{2*i+1}, s{82+4*i}")
        k.e("v_mov_b32 v8, s100\nbuffer_store_dwordx4 v[0:3], v8, s[96:99], 0 offen\nbuffer_store_dwordx4 v[4:7], v8, s[96:99], 0 offen offset:16")
    if OPT.probe:
        srd(k, 96, 22, 23, MB, WS_STAMP)
        k.e(f"s_lshl_b32 s100, s2, 2\ns_add_u32 s100, s100, {kid*1024}\nv_mov_b32 v0, s80\nv_mov_b32 v1, s100\nbuffer_store_dword v0, v1, s[96:99], 0 offen")
    if OPT.mega and kid != 5:
        srd(k, 96, 20, 21, 256)
        k.e(f"""
        s_waitcnt vmcnt(0) lgkmcnt(0)
        s_barrier
        s_cmp_lg_u32 s3, 0
        s_cbranch_scc1 L_{k.name}_gw
        v_mov_b32 v0, 1
        s_and_b32 s100, s2, 3
        s_lshl_b32 s100, s100, 6
        s_add_u32 s100, s100, {4*kid}
        v_mov_b32 v1, s100
        s_mov_b64 exec, 1
        buffer_atomic_add v0, v1, s[96:99], 0 offen sc1
        s_mov_b64 exec, 15
        v_mbcnt_lo_u32_b32 v1, -1, 0
        v_lshlrev_b32 v1, 6, v1
        s_mov_b32 s100, 100000
        L_{k.name}_poll:
        buffer_load_dword v2, v1, s[96:99], 0 offen offset:{4*kid} sc1
        s_waitcnt vmcnt(0)
        v_cmp_gt_u32 vcc, 64, v2
        s_sub_u32 s100, s100, 1
        s_cmp_eq_u32 s100, 0
        s_cbranch_scc1 L_{k.name}_pd
        s_cmp_lg_u64 vcc, 0
        s_cbranch_scc1 L_{k.name}_poll
        L_{k.name}_pd:
        s_mov_b64 exec, -1
        buffer_inv sc1
        s_waitcnt vmcnt(0)
        L_{k.name}_gw:
        s_barrier
        """)
        return
    k.e(f"L_{k.name}_end:\ns_endpgm")

def merge(ks):
    m = KB(KNAME, 256, 256, 163840)
    for x in ks: m.lines += [f"{x.name}:"] + x.lines
    m.launch = lambda: "; @launch grid=(256,1,1) block=(256,1,1) lds=163840\n"
    m.single = True
    return [m]

def gen_probe(i, wi, j, wj, mult=8):
    k = KB("k8_kernel", 8, 0, 0, block=64, grid=1)
    k.e(f"""
    s_cmp_ge_u32 s2, 1
    s_cbranch_scc1 L_k8_end
    s_memrealtime s[30:31]
    s_load_dwordx2 s[22:23], s[0:1], 72
    s_waitcnt lgkmcnt(0)
    s_add_u32 s24, s22, {WS_STAMP}
    s_addc_u32 s25, s23, 0
    s_load_dword s26, s[24:25], {i*1024 + 4*wi}
    s_load_dword s27, s[24:25], {(j if j < 9 else 0)*1024 + 4*wj}
    s_waitcnt lgkmcnt(0)
    s_sub_u32 s28, {'s27' if j < 9 else 's30'}, s26
    s_add_u32 s28, s28, 500
    s_min_u32 s28, s28, 20000
    s_mul_i32 s28, s28, {mult}
    L_k8_spin:
    s_memrealtime s[32:33]
    s_waitcnt lgkmcnt(0)
    s_sub_u32 s29, s32, s30
    s_cmp_lt_u32 s29, s28
    s_cbranch_scc1 L_k8_spin
    L_k8_end:
    s_endpgm
    """)
    return k

def udiv_const(k, dst, src, c):
    sh = 20
    m = (1 << sh) // c + 1
    for x in range(0, 4096): assert (x * m) >> sh == x // c
    k.e(f"v_mul_u32_u24 v{dst}, {m}, v{src}\nv_lshrrev_b32 v{dst}, {sh}, v{dst}")

def tile_map(k, nb_m, nb_x, sm, sn):
    k.e(f"""
    s_and_b32 s{sm}, s44, {(1<<nb_x)-1}
    s_lshl_b32 s{sm}, s{sm}, {nb_m}
    s_and_b32 s{sn}, s45, {(1<<nb_m)-1}
    s_add_u32 s{sm}, s{sm}, s{sn}
    s_lshr_b32 s{sn}, s44, {nb_x}
    s_lshl_b32 s{sn}, s{sn}, {5-nb_m}
    s_lshr_b32 s79, s45, {nb_m}
    s_add_u32 s{sn}, s{sn}, s79
    """)

def reloc(k, addr, tmp):
    if not OPT.reloc: return
    k.e(f"""
    v_bfe_u32 v{tmp}, v{addr}, 7, 2
    v_add_u32 v{tmp}, 1, v{tmp}
    v_lshrrev_b32 v{tmp}, 2, v{tmp}
    v_mul_u32_u24 v{tmp}, {RELOC}, v{tmp}
    v_add_u32 v{addr}, v{addr}, v{tmp}
    """)

def code_pf_addr(k, first, last, vaddr, lane, chunk_s):
    L = k.label("pc")
    k.e(f"""
    s_getpc_b64 s[76:77]
    {L}:
    s_add_u32 s76, s76, {first}-{L}
    s_addc_u32 s77, s77, ({first}-{L})>>32
    s_lshl_b32 s78, s45, 2
    s_add_u32 s78, s78, s3
    s_lshl_b32 s78, s78, 9
    v_and_b32 v{vaddr}, 3, v{lane}
    v_lshl_add_u32 v{vaddr}, v{vaddr}, 7, s78
    v_min_u32 v{vaddr}, {last}-{first}, v{vaddr}
    v_mov_b32 v{vaddr+1}, s77
    v_add_co_u32 v{vaddr}, vcc, s76, v{vaddr}
    s_nop 1
    v_addc_co_u32 v{vaddr+1}, vcc, 0, v{vaddr+1}, vcc
    """)
def code_pf(vdst, vaddr):
    return f"global_load_dword v{vdst}, v[{vaddr}:{vaddr+1}], off"

def pk(op, d, *srcs):
    ops = []; lo = []; hi = []; neg = []
    for s_ in srcs:
        if isinstance(s_, tuple):
            r = s_[1]; ops.append(v(r & ~1, 2)); lo.append(r & 1); hi.append(r & 1); neg.append(int(s_[0] == 'nb'))
        else:
            assert s_ % 2 == 0
            ops.append(v(s_, 2)); lo.append(0); hi.append(1); neg.append(0)
    f = lambda x: "[" + ",".join(map(str, x)) + "]"
    t = f"v_pk_{op}_f32 {v(d,2)}, " + ", ".join(ops) + f" op_sel:{f(lo)} op_sel_hi:{f(hi)}"
    if any(neg): t += f" neg_lo:{f(neg)} neg_hi:{f(neg)}"
    return t

def sprinkle(base, extra):
    out = []; n = len(base); m = len(extra); q = 0
    for i, b in enumerate(base):
        out.append(b)
        while q < m and (q + 1) * n <= (i + 1) * (m + 1):
            out += extra[q]; q += 1
    for x in extra[q:]: out += x
    return out
def with_nop(op):
    return [op[0], "s_nop 0", op[1]] if len(op) > 1 else list(op)

def lead_adv(NS, LEAD, st, srho, su):
    if not LEAD: return [f"s_add_u32 s{st}, s{st}, 1", f"s_mov_b32 s{su}, s{st}"]
    return [f"s_add_u32 s{st}, s{st}, 1", f"s_and_b32 s{su}, s{st}, {LEAD-1}", f"s_cmp_eq_u32 s{su}, s{srho}", f"s_cselect_b32 s{su}, {LEAD}, 0",
            f"s_add_u32 s{su}, s{su}, s{st}", f"s_cmp_ge_u32 s{su}, {NS}", f"s_cselect_b32 s79, {NS}, 0", f"s_sub_u32 s{su}, s{su}, s79"]

def allreduce64(k, regs, tmp):
    for sh in (8, 4, 2, 1):
        k.e("s_nop 1")
        for r in regs: k.e(f"v_add_f32_dpp v{r}, v{r}, v{r} row_ror:{sh} row_mask:0xf bank_mask:0xf")
    for sw in ("v_permlane16_swap_b32", "v_permlane32_swap_b32"):
        for q, r in enumerate(regs): k.e(f"v_mov_b32 v{tmp+q}, v{r}")
        k.e("s_nop 1")
        for q, r in enumerate(regs): k.e(f"{sw} v{r}, v{tmp+q}")
        k.e("s_nop 1")
        for q, r in enumerate(regs): k.e(f"v_add_f32 v{r}, v{r}, v{tmp+q}")

def gen_k0(first="k0_kernel", last="L_k5_kernel_end", wpf=False, tlb=0):
    k = KB("k0_kernel", 72, 0, 0)
    prologue(k)
    k.e("""
    v_lshlrev_b32 v1, 4, v0
    s_lshl_b32 s46, s2, 2
    s_add_u32 s46, s46, s3
    s_lshl_b32 s47, s46, 12
    s_and_b32 s48, s45, 1
    s_lshl_b32 s48, s48, 2
    s_add_u32 s48, s48, s3
    v_lshlrev_b32 v60, 6, v0
    s_mul_i32 s49, s46, 6144
    v_lshlrev_b32 v61, 2, v0
    s_lshl_b32 s50, s46, 8
    v_mov_b32 v62, 0
    """)
    if OPT.codepf: code_pf_addr(k, first, last, 64, 0, 48)
    k.e("s_waitcnt lgkmcnt(0)")
    srd(k, 24, 4, 5, S_*D_*2)
    for q in range(4): k.e(f"buffer_load_dwordx4 v[{4+4*q}:{7+4*q}], v1, s[24:27], s47 offen offset:{q*1024}")
    srd(k, 32, 6, 7, D_*3*D_*2)
    if OPT.codepf: k.e(code_pf(66, 64))
    k.e(f"v_min_u32 v60, {47 if wpf else 0}, v0\nv_lshlrev_b32 v60, 7, v60\nbuffer_load_dword v67, v60, s[32:35], s49 offen")
    srd(k, 28, 22, 23, S_*D_*2, WS_XN)
    srd(k, 36, 22, 23, ZERO_BYTES, WS_ST)
    k.e(f"buffer_store_dword v62, v61, s[36:39], s50 offen {OPT.st}")
    ntl = 0
    if tlb:
        srd(k, 40, 22, 23, 128*MB)
        if tlb == 1:
            k.e("v_lshlrev_b32 v63, 21, v0\nbuffer_load_dword v69, v63, s[40:43], 0 offen")
        else:
            k.e("s_lshl_b32 s51, s45, 22\nv_lshlrev_b32 v63, 16, v0\nbuffer_load_dword v69, v63, s[40:43], s51 offen")
            k.e("s_and_b32 s51, s45, 1\ns_lshl_b32 s51, s51, 22")
        ntl = 1
        for (r, nb) in ((6, D_*3*D_*2), (8, D_*D_*2), (12, D_*F_*2), (14, D_*F_*2), (16, D_*F_*2), (18, S_*D_*2)):
            srd(k, 40, r, r+1, nb)
            k.e(f"buffer_load_dword v69, v63, s[40:43], {'0' if tlb == 1 else 's51'} offen"); ntl += 1
    stamp(k, 1)
    k.e(f"s_waitcnt vmcnt({ntl + (3 if OPT.codepf else 2)})")
    for q in range(16):
        k.e(f"v_lshlrev_b32 v{24+2*q}, 16, v{4+q}\nv_and_b32 v{25+2*q}, 0xffff0000, v{4+q}")
    for r in range(2):
        b = 24 + 16 * r
        k.e(pk("add", 56, b, b+2))
        for q in range(4, 16, 2): k.e(pk("add", 56, 56, b+q))
        k.e(f"v_add_f32 v{2+r}, v56, v57")
    allreduce64(k, [2, 3], 20)
    for r in range(2):
        b = 24 + 16 * r
        k.e(f"v_mul_f32 v{2+r}, {fbits(1.0/D_)}, v{2+r}")
        for q in range(0, 16, 2): k.e(pk("add", b+q, b+q, ('nb', 2+r)))
        k.e(pk("mul", 56, b, b))
        for q in range(2, 16, 2): k.e(pk("fma", 56, b+q, b+q, 56))
        k.e(f"v_add_f32 v{2+r}, v56, v57")
    allreduce64(k, [2, 3], 20)
    k.e(f"v_mov_b32 v20, {fbits(1e-5)}\nv_mov_b32 v21, {fbits(1e-5)}")
    for r in range(2): k.e(f"v_fmac_f32 v{20+r}, {fbits(1.0/D_)}, v{2+r}")
    k.e("v_rsq_f32 v2, v20\nv_rsq_f32 v3, v21\ns_nop 0")
    stamp(k, 2)
    for r in range(2):
        b = 24 + 16 * r
        for h in range(2):
            for q in range(0, 8, 2): k.e(pk("mul", b+8*h+q, b+8*h+q, ('b', 2+r)))
            for q in range(4): k.e(f"v_cvt_pk_bf16_f32 v{4+8*r+4*h+q}, v{b+8*h+2*q}, v{b+8*h+2*q+1}")
            qq = 2*r + h
            k.e(f"buffer_store_dwordx4 v[{4+4*qq}:{7+4*qq}], v1, s[28:31], s47 offen offset:{qq*1024} {OPT.st}")
    finish(k, 0)
    return k

def gen_k1(D=2, ROT=1, LEAD=0):
    STG = 40960
    k = KB("k1_kernel", 160, 112, 4 * STG)
    ACC = lambda j, i: (j * 4 + i) * 4
    VDX = 96
    VDW = 100
    VRX = 106
    VRW = 114
    VL = 122; VPF = 123; VT = 124; VPA = 132
    AX = lambda st, i, s_: (st % 2) * 32 + (i * 2 + s_) * 4
    AW = lambda j, s_: 64 + j * 8 + s_ * 4
    prologue(k)
    k.e(f"v_mov_b32 v{VL}, v0")
    if ROT:
        k.e("""
        s_and_b32 s46, s45, 7
        s_lshl_b32 s46, s46, 1
        s_and_b32 s47, s44, 1
        s_add_u32 s46, s46, s47
        s_lshr_b32 s47, s44, 1
        s_lshl_b32 s47, s47, 2
        s_lshr_b32 s48, s45, 3
        s_add_u32 s47, s47, s48
        """)
    else: tile_map(k, 3, 1, 46, 47)
    k.e(f"""
    s_lshr_b32 s48, s3, 1            ; wm
    s_and_b32 s49, s3, 1             ; wn
    v_lshrrev_b32 v{VT}, 3, v{VL}       ; l/8
    v_and_b32 v{VT+1}, 7, v{VL}         ; p
    v_lshrrev_b32 v{VT+2}, 1, v{VT}     ; (l/8)>>1  (0..3)
    v_xor_b32 v{VT+3}, v{VT+1}, v{VT+2}
    s_lshl_b32 s50, s46, 7
    s_lshl_b32 s51, s3, 5
    s_add_u32 s50, s50, s51
    s_lshl_b32 s50, s50, 11             ; (rb*128 + w*32)*2048
    v_lshlrev_b32 v{VT+4}, 11, v{VT}
    v_add_u32 v{VT+4}, s50, v{VT+4}
    v_lshl_add_u32 v{VDX}, v{VT+3}, 4, v{VT+4}
    v_xor_b32 v{VT+3}, 4, v{VT+3}
    v_lshl_add_u32 v{VDX+1}, v{VT+3}, 4, v{VT+4}
    v_add_u32 v{VDX+2}, {2*15360}, v{VDX}
    v_add_u32 v{VDX+3}, {3*15360}, v{VDX+1}
    v_add_u32 v{VDX+1}, {15360}, v{VDX+1}
    v_and_b32 v{VT+2}, 1, v{VT+2}
    v_lshlrev_b32 v{VT+2}, 1, v{VT+2}
    v_xor_b32 v{VT+3}, v{VT+1}, v{VT+2}
    v_mul_u32_u24 v{VT+4}, 6144, v{VT}
    s_mul_i32 s50, s3, {16*6144}
    s_lshl_b32 s51, s47, 7
    s_add_u32 s50, s50, s51
    v_add_u32 v{VT+4}, s50, v{VT+4}
    v_lshl_add_u32 v{VDW}, v{VT+3}, 4, v{VT+4}
    v_xor_b32 v{VT+3}, 4, v{VT+3}
    v_lshl_add_u32 v{VDW+1}, v{VT+3}, 4, v{VT+4}
    v_add_u32 v{VDW+1}, {8*6144 - 1024}, v{VDW+1}
    """)
    for sg in range(1, 3):
        k.e(f"v_add_u32 v{VDW+2*sg}, {2048*sg}, v{VDW}\nv_add_u32 v{VDW+2*sg+1}, {2048*sg}, v{VDW+1}")
    k.e(f"""
    s_lshl_b32 s53, s3, 12
    s_lshl_b32 s54, s3, 11
    s_add_u32 s54, s54, 16384
    s_mov_b32 s58, -1
    s_mov_b32 s59, {OOB}
    s_mov_b32 s63, {'s46' if ROT else '0'}
    s_add_u32 s70, s47, {'0' if ROT else 's46'}
    s_and_b32 s70, s70, {max(LEAD-1,0)}
    """)
    zero = [f"v_mov_b32 v{r}, 0" for r in range(96)]
    for x in zero[:40]: k.e(x)
    k.e("s_waitcnt lgkmcnt(0)")
    srd(k, 24, 6, 7, D_*3*D_*2)
    srd(k, 28, 22, 23, S_*D_*2, WS_XN)
    def vmem_ops(slot):
        ops = []
        for q in range(4):
            o = [f"buffer_load_dwordx4 v{VDX+q}, s[28:31], s57 offen offset:{q*1024} lds"]
            if q == 0: o = [f"s_add_u32 m0, s53, {slot*STG}"] + o
            ops.append(o)
        for sg in range(3):
            for q in range(2):
                o = [f"buffer_load_dwordx4 v{VDW+2*sg+q}, s[24:27], s56 offen offset:{q*1024} lds"]
                if q == 0: o = [f"s_add_u32 m0, s54, {slot*STG + sg*8192}"] + o
                ops.append(o)
        return ops
    adv = lead_adv(16, LEAD, 58, 70, 69)[:5] + ["s_add_u32 s69, s69, s63", "s_and_b32 s69, s69, 15", f"s_mul_i32 s71, s69, {64*6144}", "s_lshl_b32 s72, s69, 7",
           "s_cmp_lt_u32 s58, 16", "s_cselect_b32 s56, s71, s59", "s_cselect_b32 s57, s72, s59"]
    k.e("\n".join(adv))
    for o in vmem_ops(0): k.e("\n".join(with_nop(o)))
    k.e("\n".join(adv))
    setup = f"""
    v_and_b32 v{VT}, 15, v{VL}
    v_lshrrev_b32 v{VT+1}, 4, v{VL}
    v_lshrrev_b32 v{VT+2}, 1, v{VT}
    v_xor_b32 v{VT+2}, v{VT+1}, v{VT+2}
    s_lshl_b32 s50, s48, 13
    v_lshlrev_b32 v{VT+3}, 7, v{VT}
    v_add_u32 v{VT+3}, s50, v{VT+3}
    v_lshl_add_u32 v{VRX}, v{VT+2}, 4, v{VT+3}
    v_xor_b32 v{VRX+1}, 64, v{VRX}
    v_lshrrev_b32 v{VT+2}, 2, v{VT}
    v_lshl_add_u32 v{VT+3}, v{VT+1}, 3, v{VT+2}
    v_lshrrev_b32 v{VT+2}, 1, v{VT+2}
    v_and_b32 v{VT+4}, 1, v{VT+1}
    v_lshl_add_u32 v{VT+2}, v{VT+4}, 1, v{VT+2}
    s_lshl_b32 s50, s49, 1
    v_xor_b32 v{VT+2}, s50, v{VT+2}
    v_lshlrev_b32 v{VT+2}, 5, v{VT+2}
    v_lshl_add_u32 v{VT+2}, v{VT+3}, 7, v{VT+2}
    v_and_b32 v{VT+4}, 3, v{VL}
    v_lshl_add_u32 v{VT+2}, v{VT+4}, 3, v{VT+2}
    v_add_u32 v{VRW}, 16384, v{VT+2}
    v_xor_b32 v{VRW+1}, 32, v{VRW}
    """.strip().split("\n")
    setup = [x.strip() for x in setup]
    for sl in range(1, 4):
        for q in range(2):
            setup += [f"v_add_u32 v{VRX+2*sl+q}, {sl*STG}, v{VRX+q}", f"v_add_u32 v{VRW+2*sl+q}, {sl*STG}, v{VRW+q}"]
    setup += zero[40:]
    for x in sprinkle(setup, [with_nop(o) for o in vmem_ops(1)]): k.e(x)
    k.e("\n".join(adv))
    def wreads(slot, j):
        return [f"ds_read_b64_tr_b16 {a(AW(j,s_)+2*rd,2)}, v{VRW+2*slot+j%2} offset:{(j//2)*8192 + (32*s_+4*rd)*128}" for s_ in range(2) for rd in range(2)]
    def xreads(slot):
        return [f"ds_read_b128 {a(AX(slot,i,s_),4)}, v{VRX+2*slot+s_} offset:{i*2048}" for i in range(4) for s_ in range(2)]
    NH = 3
    body = []; tail_reads = []
    for st in range(4):
        main = []; side = {}
        vm_a = vmem_ops((st + 2) % 4)[NH:]
        vm_b = vmem_ops((st + 3) % 4)[:NH]
        xr = xreads((st + 1) % 4)
        for j in range(6):
            for i in range(4):
                for s_ in range(2):
                    w_, x_ = a(AW(j,s_),4), a(AX(st,i,s_),4)
                    if j >= 4: w_, x_ = x_, w_
                    main.append(f"v_mfma_f32_16x16x32_bf16 {v(ACC(j,i),4)}, {w_}, {x_}, {v(ACC(j,i),4)}")
        def place(o, pos):
            if len(o) > 1: side.setdefault(pos - 1, []).append(o[0])
            side.setdefault(pos, []).append(o[-1])
        nb = 8 * (6 - D)
        for q, o in enumerate(vm_a): place(o, 1 + q * (nb - 8) // len(vm_a))
        for q, x in enumerate(adv): side.setdefault(nb - 9 + (q * 8) // len(adv), []).append(x)
        side.setdefault(nb - 1, []).extend(["s_waitcnt vmcnt(10)", "s_barrier"])
        for q, o in enumerate(vm_b): place(o, nb + 2 + q * (8 * D - 3) // len(vm_b))
        for j in range(6):
            g0 = 8 * j
            jj = j + D
            rd = wreads(st if jj < 6 else (st + 1) % 4, jj % 6)
            if j >= 6 - D:
                n = (8 + D - 1) // D
                rd = rd + xr[:n]; xr = xr[n:]
                if st == 3: tail_reads += rd
            for q, x in enumerate(rd): side.setdefault(g0 + q, []).append(x)
        if st == 3:
            side.setdefault(45, []).append("s_sub_u32 s62, s62, 1")
            side.setdefault(46, []).append("s_cmp_lg_u32 s62, 0")
        body += flatten(main, side)
    body = auto_lgkm(body, tail_reads)
    L = k.label("loop"); Lep = k.label("epi")
    if OPT.codepf: code_pf_addr(k, Lep, "L_k5_kernel_end", VPA, VL, 3)
    k.e("s_waitcnt vmcnt(10)\ns_barrier")
    stamp(k, 1)
    for x in tail_reads: k.e(x)
    if OPT.codepf: k.e(code_pf(VPF, VPA))
    for o in vmem_ops(2)[:NH]: k.e("\n".join(with_nop(o)))
    k.e("s_mov_b32 s62, 4")
    k.e(f".p2align 6\n{L}:")
    for x in body: k.e(x)
    k.e(f"s_cbranch_scc1 {L}\n{Lep}:")
    stamp(k, 2)
    srd(k, 32, 22, 23, S_*D_*2, WS_Q)
    srd(k, 36, 22, 23, S_*D_*4, WS_KV)
    k.e(f"""
    s_lshl_b32 s50, s47, 1
    s_add_u32 s50, s50, s49
    s_lshl_b32 s50, s50, 6
    s_lshl_b32 s51, s46, 2
    s_add_u32 s50, s50, s51
    s_lshl_b32 s51, s48, 1
    s_add_u32 s50, s50, s51
    s_lshl_b32 s60, s50, 11
    s_lshl_b32 s61, s50, 12
    s_add_u32 s63, s61, 4096
    v_and_b32 v{VT}, 15, v{VL}          ; t
    v_lshrrev_b32 v{VT+1}, 4, v{VL}     ; g
    v_lshlrev_b32 v{VT+1}, 9, v{VT+1}   ; g*512
    v_lshl_add_u32 v{VRX}, v{VT}, 4, v{VT+1}
    v_lshrrev_b32 v{VT+2}, 3, v{VT}
    v_and_b32 v{VT+3}, 7, v{VT}
    v_lshl_add_u32 v{VT+2}, v{VT+2}, 4, v{VT+3}   ; 16*(t/8) + t%8
    v_lshl_add_u32 v{VRX+1}, v{VT+2}, 4, v{VT+1}
    v_mov_b32 v{VT+4}, {fbits(LOG2E / 32 ** 0.5)}
    """)
    fl = OPT.st
    def cvt4(o, u):
        k.e(f"v_cvt_pk_bf16_f32 v{o}, v{o}, v{o+1}\nv_cvt_pk_bf16_f32 v{o+1}, v{o+2}, v{o+3}")
        k.e(f"v_cvt_pk_bf16_f32 v{o+2}, v{u}, v{u+1}\nv_cvt_pk_bf16_f32 v{o+3}, v{u+2}, v{u+3}")
    for i in range(4):
        o = ACC(2, i); cvt4(o, ACC(3, i))
        k.e(f"buffer_store_dwordx4 {v(o,4)}, v{VRX+1}, s[36:39], s{61 if i < 2 else 63} offen offset:{(i%2)*128} {fl}")
    for p in range(2):
        for fb in range(2):
            o = ACC(4 + fb, 2*p); cvt4(o, ACC(4 + fb, 2*p + 1))
            k.e(f"buffer_store_dwordx4 {v(o,4)}, v{VRX}, s[36:39], s{61 if p == 0 else 63} offen offset:{2048 + fb*256} {fl}")
    for i in range(4):
        o = ACC(0, i); u = ACC(1, i)
        for r in (0, 2): k.e(pk("mul", o+r, o+r, ('b', VT+4)) + "\n" + pk("mul", u+r, u+r, ('b', VT+4)))
        cvt4(o, u)
        k.e(f"buffer_store_dwordx4 {v(o,4)}, v{VRX}, s[32:35], s60 offen offset:{(i//2)*2048 + (i%2)*256} {fl}")
    finish(k, 1)
    return k

def gen_k2(force_fb=False, abl='', W2COLS=64):
    k = KB("k2_kernel", 180, 72, 65536 + 64)
    VS = lambda b: b * 16
    VC = lambda q: 32 + q * 16
    VP = lambda b: 64 + b * 8
    VO = lambda q: 80 + q * 16
    VLs = lambda q: 112 + q * 16
    VONE = 144
    VIDX = 148
    VKA = 149; VVA = 150; VL16 = 151; VL = 152
    VCSA = 153; VCPS = 154; VCPD = 155
    VSEL = 156
    VCSD = 160
    VT = 164
    VPA = 176; VPF = 178
    AQ = lambda q, s_: q * 8 + s_ * 4
    AK = lambda b, s_: 16 + b * 8 + s_ * 4
    AV = lambda b, s_: 32 + b * 8 + s_ * 4
    ACSL = lambda b: 48 + b * 4
    ACP = lambda b: 56 + b * 4
    prologue(k)
    k.e(f"""
    v_mov_b32 v{VL}, v0
    v_lshlrev_b32 v{VL16}, 4, v0
    s_lshl_b32 s46, s44, 2
    s_lshr_b32 s47, s45, 3
    s_add_u32 s46, s46, s47          ; head
    s_and_b32 s47, s45, 7            ; qblk (256)
    s_lshl_b32 s48, s47, 3
    s_lshl_b32 s49, s3, 1
    s_add_u32 s48, s48, s49
    s_lshl_b32 s49, s46, 6
    s_add_u32 s49, s49, s48
    s_lshl_b32 s49, s49, 11
    s_lshl_b32 s53, s3, 12           ; wave lds offset
    s_lshl_b32 s52, s46, 18
    s_add_u32 s52, s52, s53
    s_mov_b32 s59, {OOB}
    s_mov_b32 s70, 0
    v_and_b32 v{VT}, 15, v{VL}
    v_lshrrev_b32 v{VT+1}, 4, v{VL}
    v_mul_u32_u24 v{VT+2}, 7168, v{VT+1}
    v_lshl_add_u32 v{VCSA}, v{VT}, 4, v{VT+2}
    """)
    for r in range(4):
        k.e(f"""
        v_cmp_eq_u32 vcc, {2*r}, v{VT}
        v_mov_b32 v{VT+2}, 0x3f80
        v_cndmask_b32 v{VSEL+r}, 0, v{VT+2}, vcc
        v_cmp_eq_u32 vcc, {2*r+1}, v{VT}
        v_mov_b32 v{VT+2}, 0x3f800000
        v_cndmask_b32 v{VSEL+r}, v{VSEL+r}, v{VT+2}, vcc
        """.replace("v_cndmask", "s_nop 0\nv_cndmask"))
    k.e(f"""
    v_and_b32 v{VT+2}, 26, v{VL}
    v_cmp_eq_u32 vcc, 0, v{VT+2}
    v_mov_b32 v{VT+3}, 0x3f803f80
    s_nop 0
    v_cndmask_b32 v{VONE}, 0, v{VT+3}, vcc
    v_and_b32 v{VT+2}, 1, v{VL}
    v_cmp_eq_u32 vcc, 0, v{VT+2}
    v_mov_b32 v{VT+3}, 0x44444444
    v_mov_b32 v{VT+4}, 0xeeeeeeee
    v_cndmask_b32 v{VIDX}, v{VT+4}, v{VT+3}, vcc
    v_mov_b32 v{VONE+1}, v{VONE}
    v_mov_b32 v{VONE+2}, v{VONE}
    v_mov_b32 v{VONE+3}, v{VONE}
    """)
    k.e("s_waitcnt lgkmcnt(0)")
    srd(k, 24, 22, 23, S_*D_*4, WS_KV)
    srd(k, 28, 22, 23, S_*D_*2, WS_Q)
    for q in range(2):
        for s_ in range(2):
            k.e(f"buffer_load_dwordx4 {a(AQ(q,s_),4)}, v{VL16}, s[28:31], s49 offen offset:{q*2048+s_*1024}")
    def dma(): return [f"buffer_load_dwordx4 v{VL16}, s[24:27], s57 offen offset:{q*1024} lds" for q in range(4)]
    adv = ["s_add_u32 s56, s56, 16384", "s_add_u32 s57, s56, s52", "s_cmp_lt_u32 s56, 0x40000", "s_cselect_b32 s57, s57, s59",
           "s_add_u32 s58, s58, 16384", "s_and_b32 s58, s58, 0xffff", "s_mov_b32 m0, s58"]
    Lre = k.label("restart"); Lside = k.label("noside")
    k.e(f"{Lre}:\ns_mov_b32 s56, 0\ns_mov_b32 s57, s52\ns_mov_b32 s58, s53\ns_mov_b32 m0, s58\ns_nop 0")
    for st in range(3):
        k.e("\n".join(dma()))
        if st < 2: k.e("\n".join(adv) + "\ns_nop 0")
    assert W2COLS in (64, 128)
    M18 = (1 << 16) // 18 + 1
    for x in range(1024): assert (x * M18) >> 16 == x // 18
    k.e(f"""
    s_lshl_b32 s64, s2, 2
    s_add_u32 s64, s64, s3
    s_mul_i32 s68, s64, {M18}
    s_lshr_b32 s68, s68, 16          ; c
    s_mul_i32 s69, s68, 18
    s_sub_u32 s69, s64, s69          ; p
    s_lshl_b32 s71, s68, 9
    s_cmp_lt_u32 s68, 28
    s_cselect_b32 s32, s12, s14
    s_cselect_b32 s33, s13, s15
    s_cselect_b32 s65, 0, 28
    s_sub_u32 s68, s68, s65          ; chunk
    s_mul_i32 s66, s69, {60*7168}
    s_lshl_b32 s68, s68, 8
    s_add_u32 s66, s66, s68
    s_cmp_lt_u32 s64, 1008
    s_cselect_b32 s66, s66, s59
    s_cselect_b32 s71, s71, s59
    s_mov_b32 s34, {D_*F_*2}
    s_mov_b32 s35, 0x20000
    s_mov_b32 s38, {D_*D_*2}
    s_mov_b32 s74, {WS_WOT}
    s_mov_b32 s72, {D_//8}
    s_cmp_lt_u32 s64, 512
    s_cselect_b32 s36, s16, s8
    s_cselect_b32 s37, s17, s9
    s_cselect_b32 s38, {F_*D_*2}, s38
    s_cselect_b32 s74, {WS_W2T}, s74
    s_cselect_b32 s72, {F_//8}, s72
    s_cselect_b32 s75, 14, 8         ; units
    s_mov_b32 s39, 0x20000
    s_add_u32 s40, s22, s74
    s_addc_u32 s41, s23, 0
    s_mov_b32 s42, {PLANE + F_*D_*2}
    s_mov_b32 s43, 0x20000
    s_and_b32 s68, s64, 15
    s_bfe_u32 s69, s64, 0x50004
    s_mul_i32 s69, s69, s75
    s_add_u32 s54, s75, 2
    s_lshl_b32 s54, s54, 14
    v_lshrrev_b32 v{VT+2}, 3, v{VL}     ; r
    v_and_b32 v{VT+3}, 7, v{VL}         ; p
    v_and_b32 v{VT+4}, 6, v{VT+2}
    v_xor_b32 v{VT+4}, v{VT+4}, v{VT+3}
    v_lshlrev_b32 v{VT+4}, 4, v{VT+4}
    v_lshl_add_u32 v{VCPS}, v{VT+2}, 11, v{VT+4}
    v_mov_b32 v{VCPD}, v{VL16}
    s_lshl_b32 s67, s69, 14
    s_lshl_b32 s73, s68, 7
    s_add_u32 s67, s67, s73
    s_mul_i32 s72, s72, s68
    s_add_u32 s72, s72, s69
    s_lshl_b32 s73, s72, 10
    s_mov_b32 s55, 1024
    """)
    if W2COLS == 128:
        Lw = k.label("now2")
        k.e(f"""
        s_cmp_eq_u32 s75, 8
        s_cbranch_scc1 {Lw}
        v_lshrrev_b32 v{VT+4}, 1, v{VT+3}
        v_xor_b32 v{VT+4}, v{VT+4}, v{VT+2}
        v_lshlrev_b32 v{VT+4}, 5, v{VT+4}
        v_and_b32 v{VT+5}, 1, v{VT+3}
        v_lshl_add_u32 v{VT+4}, v{VT+5}, 4, v{VT+4}
        s_and_b32 s72, s68, 1
        s_lshl_b32 s72, s72, 7
        v_xor_b32 v{VT+4}, s72, v{VT+4}
        v_lshl_add_u32 v{VCPS}, v{VT+2}, 11, v{VT+4}
        v_lshlrev_b32 v{VT+4}, 8, v{VT+2}
        v_lshl_add_u32 v{VT+4}, v{VT+3}, 4, v{VT+4}
        v_add_u32 v{VCPD}, s72, v{VT+4}
        s_lshr_b32 s72, s68, 1
        s_lshl_b32 s67, s69, 14
        s_lshl_b32 s73, s72, 8
        s_add_u32 s67, s67, s73
        s_mul_i32 s72, s72, {F_*256}
        s_lshl_b32 s73, s69, 11
        s_add_u32 s73, s73, s72
        s_mov_b32 s55, 2048
        {Lw}:
        """)
    reloc(k, VCPD, VT+4)
    k.e(f"""
    s_cmp_lt_u32 s64, 768
    s_cselect_b32 s67, s67, s59
    s_cselect_b32 s73, s73, s59
    s_cmp_lg_u32 s70, 0
    s_cselect_b32 s66, s59, s66
    s_cselect_b32 s67, s59, s67
    s_cselect_b32 s73, s59, s73
    s_mov_b32 s74, s59
    s_mov_b32 s72, s59
    """)
    for r in range(4): k.e(f"v_mov_b32 v{VCSD+r}, 0")
    for r in range(8): k.e(f"v_accvgpr_write_b32 a{ACSL(0)+r}, 0")
    for r in list(range(72, 144)): k.e(f"v_mov_b32 v{r}, 0")
    for r in range(8): k.e(f"v_accvgpr_write_b32 a{AV(1,0)+r}, 0")
    k.e(f"v_mov_b32 v{VKA}, v{VL16}\nv_mov_b32 v{VVA}, v{VL16}")
    L = k.label("loop"); Lep = k.label("epi")
    if OPT.codepf: code_pf_addr(k, Lep, "L_k5_kernel_end", VPA, VL, 3)
    k.e("s_waitcnt vmcnt(8)\ns_barrier")
    stamp(k, 1)
    def kread(kb): return [f"ds_read_b128 {a(AK(kb%2,s_),4)}, v{VKA} offset:{(kb%4)*4096 + s_*1024}" for s_ in range(2)]
    def vread(kb): return [f"ds_read_b128 {a(AV(kb%2,s_),4)}, v{VVA} offset:{(kb%4)*4096 + 2048 + s_*1024}" for s_ in range(2)]
    for x in kread(0) + kread(1): k.e(x)
    Lskip = k.label("havemax")
    k.e(f"s_waitcnt lgkmcnt(0)\ns_cmp_lg_u32 s70, 0\ns_cbranch_scc1 {Lskip}")
    for q in range(2):
        k.e(f"v_mfma_f32_32x32x16_bf16 {v(VS(q),16)}, {a(AK(0,0),4)}, {a(AQ(q,0),4)}, 0")
        k.e(f"v_mfma_f32_32x32x16_bf16 {v(VS(q),16)}, {a(AK(0,1),4)}, {a(AQ(q,1),4)}, {v(VS(q),16)}")
    k.e("s_nop 9")
    def maxfin():
        k.e(f"v_mov_b32 v{VT+2}, v{VT}\nv_mov_b32 v{VT+3}, v{VT+1}\ns_nop 0")
        k.e(f"v_permlane32_swap_b32 v{VT}, v{VT+2}\nv_permlane32_swap_b32 v{VT+1}, v{VT+3}\ns_nop 0")
        k.e(f"v_max_f32 v{VT}, v{VT}, v{VT+2}\nv_max_f32 v{VT+1}, v{VT+1}, v{VT+3}\nv_mov_b32 v{VT+2}, -1.0")
        for q in range(2):
            for r in range(0, 16, 2): k.e(pk("mul", VC(q)+r, ('b', VT+q), ('b', VT+2)))
    for q in range(2):
        b = VS(q)
        k.e(f"v_max3_f32 v{VT+q}, v{b}, v{b+1}, v{b+2}\nv_max3_f32 v{VT+2}, v{b+3}, v{b+4}, v{b+5}")
        for r in range(6, 14, 4): k.e(f"v_max3_f32 v{VT+q}, v{VT+q}, v{b+r}, v{b+r+1}\nv_max3_f32 v{VT+2}, v{VT+2}, v{b+r+2}, v{b+r+3}")
        k.e(f"v_max3_f32 v{VT+q}, v{VT+q}, v{b+14}, v{b+15}\nv_max_f32 v{VT+q}, v{VT+q}, v{VT+2}")
        if q == 0: k.e("s_nop 3")
    maxfin()
    k.e(f"{Lskip}:\ns_nop 1")
    def qk(n):
        q = n % 2; kb = n // 2
        return [f"v_mfma_f32_32x32x16_bf16 {v(VS(q),16)}, {a(AK(kb%2,0),4)}, {a(AQ(q,0),4)}, {v(VC(q),16)}",
                f"v_mfma_f32_32x32x16_bf16 {v(VS(q),16)}, {a(AK(kb%2,1),4)}, {a(AQ(q,1),4)}, {v(VS(q),16)}"]
    def pv(n):
        q = n % 2; kb = n // 2
        return [f"v_mfma_f32_32x32x16_bf16 {v(VO(q),16)}, {a(AV(kb%2,s_),4)}, {v(VP(q)+4*s_,4)}, {v(VO(q),16)}" for s_ in range(2)] + \
               [f"v_smfmac_f32_32x32x32_bf16 {v(VLs(q),16)}, {v(VONE,4)}, {v(VP(q),8)}, v{VIDX}"]
    for x in qk(0): k.e(x)
    k.e("s_mov_b32 s62, 8\ns_waitcnt vmcnt(4)")
    if OPT.codepf: k.e(code_pf(VPF, VPA))
    k.e("s_nop 8")
    csm = lambda st: f"v_mfma_f32_16x16x32_bf16 {v(VCSD,4)}, {v(VSEL,4)}, {a(ACSL(st),4)}, {v(VCSD,4)}"
    cpst = lambda st, so: f"buffer_store_dwordx4 {a(ACP(st),4)}, v{VCPD}, s[40:43], s{so} offen {OPT.st}"
    body = []
    for st in range(2):
        for n in range(8):
            q = n % 2
            b = VS(q)
            ex = lambda r: f"v_exp_f32 v{b+r}, v{b+r}"
            cv = lambda r: f"v_cvt_pk_bf16_f32 v{VP(q)+r}, v{b+2*r}, v{b+2*r+1}"
            m = qk(n + 1) + pv(n - 1)
            seg = [[ex(0), ex(1), ex(2), ex(3)],
                   [ex(4), cv(0), ex(5), cv(1), ex(6)],
                   [ex(7), cv(2), ex(8), ex(9), cv(3)],
                   [ex(10), ex(11), cv(4), ex(12), cv(5)],
                   [ex(13), ex(14), ex(15), cv(6), cv(7)]]
            after = [[] for _ in range(5)]
            rd = kread((n + 3) // 2) if n % 2 == 1 else vread(n // 2)
            d = dma()
            csl = f"buffer_load_dwordx4 {a(ACSL(st),4)}, v{VCSA}, s[32:35], s66 offen"
            cpl = f"buffer_load_dwordx4 {a(ACP(st),4)}, v{VCPS}, s[36:39], s67 offen"
            plan = {
              0: {1: ["s_waitcnt vmcnt(11)"], 2: [adv[0]], 4: [adv[1]]},
              1: {2: [cpst(st, 74), cpl], 3: [adv[2]], 4: [adv[3]]},
              2: {1: [adv[4]], 2: [adv[5]], 4: [adv[6]]},
              3: {2: [csl], 3: [f"s_add_u32 s66, s66, {4*7168}"], 4: ["s_add_u32 s67, s67, 16384"]},
              4: {1: ["s_mov_b32 s74, s72"], 2: ["s_mov_b32 s72, s73"], 4: ["s_waitcnt vmcnt(10)"]},
              5: {0: ["s_barrier"], 2: d[:2], 3: ["s_add_u32 s73, s73, s55"], 4: [f"s_cmp_lt_u32 s56, {17*16384}"]},
              6: {1: ["s_cselect_b32 s66, s66, s59"], 2: ["s_cmp_lt_u32 s56, s54"], 4: ["s_cselect_b32 s67, s67, s59"]},
              7: {2: ["s_cselect_b32 s73, s73, s59"] + d[2:], 3: ["s_sub_u32 s62, s62, 1"] if st else [], 4: ["s_cmp_lg_u32 s62, 0"] if st else []},
            }[n]
            for j_, x in plan.items(): after[j_] += x
            after[0] += rd
            if n % 2 == 1: after[1].append("s_waitcnt lgkmcnt(2)")
            else: after[3].append("s_waitcnt lgkmcnt(2)")
            if n == 4: seg[2] = [f"v_add_u32 v{VKA}, 0x4000, v{VKA}", f"v_and_b32 v{VKA}, 0xffff, v{VKA}"] + seg[2]
            if n == 7: seg[2] = [f"v_add_u32 v{VVA}, 0x4000, v{VVA}", f"v_and_b32 v{VVA}, 0xffff, v{VVA}"] + seg[2]
            if n == 3: seg[1] = seg[1][:3] + [csm(st)] + seg[1][3:]
            for j_ in range(5):
                body.append(m[j_]); body += [x for x in after[j_] if x != "s_nop 0"]; body += seg[j_]
    if 'novm' in abl: body = [x for x in body if not x.startswith('buffer_')]
    if 'noside' in abl: body = [x.replace('vmcnt(10)', 'vmcnt(4)') for x in body if not (x.startswith('buffer_') and 'lds' not in x)]
    if 'nost' in abl: body = [x.replace('vmcnt(10)', 'vmcnt(8)') for x in body if not x.startswith('buffer_store')]
    if 'nowait' in abl: body = [x for x in body if 'vmcnt' not in x]
    body = auto_lgkm(body, kread(1))
    k.e(f".p2align 6\n{L}:")
    for x in body: k.e(x)
    k.e(f"s_cbranch_scc1 {L}\n{Lep}:")
    k.e("s_nop 1")
    for x in pv(7): k.e(x)
    k.e("s_waitcnt vmcnt(11) lgkmcnt(0)")
    stamp(k, 2)
    Lno = k.label("nofb")
    k.e(f"s_cmp_lg_u32 s70, 0\ns_cbranch_scc1 {Lno}")
    k.e(csm(0))
    srd(k, 28, 22, 23, 2*F_*4, WS_CS)
    k.e(f"""
    v_and_b32 v{VT+8}, 15, v{VL}
    v_lshrrev_b32 v{VT+1}, 4, v{VL}
    v_lshlrev_b32 v{VT+8}, 5, v{VT+8}
    v_lshl_add_u32 v{VT+8}, v{VT+1}, 4, v{VT+8}
    v_lshrrev_b32 v{VT+1}, 1, v{VT+1}
    v_lshl_add_u32 v{VT+8}, v{VT+1}, 29, v{VT+8}
    v_add_f32 v{VT}, v{VLs(0)}, v{VLs(0)+1}
    v_add_f32 v{VT+1}, v{VLs(1)}, v{VLs(1)+1}
    v_add_f32 v{VT}, v{VT}, v{VT+1}
    v_mov_b32 v{VT+2}, {fbits(2.0**40 if not force_fb else 0.5)}
    v_cmp_nlt_f32 vcc, v{VT}, v{VT+2}
    s_lshl_b32 s60, s3, 2
    s_add_u32 s60, s60, 65536
    v_mov_b32 v{VT+2}, s60
    s_cmp_lg_u64 vcc, 0
    s_cselect_b32 s61, 1, 0
    v_mov_b32 v{VT+3}, s61
    ds_write_b32 v{VT+2}, v{VT+3}
    v_mov_b32 v{VT+2}, 65536
    """)
    for r in range(4): k.e(f"buffer_atomic_add_f32 v{VCSD+r}, v{VT+8}, s[28:31], s71 offen offset:{4*r}")
    k.e(f"""
    s_waitcnt lgkmcnt(0)
    s_barrier
    ds_read_b128 {v(VT+4,4)}, v{VT+2}
    s_waitcnt lgkmcnt(0)
    v_or_b32 v{VT+4}, v{VT+4}, v{VT+5}
    v_or3_b32 v{VT+4}, v{VT+4}, v{VT+6}, v{VT+7}
    s_nop 0
    v_readfirstlane_b32 s61, v{VT+4}
    s_nop 3
    s_cmp_eq_u32 s61, 0
    s_cbranch_scc1 {Lno}
    """)
    Lm = k.label("maxloop")
    k.e(f"""
    s_mov_b32 s70, 1
    s_lshl_b32 s60, s46, 18
    s_mov_b32 s61, 64
    v_mov_b32 v{VT}, 0xff800000
    v_mov_b32 v{VT+1}, 0xff800000
    {Lm}:
    buffer_load_dwordx4 {a(AK(0,0),4)}, v{VL16}, s[24:27], s60 offen
    buffer_load_dwordx4 {a(AK(0,1),4)}, v{VL16}, s[24:27], s60 offen offset:1024
    s_waitcnt vmcnt(0)
    """)
    for q in range(2):
        k.e(f"v_mfma_f32_32x32x16_bf16 {v(VS(q),16)}, {a(AK(0,0),4)}, {a(AQ(q,0),4)}, 0")
        k.e(f"v_mfma_f32_32x32x16_bf16 {v(VS(q),16)}, {a(AK(0,1),4)}, {a(AQ(q,1),4)}, {v(VS(q),16)}")
    k.e("s_nop 15")
    for q in range(2):
        for r in range(0, 16, 2): k.e(f"v_max3_f32 v{VT+q}, v{VT+q}, v{VS(q)+r}, v{VS(q)+r+1}")
    k.e(f"s_add_u32 s60, s60, 4096\ns_sub_u32 s61, s61, 1\ns_cmp_lg_u32 s61, 0\ns_cbranch_scc1 {Lm}")
    maxfin()
    k.e(f"s_branch {Lre}\n{Lno}:")
    srd(k, 28, 22, 23, PLANE + S_*D_*2, WS_O)
    k.e(f"""
    v_and_b32 v{VT}, 15, v{VL}
    v_bfe_u32 v{VT+1}, v{VL}, 4, 1
    v_lshrrev_b32 v{VT+2}, 5, v{VL}
    v_lshlrev_b32 v{VT}, 4, v{VT}
    v_lshl_add_u32 v{VT}, v{VT+1}, 15, v{VT}
    v_lshl_add_u32 v{VT}, v{VT+2}, 8, v{VT}
    s_lshl_b32 s60, s48, 16
    s_lshl_b32 s61, s46, 10
    s_add_u32 s60, s60, s61
    s_add_u32 s61, s60, 65536
    """)
    reloc(k, VT, VT+1)
    k.e(f"v_add_f32 v{VT+4}, v{VLs(0)}, v{VLs(0)+1}\nv_add_f32 v{VT+5}, v{VLs(1)}, v{VLs(1)+1}\nv_rcp_f32 v{VT+4}, v{VT+4}\nv_rcp_f32 v{VT+5}, v{VT+5}\ns_nop 0")
    for q in range(2):
        b = VO(q)
        for a_ in range(2):
            for r in range(0, 8, 2): k.e(pk("mul", b+8*a_+r, b+8*a_+r, ('b', VT+4+q)))
            for r in range(4): k.e(f"v_cvt_pk_bf16_f32 v{b+8*a_+r}, v{b+8*a_+2*r}, v{b+8*a_+2*r+1}")
            k.e(f"buffer_store_dwordx4 {v(b+8*a_,4)}, v{VT}, s[28:31], s{60+q} offen offset:{a_*512} {OPT.st}")
    finish(k, 2)
    return k

def gen_small(which, D=3, TB=2, LEAD=0, MG=1, abl=''):
    k3 = which == 3
    K = D_ if k3 else F_
    NS = K // 128
    U = 4; STG = 16384; NH = 4
    k = KB(f"k{which}_kernel", 112, 128, U * STG)
    ACC = lambda j, i: (j * 2 + i) * 4
    VW = lambda g, s_: 32 + (g % 4) * 8 + s_ * 4
    VD = 64
    VX = 66
    VR = 68
    VRA = 72
    VPF = 73; VPA = 74
    VL = 78; VT = 80
    VRES = 88
    AX = lambda st, i, s_: st * 32 + (i * 4 + s_) * 4
    prologue(k)
    k.e(f"v_mov_b32 v{VL}, v0")
    tile_map(k, TB, 4 - TB, 46, 47)
    k.e(f"""
    s_lshl_b32 s48, s46, 3
    s_lshl_b32 s49, s3, 1
    s_add_u32 s48, s48, s49
    s_mul_i32 s49, s48, {K*32}
    v_lshlrev_b32 v{VT}, 4, v{VL}
    s_lshl_b32 s53, s3, 12
    s_mul_i32 s50, s47, {K*128}
    s_add_u32 s50, s50, s53
    s_lshl_b32 s51, s47, 7
    s_add_u32 s70, s46, s47
    s_and_b32 s70, s70, {max(LEAD-1,0)}
    s_mov_b32 s58, -1
    """)
    reloc(k, VT, VT+1)
    k.e(f"""
    v_add_u32 v{VX}, s49, v{VT}
    v_add_u32 v{VX+1}, {K*32}, v{VX}
    v_add_u32 v{VD}, s50, v{VT}
    v_and_b32 v{VT}, 31, v{VL}
    v_lshrrev_b32 v{VT}, 2, v{VT}        ; 4*(g%2)+i
    v_lshrrev_b32 v{VT+1}, 5, v{VL}
    v_lshl_add_u32 v{VT+1}, v{VT+1}, 4, v{VT}   ; row
    v_lshrrev_b32 v{VT}, 1, v{VT}        ; sw
    v_lshlrev_b32 v{VT}, 5, v{VT}
    v_lshl_add_u32 v{VT}, v{VT+1}, 7, v{VT}
    v_and_b32 v{VT+1}, 3, v{VL}
    v_lshl_add_u32 v{VR}, v{VT+1}, 3, v{VT}
    """)
    for fb in range(1, 4): k.e(f"v_xor_b32 v{VR+fb}, {fb*32}, v{VR}")
    for r in range(32): k.e(f"v_mov_b32 v{r}, 0")
    k.e(f"v_and_b32 v{VT}, 15, v{VL}\nv_lshrrev_b32 v{VT+1}, 4, v{VL}")
    L = k.label("loop"); Lt = k.label("tail")
    if OPT.codepf: code_pf_addr(k, Lt, "L_k5_kernel_end", VPA, VL, 3)
    if k3:
        k.e(f"""
        v_lshlrev_b32 v{VRA}, 11, v{VT}
        v_lshl_add_u32 v{VRA}, v{VT+1}, 3, v{VRA}
        s_lshl_b32 s60, s48, 15
        s_add_u32 s60, s60, s51
        s_add_u32 s61, s60, 32768
        """)
        res = [f"buffer_load_dwordx2 {v(VRES+i*8+fb*2,2)}, v{VRA}, s[32:35], s{60+i} offen offset:{fb*32}" for i in range(2) for fb in range(4)]
    else:
        k.e(f"""
        v_lshlrev_b32 v{VRA}, 4, v{VL}
        s_lshl_b32 s60, s48, 15
        s_lshl_b32 s61, s47, 11
        s_add_u32 s60, s60, s61
        s_add_u32 s61, s60, 32768
        """)
        res = [f"buffer_load_dwordx4 {v(VRES+i*8+p*4,4)}, v{VRA}, s[32:35], s{60+i} offen offset:{p*1024}" for i in range(2) for p in range(2)]
    k.e("s_waitcnt lgkmcnt(0)")
    srd(k, 24, 22, 23, PLANE + K*D_*2, WS_WOT if k3 else WS_W2T)
    srd(k, 28, 22, 23, PLANE + S_*K*2, WS_O if k3 else WS_G)
    def vmem_ops(slot):
        ops = []
        for q in range(4):
            o = [f"buffer_load_dwordx4 v{VD}, s[24:27], s56 offen offset:{q*1024} lds"]
            if q == 0: o = [f"s_add_u32 m0, s53, {slot*STG}"] + o
            ops.append(o)
            for i in range(2):
                ops.append([f"buffer_load_dwordx4 {a(AX(slot,i,q),4)}, v{VX+i}, s[28:31], s57 offen offset:{q*1024}"])
        return ops
    adv = lead_adv(NS, LEAD, 58, 70, 69) + ["s_lshl_b32 s56, s69, 14", "s_lshl_b32 s57, s69, 12"]
    k.e("\n".join(adv))
    for st in range(2):
        for o in vmem_ops(st): k.e("\n".join(with_nop(o)))
        k.e("\n".join(adv))
        if st == 0:
            if k3: srd(k, 32, 4, 5, S_*D_*2)
            else: srd(k, 32, 22, 23, S_*D_*2, WS_H)
    def wreads(slot, g):
        fb, sp = g % 4, g // 4
        return [f"ds_read_b64_tr_b16 {v(VW(g,s_)+2*rd,2)}, v{VR+fb} offset:{slot*STG + (2*sp+s_)*4096 + rd*1024}" for s_ in range(2) for rd in range(2)]
    def stage(st, left, loopend=False):
        main = []; side = {}
        vm_a = vmem_ops((st + 2) % U)[NH:] if left >= 2 else []
        vm_b = vmem_ops((st + 3) % U)[:NH] if left >= 3 else []
        nwait = 12 if left >= 2 else 0
        if left == 2: vm_b = [[x] for x in res]
        if left == 1: nwait = len(res)
        for g in range(8):
            fb, sp = g % 4, g // 4
            for i in range(2):
                for s_ in range(2):
                    main.append(f"v_mfma_f32_16x16x32_bf16 {v(ACC(fb,i),4)}, {v(VW(g,s_),4)}, {a(AX(st,i,2*sp+s_),4)}, {v(ACC(fb,i),4)}")
        def place(o, pos):
            if len(o) > 1: side.setdefault(pos - 1, []).append(o[0])
            side.setdefault(pos, []).append(o[-1])
        nb = 4 * (8 - D)
        for q, o in enumerate(vm_a): place(o, q * (nb - 2) // len(vm_a))
        if left >= 3:
            for q, x in enumerate(adv): side.setdefault(nb - 1 - len(adv) + q, []).append(x)
        if left >= 1: side.setdefault(nb - 1, []).extend([f"s_waitcnt vmcnt({nwait})", "s_barrier"])
        for q, o in enumerate(vm_b): place(o, nb + 1 + q * (4 * D - 2) // len(vm_b))
        heads = []
        for g in range(8):
            gg = g + D
            if gg >= 8 and left == 0: continue
            rd = wreads(st if gg < 8 else (st + 1) % U, gg % 8)
            if gg >= 8: heads += rd
            for q, x in enumerate(rd): side.setdefault(4 * g + q, []).append(x)
        if loopend:
            side.setdefault(29, []).append("s_sub_u32 s62, s62, 1")
            side.setdefault(30, []).append("s_cmp_lg_u32 s62, 0")
        return flatten(main, side), heads
    body = []
    for st in range(U):
        b_, heads = stage(st, 99, st == U - 1); body += b_
    tail = []
    for st in range(U): tail += stage(st, U - 1 - st)[0]
    if 'nomfma' in abl:
        body = [x if 'mfma' not in x else 's_nop 0' for x in body]
    body = salu_first(auto_lgkm(body, heads, merge=MG, hoist=True))
    tail = salu_first(auto_lgkm(tail, heads, cyclic=False, merge=MG, hoist=True))
    if OPT.rep: print(k.name, slot_report(body), file=sys.stderr)
    k.e(f"s_waitcnt vmcnt(12)\ns_barrier")
    stamp(k, 1)
    for x in heads: k.e(x)
    if OPT.codepf: k.e(code_pf(VPF, VPA))
    for o in vmem_ops(2)[:NH]: k.e("\n".join(with_nop(o)))
    k.e(f"s_mov_b32 s62, {NS//U - 1}")
    k.e(f".p2align 6\n{L}:")
    for x in body: k.e(x)
    k.e(f"s_cbranch_scc1 {L}\n{Lt}:")
    for x in tail: k.e(x)
    stamp(k, 2)
    fl = OPT.st
    if k3:
        srd(k, 36, 22, 23, S_*D_*2, WS_H)
        srd(k, 40, 22, 23, S_*8, WS_ST)
        k.e(f"""
        v_lshlrev_b32 v{VT+2}, 4, v{VL}
        s_lshl_b32 s60, s48, 15
        s_lshl_b32 s61, s47, 11
        s_add_u32 s60, s60, s61
        s_add_u32 s61, s60, 32768
        """)
    else:
        srd(k, 36, 18, 19, S_*D_*2)
        k.e(f"""
        v_and_b32 v{VT+2}, 1, v{VT+1}
        v_lshrrev_b32 v{VT+3}, 1, v{VT+1}
        v_lshlrev_b32 v{VT+2}, 5, v{VT+2}
        v_lshl_add_u32 v{VT+2}, v{VT+3}, 4, v{VT+2}
        v_lshl_add_u32 v{VT+2}, v{VT}, 11, v{VT+2}
        s_lshl_b32 s60, s48, 15
        s_add_u32 s60, s60, s51
        s_add_u32 s61, s60, 32768
        """)
    k.e("s_waitcnt vmcnt(0)")
    for i in range(2):
        for p in range(2):
            for fb in (2*p, 2*p+1):
                o = ACC(fb, i); r = VRES + i*8 + fb*2
                k.e(f"""
                v_lshlrev_b32 v{VT+4}, 16, v{r}
                v_and_b32 v{VT+5}, 0xffff0000, v{r}
                v_lshlrev_b32 v{VT+6}, 16, v{r+1}
                v_and_b32 v{VT+7}, 0xffff0000, v{r+1}
                {pk("add", o, o, VT+4)}
                {pk("add", o+2, o+2, VT+6)}
                v_cvt_pk_bf16_f32 v{r}, v{o}, v{o+1}
                v_cvt_pk_bf16_f32 v{r+1}, v{o+2}, v{o+3}
                """)
            r = VRES + i*8 + p*4
            if k3:
                k.e(f"buffer_store_dwordx4 {v(r,4)}, v{VT+2}, s[36:39], s{60+i} offen offset:{p*1024} {fl}")
            else:
                k.e(f"s_nop 1\nv_permlane16_swap_b32 v{r}, v{r+2}\nv_permlane16_swap_b32 v{r+1}, v{r+3}")
                k.e(f"buffer_store_dwordx4 {v(r,4)}, v{VT+2}, s[36:39], s{60+i} offen offset:{p*64} {fl}")
    if k3:
        for i in range(2):
            regs = [ACC(fb, i) + r for fb in range(4) for r in (0, 2)]
            k.e(pk("add", 36, regs[0], regs[1]) + "\n" + pk("mul", 38, regs[0], regs[0]) + "\n" + pk("fma", 38, regs[1], regs[1], 38))
            for r in regs[2:]: k.e(pk("add", 36, 36, r) + "\n" + pk("fma", 38, r, r, 38))
            k.e(f"v_add_f32 v{32+2*i}, v36, v37\nv_add_f32 v{33+2*i}, v38, v39")
        k.e(f"""
        v_lshrrev_b32 v{VT+3}, 1, v{VT+1}
        v_lshl_add_u32 v{VT+3}, v{VT+3}, 4, v{VT}
        v_permlane32_swap_b32 v32, v34
        v_permlane32_swap_b32 v33, v35
        v_and_b32 v{VT+4}, 1, v{VT+1}
        v_add_f32 v32, v32, v34
        v_add_f32 v33, v33, v35
        v_lshlrev_b32 v{VT+3}, 3, v{VT+3}
        v_lshl_add_u32 v{VT+3}, v{VT+4}, 2, v{VT+3}
        v_permlane16_swap_b32 v32, v33
        s_lshl_b32 s60, s48, 7
        v_add_f32 v32, v32, v33
        buffer_atomic_add_f32 v32, v{VT+3}, s[40:43], s60 offen
        """)
    finish(k, which)
    return k

def gen_k4(D=3, MG=1, SP=2, retile=False, abl=''):
    STG = 28672
    k = KB("k4_kernel", 256, 192, 4 * STG + 4096)
    ACC = lambda j, i: (j * 4 + i) * 4
    VD = 224
    VPF = 231
    VX = 232
    VR = 236
    VC1 = 238; VC2 = 242
    VL = 246; VT = 248
    AX = lambda st, i, s_: st * 32 + (i * 2 + s_) * 4
    AW = lambda slot, s_: 128 + slot * 8 + s_ * 4
    prologue(k)
    k.e(f"v_mov_b32 v{VL}, v0")
    tile_map(k, 2, 1, 46, 47)
    k.e(f"""
    s_lshl_b32 s48, s46, 4
    s_lshl_b32 s49, s3, 2
    s_add_u32 s48, s48, s49
    s_lshl_b32 s49, s48, 15
    v_lshlrev_b32 v{VT}, 4, v{VL}
    v_add_u32 v{VX}, s49, v{VT}
    s_and_b32 s50, s3, 1
    s_mul_i32 s50, s50, 448
    s_mul_i32 s51, s47, 224
    """)
    for i in range(1, 4): k.e(f"v_add_u32 v{VX+i}, {i*32768}, v{VX}")
    k.e(f"""
    v_cmp_lt_u32 vcc, 27, v{VL}
    v_mov_b32 v0, {F_*4 - 28*16}
    s_mul_i32 s60, s47, 448
    v_cndmask_b32 v0, 0, v0, vcc
    v_add_u32 v0, v0, v{VT}
    v_and_b32 v1, 15, v{VL}
    v_lshlrev_b32 v1, 3, v1
    s_lshl_b32 s61, s48, 7
    s_lshl_b32 s55, s3, 10
    s_add_u32 s55, s55, {4*STG}
    """)
    for i in range(7):
        k.e(f"v_add_u32 v{VT}, s50, v{VL}")
        if i: k.e(f"v_add_u32 v{VT}, {64*i}, v{VT}")
        udiv_const(k, VT+1, VT, 14)
        k.e(f"""
        v_mul_u32_u24 v{VT+1}, {7168 - 224}, v{VT+1}
        v_lshl_add_u32 v{VT+1}, v{VT}, 4, v{VT+1}
        v_add_u32 v{VD+i}, s51, v{VT+1}
        """)
        if i % 4: k.e(f"v_subrev_u32 v{VD+i}, {(i%4)*1024}, v{VD+i}")
    k.e(f"""
    s_mul_i32 s53, s3, 7168
    s_mov_b32 s56, 0
    s_mov_b32 s57, 0
    s_mov_b32 s58, 0
    s_mov_b32 s59, {OOB}
    s_mov_b32 m0, s55
    s_waitcnt lgkmcnt(0)
    """)
    srd(k, 40, 22, 23, 2*F_*4, WS_CS)
    srd(k, 36, 22, 23, S_*8, WS_ST)
    k.e("buffer_load_dwordx4 v0, s[40:43], s60 offen lds")
    for i in range(4): k.e(f"buffer_load_dwordx2 v[{VT+2*i}:{VT+2*i+1}], v1, s[36:39], s61 offen offset:{i*128}")
    k.e(f"""
    s_cmp_lt_u32 s3, 2
    s_cselect_b32 s24, s12, s14
    s_cselect_b32 s25, s13, s15
    s_mov_b32 s26, {D_*F_*2}
    s_mov_b32 s27, 0x20000
    """)
    srd(k, 28, 22, 23, S_*D_*2, WS_H)
    def parts(slot):
        d = []
        for i in range(7):
            o = [f"buffer_load_dwordx4 v{VD+i}, s[24:27], s56 offen offset:{(i%4)*1024} lds"]
            if i % 4 == 0: o = [f"s_add_u32 m0, s53, {slot*STG + i*1024}"] + o
            d.append(o)
        xs = [[f"buffer_load_dwordx4 {a(AX(slot, i, s_), 4)}, v{VX+i}, s[28:31], s57 offen offset:{s_*1024}"] for i in range(4) for s_ in range(2)]
        return d[:4] + xs[:4], d[4:] + xs[4:]
    adv = ["s_add_u32 s56, s56, %d" % (64*7168), "s_add_u32 s58, s58, 2048", "s_cmp_lt_u32 s58, 32768", f"s_cselect_b32 s57, s58, s59"]
    p1, p2 = parts(0)
    for o in p1 + p2: k.e("\n".join(with_nop(o)))
    k.e("\n".join(adv))
    L = k.label("loop"); Lep = k.label("epi")
    k.e(f"""
    v_lshrrev_b32 v4, 2, v{VL}
    v_mul_u32_u24 v4, 224, v4
    v_and_b32 v5, 3, v{VL}
    v_lshl_add_u32 v{VR}, v5, 3, v4
    v_add_u32 v{VR+1}, {2*STG}, v{VR}
    v_lshrrev_b32 v4, 4, v{VL}
    v_lshl_add_u32 v4, v4, 4, s55
    s_waitcnt vmcnt(15)
    """)
    for j in range(14): k.e(f"ds_read_b128 {v(ACC(j,0),4)}, v4 offset:{j*64}")
    init = []
    for i in range(4):
        b = VT + 2 * i
        init += f"""v_mul_f32 v{b}, {fbits(-1.0/D_)}, v{b}
        v_mul_f32 v{b+1}, {fbits(1.0/D_)}, v{b+1}
        v_fma_f32 v{b+1}, -v{b}, v{b}, v{b+1}
        v_max_f32 v{b+1}, 0, v{b+1}
        v_add_f32 v{VC2+i}, {fbits(1e-5)}, v{b+1}
        v_rsq_f32 v{b+1}, v{VC2+i}""".split("\n")
    for i in range(4): init.append(f"v_mul_f32 v{VC1+i}, {fbits(-LOG2E)}, v{VT+2*i+1}")
    init.append("s_waitcnt lgkmcnt(0)")
    for j in range(14):
        for i in (3, 2, 1, 0):
            for r in (0, 2): init.append(pk("mul", ACC(j,i)+r, ACC(j,0)+r, ('b', VT+2*i)))
    init = [x.strip() for x in init]
    for x in sprinkle(init, [with_nop(o) for o in parts(1)[0]]): k.e(x)
    if OPT.codepf: code_pf_addr(k, Lep, "L_k5_kernel_end", VT, VL, 3)
    VCPS = VT + 2; VCPD = VT + 3
    if retile:
        srd(k, 64, 16, 17, F_*D_*2); srd(k, 68, 22, 23, PLANE + F_*D_*2, WS_W2T)
        k.e(f"""
        s_lshl_b32 s72, s2, 2
        s_add_u32 s72, s72, s3
        v_lshrrev_b32 v{VT+4}, 3, v{VL}
        v_and_b32 v{VT+5}, 7, v{VL}
        v_lshrrev_b32 v{VT+6}, 1, v{VT+5}
        v_xor_b32 v{VT+6}, v{VT+6}, v{VT+4}
        v_lshlrev_b32 v{VT+6}, 5, v{VT+6}
        v_and_b32 v{VT+7}, 1, v{VT+5}
        v_lshl_add_u32 v{VT+6}, v{VT+7}, 4, v{VT+6}
        s_and_b32 s73, s72, 1
        s_lshl_b32 s73, s73, 7
        v_xor_b32 v{VT+6}, s73, v{VT+6}
        v_lshl_add_u32 v{VCPS}, v{VT+4}, 11, v{VT+6}
        v_lshlrev_b32 v{VT+6}, 8, v{VT+4}
        v_lshl_add_u32 v{VT+6}, v{VT+5}, 4, v{VT+6}
        v_add_u32 v{VCPD}, s73, v{VT+6}
        s_bfe_u32 s73, s72, 0x30001
        s_lshr_b32 s72, s72, 4
        s_mul_i32 s72, s72, 7
        s_lshl_b32 s74, s72, 14
        s_lshl_b32 s75, s73, 8
        s_add_u32 s74, s74, s75
        s_mul_i32 s73, s73, {F_*256}
        s_lshl_b32 s75, s72, 11
        s_add_u32 s75, s75, s73
        """)
        reloc(k, VCPD, VT+4)
    def reads(stage_slot, j):
        base = VR + (stage_slot // 2)
        off0 = (stage_slot % 2) * STG + (j // 7) * 14336 + (j % 7) * 32
        return [f"ds_read_b64_tr_b16 {a(AW(j % 7, s_) + 2*rd, 2)}, v{base} offset:{off0 + (32*s_ + 16*rd)*224}" for s_ in range(2) for rd in range(2)]
    body = []; heads = []
    for st in range(4):
        main = []; side = {}
        cur = parts((st + 1) % 4)[1][D:]; nxt = parts((st + 2) % 4)[0]; post = parts((st + 2) % 4)[1][:D]
        for j in range(14):
            for i in range(4):
                for s_ in range(2):
                    main.append(f"v_mfma_f32_16x16x32_bf16 {v(ACC(j,i),4)}, {a(AW(j%7,s_),4)}, {a(AX(st,i,s_),4)}, {v(ACC(j,i),4)}")
        def place(o, pos):
            if len(o) > 1: side.setdefault(pos - 1, []).append(o[0])
            side.setdefault(pos, []).append(o[-1])
        nb = 8 * (14 - D)
        ops = cur + nxt
        pos = [(5 + q * (nb - 6) // len(ops)) | 1 for q in range(len(ops))]
        for q, o in enumerate(ops): place(o, pos[q])
        for q, x in enumerate(adv): side.setdefault(pos[len(cur) - 1] + 1 + q, []).append(x)
        assert pos[len(cur) - 1] + 4 < pos[len(cur)] - 1
        side.setdefault(nb - 1, []).extend(["s_waitcnt vmcnt(8)", "s_barrier"])
        for q, o in enumerate(post): place(o, nb + 5 + 8 * q)
        if retile:
            sr = 74 if st < 2 else 75
            if st % 2: side.setdefault(nb, []).append("s_cmp_lg_u32 s62, 1"); side.setdefault(nb + 1, []).append(f"s_cselect_b32 s{sr}, s{sr}, s59")
            if st < 2: x = f"buffer_load_dwordx4 {a(184 + 4*st, 4)}, v{VCPS}, s[64:67], s74 offen"
            else: x = f"buffer_store_dwordx4 {a(184 + 4*(st-2), 4)}, v{VCPD}, s[68:71], s75 offen {OPT.st}"
            side.setdefault(nb + 1, []).append(x)
            side.setdefault(nb + 2, []).append(f"s_add_u32 s{sr}, s{sr}, {16384 if st < 2 else 2048}")
        for j in range(14):
            jj = j + D
            rd = reads(st if jj < 14 else (st + 1) % 4, jj % 14)
            if jj >= 14 and st == 3: heads += rd
            for q, x in enumerate(rd): side.setdefault(8 * j + q * SP, []).append(x)
        if st == 3:
            side.setdefault(109, []).append("s_sub_u32 s62, s62, 1")
            side.setdefault(110, []).append("s_cmp_lg_u32 s62, 0")
        body += flatten(main, side)
    body = salu_first(auto_lgkm(body, heads, merge=MG, hoist=True))
    if OPT.rep: print(k.name, slot_report(body), file=sys.stderr)
    k.e("s_waitcnt vmcnt(8)\ns_barrier")
    stamp(k, 1)
    for x in heads: k.e(x)
    if OPT.codepf: k.e(code_pf(VPF, VT))
    for o in parts(1)[1][:D]: k.e("\n".join(with_nop(o)))
    k.e("s_mov_b32 s62, 4")
    k.e(f".p2align 6\n{L}:")
    for x in body: k.e(x)
    k.e(f"s_cbranch_scc1 {L}\n{Lep}:")
    stamp(k, 2)
    srd(k, 32, 22, 23, PLANE + S_*F_*2, WS_G)
    k.e(f"""
    v_and_b32 v{VT}, 31, v{VL}
    v_lshlrev_b32 v{VT}, 4, v{VT}
    """)
    reloc(k, VT, VT+1)
    k.e(f"""
    v_lshrrev_b32 v{VT+1}, 5, v{VL}
    v_mul_u32_u24 v{VT+1}, {224*512}, v{VT+1}
    v_add_u32 v{VT}, v{VT}, v{VT+1}
    s_mul_i32 s60, s48, {224*512}
    s_mul_i32 s61, s47, {7*512}
    s_add_u32 s60, s60, s61
    s_add_u32 s61, s60, {2*224*512}
    """)
    for j in range(7):
        for p in range(2):
            ii = (2*p, 2*p+1)
            G = lambda i: ACC(j, i); Uu = lambda i: ACC(j + 7, i)
            for i in ii:
                for r in (0, 2): k.e(pk("mul", Uu(i)+r, Uu(i)+r, G(i)+r))
                for r in (0, 2): k.e(pk("mul", G(i)+r, G(i)+r, ('b', VC1+i)))
            for i in ii:
                for r in range(4): k.e(f"v_exp_f32 v{G(i)+r}, v{G(i)+r}")
            for i in ii:
                for r in (0, 2): k.e(pk("fma", G(i)+r, G(i)+r, ('b', VC2+i), ('b', VC2+i)))
            for i in ii:
                for r in range(4): k.e(f"v_rcp_f32 v{G(i)+r}, v{G(i)+r}")
            for i in ii:
                for r in (0, 2): k.e(pk("mul", Uu(i)+r, Uu(i)+r, G(i)+r))
            o = G(2*p)
            k.e(f"v_cvt_pk_bf16_f32 v{o}, v{Uu(2*p)}, v{Uu(2*p)+1}\nv_cvt_pk_bf16_f32 v{o+2}, v{Uu(2*p+1)}, v{Uu(2*p+1)+1}")
            k.e(f"v_cvt_pk_bf16_f32 v{o+1}, v{Uu(2*p)+2}, v{Uu(2*p)+3}\nv_cvt_pk_bf16_f32 v{o+3}, v{Uu(2*p+1)+2}, v{Uu(2*p+1)+3}")
            k.e(f"v_permlane32_swap_b32 v{o}, v{o+2}\ns_nop 0\nv_permlane32_swap_b32 v{o+1}, v{o+3}")
            k.e(f"buffer_store_dwordx4 {v(o,4)}, v{VT}, s[32:35], s{60+p} offen offset:{j*512} {OPT.st}")
    finish(k, 4)
    return k

def gen_k5s(D=3, DIST=3, U=6, MAP=0, LEAD=0, MG=1, abl=''):
    NS = 28; STG = 16384; NH = 3
    NT = DIST + 1
    assert (NS - NT) % U == 0 and U >= DIST + 2
    k = KB("k5_kernel", 160, 16 * U, U * STG)
    ACC = lambda j, i: (j * 2 + i) * 4
    VW = lambda g, s_: 64 + (g % 4) * 8 + s_ * 4
    VD = 96; VX = 98; VRA = 100; VPF = 101; VPA = 102
    VR = 104
    VL = 120; VL16 = 121; VT = 122
    VRES = 132
    AX = lambda st, i, s_: st * 16 + (i * 2 + s_) * 4
    prologue(k)
    k.e(f"v_mov_b32 v{VL}, v0")
    if MAP == 0:
        k.e("""
        s_and_b32 s52, s44, 1
        s_bfe_u32 s46, s44, 0x10001
        s_lshl_b32 s46, s46, 3
        s_and_b32 s47, s45, 7
        s_add_u32 s46, s46, s47
        s_lshr_b32 s47, s44, 2
        s_lshl_b32 s47, s47, 2
        s_lshr_b32 s48, s45, 3
        s_add_u32 s47, s47, s48
        s_xor_b32 s63, s2, 1
        """)
    elif MAP == 1:
        k.e("""
        s_and_b32 s52, s44, 1
        s_lshr_b32 s46, s44, 1
        s_lshl_b32 s46, s46, 2
        s_and_b32 s47, s45, 3
        s_add_u32 s46, s46, s47
        s_lshr_b32 s47, s45, 2
        s_xor_b32 s63, s2, 1
        """)
    else:
        k.e("""
        s_and_b32 s52, s45, 1
        s_and_b32 s46, s44, 3
        s_lshl_b32 s46, s46, 2
        s_bfe_u32 s47, s45, 0x20001
        s_add_u32 s46, s46, s47
        s_lshr_b32 s47, s44, 2
        s_lshl_b32 s47, s47, 2
        s_lshr_b32 s48, s45, 3
        s_add_u32 s47, s47, s48
        s_xor_b32 s63, s2, 8
        """)
    k.e(f"""
    s_lshl_b32 s48, s46, 3
    s_lshl_b32 s49, s3, 1
    s_add_u32 s48, s48, s49
    s_mul_i32 s49, s48, {F_*32}
    v_lshlrev_b32 v{VL16}, 4, v{VL}
    v_mov_b32 v{VT}, v{VL16}
    s_lshl_b32 s53, s3, 12
    s_mul_i32 s50, s47, {F_*256}
    s_add_u32 s50, s50, s53
    s_mul_i32 s71, s52, 28
    s_add_u32 s70, s46, s47
    s_and_b32 s70, s70, {max(LEAD-1,0)}
    s_mov_b32 s58, -1
    s_lshl_b32 s51, s47, 1
    s_add_u32 s51, s51, s52
    """)
    reloc(k, VT, VT+1)
    k.e(f"""
    v_add_u32 v{VX}, s49, v{VT}
    v_add_u32 v{VX+1}, {F_*32}, v{VX}
    v_add_u32 v{VD}, s50, v{VT}
    v_and_b32 v{VT}, 31, v{VL}
    v_lshrrev_b32 v{VT}, 2, v{VT}        ; 4*(g%2)+i = row&7
    v_lshrrev_b32 v{VT+1}, 5, v{VL}
    v_lshl_add_u32 v{VT+1}, v{VT+1}, 4, v{VT}   ; row
    s_lshl_b32 s54, s52, 2
    v_xor_b32 v{VT}, s54, v{VT}
    v_lshlrev_b32 v{VT}, 5, v{VT}
    v_lshl_add_u32 v{VT}, v{VT+1}, 8, v{VT}
    v_and_b32 v{VT+1}, 3, v{VL}
    v_lshl_add_u32 v{VR}, v{VT+1}, 3, v{VT}
    """)
    for fb in range(1, 8): k.e(f"v_xor_b32 v{VR+fb}, {fb*32}, v{VR}")
    for fb in range(8): k.e(f"v_add_u32 v{VR+8+fb}, 0x10000, v{VR+fb}")
    zero = [f"v_mov_b32 v{r}, 0" for r in range(64)]
    for x in zero[:24]: k.e(x)
    L = k.label("loop"); Lt = k.label("tail")
    k.e(f"""
    s_lshl_b32 s60, s48, 15
    s_lshl_b32 s61, s51, 11
    s_add_u32 s60, s60, s61
    s_add_u32 s61, s60, 32768
    s_waitcnt lgkmcnt(0)
    """)
    res = [f"buffer_load_dwordx4 {v(VRES+i*8+p*4,4)}, v{VL16}, s[32:35], s{60+i} offen offset:{p*1024}" for i in range(2) for p in range(2)]
    srd(k, 24, 22, 23, PLANE + F_*D_*2, WS_W2T)
    srd(k, 28, 22, 23, PLANE + S_*F_*2, WS_G)
    def vmem_ops(slot):
        ops = []
        for q in range(4):
            o = [f"buffer_load_dwordx4 v{VD}, s[24:27], s56 offen offset:{q*1024} lds"]
            if q == 0: o = [f"s_add_u32 m0, s53, {slot*STG}"] + o
            ops.append(o)
            ops.append([f"buffer_load_dwordx4 {a(AX(slot,q//2,q%2),4)}, v{VX+q//2}, s[28:31], s57 offen offset:{(q%2)*1024}"])
        return ops
    adv = lead_adv(NS, LEAD, 58, 70, 69) + ["s_add_u32 s69, s69, s71", "s_lshl_b32 s56, s69, 14", "s_lshl_b32 s57, s69, 11"]
    k.e("\n".join(adv))
    for o in vmem_ops(0): k.e("\n".join(with_nop(o)))
    k.e("\n".join(adv))
    for x in zero[24:]: k.e(x)
    if OPT.codepf: code_pf_addr(k, Lt, "L_k5_kernel_end", VPA, VL, 3)
    srd(k, 32, 22, 23, S_*D_*2, WS_H)
    for o in vmem_ops(1): k.e("\n".join(with_nop(o)))
    k.e("\n".join(adv))
    def wreads(slot, g):
        return [f"ds_read_b64_tr_b16 {v(VW(g,s_)+2*rd,2)}, v{VR+8*(slot//4)+g} offset:{(slot%4)*STG + s_*8192 + rd*2048}" for s_ in range(2) for rd in range(2)]
    def stage(n, left, loopend=False):
        st = n % U
        main = []; side = {}
        vm_a = vmem_ops((st + DIST) % U)[NH:] if left >= DIST else []
        vm_b = vmem_ops((st + DIST + 1) % U)[:NH] if left >= DIST + 1 else []
        nwait = 8 * (min(left, DIST) - 1)
        if left == DIST: vm_b = [[x] for x in res]
        if left < DIST: nwait += len(res)
        for g in range(8):
            for i in range(2):
                for s_ in range(2):
                    main.append(f"v_mfma_f32_16x16x32_bf16 {v(ACC(g,i),4)}, {v(VW(g,s_),4)}, {a(AX(st,i,s_),4)}, {v(ACC(g,i),4)}")
        def place(o, pos):
            if len(o) > 1: side.setdefault(pos - 1, []).append(o[0])
            side.setdefault(pos, []).append(o[-1])
        nb = 4 * (8 - D)
        for q, o in enumerate(vm_a): place(o, 1 + q * (nb - 2) // len(vm_a))
        if left >= DIST + 1:
            for q, x in enumerate(adv): side.setdefault(nb - 1 - len(adv) + q, []).append(x)
        if left >= 1: side.setdefault(nb - 1, []).extend([f"s_waitcnt vmcnt({nwait})", "s_barrier"])
        for q, o in enumerate(vm_b): place(o, nb + 1 + q * (4 * D - 1) // len(vm_b))
        heads = []
        for g in range(8):
            gg = g + D
            if gg >= 8 and left == 0: continue
            rd = wreads(st if gg < 8 else (st + 1) % U, gg % 8)
            if gg >= 8: heads += rd
            for q, x in enumerate(rd): side.setdefault(4 * g + q, []).append(x)
        if loopend:
            side.setdefault(29, []).append("s_sub_u32 s62, s62, 1")
            side.setdefault(30, []).append("s_cmp_lg_u32 s62, 0")
        return flatten(main, side), heads
    body = []
    for st in range(U):
        b_, heads = stage(st, 99, st == U - 1); body += b_
    tail = []
    for st in range(NT): tail += stage(st, NT - 1 - st)[0]
    if 'nomfma' in abl: body = [x if 'mfma' not in x else 's_nop 0' for x in body]
    if 'nods' in abl: body = [x for x in body if not x.startswith('ds_read')]
    if 'hot' in abl: body = [x.replace('s_add_u32 s69, s69, s71', 's_and_b32 s69, s69, 3') for x in body]
    if 'nobar' in abl: body = [x for x in body if not x.startswith('s_barrier')]
    if 'novm' in abl: body = [x for x in body if not x.startswith('buffer_load')]
    if 'nox' in abl: body = [x for x in body if not (x.startswith('buffer_load') and 'lds' not in x)]
    if 'nodma' in abl: body = [x for x in body if not (x.startswith('buffer_load') and 'lds' in x)]
    body = salu_first(auto_lgkm(body, heads, merge=MG, hoist=True))
    tail = salu_first(auto_lgkm(tail, heads, cyclic=False, merge=MG, hoist=True))
    if OPT.rep: print(k.name, slot_report(body), file=sys.stderr)
    k.e(f"s_waitcnt vmcnt(8)\ns_barrier")
    stamp(k, 1)
    for x in heads: k.e(x)
    for st in range(2, DIST):
        for o in vmem_ops(st): k.e("\n".join(with_nop(o)))
        k.e("\n".join(adv))
    if OPT.codepf: k.e(code_pf(VPF, VPA))
    for o in vmem_ops(DIST)[:NH]: k.e("\n".join(with_nop(o)))
    k.e(f"s_mov_b32 s62, {(NS - NT)//U}")
    k.e(f".p2align 6\n{L}:")
    for x in body: k.e(x)
    k.e(f"s_cbranch_scc1 {L}\n{Lt}:")
    for x in tail: k.e(x)
    stamp(k, 2)
    fl = OPT.st
    srd(k, 40, 22, 23, 4*MB, WS_EX)
    srd(k, 24, 22, 23, 1024*128, WS_FLAG)
    k.e(f"""
    s_lshl_b32 s64, s2, 2
    s_add_u32 s64, s64, s3
    s_lshl_b32 s65, s63, 2
    s_add_u32 s65, s65, s3
    s_lshl_b32 s66, s64, 12
    s_lshl_b32 s67, s65, 12
    s_lshl_b32 s64, s64, 7
    s_lshl_b32 s65, s65, 7
    """)
    for p in range(2):
        for i in range(2):
            o = ACC(4+2*p, i); u = ACC(5+2*p, i)
            k.e(f"v_cvt_pk_bf16_f32 v{o}, v{o}, v{o+1}\nv_cvt_pk_bf16_f32 v{o+1}, v{o+2}, v{o+3}")
            k.e(f"v_cvt_pk_bf16_f32 v{o+2}, v{u}, v{u+1}\nv_cvt_pk_bf16_f32 v{o+3}, v{u+2}, v{u+3}")
            k.e(f"buffer_store_dwordx4 {v(o,4)}, v{VL16}, s[40:43], s66 offen offset:{(i*2+p)*1024} sc1")
    def addin(base):
        for i in range(2):
            for fb in range(4):
                o = ACC(fb, i); r = base + i*8 + fb*2
                k.e(f"""
                v_lshlrev_b32 v{VT+4}, 16, v{r}
                v_and_b32 v{VT+5}, 0xffff0000, v{r}
                v_lshlrev_b32 v{VT+6}, 16, v{r+1}
                v_and_b32 v{VT+7}, 0xffff0000, v{r+1}
                {pk("add", o, o, VT+4)}
                {pk("add", o+2, o+2, VT+6)}
                """)
                yield i, fb
    k.e("s_waitcnt vmcnt(4)")
    for _ in addin(VRES): pass
    srd(k, 36, 18, 19, S_*D_*2)
    Lp = k.label("poll")
    k.e(f"""
    v_and_b32 v{VT}, 15, v{VL}
    v_lshrrev_b32 v{VT+1}, 4, v{VL}
    v_and_b32 v{VT+2}, 1, v{VT+1}
    v_lshrrev_b32 v{VT+3}, 1, v{VT+1}
    v_lshlrev_b32 v{VT+2}, 5, v{VT+2}
    v_lshl_add_u32 v{VT+2}, v{VT+3}, 4, v{VT+2}
    v_lshl_add_u32 v{VT+2}, v{VT}, 11, v{VT+2}
    s_lshl_b32 s60, s48, 15
    s_lshl_b32 s61, s51, 7
    s_add_u32 s60, s60, s61
    s_add_u32 s61, s60, 32768
    v_mov_b32 v{VT}, 1
    v_mov_b32 v{VT+1}, 0
    s_waitcnt vmcnt(0)
    s_mov_b64 exec, 1
    buffer_store_dword v{VT}, v{VT+1}, s[24:27], s64 offen sc1
    s_mov_b32 s69, {SPIN}
    {Lp}:
    buffer_load_dword v{VT+3}, v{VT+1}, s[24:27], s65 offen sc1
    s_sub_u32 s69, s69, 1
    s_cbranch_scc1 {Lp}_x
    s_waitcnt vmcnt(0)
    v_readfirstlane_b32 s68, v{VT+3}
    s_nop 3
    s_cmp_eq_u32 s68, 0
    s_cbranch_scc1 {Lp}
    {Lp}_x:
    s_mov_b64 exec, -1
    """)
    for i in range(2):
        for p in range(2):
            k.e(f"buffer_load_dwordx4 {v(VRES+i*8+p*4,4)}, v{VL16}, s[40:43], s67 offen offset:{(i*2+p)*1024} sc1")
    k.e("s_waitcnt vmcnt(3)")
    nst = 0
    for i, fb in addin(VRES):
        o = ACC(fb, i); r = 64 + i*8 + fb*2
        k.e(f"v_cvt_pk_bf16_f32 v{r}, v{o}, v{o+1}\nv_cvt_pk_bf16_f32 v{r+1}, v{o+2}, v{o+3}")
        if fb % 2:
            p = fb // 2; r = 64 + i*8 + p*4
            k.e(f"s_nop 1\nv_permlane16_swap_b32 v{r}, v{r+2}\nv_permlane16_swap_b32 v{r+1}, v{r+3}")
            k.e(f"buffer_store_dwordx4 {v(r,4)}, v{VT+2}, s[36:39], s{60+i} offen offset:{p*64} {fl}")
            nst += 1
            if nst < 4: k.e(f"s_waitcnt vmcnt(3)")
    finish(k, 5)
    return k

WS_CSP1 = 22*MB; WS_MU = WS_CSP1 + 0x40000; WS_RS = WS_MU + 0x2000
def gen_k1f(NB=22, POLL=12, NSH=4, NBG=4, MG=3, abl=''):
    STG = 40960
    k = KB("k1_kernel", 256, 112, 4 * STG)
    ACC = lambda j, i: (j * 4 + i) * 4
    VDX = 96; VDW = 100; VRX = 106; VRW = 114
    VL = 122; VPF = 123; VT = 124; VPA = 132; VZ = 134; VSA = 135
    VRAW = 136; VU = 152; VSUM = 156; VRT = 160
    VSEL = 164; VCD = 180; VCD2 = 184
    VCQ = 192; VCV = 208; VMT = 216; VRSt = 220; VMR = 224; VRR = 228
    AX = lambda st, i, s_: (st % 2) * 32 + (i * 2 + s_) * 4
    AW = lambda j, s_: 64 + j * 8 + s_ * 4
    prologue(k)
    k.e(f"""
    v_mov_b32 v{VL}, v0
    s_and_b32 s46, s45, 7
    s_lshl_b32 s46, s46, 1
    s_and_b32 s47, s44, 1
    s_add_u32 s46, s46, s47          ; rb
    s_lshr_b32 s47, s44, 1
    s_lshl_b32 s47, s47, 2
    s_lshr_b32 s48, s45, 3
    s_add_u32 s47, s47, s48          ; cb
    s_lshr_b32 s48, s3, 1            ; wm
    s_and_b32 s49, s3, 1             ; wn
    v_lshrrev_b32 v{VT}, 3, v{VL}       ; l/8
    v_and_b32 v{VT+1}, 7, v{VL}         ; p
    v_lshrrev_b32 v{VT+2}, 1, v{VT}     ; (l/8)>>1  (0..3)
    v_xor_b32 v{VT+3}, v{VT+1}, v{VT+2}
    s_lshl_b32 s50, s46, 7
    s_lshl_b32 s51, s3, 5
    s_add_u32 s50, s50, s51
    s_lshl_b32 s50, s50, 11             ; (rb*128 + w*32)*2048
    v_lshlrev_b32 v{VT+4}, 11, v{VT}
    v_add_u32 v{VT+4}, s50, v{VT+4}
    v_lshl_add_u32 v{VDX}, v{VT+3}, 4, v{VT+4}
    v_xor_b32 v{VT+3}, 4, v{VT+3}
    v_lshl_add_u32 v{VDX+1}, v{VT+3}, 4, v{VT+4}
    v_add_u32 v{VDX+2}, {2*15360}, v{VDX}
    v_add_u32 v{VDX+3}, {3*15360}, v{VDX+1}
    v_add_u32 v{VDX+1}, {15360}, v{VDX+1}
    v_and_b32 v{VT+2}, 1, v{VT+2}
    v_lshlrev_b32 v{VT+2}, 1, v{VT+2}
    v_xor_b32 v{VT+3}, v{VT+1}, v{VT+2}
    v_mul_u32_u24 v{VT+4}, 6144, v{VT}
    s_mul_i32 s50, s3, {16*6144}
    s_lshl_b32 s51, s47, 7
    s_add_u32 s50, s50, s51
    v_add_u32 v{VT+4}, s50, v{VT+4}
    v_lshl_add_u32 v{VDW}, v{VT+3}, 4, v{VT+4}
    v_xor_b32 v{VT+3}, 4, v{VT+3}
    v_lshl_add_u32 v{VDW+1}, v{VT+3}, 4, v{VT+4}
    v_add_u32 v{VDW+1}, {8*6144 - 1024}, v{VDW+1}
    """)
    for sg in range(1, 3):
        k.e(f"v_add_u32 v{VDW+2*sg}, {2048*sg}, v{VDW}\nv_add_u32 v{VDW+2*sg+1}, {2048*sg}, v{VDW+1}")
    k.e(f"""
    s_lshl_b32 s53, s3, 12
    s_lshl_b32 s54, s3, 11
    s_add_u32 s54, s54, 16384
    s_mov_b32 s59, {OOB}
    s_mov_b32 s63, s46
    s_mul_i32 s56, s63, {64*6144}
    s_lshl_b32 s57, s63, 7
    v_lshlrev_b32 v{VSA}, 4, v{VL}
    s_lshl_b32 s64, s46, 4
    s_add_u32 s64, s64, s47
    s_lshl_b32 s64, s64, 2
    s_add_u32 s64, s64, s3
    s_lshl_b32 s65, s64, 12
    s_lshl_b32 s66, s64, 8
    s_lshl_b32 s67, s47, 1
    s_add_u32 s67, s67, s49          ; head
    """)
    if OPT.codepf: code_pf_addr(k, "k1_kernel", "L_k5_kernel_end", VPA, VL, 3)
    k.e("s_waitcnt lgkmcnt(0)")
    srd(k, 24, 6, 7, D_*3*D_*2)
    srd(k, 28, 4, 5, S_*D_*2)
    def vmem_ops(n):
        slot = n % 4; ops = []
        for q in range(4):
            o = [f"buffer_load_dwordx4 v{VDX+q}, s[28:31], s57 offen offset:{q*1024} lds @s{n}"]
            if q == 0: o = [f"s_add_u32 m0, s53, {slot*STG}"] + o
            ops.append(o)
        for sg in range(3):
            for q in range(2):
                o = [f"buffer_load_dwordx4 v{VDW+2*sg+q}, s[24:27], s56 offen offset:{q*1024} lds @s{n}"]
                if q == 0: o = [f"s_add_u32 m0, s54, {slot*STG + sg*8192}"] + o
                ops.append(o)
        return ops
    adv = ["s_add_u32 s63, s63, 1", "s_and_b32 s63, s63, 15", f"s_mul_i32 s56, s63, {64*6144}", "s_lshl_b32 s57, s63, 7"]
    P = []
    if OPT.codepf: P.append(code_pf(VPF, VPA))
    for o in vmem_ops(0): P += with_nop(o)
    for q in range(4): P.append(f"buffer_load_dwordx4 {v(VRAW+4*q,4)}, v{VSA}, s[28:31], s65 offen offset:{q*1024} @raw")
    P += adv
    setup = lines(f"""
    v_and_b32 v{VT}, 15, v{VL}
    v_lshrrev_b32 v{VT+1}, 4, v{VL}
    v_lshrrev_b32 v{VT+2}, 1, v{VT}
    v_xor_b32 v{VT+2}, v{VT+1}, v{VT+2}
    s_lshl_b32 s50, s48, 13
    v_lshlrev_b32 v{VT+3}, 7, v{VT}
    v_add_u32 v{VT+3}, s50, v{VT+3}
    v_lshl_add_u32 v{VRX}, v{VT+2}, 4, v{VT+3}
    v_xor_b32 v{VRX+1}, 64, v{VRX}
    v_lshrrev_b32 v{VT+2}, 2, v{VT}
    v_lshl_add_u32 v{VT+3}, v{VT+1}, 3, v{VT+2}
    v_lshrrev_b32 v{VT+2}, 1, v{VT+2}
    v_and_b32 v{VT+4}, 1, v{VT+1}
    v_lshl_add_u32 v{VT+2}, v{VT+4}, 1, v{VT+2}
    s_lshl_b32 s50, s49, 1
    v_xor_b32 v{VT+2}, s50, v{VT+2}
    v_lshlrev_b32 v{VT+2}, 5, v{VT+2}
    v_lshl_add_u32 v{VT+2}, v{VT+3}, 7, v{VT+2}
    v_and_b32 v{VT+4}, 3, v{VL}
    v_lshl_add_u32 v{VT+2}, v{VT+4}, 3, v{VT+2}
    v_add_u32 v{VRW}, 16384, v{VT+2}
    v_xor_b32 v{VRW+1}, 32, v{VRW}
    v_mov_b32 v{VT+5}, 0x3f803f80
    """)
    for sl in range(1, 4):
        for q in range(2):
            setup += [f"v_add_u32 v{VRX+2*sl+q}, {sl*STG}, v{VRX+q}", f"v_add_u32 v{VRW+2*sl+q}, {sl*STG}, v{VRW+q}"]
    for j in range(4):
        setup += [f"v_cmp_eq_u32 vcc, {j}, v{VT}", "s_nop 1", f"v_cndmask_b32 v{VSEL+4*j}, 0, v{VT+5}, vcc"]
        setup += [f"v_mov_b32 v{VSEL+4*j+r}, v{VSEL+4*j}" for r in (1, 2, 3)]
    kk = KB("t", 0, 0, 0)
    srd(kk, 36, 22, 23, ZERO_BYTES, WS_ST); srd(kk, 40, 22, 23, 0x44000, WS_CSP1); srd(kk, 32, 20, 21, 256)
    P += [x.strip() for x in kk.lines]
    P += [f"v_mov_b32 v{VZ}, 0", f"v_lshlrev_b32 v{VT+6}, 2, v{VL}", f"buffer_store_dword v{VZ}, v{VT+6}, s[36:39], s66 offen sc1 @pub"]
    P += setup
    for o in vmem_ops(1): P += with_nop(o)
    P += adv
    def wreads(slot, j):
        return [f"ds_read_b64_tr_b16 {a(AW(j,s_)+2*rd,2)}, v{VRW+2*slot+j%2} offset:{(j//2)*8192 + (32*s_+4*rd)*128}" for s_ in range(2) for rd in range(2)]
    def xreads(slot):
        return [f"ds_read_b128 {a(AX(slot,i,s_),4)}, v{VRX+2*slot+s_} offset:{i*2048}" for i in range(4) for s_ in range(2)]
    def allreads(slot):
        xr = xreads(slot)
        return xr[:2] + wreads(slot, 0) + xr[2:] + sum([wreads(slot, j) for j in range(1, 6)], [])
    rpos = [NB + q + q // 2 for q in range(32)]
    free = [p for p in range(NB, NB + 48) if p not in rpos]
    vpos = [free[(q * 15) // 10] for q in range(10)]
    NHR = sum(p < 48 for p in rpos); NH = sum(p < 48 for p in vpos)
    P += ["WAITVM s0", "s_barrier", "STAMP1"]
    P += allreads(0)[:NHR]
    for o in vmem_ops(2)[:NH]: P += with_nop(o)
    st1 = ["WAITVM raw"]
    for r in range(2):
        for q in range(8):
            x = VRAW + 8*r + q; u = VU + 2*(q % 2)
            st1 += [f"v_lshlrev_b32 v{u}, 16, v{x}", f"v_and_b32 v{u+1}, 0xffff0000, v{x}"]
            if q == 0:
                st1 += [f"v_add_f32 v{VSUM+2*r}, v{u}, v{u+1}", f"v_mul_f32 v{VSUM+2*r+1}, v{u}, v{u}", f"v_fmac_f32 v{VSUM+2*r+1}, v{u+1}, v{u+1}"]
            else:
                st1 += [f"v_add_f32 v{VSUM+2*r}, v{VSUM+2*r}, v{u}", f"v_fmac_f32 v{VSUM+2*r+1}, v{u}, v{u}",
                        f"v_add_f32 v{VSUM+2*r}, v{VSUM+2*r}, v{u+1}", f"v_fmac_f32 v{VSUM+2*r+1}, v{u+1}, v{u+1}"]
    kk = KB("t", 0, 0, 0); allreduce64(kk, [VSUM, VSUM+1, VSUM+2, VSUM+3], VRT); st1 += [x.strip() for x in kk.lines]
    for r in range(2):
        b = VSUM + 2*r
        st1 += lines(f"""
        v_mul_f32 v{b}, {fbits(-1.0/D_)}, v{b}
        v_mul_f32 v{b+1}, {fbits(1.0/D_)}, v{b+1}
        v_fma_f32 v{b+1}, -v{b}, v{b}, v{b+1}
        v_max_f32 v{b+1}, 0, v{b+1}
        v_add_f32 v{b+1}, {fbits(1e-5)}, v{b+1}
        v_rsq_f32 v{b+1}, v{b+1}
        """)
    st1 += lines(f"""
    v_and_b32 v{VRT+2}, 1, v{VL}
    v_cmp_eq_u32 vcc, 0, v{VRT+2}
    v_lshrrev_b32 v{VRT+3}, 1, v{VL}
    s_lshr_b32 s68, s64, 5
    v_cndmask_b32 v{VRT}, v{VSUM+2}, v{VSUM}, vcc
    v_cndmask_b32 v{VRT+1}, v{VSUM+3}, v{VSUM+1}, vcc
    v_cmp_eq_u32 vcc, 0, v{VRT+3}
    v_lshlrev_b32 v{VRT+3}, 13, v{VRT+3}
    v_lshl_add_u32 v{VRT+2}, v{VRT+2}, 4, v{VRT+3}
    v_cndmask_b32 v{VRT}, v{VRT+1}, v{VRT}, vcc
    s_lshl_b32 s68, s68, 8
    s_and_b32 s75, s64, 7
    s_lshl_b32 s75, s75, 5
    s_add_u32 s68, s68, s75
    s_bfe_u32 s75, s64, 0x20003
    s_lshl_b32 s75, s75, 2
    s_add_u32 s68, s68, s75
    s_add_u32 s68, s68, {WS_MU - WS_CSP1}
    buffer_store_dword v{VRT}, v{VRT+2}, s[40:43], s68 offen sc1 @pub
    """)
    cst = lines(f"""
    v_lshlrev_b32 v{VT+6}, 10, v{VT}
    v_lshl_add_u32 v{VT+6}, v{VT+1}, 8, v{VT+6}
    v_cmp_gt_u32 vcc, 4, v{VT}
    v_mov_b32 v{VT+7}, {OOB}
    s_mul_i32 s69, s67, 6144
    v_cndmask_b32 v{VT+6}, v{VT+7}, v{VT+6}, vcc
    s_lshl_b32 s70, s48, 29
    s_add_u32 s69, s69, s70
    s_lshl_b32 s70, s46, 4
    s_add_u32 s70, s70, s69
    buffer_store_dwordx4 {v(VCD,4)}, v{VT+6}, s[40:43], s70 offen sc1 @pub
    v_lshlrev_b32 v{VT+7}, 4, v{VT}
    v_lshl_add_u32 v{VT+7}, v{VT+1}, 27, v{VT+7}
    s_lshr_b32 s70, s46, 2
    s_lshl_b32 s70, s70, 8
    s_add_u32 s69, s69, s70
    s_bfe_u32 s70, s46, 0x10001
    s_lshl_b32 s70, s70, 10
    s_add_u32 s69, s69, s70
    s_and_b32 s70, s46, 1
    s_lshl_b32 s70, s70, 3
    s_add_u32 s69, s69, s70
    s_add_u32 s69, s69, 4096
    buffer_store_dwordx2 {v(VCD2,2)}, v{VT+7}, s[40:43], s69 offen sc1 @pub
    """)
    sig = lines(f"""
    v_mov_b32 v{VT+6}, 1
    v_lshlrev_b32 v{VT+7}, 8, v{VL}
    s_lshl_b32 s70, s3, 8
    s_and_b32 s71, s45, {NSH-1}
    s_mul_i32 s71, s71, {256//NSH}
    s_add_u32 s70, s70, s71
    buffer_atomic_add v{VT+6}, v{VT+7}, s[32:35], s70 offen sc1
    """)
    Lsp = k.label("spin"); Lok = k.label("ok")
    pol = lines(f"""
    v_mov_b32 v{VT+5}, {256//NSH}
    v_and_b32 v{VT+7}, {NSH-1}, v{VL}
    v_mul_u32_u24 v{VT+7}, {256//NSH}, v{VT+7}
    buffer_load_dword v{VT+6}, v{VT+7}, s[32:35], 0 offen sc1 @poll
    """)
    chk = ["WAITVM poll", f"v_cmp_ne_u32 vcc, v{VT+5}, v{VT+6}", "s_nop 4", f"s_cbranch_vccnz {Lsp}\n{Lok}:"]
    A = VRAW
    ld = lines(f"""
    v_lshlrev_b32 v{A+2}, 4, v{VT}
    v_and_b32 v{A+3}, 3, v{VT}
    v_lshl_add_u32 v{A+3}, v{VT+1}, 2, v{A+3}
    v_lshlrev_b32 v{A+3}, 4, v{A+3}
    s_mul_i32 s69, s67, 6144
    s_add_u32 s72, s69, 4096
    s_lshl_b32 s70, s46, 9
    s_lshl_b32 s71, s48, 8
    s_add_u32 s70, s70, s71
    s_add_u32 s70, s70, {WS_MU - WS_CSP1}
    s_add_u32 s71, s70, {WS_RS - WS_MU}
    """)
    nld0 = len(ld)
    for j in range(4): ld.append(f"buffer_load_dwordx4 {v(VCQ+4*j,4)}, v{VSA}, s[40:43], s69 offen offset:{j*1024} sc1 @cs")
    for j in range(2): ld.append(f"buffer_load_dwordx4 {v(VCV+4*j,4)}, v{VSA}, s[40:43], s72 offen offset:{j*1024} sc1 @cs")
    ld.append(f"buffer_load_dwordx4 {v(VMT,4)}, v{A+2}, s[40:43], s70 offen sc1 @st")
    ld.append(f"buffer_load_dwordx4 {v(VRSt,4)}, v{A+2}, s[40:43], s71 offen sc1 @st")
    ld.append(f"buffer_load_dwordx4 {v(VMR,4)}, v{A+3}, s[40:43], s70 offen sc1 @st")
    ld.append(f"buffer_load_dwordx4 {v(VRR,4)}, v{A+3}, s[40:43], s71 offen sc1 @st")
    red = ["WAITVM cs"]
    for j in range(2):
        b = VCV + j
        red += [f"v_add_f32 v{b}, v{b}, v{b+2}", f"v_add_f32 v{b+4}, v{b+4}, v{b+6}", f"v_add_f32 v{b}, v{b}, v{b+4}"]
    for sw in ("v_permlane16_swap_b32", "v_permlane32_swap_b32"):
        red += [f"v_mov_b32 v{VCV+2}, v{VCV}", f"v_mov_b32 v{VCV+3}, v{VCV+1}", "s_nop 1", f"{sw} v{VCV}, v{VCV+2}", f"{sw} v{VCV+1}, v{VCV+3}",
                f"v_add_f32 v{VCV}, v{VCV}, v{VCV+2}", f"v_add_f32 v{VCV+1}, v{VCV+1}, v{VCV+3}"]
    for sh in (8, 4, 2, 1):
        for r in range(16): red.append(f"v_add_f32_dpp v{VCQ+r}, v{VCQ+r}, v{VCQ+r} row_ror:{sh} row_mask:0xf bank_mask:0xf")
    epi_setup = lines(f"""
    s_lshl_b32 s50, s67, 6
    s_lshl_b32 s51, s46, 2
    s_add_u32 s50, s50, s51
    s_lshl_b32 s51, s48, 1
    s_add_u32 s50, s50, s51
    s_lshl_b32 s60, s50, 11
    s_lshl_b32 s61, s50, 12
    s_add_u32 s62, s61, 4096
    v_lshlrev_b32 v{A+4}, 9, v{VT+1}
    v_lshl_add_u32 v{A+5}, v{VT}, 4, v{A+4}
    v_lshrrev_b32 v{A+6}, 3, v{VT}
    v_and_b32 v{A+7}, 7, v{VT}
    v_lshl_add_u32 v{A+6}, v{A+6}, 4, v{A+7}
    v_lshl_add_u32 v{A+6}, v{A+6}, 4, v{A+4}
    """)
    n1 = len(st1)
    bg = {}
    bg[1] = cst + st1[:n1//8]
    for q in range(NBG): bg[2+q] = st1[n1//8 + q*(n1 - n1//8)//NBG : n1//8 + (q+1)*(n1 - n1//8)//NBG]
    bg[NBG + 4] = sig
    bg[POLL - 2] = pol[:3] + ld[:nld0] + epi_setup; bg[POLL - 1] = pol[3:]; bg[POLL] = chk + ld[nld0:nld0+6]; bg[POLL + 1] = ld[nld0+6:]
    bg[14] = bg.get(14, []) + red[:len(red)//2]; bg[15] = red[len(red)//2:]
    if 'nobg' in abl:
        for n in list(bg): bg[n] = [x for x in bg[n] if not x.startswith(('v_add_f32', 'v_fmac', 'v_lshlrev_b32 v15', 'v_and_b32 v15', 's_nop', 'v_perm'))]
    for n in range(16):
        st = n % 4
        main = []; side = {}
        vm_a = vmem_ops(n + 2)[NH:] if n + 2 < 16 else []
        vm_b = vmem_ops(n + 3)[:NH] if n + 3 < 16 else []
        for j in range(6):
            for i in range(4):
                for s_ in range(2):
                    w_, x_ = a(AW(j,s_),4), a(AX(st,i,s_),4)
                    if j >= 4: w_, x_ = x_, w_
                    c_ = v(ACC(j,i),4) if (n or s_) else "0"
                    main.append(f"v_mfma_f32_16x16x32_bf16 {v(ACC(j,i),4)}, {w_}, {x_}, {c_}")
            if n == 0:
                for s_ in range(2):
                    d_ = v(VCD if j < 4 else VCD2, 4)
                    c_ = d_ if (j % 4 or s_) else "0"
                    o1, o2 = a(AW(j,s_),4), v(VSEL+4*(j%4),4)
                    if j >= 4: o1, o2 = o2, o1
                    side.setdefault(8*j + 7, []).append(f"v_mfma_f32_16x16x32_bf16 {d_}, {o1}, {o2}, {c_}")
        def place(o, pos):
            if len(o) > 1: side.setdefault(pos - 1, []).append(o[0])
            side.setdefault(pos, []).append(o[-1])
        nb = NB
        for q, o in enumerate(vm_a): place(o, vpos[NH + q] - 48)
        if vm_b:
            assert vpos[9] - 48 < nb - 4
            for q, x in enumerate(adv): side.setdefault(nb - 5 + q, []).append(x)
        if n < 15:
            side.setdefault(nb - 1, []).extend([f"WAITVM s{n+1}" + (" pub" if n == NBG + 3 else ""), "s_barrier"])
        if 'fine' in abl:
            side.setdefault(nb - 1, []).append("s_memtime s[94:95]")
            side.setdefault(46, []).append(f"v_writelane_b32 v{VZ}, s94, {n}")
        for q, o in enumerate(vm_b): place(o, vpos[q])
        for q, x in enumerate(allreads(st)[NHR:]): side.setdefault(rpos[NHR + q] - 48, []).insert(0, x)
        if n < 15:
            for q, x in enumerate(allreads((st + 1) % 4)[:NHR]): side.setdefault(rpos[q], []).insert(0, x)
        b_ = bg.get(n, [])
        for q, x in enumerate(b_): side.setdefault(8 + (q * 39) // len(b_) if n == 1 else (q * 47) // len(b_), []).append(x)
        P += flatten(main, side)
    P.append("STAMP2")
    kk = KB("t", 0, 0, 0); srd(kk, 32, 22, 23, S_*D_*2, WS_Q); srd(kk, 36, 22, 23, S_*D_*4, WS_KV); P += [x.strip() for x in kk.lines]
    P.append("WAITVM st")
    fl = OPT.st
    def cvt4(o, u):
        return [f"v_cvt_pk_bf16_f32 v{o}, v{o}, v{o+1}", f"v_cvt_pk_bf16_f32 v{o+1}, v{o+2}, v{o+3}",
                f"v_cvt_pk_bf16_f32 v{o+2}, v{u}, v{u+1}", f"v_cvt_pk_bf16_f32 v{o+3}, v{u+2}, v{u+3}"]
    def normqk(j, i):
        o = ACC(j, i)
        return [pk("fma", o+r, VCQ+4*j+r, ('b', VMT+i), o+r) for r in (0, 2)] + [pk("mul", o+r, o+r, ('b', VRSt+i)) for r in (0, 2)]
    def normv(j, i):
        o = ACC(j, i)
        q_ = lambda r: f"quad_perm:[{r},{r},{r},{r}] row_mask:0xf bank_mask:0xf"
        return [f"v_fmac_f32_dpp v{o+r}, v{VMR+i}, v{VCV+j-4} {q_(r)}" for r in range(4)] + [f"v_mul_f32_dpp v{o+r}, v{VRR+i}, v{o+r} {q_(r)}" for r in range(4)]
    for i in range(4):
        o = ACC(2, i); P += normqk(2, i) + normqk(3, i) + cvt4(o, ACC(3, i))
        P.append(f"buffer_store_dwordx4 {v(o,4)}, v{A+6}, s[36:39], s{61 if i < 2 else 62} offen offset:{(i%2)*128} {fl}")
    for p in range(2):
        for fb in range(2):
            o = ACC(4 + fb, 2*p); P += normv(4+fb, 2*p) + normv(4+fb, 2*p+1) + cvt4(o, ACC(4 + fb, 2*p + 1))
            P.append(f"buffer_store_dwordx4 {v(o,4)}, v{A+5}, s[36:39], s{61 if p == 0 else 62} offen offset:{2048 + fb*256} {fl}")
    for i in range(4): P.append(f"v_mul_f32 v{VRSt+i}, {fbits(LOG2E / 32 ** 0.5)}, v{VRSt+i}")
    for i in range(4):
        o = ACC(0, i); P += normqk(0, i) + normqk(1, i) + cvt4(o, ACC(1, i))
        P.append(f"buffer_store_dwordx4 {v(o,4)}, v{A+5}, s[32:35], s60 offen offset:{(i//2)*2048 + (i%2)*256} {fl}")
    if 'nomfma' in abl: P = [x if 'mfma' not in x else 's_nop 0' for x in P]
    P = resolve_vm(P)
    P = salu_first(auto_lgkm([x if not x.startswith("STAMP") else "s_" + x for x in P], cyclic=False, merge=MG, hoist=True))
    if OPT.rep: print("k1", slot_report(P[:P.index("s_STAMP2")]), file=sys.stderr)
    for x in P:
        if x.startswith("s_STAMP"): stamp(k, int(x[-1]))
        else: k.e(x)
    if 'fine' in abl:
        srd(k, 96, 22, 23, MB, WS_STAMP + 0x80000)
        k.e(f"v_lshlrev_b32 v{VT}, 2, v{VL}\ns_lshl_b32 s100, s2, 2\ns_add_u32 s100, s100, s3\ns_lshl_b32 s100, s100, 8\nbuffer_store_dword v{VZ}, v{VT}, s[96:99], s100 offen")
    Lfin = k.label("fin")
    k.e(f"""
    s_branch {Lfin}
    {Lsp}:
    s_mov_b32 s94, {SPIN}
    {Lsp}_l:
    s_sleep 2
    s_sub_u32 s94, s94, 1
    s_cbranch_scc1 {Lok}
    buffer_load_dword v{VT+6}, v{VT+7}, s[32:35], 0 offen sc1
    s_waitcnt vmcnt(0)
    v_cmp_ne_u32 vcc, v{VT+5}, v{VT+6}
    s_nop 4
    s_cbranch_vccnz {Lsp}_l
    s_branch {Lok}
    {Lfin}:
    """)
    finish(k, 1)
    return k


WS_CNT = WS_ST + 0x38000
def fstamp(k, i):
    if OPT.diag and (OPT.only is None or i in OPT.only):
        k.e(f"s_memrealtime s[96:97]\ns_memtime s[98:99]\ns_waitcnt lgkmcnt(0)\nv_writelane_b32 v254, s96, {i}\nv_writelane_b32 v255, s98, {i}")
def ffinish(k, i):
    if OPT.diag:
        k.e("s_waitcnt vmcnt(0)")
        fstamp(k, i)
        srd(k, 96, 22, 23, MB, WS_STAMP + 0x80000)
        k.e("v_mbcnt_lo_u32_b32 v0, -1, 0\nv_mbcnt_hi_u32_b32 v0, -1, v0\nv_lshlrev_b32 v0, 3, v0\ns_lshl_b32 s100, s2, 2\ns_add_u32 s100, s100, s3\ns_lshl_b32 s100, s100, 9")
        k.e("buffer_store_dwordx2 v[254:255], v0, s[96:99], s100 offen")
    k.e(f"L_{k.name}_end:\ns_endpgm")


def lane_id(k, r): k.e(f"v_mbcnt_lo_u32_b32 v{r}, -1, 0\nv_mbcnt_hi_u32_b32 v{r}, -1, v{r}")
def signal(k, vone, vfa, off_s, tmp_s):
    k.e(f"s_lshl_b32 s{tmp_s}, s3, 20\ns_add_u32 s{tmp_s}, s{tmp_s}, s{off_s}\nbuffer_atomic_add v{vone}, v{vfa}, s[88:91], s{tmp_s} offen sc1")
def wait_multi(k, conds, vt):
    L2 = k.label("pdone"); L0 = k.label("poller")
    if OPT.warm and getattr(k, "page", False):
        k.e(f"s_cmp_eq_u32 s3, 0\ns_cbranch_scc1 {L0}\ns_branch {L2}\n{L0}:\ns_mov_b32 s50, {SPIN}")
    else: k.e(f"s_cmp_lg_u32 s3, 0\ns_cbranch_scc1 {L2}\ns_mov_b32 s50, {SPIN}")
    for vaddr, soff, target in conds:
        L1 = k.label("poll")
        k.e(f"""
        {L1}:
        buffer_load_dword v{vt}, v{vaddr}, s[88:91], {soff} offen sc1
        s_sub_u32 s50, s50, 1
        s_cbranch_scc1 {L2}
        s_waitcnt vmcnt(0)
        v_cmp_gt_u32 vcc, {target}, v{vt}
        s_nop 4
        s_cbranch_vccnz {L1}
        """)
    k.e(f"{L2}:\ns_waitcnt vmcnt(0)\ns_barrier")
C2 = 2048; C3 = 4096; C4 = 6144; C6 = 8192

def phase4(k, LAST, cold, D=3, MG=1, SP=2):
    STG = 28672
    ACC = lambda j, i: (j * 4 + i) * 4
    VD = 224; VPF = 231; VX = 232; VR = 236; VA = 238; VL = 246; VCPS = 247; VCPD = 248; VFA = 249; VPA = 250; VPL = 252; VPD = 253
    T = 40
    AX = lambda st, i, s_: st * 32 + (i * 2 + s_) * 4
    AW = lambda slot, s_: 128 + slot * 8 + s_ * 4
    ACPY = lambda u: 184 + 4 * u
    L = k.label("loop4"); Lep = k.label("epi4")
    lane_id(k, VL)
    tile_map(k, 2, 1, 46, 47)
    k.e(f"""
    s_and_b32 s50, s3, 1
    s_mul_i32 s50, s50, 448
    s_mul_i32 s51, s47, 224
    s_cmp_lt_u32 s3, 2
    s_cselect_b32 s24, s12, s14
    s_cselect_b32 s25, s13, s15
    s_mov_b32 s26, {D_*F_*2}
    s_mov_b32 s27, 0x20000
    s_mul_i32 s53, s3, 7168
    s_mov_b32 s56, 0
    """)
    def parts(slot):
        d = []
        for i in range(7):
            o = [f"buffer_load_dwordx4 v{VD+i}, s[24:27], s56 offen offset:{(i%4)*1024} lds"]
            if i % 4 == 0: o = [f"s_add_u32 m0, s53, {slot*STG + i*1024}"] + o
            d.append(o)
        xs = [[f"buffer_load_dwordx4 {a(AX(slot, i, s_), 4)}, v{VX+i}, s[28:31], s57 offen offset:{s_*1024} sc1"] for i in range(4) for s_ in range(2)]
        return d, xs
    d0, x0 = parts(0); d1, x1 = parts(1)
    for i in range(7):
        k.e(f"v_add_u32 v{T}, s50, v{VL}")
        if i: k.e(f"v_add_u32 v{T}, {64*i}, v{T}")
        udiv_const(k, T+1, T, 14)
        k.e(f"""
        v_mul_u32_u24 v{T+1}, {7168 - 224}, v{T+1}
        v_lshl_add_u32 v{T+1}, v{T}, 4, v{T+1}
        v_add_u32 v{VD+i}, s51, v{T+1}
        """)
        if i % 4: k.e(f"v_subrev_u32 v{VD+i}, {(i%4)*1024}, v{VD+i}")
        k.e("\n".join(with_nop(d0[i])))
    k.e(f"""
    v_lshlrev_b32 v{VFA}, 20, v{VL}
    v_mov_b32 v{T}, 1
    s_lshl_b32 s60, s92, 7
    s_add_u32 s60, s60, {C3}
    s_waitcnt vmcnt(7)
    s_barrier
    """)
    signal(k, T, VFA, 60, 61)
    fstamp(k, 11)
    k.e(f"s_mov_b32 s56, {64*7168}")
    for o in d1: k.e("\n".join(with_nop(o)))
    k.e(f"""
    s_lshl_b32 s48, s46, 4
    s_lshl_b32 s49, s3, 2
    s_add_u32 s48, s48, s49
    s_lshl_b32 s49, s48, 15
    v_lshlrev_b32 v{T+2}, 4, v{VL}
    v_add_u32 v{VX}, s49, v{T+2}
    v_cmp_lt_u32 vcc, 27, v{VL}
    v_mov_b32 v0, {F_*4 - 28*16}
    s_mul_i32 s60, s47, 448
    v_cndmask_b32 v0, 0, v0, vcc
    v_add_u32 v0, v0, v{T+2}
    v_and_b32 v1, 15, v{VL}
    v_lshlrev_b32 v1, 3, v1
    s_lshl_b32 s61, s48, 7
    s_lshl_b32 s55, s3, 10
    s_add_u32 s55, s55, {4*STG}
    s_mov_b32 s57, 0
    s_mov_b32 s58, 2048
    v_lshrrev_b32 v4, 2, v{VL}
    v_mul_u32_u24 v4, 224, v4
    v_and_b32 v5, 3, v{VL}
    v_lshl_add_u32 v{VR}, v5, 3, v4
    v_add_u32 v{VR+1}, {2*STG}, v{VR}
    v_lshrrev_b32 v4, 4, v{VL}
    v_lshl_add_u32 v4, v4, 4, s55
    v_and_b32 v{VPL}, 7, v{VL}
    v_lshlrev_b32 v{VPL}, 7, v{VPL}
    s_lshl_b32 s62, s46, 8
    s_add_u32 s62, s62, {C3}
    v_and_b32 v{T+8}, 1, v{VL}
    v_lshlrev_b32 v{T+8}, 7, v{T+8}
    v_and_b32 v{T+9}, 15, v{VL}
    v_lshlrev_b32 v{T+9}, 7, v{T+9}
    s_mov_b32 s63, {C2}
    """)
    for i in range(1, 4): k.e(f"v_add_u32 v{VX+i}, {i*32768}, v{VX}")
    srd(k, 40, 22, 23, 2*F_*4, WS_CS); srd(k, 36, 22, 23, S_*8, WS_ST); srd(k, 28, 22, 23, S_*D_*2, WS_H)
    srd(k, 64, 16, 17, F_*D_*2); srd(k, 68, 22, 23, PLANE + F_*D_*2, WS_W2T)
    k.e(f"""
    s_lshl_b32 s72, s2, 2
    s_add_u32 s72, s72, s3
    v_lshrrev_b32 v{T+4}, 3, v{VL}
    v_and_b32 v{T+5}, 7, v{VL}
    v_lshrrev_b32 v{T+6}, 1, v{T+5}
    v_xor_b32 v{T+6}, v{T+6}, v{T+4}
    v_lshlrev_b32 v{T+6}, 5, v{T+6}
    v_and_b32 v{T+7}, 1, v{T+5}
    v_lshl_add_u32 v{T+6}, v{T+7}, 4, v{T+6}
    s_and_b32 s73, s72, 1
    s_lshl_b32 s73, s73, 7
    v_xor_b32 v{T+6}, s73, v{T+6}
    v_lshl_add_u32 v{VCPS}, v{T+4}, 11, v{T+6}
    v_lshlrev_b32 v{T+6}, 8, v{T+4}
    v_lshl_add_u32 v{T+6}, v{T+5}, 4, v{T+6}
    v_add_u32 v{VCPD}, s73, v{T+6}
    s_bfe_u32 s73, s72, 0x30001
    s_lshr_b32 s72, s72, 4
    s_mul_i32 s72, s72, 7
    s_lshl_b32 s74, s72, 14
    s_lshl_b32 s75, s73, 8
    s_add_u32 s74, s74, s75
    s_mul_i32 s73, s73, {F_*256}
    s_lshl_b32 s75, s72, 11
    s_add_u32 s75, s75, s73
    s_lshl_b32 s72, s44, 7
    s_lshl_b32 s73, s3, 20
    s_add_u32 s72, s72, s73
    s_add_u32 s72, s72, {C6}
    v_mov_b32 v{VPD}, 1
    """)
    reloc(k, VCPD, T+4)
    if OPT.codepf: code_pf_addr(k, Lep, LAST, VPA, VL, 3)
    k.e("s_mov_b32 m0, s55")
    wait_multi(k, [(T+9, "s63", 16), (T+8, "s62", 16)], T+3)
    fstamp(k, 12)
    k.e("buffer_load_dwordx4 v0, s[40:43], s60 offen sc1 lds")
    for i in range(4): k.e(f"buffer_load_dwordx2 {v(VA+2*i,2)}, v1, s[36:39], s61 offen offset:{i*128} sc1")
    for o in x0: k.e(o[0])
    k.e("s_mov_b32 s57, 2048")
    def reads(stage_slot, j):
        base = VR + (stage_slot // 2)
        off0 = (stage_slot % 2) * STG + (j // 7) * 14336 + (j % 7) * 32
        return [f"ds_read_b64_tr_b16 {a(AW(j % 7, s_) + 2*rd, 2)}, v{base} offset:{off0 + (32*s_ + 16*rd)*224}" for s_ in range(2) for rd in range(2)]
    heads = sum([reads(0, j) for j in range(D)], [])
    for x in heads: k.e(x)
    k.e("s_waitcnt vmcnt(8)")
    for j in range(14): k.e(f"ds_read_b128 {v(ACC(j,0),4)}, v4 offset:{j*64}")
    init = []
    for i in range(4):
        b = VA + 2 * i
        init += lines(f"""v_mul_f32 v{b}, {fbits(-1.0/D_)}, v{b}
        v_mul_f32 v{b+1}, {fbits(1.0/D_)}, v{b+1}
        v_fma_f32 v{b+1}, -v{b}, v{b}, v{b+1}
        v_max_f32 v{b+1}, 0, v{b+1}
        v_add_f32 v{b+1}, {fbits(1e-5)}, v{b+1}""")
    init.append("s_waitcnt lgkmcnt(0)")
    for j in range(14):
        for i in (3, 2, 1, 0):
            for r in (0, 2): init.append(pk("mul", ACC(j,i)+r, ACC(j,0)+r, ('b', VA+2*i)))
    for i in range(4): init.append(f"v_rsq_f32 v{VA+2*i}, v{VA+2*i+1}")
    for i in range(4): init.append(f"v_mul_f32 v{VA+2*i}, {fbits(-LOG2E)}, v{VA+2*i}")
    for x in sprinkle(init, x1[:4]): k.e(x)
    adv = ["s_add_u32 s56, s56, %d" % (64*7168), "s_add_u32 s58, s58, 2048", "s_cmp_lt_u32 s58, 32768", f"s_cselect_b32 s57, s58, s59"]
    body = []
    for st in range(4):
        main = []; side = {}
        dn, xn = parts((st + 2) % 4)
        cur = parts((st + 1) % 4)[1][4:]; nxt = dn[:4] + xn[:4]; post = dn[4:]
        for j in range(14):
            for i in range(4):
                for s_ in range(2):
                    main.append(f"v_mfma_f32_16x16x32_bf16 {v(ACC(j,i),4)}, {a(AW(j%7,s_),4)}, {a(AX(st,i,s_),4)}, {v(ACC(j,i),4)}")
        def place(o, pos):
            if len(o) > 1: side.setdefault(pos - 1, []).append(o[0])
            side.setdefault(pos, []).append(o[-1])
        nb = 8 * (14 - D)
        ops = cur + nxt
        pos = [(5 + q * (nb - 6) // len(ops)) | 1 for q in range(len(ops))]
        for q, o in enumerate(ops): place(o, pos[q])
        for q, x in enumerate(adv): side.setdefault(pos[len(cur) - 1] + 1 + q, []).append(x)
        assert pos[len(cur) - 1] + 4 < pos[len(cur)] - 1
        side.setdefault(nb - 1, []).extend(["s_waitcnt vmcnt(8)", "s_barrier"])
        for q, o in enumerate(post): place(o, nb + 5 + 8 * q)
        sr = 74 if st < 2 else 75
        for h in range(2):
            p_ = nb + 1 + 8 * h; u = 2 * (st % 2) + h
            if u == 3: side.setdefault(p_ - 2, []).append(f"s_cmp_lg_u32 s62, 3\ns_cselect_b32 s{sr}, s{sr}, s59")
            if st < 2: x = f"buffer_load_dwordx4 {a(ACPY(u), 4)}, v{VCPS}, s[64:67], s74 offen"
            else: x = f"buffer_store_dwordx4 {a(ACPY(u), 4)}, v{VCPD}, s[68:71], s75 offen sc1"
            side.setdefault(p_, []).append(x)
            side.setdefault(p_ + 1, []).append(f"s_add_u32 s{sr}, s{sr}, {16384 if st < 2 else 2048}")
        if st == 1:
            side.setdefault(nb + 15, []).append("s_cmp_eq_u32 s62, 2\ns_cselect_b32 s73, s72, s59")
            side.setdefault(nb + 17, []).append(f"buffer_atomic_add v{VPD}, v{VFA}, s[88:91], s73 offen sc1")
        if st == 2:
            side.setdefault(nb + 15, []).append(f"s_cmp_eq_u32 s62, 1\ns_cselect_b32 s73, {C6}, s59")
            side.setdefault(nb + 17, []).append(f"buffer_load_dword v{VPF}, v{VPL}, s[88:91], s73 offen sc1")
        if st == 0 and OPT.codepf: side.setdefault(nb + 17, []).append(code_pf(VPF, VPA))
        for j in range(14):
            jj = j + D
            rd = reads(st if jj < 14 else (st + 1) % 4, jj % 14)
            for q, x in enumerate(rd): side.setdefault(8 * j + q * SP, []).append(x)
        if st == 3:
            side.setdefault(109, []).append("s_sub_u32 s62, s62, 1")
            side.setdefault(110, []).append("s_cmp_lg_u32 s62, 0")
        body += flatten(main, side)
    body = salu_first(auto_lgkm(body, heads, merge=MG, hoist=True))
    k.e("s_mov_b32 s62, 4\ns_waitcnt vmcnt(4)")
    fstamp(k, 13)
    k.e(f".p2align 6\n{L}:")
    for x in body: k.e(x)
    k.e(f"s_cbranch_scc1 {L}\n{Lep}:")
    fstamp(k, 14)
    Lsp = k.label("rtspin")
    srd(k, 32, 22, 23, PLANE + S_*F_*2, WS_G)
    VT = VD
    k.e(f"""
    v_cmp_gt_u32 vcc, 32, v{VPF}
    v_and_b32 v{VT}, 31, v{VL}
    v_lshlrev_b32 v{VT}, 4, v{VT}
    """)
    reloc(k, VT, VT+1)
    k.e(f"""
    v_lshrrev_b32 v{VT+1}, 5, v{VL}
    v_mul_u32_u24 v{VT+1}, {224*512}, v{VT+1}
    v_add_u32 v{VT}, v{VT}, v{VT+1}
    s_cbranch_vccnz {Lsp}
    {Lsp}_r:
    s_mul_i32 s60, s48, {224*512}
    s_mul_i32 s61, s47, {7*512}
    s_add_u32 s60, s60, s61
    s_add_u32 s61, s60, {2*224*512}
    s_waitcnt vmcnt(0) lgkmcnt(0)
    s_barrier
    """)
    cold += lines(f"""
    {Lsp}:
    s_mov_b32 s50, {SPIN}
    s_mov_b32 s73, {C6}
    {Lsp}_l:
    s_sub_u32 s50, s50, 1
    s_cbranch_scc1 {Lsp}_r
    buffer_load_dword v{VPF}, v{VPL}, s[88:91], s73 offen sc1
    s_waitcnt vmcnt(0)
    v_cmp_gt_u32 vcc, 32, v{VPF}
    s_nop 4
    s_cbranch_vccnz {Lsp}_l
    s_branch {Lsp}_r
    """)
    for j in range(7):
        for p in range(2):
            ii = (2*p, 2*p+1)
            G = lambda i: ACC(j, i); Uu = lambda i: ACC(j + 7, i)
            for i in ii:
                for r in (0, 2): k.e(pk("mul", Uu(i)+r, Uu(i)+r, G(i)+r))
                for r in (0, 2): k.e(pk("mul", G(i)+r, G(i)+r, ('b', VA+2*i)))
            for i in ii:
                for r in range(4): k.e(f"v_exp_f32 v{G(i)+r}, v{G(i)+r}")
            for i in ii:
                for r in (0, 2): k.e(pk("fma", G(i)+r, G(i)+r, ('b', VA+2*i+1), ('b', VA+2*i+1)))
            for i in ii:
                for r in range(4): k.e(f"v_rcp_f32 v{G(i)+r}, v{G(i)+r}")
            for i in ii:
                for r in (0, 2): k.e(pk("mul", Uu(i)+r, Uu(i)+r, G(i)+r))
            o = G(2*p)
            k.e(f"v_cvt_pk_bf16_f32 v{o}, v{Uu(2*p)}, v{Uu(2*p)+1}\nv_cvt_pk_bf16_f32 v{o+2}, v{Uu(2*p+1)}, v{Uu(2*p+1)+1}")
            k.e(f"v_cvt_pk_bf16_f32 v{o+1}, v{Uu(2*p)+2}, v{Uu(2*p)+3}\nv_cvt_pk_bf16_f32 v{o+3}, v{Uu(2*p+1)+2}, v{Uu(2*p+1)+3}")
            k.e(f"v_permlane32_swap_b32 v{o}, v{o+2}\ns_nop 0\nv_permlane32_swap_b32 v{o+1}, v{o+3}")
            k.e(f"buffer_store_dwordx4 {v(o,4)}, v{VT}, s[32:35], s{60+p} offen offset:{j*512} sc1")
    k.e(f"s_lshl_b32 s94, s46, 1\ns_lshr_b32 s51, s47, 4\ns_add_u32 s94, s94, s51\ns_lshl_b32 s94, s94, 7\ns_add_u32 s94, s94, {C4}")

def phase5(k, LAST, cold, D=3, DIST=3, U=6, MG=1):
    NS = 28; STG = 16384; NH = 3
    NT = DIST + 1
    assert (NS - NT) % U == 0 and U >= DIST + 2
    ACC = lambda j, i: (j * 2 + i) * 4
    VW = lambda g, s_: 64 + (g % 4) * 8 + s_ * 4
    VD = 128; VX = 130; VR = 132; VL = 246; VFA = 249; VONE = 253; VL16 = 148; VT = 150; VRES = 160
    AX = lambda st, i, s_: st * 16 + (i * 2 + s_) * 4
    k.e(f"""
    s_and_b32 s52, s44, 1            ; kh
    s_bfe_u32 s46, s44, 0x10001
    s_lshl_b32 s46, s46, 3
    s_and_b32 s47, s45, 7
    s_add_u32 s46, s46, s47          ; tm
    s_lshr_b32 s47, s44, 2
    s_lshl_b32 s47, s47, 2
    s_lshr_b32 s48, s45, 3
    s_add_u32 s47, s47, s48          ; cn
    s_xor_b32 s63, s2, 1             ; partner
    v_lshlrev_b32 v{VL16}, 4, v{VL}
    v_mov_b32 v{VT}, v{VL16}
    s_lshl_b32 s53, s3, 12
    s_mul_i32 s50, s47, {F_*256}
    s_add_u32 s50, s50, s53
    s_mul_i32 s56, s52, {1792*256}
    s_mul_i32 s57, s52, {56*1024}
    """)
    reloc(k, VT, VT+1)
    k.e(f"v_add_u32 v{VD}, s50, v{VT}")
    srd(k, 24, 22, 23, PLANE + F_*D_*2, WS_W2T)
    def wops(slot):
        ops = []
        for q in range(4):
            o = [f"buffer_load_dwordx4 v{VD}, s[24:27], s56 offen offset:{q*1024} sc1 lds"]
            if q == 0: o = [f"s_add_u32 m0, s53, {slot*STG}"] + o
            ops.append(o)
        return ops
    def xops(slot): return [[f"buffer_load_dwordx4 {a(AX(slot,q//2,q%2),4)}, v{VX+q//2}, s[32:35], s57 offen offset:{(q%2)*1024} sc1"] for q in range(4)]
    def vmem_ops(slot): return sum([[w_, x_] for w_, x_ in zip(wops(slot), xops(slot))], [])
    for st in range(2):
        for o in wops(st): k.e("\n".join(with_nop(o)))
        k.e("s_add_u32 s56, s56, 16384")
    k.e(f"""
    s_lshl_b32 s48, s46, 3
    s_lshl_b32 s49, s3, 1
    s_add_u32 s48, s48, s49
    s_mul_i32 s49, s48, {F_*32}
    s_lshl_b32 s51, s47, 1
    s_add_u32 s93, s51, s52
    v_add_u32 v{VX}, s49, v{VT}
    v_add_u32 v{VX+1}, {F_*32}, v{VX}
    v_and_b32 v{VT}, 31, v{VL}
    v_lshrrev_b32 v{VT}, 2, v{VT}
    v_lshrrev_b32 v{VT+1}, 5, v{VL}
    v_lshl_add_u32 v{VT+1}, v{VT+1}, 4, v{VT}
    s_lshl_b32 s54, s52, 2
    v_xor_b32 v{VT}, s54, v{VT}
    v_lshlrev_b32 v{VT}, 5, v{VT}
    v_lshl_add_u32 v{VT}, v{VT+1}, 8, v{VT}
    v_and_b32 v{VT+1}, 3, v{VL}
    v_lshl_add_u32 v{VR}, v{VT+1}, 3, v{VT}
    """)
    for fb in range(1, 8): k.e(f"v_xor_b32 v{VR+fb}, {fb*32}, v{VR}")
    for fb in range(8): k.e(f"v_add_u32 v{VR+8+fb}, 0x10000, v{VR+fb}")
    for r in range(64): k.e(f"v_mov_b32 v{r}, 0")
    k.e("s_waitcnt vmcnt(8)\ns_barrier")
    signal(k, VONE, VFA, 94, 61)
    fstamp(k, 15)
    for st in range(2, DIST):
        for o in wops(st): k.e("\n".join(with_nop(o)))
        k.e("s_add_u32 s56, s56, 16384")
    k.e(f"""
    s_lshl_b32 s60, s48, 15
    s_lshl_b32 s61, s93, 11
    s_add_u32 s60, s60, s61
    s_add_u32 s61, s60, 32768
    s_lshr_b32 s62, s46, 1
    s_lshl_b32 s62, s62, 1
    s_add_u32 s62, s62, s52
    s_lshl_b32 s62, s62, 7
    s_add_u32 s62, s62, {C4}
    v_mov_b32 v{VT+2}, 0
    """)
    for i in range(2):
        for p in range(2): k.e(f"buffer_load_dwordx4 {v(VRES+i*8+p*4,4)}, v{VL16}, s[28:31], s{60+i} offen offset:{p*1024} sc1")
    wait_multi(k, [(VT+2, "s62", 16)], VT+3)
    fstamp(k, 16)
    def wreads(slot, g):
        return [f"ds_read_b64_tr_b16 {v(VW(g,s_)+2*rd,2)}, v{VR+8*(slot//4)+g} offset:{(slot%4)*STG + s_*8192 + rd*2048}" for s_ in range(2) for rd in range(2)]
    adv = ["s_add_u32 s56, s56, 16384", "s_add_u32 s57, s57, 2048"]
    def stage(n, left, loopend=False):
        st = n % U
        main = []; side = {}
        vm_a = vmem_ops((st + DIST) % U)[NH:] if left >= DIST else []
        vm_b = vmem_ops((st + DIST + 1) % U)[:NH] if left >= DIST + 1 else []
        nwait = 8 * (min(left, DIST) - 1)
        if left > DIST and st < DIST - 2: nwait -= 4 * (DIST - 2 - st)
        for g in range(8):
            for i in range(2):
                for s_ in range(2):
                    main.append(f"v_mfma_f32_16x16x32_bf16 {v(ACC(g,i),4)}, {v(VW(g,s_),4)}, {a(AX(st,i,s_),4)}, {v(ACC(g,i),4)}")
        def place(o, pos):
            if len(o) > 1: side.setdefault(pos - 1, []).append(o[0])
            side.setdefault(pos, []).append(o[-1])
        nb = 4 * (8 - D)
        for q, o in enumerate(vm_a): place(o, 1 + q * (nb - 2) // len(vm_a))
        if left >= DIST + 1:
            for q, x in enumerate(adv): side.setdefault(nb - 1 - len(adv) + q, []).append(x)
        if left >= 1: side.setdefault(nb - 1, []).extend([f"s_waitcnt vmcnt({nwait})", "s_barrier"])
        for q, o in enumerate(vm_b): place(o, nb + 1 + q * (4 * D - 1) // len(vm_b))
        heads = []
        for g in range(8):
            gg = g + D
            if gg >= 8 and left == 0: continue
            rd = wreads(st if gg < 8 else (st + 1) % U, gg % 8)
            if gg >= 8: heads += rd
            for q, x in enumerate(rd): side.setdefault(4 * g + q, []).append(x)
        if loopend:
            side.setdefault(29, []).append("s_sub_u32 s62, s62, 1")
            side.setdefault(30, []).append("s_cmp_lg_u32 s62, 0")
        return flatten(main, side), heads
    body = []
    for st in range(U):
        b_, heads = stage(st, 99, st == U - 1); body += b_
    tail = []
    for st in range(NT): tail += stage(st, NT - 1 - st)[0]
    body = salu_first(auto_lgkm(body, heads, merge=MG, hoist=True))
    tail = salu_first(auto_lgkm(tail, heads, cyclic=False, merge=MG, hoist=True))
    for st in range(DIST):
        for o in xops(st): k.e(o[0])
        k.e("s_add_u32 s57, s57, 2048")
        if st == 0:
            for x in heads: k.e(x)
    for o in vmem_ops(DIST)[:NH]: k.e("\n".join(with_nop(o)))
    L = k.label("loop5")
    k.e(f"s_mov_b32 s62, {(NS - NT)//U}\ns_waitcnt vmcnt({4*(DIST-1) + NH})")
    fstamp(k, 17)
    k.e(f".p2align 6\n{L}:")
    for x in body: k.e(x)
    k.e(f"s_cbranch_scc1 {L}")
    for x in tail: k.e(x)
    fstamp(k, 18)
    srd(k, 40, 22, 23, 4*MB, WS_EX)
    srd(k, 24, 22, 23, 1024*128, WS_FLAG)
    k.e(f"""
    s_lshl_b32 s64, s2, 2
    s_add_u32 s64, s64, s3
    s_lshl_b32 s65, s63, 2
    s_add_u32 s65, s65, s3
    s_lshl_b32 s66, s64, 12
    s_lshl_b32 s67, s65, 12
    s_lshl_b32 s64, s64, 7
    s_lshl_b32 s65, s65, 7
    """)
    for p in range(2):
        for i in range(2):
            o = ACC(4+2*p, i); u = ACC(5+2*p, i)
            k.e(f"v_cvt_pk_bf16_f32 v{o}, v{o}, v{o+1}\nv_cvt_pk_bf16_f32 v{o+1}, v{o+2}, v{o+3}")
            k.e(f"v_cvt_pk_bf16_f32 v{o+2}, v{u}, v{u+1}\nv_cvt_pk_bf16_f32 v{o+3}, v{u+2}, v{u+3}")
            k.e(f"buffer_store_dwordx4 {v(o,4)}, v{VL16}, s[40:43], s66 offen offset:{(i*2+p)*1024} sc1")
    def addin(base):
        for i in range(2):
            for fb in range(4):
                o = ACC(fb, i); r = base + i*8 + fb*2
                k.e(f"""
                v_lshlrev_b32 v{VT+4}, 16, v{r}
                v_and_b32 v{VT+5}, 0xffff0000, v{r}
                v_lshlrev_b32 v{VT+6}, 16, v{r+1}
                v_and_b32 v{VT+7}, 0xffff0000, v{r+1}
                {pk("add", o, o, VT+4)}
                {pk("add", o+2, o+2, VT+6)}
                """)
                yield i, fb
    for _ in addin(VRES): pass
    srd(k, 36, 18, 19, S_*D_*2)
    Lp = k.label("poll")
    k.e(f"""
    v_and_b32 v{VT}, 15, v{VL}
    v_lshrrev_b32 v{VT+1}, 4, v{VL}
    v_and_b32 v{VT+2}, 1, v{VT+1}
    v_lshrrev_b32 v{VT+3}, 1, v{VT+1}
    v_lshlrev_b32 v{VT+2}, 5, v{VT+2}
    v_lshl_add_u32 v{VT+2}, v{VT+3}, 4, v{VT+2}
    v_lshl_add_u32 v{VT+2}, v{VT}, 11, v{VT+2}
    s_lshl_b32 s60, s48, 15
    s_lshl_b32 s61, s93, 7
    s_add_u32 s60, s60, s61
    s_add_u32 s61, s60, 32768
    s_waitcnt vmcnt(0)
    buffer_store_dword v{VONE}, v{VFA}, s[24:27], s64 offen sc1
    s_mov_b32 s69, {SPIN}
    {Lp}:
    buffer_load_dword v{VT+3}, v{VFA}, s[24:27], s65 offen sc1
    s_sub_u32 s69, s69, 1
    s_cbranch_scc1 {Lp}_x
    s_waitcnt vmcnt(0)
    v_readfirstlane_b32 s68, v{VT+3}
    s_nop 3
    s_cmp_eq_u32 s68, 0
    s_cbranch_scc1 {Lp}
    {Lp}_x:
    """)
    for i in range(2):
        for p in range(2):
            k.e(f"buffer_load_dwordx4 {v(VRES+i*8+p*4,4)}, v{VL16}, s[40:43], s67 offen offset:{(i*2+p)*1024} sc1")
    k.e("s_waitcnt vmcnt(3)")
    nst = 0
    for i, fb in addin(VRES):
        o = ACC(fb, i); r = 64 + i*8 + fb*2
        k.e(f"v_cvt_pk_bf16_f32 v{r}, v{o}, v{o+1}\nv_cvt_pk_bf16_f32 v{r+1}, v{o+2}, v{o+3}")
        if fb % 2:
            p = fb // 2; r = 64 + i*8 + p*4
            k.e(f"s_nop 1\nv_permlane16_swap_b32 v{r}, v{r+2}\nv_permlane16_swap_b32 v{r+1}, v{r+3}")
            k.e(f"buffer_store_dwordx4 {v(r,4)}, v{VT+2}, s[36:39], s{60+i} offen offset:{p*64} {OPT.st}")
            nst += 1
            if nst < 4: k.e(f"s_waitcnt vmcnt(3)")

def gen_front(NB=22, POLL=12, NSH=4, NBG=3, MG=3, SIG=3, TB=1, LA=4, force_fb=False, full=False, p4={}, p5={}, abl=''):
    STG = 40960
    k = KB(KNAME if full else "k1_kernel", 256, 256, 4 * STG)
    k.fine = True; k.nst = 20 if full else 12; k.page = full
    LAST = f"L_{k.name}_end" if full else "L_k5_kernel_end"
    if full: k.launch = lambda: "; @launch grid=(256,1,1) block=(256,1,1) lds=163840\n"
    ACC = lambda j, i: (j * 4 + i) * 4
    VDX = 96; VDW = 100; VRX = 106; VRW = 114
    VL = 122; VPF = 123; VT = 124; VPA = 132; VZ = 134; VSA = 135
    VRAW = 136; VU = 152; VSUM = 156; VRT = 160
    VSEL = 164; VCD = 180; VCD2 = 184
    VCQ = 192; VCV = 208; VMT = 216; VRSt = 220; VMR = 224; VRR = 228
    AX = lambda st, i, s_: (st % 2) * 32 + (i * 2 + s_) * 4
    AW = lambda j, s_: 64 + j * 8 + s_ * 4
    prologue(k)
    fstamp(k, 0)
    k.e(f"""
    v_mov_b32 v{VL}, v0
    s_and_b32 s46, s45, 7
    s_lshl_b32 s46, s46, 1
    s_and_b32 s47, s44, 1
    s_add_u32 s46, s46, s47          ; rb
    s_lshr_b32 s47, s44, 1
    s_lshl_b32 s47, s47, 2
    s_lshr_b32 s48, s45, 3
    s_add_u32 s47, s47, s48          ; cb
    s_lshr_b32 s48, s3, 1            ; wm
    s_and_b32 s49, s3, 1             ; wn
    v_lshrrev_b32 v{VT}, 3, v{VL}       ; l/8
    v_and_b32 v{VT+1}, 7, v{VL}         ; p
    v_lshrrev_b32 v{VT+2}, 1, v{VT}     ; (l/8)>>1  (0..3)
    v_xor_b32 v{VT+3}, v{VT+1}, v{VT+2}
    s_lshl_b32 s50, s46, 7
    s_lshl_b32 s51, s3, 5
    s_add_u32 s50, s50, s51
    s_lshl_b32 s50, s50, 11             ; (rb*128 + w*32)*2048
    v_lshlrev_b32 v{VT+4}, 11, v{VT}
    v_add_u32 v{VT+4}, s50, v{VT+4}
    v_lshl_add_u32 v{VDX}, v{VT+3}, 4, v{VT+4}
    v_xor_b32 v{VT+3}, 4, v{VT+3}
    v_lshl_add_u32 v{VDX+1}, v{VT+3}, 4, v{VT+4}
    v_add_u32 v{VDX+2}, {2*15360}, v{VDX}
    v_add_u32 v{VDX+3}, {3*15360}, v{VDX+1}
    v_add_u32 v{VDX+1}, {15360}, v{VDX+1}
    v_and_b32 v{VT+2}, 1, v{VT+2}
    v_lshlrev_b32 v{VT+2}, 1, v{VT+2}
    v_xor_b32 v{VT+3}, v{VT+1}, v{VT+2}
    v_mul_u32_u24 v{VT+4}, 6144, v{VT}
    s_mul_i32 s50, s3, {16*6144}
    s_lshl_b32 s51, s47, 7
    s_add_u32 s50, s50, s51
    v_add_u32 v{VT+4}, s50, v{VT+4}
    v_lshl_add_u32 v{VDW}, v{VT+3}, 4, v{VT+4}
    v_xor_b32 v{VT+3}, 4, v{VT+3}
    v_lshl_add_u32 v{VDW+1}, v{VT+3}, 4, v{VT+4}
    v_add_u32 v{VDW+1}, {8*6144 - 1024}, v{VDW+1}
    """)
    for sg in range(1, 3):
        k.e(f"v_add_u32 v{VDW+2*sg}, {2048*sg}, v{VDW}\nv_add_u32 v{VDW+2*sg+1}, {2048*sg}, v{VDW+1}")
    k.e(f"""
    s_lshl_b32 s53, s3, 12
    s_lshl_b32 s54, s3, 11
    s_add_u32 s54, s54, 16384
    s_mov_b32 s59, {OOB}
    s_mov_b32 s63, s46
    s_mul_i32 s56, s63, {64*6144}
    s_lshl_b32 s57, s63, 7
    v_lshlrev_b32 v{VSA}, 4, v{VL}
    s_lshl_b32 s64, s46, 4
    s_add_u32 s64, s64, s47
    s_lshl_b32 s64, s64, 2
    s_add_u32 s64, s64, s3
    s_lshl_b32 s65, s64, 12
    s_lshl_b32 s66, s64, 8
    s_lshl_b32 s67, s47, 1
    s_add_u32 s67, s67, s49          ; head
    """)
    if OPT.codepf: code_pf_addr(k, k.name, LAST, VPA, VL, 3)
    k.e("s_waitcnt lgkmcnt(0)")
    srd(k, 24, 6, 7, D_*3*D_*2)
    srd(k, 28, 4, 5, S_*D_*2)
    def vmem_ops(n):
        slot = n % 4; ops = []
        for q in range(4):
            o = [f"buffer_load_dwordx4 v{VDX+q}, s[28:31], s57 offen offset:{q*1024} lds @s{n}"]
            if q == 0: o = [f"s_add_u32 m0, s53, {slot*STG}"] + o
            ops.append(o)
        for sg in range(3):
            for q in range(2):
                o = [f"buffer_load_dwordx4 v{VDW+2*sg+q}, s[24:27], s56 offen offset:{q*1024} lds @s{n}"]
                if q == 0: o = [f"s_add_u32 m0, s54, {slot*STG + sg*8192}"] + o
                ops.append(o)
        return ops
    adv = ["s_add_u32 s63, s63, 1", "s_and_b32 s63, s63, 15", f"s_mul_i32 s56, s63, {64*6144}", "s_lshl_b32 s57, s63, 7"]
    P = []
    if OPT.codepf: P.append(code_pf(VPF, VPA))
    for o in vmem_ops(0): P += with_nop(o)
    for q in range(4): P.append(f"buffer_load_dwordx4 {v(VRAW+4*q,4)}, v{VSA}, s[28:31], s65 offen offset:{q*1024} @raw")
    P += adv
    setup = lines(f"""
    v_and_b32 v{VT}, 15, v{VL}
    v_lshrrev_b32 v{VT+1}, 4, v{VL}
    v_lshrrev_b32 v{VT+2}, 1, v{VT}
    v_xor_b32 v{VT+2}, v{VT+1}, v{VT+2}
    s_lshl_b32 s50, s48, 13
    v_lshlrev_b32 v{VT+3}, 7, v{VT}
    v_add_u32 v{VT+3}, s50, v{VT+3}
    v_lshl_add_u32 v{VRX}, v{VT+2}, 4, v{VT+3}
    v_xor_b32 v{VRX+1}, 64, v{VRX}
    v_lshrrev_b32 v{VT+2}, 2, v{VT}
    v_lshl_add_u32 v{VT+3}, v{VT+1}, 3, v{VT+2}
    v_lshrrev_b32 v{VT+2}, 1, v{VT+2}
    v_and_b32 v{VT+4}, 1, v{VT+1}
    v_lshl_add_u32 v{VT+2}, v{VT+4}, 1, v{VT+2}
    s_lshl_b32 s50, s49, 1
    v_xor_b32 v{VT+2}, s50, v{VT+2}
    v_lshlrev_b32 v{VT+2}, 5, v{VT+2}
    v_lshl_add_u32 v{VT+2}, v{VT+3}, 7, v{VT+2}
    v_and_b32 v{VT+4}, 3, v{VL}
    v_lshl_add_u32 v{VT+2}, v{VT+4}, 3, v{VT+2}
    v_add_u32 v{VRW}, 16384, v{VT+2}
    v_xor_b32 v{VRW+1}, 32, v{VRW}
    v_mov_b32 v{VT+5}, 0x3f803f80
    """)
    for sl in range(1, 4):
        for q in range(2):
            setup += [f"v_add_u32 v{VRX+2*sl+q}, {sl*STG}, v{VRX+q}", f"v_add_u32 v{VRW+2*sl+q}, {sl*STG}, v{VRW+q}"]
    for j in range(4):
        setup += [f"v_cmp_eq_u32 vcc, {j}, v{VT}", "s_nop 1", f"v_cndmask_b32 v{VSEL+4*j}, 0, v{VT+5}, vcc"]
        setup += [f"v_mov_b32 v{VSEL+4*j+r}, v{VSEL+4*j}" for r in (1, 2, 3)]
    kk = KB("t", 0, 0, 0)
    srd(kk, 36, 22, 23, ZERO_BYTES, WS_ST); srd(kk, 40, 22, 23, 0x44000, WS_CSP1); srd(kk, 32, 20, 21, 256)
    P += [x.strip() for x in kk.lines]
    P += [f"v_mov_b32 v{VZ}, 0", f"v_lshlrev_b32 v{VT+6}, 2, v{VL}", f"buffer_store_dword v{VZ}, v{VT+6}, s[36:39], s66 offen sc1 @pub"]
    if full: P += ["s_branch L_page1\n.p2align 12\nL_page1:"] + (["s_nop 0\n;WARM start 4 0"] if OPT.warm else [])
    P += setup
    for o in vmem_ops(1): P += with_nop(o)
    P += adv
    def wreads(slot, j):
        return [f"ds_read_b64_tr_b16 {a(AW(j,s_)+2*rd,2)}, v{VRW+2*slot+j%2} offset:{(j//2)*8192 + (32*s_+4*rd)*128}" for s_ in range(2) for rd in range(2)]
    def xreads(slot):
        return [f"ds_read_b128 {a(AX(slot,i,s_),4)}, v{VRX+2*slot+s_} offset:{i*2048}" for i in range(4) for s_ in range(2)]
    def allreads(slot):
        xr = xreads(slot)
        return xr[:2] + wreads(slot, 0) + xr[2:] + sum([wreads(slot, j) for j in range(1, 6)], [])
    rpos = [NB + q + q // 2 for q in range(32)]
    free = [p for p in range(NB, NB + 48) if p not in rpos]
    vpos = [free[(q * 15) // 10] for q in range(10)]
    NHR = sum(p < 48 for p in rpos); NH = sum(p < 48 for p in vpos)
    P += ["WAITVM s0", "s_barrier", "STAMP1"]
    P += allreads(0)[:NHR]
    for o in vmem_ops(2)[:NH]: P += with_nop(o)
    st1 = ["WAITVM raw"]
    for r in range(2):
        for q in range(8):
            x = VRAW + 8*r + q; u = VU + 2*(q % 2)
            st1 += [f"v_lshlrev_b32 v{u}, 16, v{x}", f"v_and_b32 v{u+1}, 0xffff0000, v{x}"]
            if q == 0:
                st1 += [f"v_add_f32 v{VSUM+2*r}, v{u}, v{u+1}", f"v_mul_f32 v{VSUM+2*r+1}, v{u}, v{u}", f"v_fmac_f32 v{VSUM+2*r+1}, v{u+1}, v{u+1}"]
            else:
                st1 += [f"v_add_f32 v{VSUM+2*r}, v{VSUM+2*r}, v{u}", f"v_fmac_f32 v{VSUM+2*r+1}, v{u}, v{u}",
                        f"v_add_f32 v{VSUM+2*r}, v{VSUM+2*r}, v{u+1}", f"v_fmac_f32 v{VSUM+2*r+1}, v{u+1}, v{u+1}"]
    kk = KB("t", 0, 0, 0); allreduce64(kk, [VSUM, VSUM+1, VSUM+2, VSUM+3], VRT); st1 += [x.strip() for x in kk.lines]
    for r in range(2):
        b = VSUM + 2*r
        st1 += lines(f"""
        v_mul_f32 v{b}, {fbits(-1.0/D_)}, v{b}
        v_mul_f32 v{b+1}, {fbits(1.0/D_)}, v{b+1}
        v_fma_f32 v{b+1}, -v{b}, v{b}, v{b+1}
        v_max_f32 v{b+1}, 0, v{b+1}
        v_add_f32 v{b+1}, {fbits(1e-5)}, v{b+1}
        v_rsq_f32 v{b+1}, v{b+1}
        """)
    st1 += lines(f"""
    v_and_b32 v{VRT+2}, 1, v{VL}
    v_cmp_eq_u32 vcc, 0, v{VRT+2}
    v_lshrrev_b32 v{VRT+3}, 1, v{VL}
    s_lshr_b32 s68, s64, 5
    v_cndmask_b32 v{VRT}, v{VSUM+2}, v{VSUM}, vcc
    v_cndmask_b32 v{VRT+1}, v{VSUM+3}, v{VSUM+1}, vcc
    v_cmp_eq_u32 vcc, 0, v{VRT+3}
    v_lshlrev_b32 v{VRT+3}, 13, v{VRT+3}
    v_lshl_add_u32 v{VRT+2}, v{VRT+2}, 4, v{VRT+3}
    v_cndmask_b32 v{VRT}, v{VRT+1}, v{VRT}, vcc
    s_lshl_b32 s68, s68, 8
    s_and_b32 s75, s64, 7
    s_lshl_b32 s75, s75, 5
    s_add_u32 s68, s68, s75
    s_bfe_u32 s75, s64, 0x20003
    s_lshl_b32 s75, s75, 2
    s_add_u32 s68, s68, s75
    s_add_u32 s68, s68, {WS_MU - WS_CSP1}
    buffer_store_dword v{VRT}, v{VRT+2}, s[40:43], s68 offen sc1 @pub
    """)
    cst = lines(f"""
    v_lshlrev_b32 v{VT+6}, 10, v{VT}
    v_lshl_add_u32 v{VT+6}, v{VT+1}, 8, v{VT+6}
    v_cmp_gt_u32 vcc, 4, v{VT}
    v_mov_b32 v{VT+7}, {OOB}
    s_mul_i32 s69, s67, 6144
    v_cndmask_b32 v{VT+6}, v{VT+7}, v{VT+6}, vcc
    s_lshl_b32 s70, s48, 29
    s_add_u32 s69, s69, s70
    s_lshl_b32 s70, s46, 4
    s_add_u32 s70, s70, s69
    buffer_store_dwordx4 {v(VCD,4)}, v{VT+6}, s[40:43], s70 offen sc1 @pub
    v_lshlrev_b32 v{VT+7}, 4, v{VT}
    v_lshl_add_u32 v{VT+7}, v{VT+1}, 27, v{VT+7}
    s_lshr_b32 s70, s46, 2
    s_lshl_b32 s70, s70, 8
    s_add_u32 s69, s69, s70
    s_bfe_u32 s70, s46, 0x10001
    s_lshl_b32 s70, s70, 10
    s_add_u32 s69, s69, s70
    s_and_b32 s70, s46, 1
    s_lshl_b32 s70, s70, 3
    s_add_u32 s69, s69, s70
    s_add_u32 s69, s69, 4096
    buffer_store_dwordx2 {v(VCD2,2)}, v{VT+7}, s[40:43], s69 offen sc1 @pub
    """)
    sig = lines(f"""
    v_mov_b32 v{VT+6}, 1
    v_lshlrev_b32 v{VT+7}, 8, v{VL}
    s_lshl_b32 s70, s3, 8
    s_and_b32 s71, s45, {NSH-1}
    s_mul_i32 s71, s71, {256//NSH}
    s_add_u32 s70, s70, s71
    buffer_atomic_add v{VT+6}, v{VT+7}, s[32:35], s70 offen sc1
    """)
    Lsp = k.label("spin"); Lok = k.label("ok")
    pol = lines(f"""
    v_mov_b32 v{VT+5}, {256//NSH}
    v_and_b32 v{VT+7}, {NSH-1}, v{VL}
    v_mul_u32_u24 v{VT+7}, {256//NSH}, v{VT+7}
    buffer_load_dword v{VT+6}, v{VT+7}, s[32:35], 0 offen sc1 @poll
    """)
    chk = ["WAITVM poll", f"v_cmp_ne_u32 vcc, v{VT+5}, v{VT+6}", "s_nop 4", f"s_cbranch_vccnz {Lsp}\n{Lok}:"]
    A = VRAW
    ld = lines(f"""
    v_lshlrev_b32 v{A+2}, 4, v{VT}
    v_and_b32 v{A+3}, 3, v{VT}
    v_lshl_add_u32 v{A+3}, v{VT+1}, 2, v{A+3}
    v_lshlrev_b32 v{A+3}, 4, v{A+3}
    s_mul_i32 s69, s67, 6144
    s_add_u32 s72, s69, 4096
    s_lshl_b32 s70, s46, 9
    s_lshl_b32 s71, s48, 8
    s_add_u32 s70, s70, s71
    s_add_u32 s70, s70, {WS_MU - WS_CSP1}
    s_add_u32 s71, s70, {WS_RS - WS_MU}
    """)
    nld0 = len(ld)
    for j in range(4): ld.append(f"buffer_load_dwordx4 {v(VCQ+4*j,4)}, v{VSA}, s[40:43], s69 offen offset:{j*1024} sc1 @cs")
    for j in range(2): ld.append(f"buffer_load_dwordx4 {v(VCV+4*j,4)}, v{VSA}, s[40:43], s72 offen offset:{j*1024} sc1 @cs")
    ld.append(f"buffer_load_dwordx4 {v(VMT,4)}, v{A+2}, s[40:43], s70 offen sc1 @st")
    ld.append(f"buffer_load_dwordx4 {v(VRSt,4)}, v{A+2}, s[40:43], s71 offen sc1 @st")
    ld.append(f"buffer_load_dwordx4 {v(VMR,4)}, v{A+3}, s[40:43], s70 offen sc1 @st")
    ld.append(f"buffer_load_dwordx4 {v(VRR,4)}, v{A+3}, s[40:43], s71 offen sc1 @st")
    red = ["WAITVM cs"]
    for j in range(2):
        b = VCV + j
        red += [f"v_add_f32 v{b}, v{b}, v{b+2}", f"v_add_f32 v{b+4}, v{b+4}, v{b+6}", f"v_add_f32 v{b}, v{b}, v{b+4}"]
    for sw in ("v_permlane16_swap_b32", "v_permlane32_swap_b32"):
        red += [f"v_mov_b32 v{VCV+2}, v{VCV}", f"v_mov_b32 v{VCV+3}, v{VCV+1}", "s_nop 1", f"{sw} v{VCV}, v{VCV+2}", f"{sw} v{VCV+1}, v{VCV+3}",
                f"v_add_f32 v{VCV}, v{VCV}, v{VCV+2}", f"v_add_f32 v{VCV+1}, v{VCV+1}, v{VCV+3}"]
    for sh in (8, 4, 2, 1):
        for r in range(16): red.append(f"v_add_f32_dpp v{VCQ+r}, v{VCQ+r}, v{VCQ+r} row_ror:{sh} row_mask:0xf bank_mask:0xf")
    epi_setup = lines(f"""
    s_lshl_b32 s50, s67, 6
    s_lshl_b32 s51, s46, 2
    s_add_u32 s50, s50, s51
    s_lshl_b32 s51, s48, 1
    s_add_u32 s50, s50, s51
    s_lshl_b32 s60, s50, 11
    s_lshl_b32 s61, s50, 12
    s_add_u32 s62, s61, 4096
    v_lshlrev_b32 v{A+4}, 9, v{VT+1}
    v_lshl_add_u32 v{A+5}, v{VT}, 4, v{A+4}
    v_lshrrev_b32 v{A+6}, 3, v{VT}
    v_and_b32 v{A+7}, 7, v{VT}
    v_lshl_add_u32 v{A+6}, v{A+6}, 4, v{A+7}
    v_and_b32 v{A+7}, 1, v{VT+1}
    v_lshlrev_b32 v{A+7}, 10, v{A+7}
    v_lshrrev_b32 v{A+4}, 1, v{VT+1}
    v_lshl_add_u32 v{A+7}, v{A+4}, 9, v{A+7}
    v_lshl_add_u32 v{A+6}, v{A+6}, 4, v{A+7}
    s_lshl_b32 s55, s49, 14
    s_lshl_b32 s51, s48, 13
    s_add_u32 s55, s55, s51
    v_add_u32 v{A+8}, s55, v{A+5}
    v_add_u32 v{A+9}, s55, v{A+6}
    """)
    QR = lambda q, s_: q * 8 + s_ * 4
    VS = lambda q: 16 + q * 16; VC = lambda q: 48 + q * 16; VP = lambda q: 80 + q * 8; VO = lambda q: 96 + q * 16
    VONE = 152; VIDX = 156; VKA = 157; VVA = 158; VCSA = 159; VDM = 160; VWO = 164; VSL = 168; VCSD = 172
    VLs = lambda q: 176 + 4 * q
    VX2 = 184
    VL2 = 232; VL16 = 233; VTP = 234; VOA = 235; VRA = 236; VFA = 237; VD1 = 238; VD2 = 239; VY = 240
    AK = lambda b_, s_: 128 + b_ * 8 + s_ * 4
    AV = lambda b_, s_: 144 + b_ * 8 + s_ * 4
    ACSL = lambda b_: 160 + b_ * 4
    M18 = (1 << 16) // 18 + 1
    for x in range(1024): assert (x * M18) >> 16 == x // 18
    att_setup = lines(f"""
    v_mov_b32 v{VL2}, v{VL}
    v_mov_b32 v{VL16}, v{VSA}
    v_mul_u32_u24 v{VX2}, 7168, v{VT+1}
    v_lshl_add_u32 v{VCSA}, v{VT}, 4, v{VX2}
    v_mov_b32 v{VX2+1}, 0x3f80
    v_mov_b32 v{VX2+2}, 0x3f800000
    """)
    for r in range(4):
        att_setup += [f"v_cmp_eq_u32 vcc, {4*r}, v{VT}", f"v_mov_b32 v{VCSD+r}, 0", f"v_mov_b32 v{VLs(0)+r}, 0", f"v_cndmask_b32 v{VSL+r}, 0, v{VX2+1}, vcc",
                      f"v_cmp_eq_u32 vcc, {4*r+1}, v{VT}", f"v_mov_b32 v{VDM+r}, v{VSA}", f"v_mov_b32 v{VLs(1)+r}, 0", f"v_cndmask_b32 v{VSL+r}, v{VSL+r}, v{VX2+2}, vcc"]
    att_setup += lines(f"""
    v_and_b32 v{VX2}, 6, v{VT}
    v_cmp_eq_u32 vcc, 0, v{VX2}
    v_mov_b32 v{VX2+1}, 0x3f803f80
    v_mov_b32 v{VX2+2}, 0x44444444
    v_cndmask_b32 v{VONE}, 0, v{VX2+1}, vcc
    v_cmp_eq_u32 vcc, 4, v{VX2}
    v_mov_b32 v{VONE+1}, v{VONE}
    v_and_b32 v{VX2}, 1, v{VT}
    v_cndmask_b32 v{VONE+2}, 0, v{VX2+1}, vcc
    v_cmp_eq_u32 vcc, 0, v{VX2}
    v_mov_b32 v{VONE+3}, v{VONE+2}
    v_mov_b32 v{VX2+3}, 0xeeeeeeee
    v_cndmask_b32 v{VIDX}, v{VX2+3}, v{VX2+2}, vcc
    s_lshl_b32 s51, s49, 14
    v_add_u32 v{VKA}, s51, v{VSA}
    v_mov_b32 v{VVA}, v{VKA}
    v_lshrrev_b32 v{VX2}, 3, v{VL}
    v_and_b32 v{VX2+1}, 7, v{VL}
    v_and_b32 v{VX2+2}, 6, v{VX2}
    v_xor_b32 v{VX2+1}, v{VX2+1}, v{VX2+2}
    v_lshlrev_b32 v{VX2}, 11, v{VX2}
    v_lshl_add_u32 v{VWO}, v{VX2+1}, 4, v{VX2}
    v_add_u32 v{VWO+1}, 15360, v{VWO}
    v_add_u32 v{VWO+2}, {2*15360}, v{VWO}
    v_add_u32 v{VWO+3}, {3*15360}, v{VWO}
    v_lshrrev_b32 v{VTP}, 2, v{VL}
    v_lshlrev_b32 v{VTP}, 7, v{VTP}
    v_and_b32 v{VX2}, 1, v{VT+1}
    v_lshrrev_b32 v{VX2+1}, 1, v{VT+1}
    v_lshlrev_b32 v{VX2}, 5, v{VX2}
    v_lshl_add_u32 v{VX2}, v{VX2+1}, 4, v{VX2}
    v_lshl_add_u32 v{VRA}, v{VT}, 11, v{VX2}
    v_lshlrev_b32 v{VFA}, 20, v{VL}
    """)
    for r in range(4): att_setup.append(f"v_accvgpr_write_b32 a{ACSL(1)+r}, 0")
    kk = KB("t", 0, 0, 0)
    tile_map(kk, TB, 4 - TB, 92, 93)
    sc = lines("\n".join(kk.lines))
    sc += ["s_mov_b32 s80, s8", "s_mov_b32 s81, s9", f"s_mov_b32 s82, {D_*D_*2}", "s_mov_b32 s83, 0x20000",
           f"s_add_u32 s88, s22, {WS_CNT}\ns_addc_u32 s89, s23, 0", "s_mov_b32 s90, 0x8000", "s_mov_b32 s91, 0x20000"]
    sc += lines(f"""
    s_lshl_b32 s64, s2, 2
    s_add_u32 s64, s64, s3
    s_mul_i32 s68, s64, {M18}
    s_lshr_b32 s68, s68, 16
    s_mul_i32 s75, s68, 18
    s_sub_u32 s75, s64, s75
    s_lshl_b32 s95, s68, 9""")
    sc += ["s_cmp_lt_u32 s68, 28\ns_cselect_b32 s36, s12, s14\ns_cselect_b32 s37, s13, s15\ns_cselect_b32 s65, 0, 28"]
    sc += lines(f"""
    s_sub_u32 s68, s68, s65
    s_mul_i32 s66, s75, {60*7168}
    s_lshl_b32 s68, s68, 8
    s_add_u32 s66, s66, s68
    s_mov_b32 s38, {D_*F_*2}
    s_mov_b32 s39, 0x20000
    s_mov_b32 s86, {D_*D_*2}
    s_mov_b32 s87, 0x20000""")
    sc += ["s_cmp_lt_u32 s64, 1008\ns_cselect_b32 s66, s66, s59\ns_cselect_b32 s95, s95, s59",
           f"s_cmp_lt_u32 s64, 768\ns_cselect_b32 s84, s16, s8\ns_cselect_b32 s85, s17, s9\ns_cselect_b32 s86, {F_*D_*2}, s86\ns_cselect_b32 s65, 0, 768"]
    sc += lines(f"""
    s_sub_u32 s74, s64, s65
    s_mul_i32 s74, s74, 10240
    s_lshl_b32 s76, s92, 3
    s_lshl_b32 s77, s3, 1
    s_add_u32 s76, s76, s77
    s_lshl_b32 s64, s76, 15
    s_lshl_b32 s77, s93, 7
    s_add_u32 s77, s77, s64
    s_add_u32 s78, s77, 32768
    s_lshl_b32 s52, s67, 18
    s_lshl_b32 s75, s48, 13
    s_add_u32 s52, s52, s75""")
    att_setup = sprinkle(att_setup, [[x] for x in sc])

    n1 = len(st1)
    bg = {}
    bg[1] = cst + st1[:n1//8]
    for q in range(NBG): bg[2+q] = st1[n1//8 + q*(n1 - n1//8)//NBG : n1//8 + (q+1)*(n1 - n1//8)//NBG]
    bg[NBG + 4] = sig
    na = len(att_setup)
    bg[NBG + 4] = sig + att_setup[:na//3]; bg[8] = att_setup[na//3:2*na//3]; bg[9] = att_setup[2*na//3:]
    bg[POLL - 2] = pol[:3] + ld[:nld0] + epi_setup; bg[POLL - 1] = pol[3:]; bg[POLL] = chk + ld[nld0:nld0+6]; bg[POLL + 1] = ld[nld0+6:]
    bg[14] = bg.get(14, []) + red[:len(red)//2]; bg[15] = red[len(red)//2:]
    if 'nobg' in abl:
        for n in list(bg): bg[n] = [x for x in bg[n] if not x.startswith(('v_add_f32', 'v_fmac', 'v_lshlrev_b32 v15', 'v_and_b32 v15', 's_nop', 'v_perm'))]
    for n in range(16):
        st = n % 4
        main = []; side = {}
        vm_a = vmem_ops(n + 2)[NH:] if n + 2 < 16 else []
        vm_b = vmem_ops(n + 3)[:NH] if n + 3 < 16 else []
        for j in range(6):
            for i in range(4):
                for s_ in range(2):
                    w_, x_ = a(AW(j,s_),4), a(AX(st,i,s_),4)
                    if j >= 4: w_, x_ = x_, w_
                    c_ = v(ACC(j,i),4) if (n or s_) else "0"
                    main.append(f"v_mfma_f32_16x16x32_bf16 {v(ACC(j,i),4)}, {w_}, {x_}, {c_}")
            if n == 0:
                for s_ in range(2):
                    d_ = v(VCD if j < 4 else VCD2, 4)
                    c_ = d_ if (j % 4 or s_) else "0"
                    o1, o2 = a(AW(j,s_),4), v(VSEL+4*(j%4),4)
                    if j >= 4: o1, o2 = o2, o1
                    side.setdefault(8*j + 7, []).append(f"v_mfma_f32_16x16x32_bf16 {d_}, {o1}, {o2}, {c_}")
        def place(o, pos):
            if len(o) > 1: side.setdefault(pos - 1, []).append(o[0])
            side.setdefault(pos, []).append(o[-1])
        nb = NB
        for q, o in enumerate(vm_a): place(o, vpos[NH + q] - 48)
        if vm_b:
            assert vpos[9] - 48 < nb - 4
            for q, x in enumerate(adv): side.setdefault(nb - 5 + q, []).append(x)
        if n < 15:
            side.setdefault(nb - 1, []).extend([f"WAITVM s{n+1}" + (" pub" if n == NBG + 3 else ""), "s_barrier"])
        for q, o in enumerate(vm_b): place(o, vpos[q])
        for q, x in enumerate(allreads(st)[NHR:]): side.setdefault(rpos[NHR + q] - 48, []).insert(0, x)
        if n < 15:
            for q, x in enumerate(allreads((st + 1) % 4)[:NHR]): side.setdefault(rpos[q], []).insert(0, x)
        b_ = bg.get(n, [])
        for q, x in enumerate(b_): side.setdefault(8 + (q * 39) // len(b_) if n == 1 else (q * 47) // len(b_), []).append(x)
        P += flatten(main, side)
    P.append("STAMP2")
    kk = KB("t", 0, 0, 0); srd(kk, 24, 22, 23, S_*D_*4, WS_KV); P += [x.strip() for x in kk.lines]
    P.append("WAITVM st")
    def cvt4(o, u):
        return [f"v_cvt_pk_bf16_f32 v{o}, v{o}, v{o+1}", f"v_cvt_pk_bf16_f32 v{o+1}, v{o+2}, v{o+3}",
                f"v_cvt_pk_bf16_f32 v{o+2}, v{u}, v{u+1}", f"v_cvt_pk_bf16_f32 v{o+3}, v{u+2}, v{u+3}"]
    def normqk(j, i):
        o = ACC(j, i)
        return [pk("fma", o+r, VCQ+4*j+r, ('b', VMT+i), o+r) for r in (0, 2)] + [pk("mul", o+r, o+r, ('b', VRSt+i)) for r in (0, 2)]
    def normv(j, i):
        o = ACC(j, i)
        q_ = lambda r: f"quad_perm:[{r},{r},{r},{r}] row_mask:0xf bank_mask:0xf"
        return [f"v_fmac_f32_dpp v{o+r}, v{VMR+i}, v{VCV+j-4} {q_(r)}" for r in range(4)] + [f"v_mul_f32_dpp v{o+r}, v{VRR+i}, v{o+r} {q_(r)}" for r in range(4)]
    for i in range(4):
        o = ACC(2, i); P += normqk(2, i) + normqk(3, i) + cvt4(o, ACC(3, i))
        P.append(f"buffer_store_dwordx4 {v(o,4)}, v{A+6}, s[24:27], s{61 if i < 2 else 62} offen offset:{(i%2)*128} sc1 @kv")
        P.append(f"ds_write_b128 v{A+9}, {v(o,4)} offset:{(i//2)*4096 + (i%2)*128}")
    for p in range(2):
        for fb in range(2):
            o = ACC(4 + fb, 2*p); P += normv(4+fb, 2*p) + normv(4+fb, 2*p+1) + cvt4(o, ACC(4 + fb, 2*p + 1))
            P.append(f"buffer_store_dwordx4 {v(o,4)}, v{A+5}, s[24:27], s{61 if p == 0 else 62} offen offset:{2048 + fb*256} sc1 @kv")
            P.append(f"ds_write_b128 v{A+8}, {v(o,4)} offset:{p*4096 + 2048 + fb*256}")
    for i in range(4): P.append(f"v_mul_f32 v{VRSt+i}, {fbits(LOG2E / 32 ** 0.5)}, v{VRSt+i}")
    for i in range(4): P += normqk(0, i) + normqk(1, i) + cvt4(ACC(0, i), ACC(1, i))
    P.append('s_nop 0')
    for p in range(2):
        for r in range(4): P.append(f"v_permlane16_swap_b32 v{8*p+r}, v{8*p+4+r}")
    P += ["s_waitcnt lgkmcnt(0)", "s_barrier", "STAMP3"]
    def kread(kb): return [f"ds_read_b128 {a(AK(kb%2,s_),4)}, v{VKA} offset:{(kb%4)*4096 + s_*1024}" for s_ in range(2)]
    def vread(kb): return [f"ds_read_b128 {a(AV(kb%2,s_),4)}, v{VVA} offset:{(kb%4)*4096 + 2048 + s_*1024}" for s_ in range(2)]
    P += kread(0) + kread(1)
    def wodma(base, tag):
        out = []
        for h in range(2):
            out += [f"s_add_u32 m0, s55, {base + h*4096}", "s_nop 0"]
            out += [f"buffer_load_dwordx4 v{VWO+q}, s[80:83], s{72+h} offen offset:{q*1024} lds @{tag}" for q in range(4)]
        return out
    def qk0(q): return [f"v_mfma_f32_32x32x16_bf16 {v(VS(q),16)}, {a(AK(0,0),4)}, {v(QR(q,0),4)}, 0",
                        f"v_mfma_f32_32x32x16_bf16 {v(VS(q),16)}, {a(AK(0,1),4)}, {v(QR(q,1),4)}, {v(VS(q),16)}"]
    P += qk0(0) + qk0(1)
    P += ["s_lshl_b32 s72, s55, 4", "s_lshl_b32 s73, s93, 7", "s_add_u32 s72, s72, s73", "s_add_u32 s73, s72, 65536",
          "s_mov_b32 s63, -1", "s_mov_b32 s58, s55", "s_mov_b32 s70, 4096", "s_mov_b32 s69, 14", "s_mov_b32 s71, s46",
          "s_add_u32 s65, s55, 0x20000", "s_mov_b32 s68, 0", "s_mov_b32 s75, 2048", f"s_mov_b32 s79, {(1 << 2) | (1 << 10)}"]
    def maxfin():
        o_ = [f"v_mov_b32 v{VX2+2}, v{VX2}", f"v_mov_b32 v{VX2+3}, v{VX2+1}", "s_nop 0",
              f"v_permlane32_swap_b32 v{VX2}, v{VX2+2}", f"v_permlane32_swap_b32 v{VX2+1}, v{VX2+3}",
              f"v_max_f32 v{VX2}, v{VX2}, v{VX2+2}", f"v_max_f32 v{VX2+1}, v{VX2+1}, v{VX2+3}", f"v_mov_b32 v{VX2+2}, -1.0"]
        for q in range(2): o_ += [pk("mul", VC(q)+r, ('b', VX2+q), ('b', VX2+2)) for r in range(0, 16, 2)]
        return o_
    for q in range(2):
        b_ = VS(q)
        P += [f"v_max3_f32 v{VX2+q}, v{b_}, v{b_+1}, v{b_+2}", f"v_max3_f32 v{VX2+2}, v{b_+3}, v{b_+4}, v{b_+5}"]
        for r in range(6, 14, 4): P += [f"v_max3_f32 v{VX2+q}, v{VX2+q}, v{b_+r}, v{b_+r+1}", f"v_max3_f32 v{VX2+2}, v{VX2+2}, v{b_+r+2}, v{b_+r+3}"]
        P += [f"v_max3_f32 v{VX2+q}, v{VX2+q}, v{b_+14}, v{b_+15}", f"v_max_f32 v{VX2+q}, v{VX2+q}, v{VX2+2}"]
    P += maxfin()
    P += [pk("add", VS(0)+r, VS(0)+r, VC(0)+r) for r in range(0, 16, 2)]
    def qk(n):
        q = n % 2; kb = n // 2
        return [f"v_mfma_f32_32x32x16_bf16 {v(VS(q),16)}, {a(AK(kb%2,0),4)}, {v(QR(q,0),4)}, {v(VC(q),16)}",
                f"v_mfma_f32_32x32x16_bf16 {v(VS(q),16)}, {a(AK(kb%2,1),4)}, {v(QR(q,1),4)}, {v(VS(q),16)}"]
    def pv(n, first=False):
        q = n % 2; kb = n // 2
        return [f"v_mfma_f32_32x32x16_bf16 {v(VO(q),16)}, {a(AV(kb%2,s_),4)}, {v(VP(q)+4*s_,4)}, {'0' if first and s_ == 0 else v(VO(q),16)}" for s_ in range(2)] + \
               [f"v_smfmac_f32_16x16x64_bf16 {v(VLs(q),4)}, {v(VONE,4)}, {v(VP(q),8)}, v{VIDX}"]
    csm = lambda st: f"v_mfma_f32_16x16x32_bf16 {v(VCSD,4)}, {v(VSL,4)}, {a(ACSL(st),4)}, {v(VCSD,4)}"
    csl = lambda st: f"buffer_load_dwordx4 {a(ACSL(st),4)}, v{VCSA}, s[36:39], s66 offen"
    def dma(h, tag=""): return [f"buffer_load_dwordx4 v{VDM+q}, s[24:27], s{57 if h == 0 else 56} offen offset:{q*1024} sc1 lds{tag}" for q in range(4)]
    tch = f"buffer_load_dwordx4 v{VTP}, s[84:87], s74 offen lds"
    adv2 = ["s_add_u32 s63, s63, 1", "s_cmp_eq_u32 s63, s71\ns_addc_u32 s63, s63, 0", "s_lshl_b32 s57, s63, s69", "s_add_u32 s57, s57, s52", "s_add_u32 s56, s57, s70",
            "s_add_u32 s58, s58, 0x8000", "s_and_b32 s58, s58, 0x1ffff"]
    def slot(n, m, after, pre2=(), mid1=()):
        q = n % 2; b_ = VS(q)
        ex = lambda r: f"v_exp_f32 v{b_+r}, v{b_+r}"
        cv = lambda r: f"v_cvt_pk_bf16_f32 v{VP(q)+r}, v{b_+2*r}, v{b_+2*r+1}"
        seg = [[ex(0), ex(1), ex(2), ex(3)], [ex(4), cv(0), ex(5)] + list(mid1) + [cv(1), ex(6)], list(pre2) + [ex(7), cv(2), ex(8), ex(9), cv(3)],
               [ex(10), ex(11), cv(4), ex(12), cv(5)], [ex(13), ex(14), ex(15), cv(6), cv(7)]]
        out = []
        for j_ in range(5):
            if m[j_]: out.append(m[j_])
            out += after.get(j_, []) + seg[j_]
        return out
    advK = [f"v_add_u32 v{VKA}, 0x8000, v{VKA}", f"v_and_b32 v{VKA}, 0x1ffff, v{VKA}"]
    advV = [f"v_add_u32 v{VVA}, 0x8000, v{VVA}", f"v_and_b32 v{VVA}, 0x1ffff, v{VVA}"]
    VRES = 192
    for n in range(8):
        m = (qk(n + 1) if n < 7 else [None, None]) + (pv(n - 1, n <= 2) if n > 0 else [None] * 3)
        after = {}
        if n % 2 == 0: after[0] = vread(n // 2)
        elif n < 5: after[0] = kread((n + 3) // 2)
        if n >= 1: after[3] = [adv2[n - 1]]
        if n == SIG:
            after[1] = ["WAITVM kv", "s_barrier", f"v_mov_b32 v{VX2}, 1", "s_lshl_b32 s60, s47, 7", "s_lshl_b32 s61, s3, 20", "s_add_u32 s61, s61, s60",
                        f"buffer_atomic_add v{VX2}, v{VFA}, s[88:91], s61 offen sc1"]
        P += slot(n, m, after, pre2=advK if n == 4 else advV if n == 7 else ())
    P.append("STAMP4")
    P = resolve_vm(P)
    P = salu_first(auto_lgkm([x if not x.startswith("STAMP") else "s_" + x for x in P], cyclic=False, merge=MG, hoist=True))
    def emit(seq):
        for x in seq:
            if x.startswith("s_STAMP"): fstamp(k, int(x[7:]))
            else: k.e(x)
    emit(P)
    def waitcnt(soff, target, vt):
        k.e(f"v_mov_b32 v{vt+1}, 0")
        wait_multi(k, [(vt + 1, f"s{soff}", target)], vt)
    VPA2 = 252
    if OPT.codepf:
        kk = KB(k.name + "_b", 0, 0, 0); code_pf_addr(kk, "L_att_code", LAST, VPA2, VL2, 3)
        k.e("\n".join(kk.lines).replace("s76", "s100").replace("s77", "s101").replace("s[76:77]", "s[100:101]").replace("s78", "s51"))
        k.e(code_pf(VD1, VPA2))
    waitcnt(60, 16, VX2 + 1)
    k.e("L_att_code:")
    fstamp(k, 5)
    for e in range(2):
        k.e("s_mov_b32 m0, s58\ns_add_u32 s51, s58, 4096\n" + "\n".join(dma(0)) + "\ns_mov_b32 m0, s51\ns_nop 0\n" + "\n".join(dma(1)) + "\n" + "\n".join(adv2))
    k.e("s_mov_b32 m0, s65\n" + csl(0) + "\n" + tch + f"\ns_add_u32 s66, s66, {4*7168}\ns_mov_b32 m0, s58\ns_mov_b32 s62, 15\ns_waitcnt vmcnt(10)\ns_barrier")
    for x in kread(0) + kread(1): k.e(x)
    k.e("s_waitcnt lgkmcnt(2)")
    for x in qk(0): k.e(x)
    fstamp(k, 6)
    L = k.label("loop"); Lmid = k.label("mid"); Lsw = k.label("sw"); Lswr = k.label("swr"); Lq3 = k.label("q3")
    k.e(f"s_waitcnt lgkmcnt(0)\ns_nop 8\ns_branch {Lmid}")
    k.e(f"""
    {'.p2align 12' if full else ''}
    {Lsw}:
    s_cmp_eq_u32 s62, 10
    s_cbranch_scc1 {Lq3}
    s_sub_u32 s65, s65, s68
    s_sub_u32 s74, s74, s75
    s_mov_b32 s68, 0
    s_mov_b32 s75, 0
    s_mov_b32 s24, s80
    s_mov_b32 s25, s81
    s_mov_b32 s26, s82
    s_mov_b32 s52, s72
    s_mov_b32 s63, 0
    s_mov_b32 s71, 99
    s_mov_b32 s69, 19
    s_mov_b32 s70, 65536
    """)
    for q in range(4): k.e(f"v_mov_b32 v{VDM+q}, v{VWO+q}")
    if OPT.codepf: k.e(code_pf(VD1, VPA2))
    k.e(f"s_branch {Lswr}")
    k.e(f"""
    {Lq3}:
    s_mov_b32 s84, s80
    s_mov_b32 s85, s81
    s_mov_b32 s86, s82
    s_mov_b32 s74, s72
    s_mov_b32 s75, 16384
    s_mov_b32 s68, 1024
    v_mov_b32 v{VTP}, v{VWO}
    """)
    for i in range(2):
        for p in range(2): k.e(f"buffer_load_dwordx4 {v(VRES+i*8+p*4,4)}, v{VRA}, s[28:31], s{77+i} offen offset:{p*64}")
    k.e(f"s_branch {Lswr}")
    halves = []
    for st in range(2):
        body = []
        for n in range(8):
            d0, d1 = dma(0), dma(1)
            plan = {
              0: {1: ["s_add_u32 s74, s74, s75"], 2: d0[:2], 4: ["s_add_u32 s65, s65, s68"]},
              1: {2: d0[2:], 3: ["s_add_u32 m0, s58, 4096"]},
              2: {2: d1[:2]},
              3: {2: d1[2:], 3: ["s_sub_u32 s62, s62, 1"], 4: ["s_bitcmp1_b32 s79, s62"] if st else []},
              4: {1: [f"s_cbranch_scc1 {Lsw}\n{Lswr}:"] if st else [], 2: [adv2[0]], 4: ["s_waitcnt vmcnt(10)"]},
              5: {0: ["s_barrier"], 2: [adv2[1]], 3: [adv2[2]], 4: ["s_cmp_lg_u32 s62, 0"]},
              6: {0: ["s_mov_b32 m0, s65"], 1: ["s_cselect_b32 s66, s66, s59"], 2: [adv2[3], csl(st), tch], 4: [adv2[4]]},
              7: {0: [f"s_add_u32 s66, s66, {4*7168}"], 2: [adv2[5]], 3: [adv2[6], "s_mov_b32 m0, s58"], 4: ["s_cmp_lg_u32 s62, 0"] if st else []},
            }[n]
            after = {j_: list(x) for j_, x in plan.items()}
            after.setdefault(0, []).extend(kread((n + 3) // 2) if n % 2 == 1 else vread(n // 2))
            after.setdefault(1 if n % 2 == 1 else 3, []).insert(0, "s_waitcnt lgkmcnt(2)")
            body += slot(n, qk(n + 1) + pv(n - 1), after, pre2=advK if n == 4 else advV if n == 7 else (), mid1=[csm(st)] if n == 5 else ())
        halves.append(body)
    assert auto_lgkm(halves[0] + halves[1], kread(1)) == halves[0] + halves[1]
    k.e(f".p2align 6\n;STUB\ns_nop 0\n{L}:" if full and OPT.warm else f".p2align 6\n{L}:")
    for x in halves[0]: k.e(x)
    k.e(f";STUB\n{Lmid}:")
    for x in halves[1]: k.e(x)
    k.e(f"s_cbranch_scc1 {L}")
    k.e("s_nop 1")
    for x in pv(7): k.e(x)
    fstamp(k, 7)
    Lfb = k.label("fb"); Lno = k.label("nofb")
    srd(k, 32, 22, 23, PLANE + S_*D_*2, WS_O)
    k.e(f"""
    v_and_b32 v{VY}, 15, v{VL2}
    v_bfe_u32 v{VY+1}, v{VL2}, 4, 1
    v_lshrrev_b32 v{VY+2}, 5, v{VL2}
    v_lshlrev_b32 v{VOA}, 4, v{VY}
    v_lshl_add_u32 v{VOA}, v{VY+1}, 15, v{VOA}
    v_lshl_add_u32 v{VOA}, v{VY+2}, 8, v{VOA}
    s_lshl_b32 s60, s46, 18
    s_lshl_b32 s61, s48, 17
    s_add_u32 s60, s60, s61
    s_lshl_b32 s61, s67, 10
    s_add_u32 s60, s60, s61
    s_add_u32 s61, s60, 65536
    """)
    reloc(k, VOA, VY+1)
    k.e(f"""
    v_add_f32 v{VY+4}, v{VLs(0)}, v{VLs(0)+1}
    v_add_f32 v{VY+5}, v{VLs(1)}, v{VLs(1)+1}
    v_add_f32 v{VY+2}, v{VY+4}, v{VY+5}
    v_mov_b32 v{VY+3}, {fbits(2.0**40 if not force_fb else 0.5)}
    v_cmp_nlt_f32 vcc, v{VY+2}, v{VY+3}
    v_rcp_f32 v{VY+4}, v{VY+4}
    v_rcp_f32 v{VY+5}, v{VY+5}
    s_nop 2
    s_cbranch_vccnz {Lfb}
    {Lno}:
    """)
    E = []
    for q in range(2):
        b_ = VO(q)
        for a_ in range(2):
            E += [pk("mul", b_+8*a_+r, b_+8*a_+r, ('b', VY+4+q)) for r in range(0, 8, 2)]
            E += [f"v_cvt_pk_bf16_f32 v{b_+8*a_+r}, v{b_+8*a_+2*r}, v{b_+8*a_+2*r+1}" for r in range(4)]
            E.append(f"buffer_store_dwordx4 {v(b_+8*a_,4)}, v{VOA}, s[32:35], s{60+q} offen offset:{a_*512} sc1 @o")
    Q3 = [f"s_add_u32 s72, s72, {3*256*2048}", "s_add_u32 s73, s72, 65536"] + wodma(0x10000, "wo")
    ACC3 = lambda j, i: (j * 2 + i) * 4
    VW3 = lambda g, s_: 32 + (g % 4) * 8 + s_ * 4
    VR3 = 64
    VXA = 76
    AX3 = lambda ks, i: ((ks % 32) * 2 + i) * 4
    kk = KB("t", 0, 0, 0)
    srd(kk, 28, 22, 23, 2*F_*4, WS_CS)
    kk.e(f"""
    {csm(0)}
    v_lshrrev_b32 v{VY+1}, 4, v{VL2}
    v_and_b32 v{VY+6}, 7, v{VY}
    v_lshlrev_b32 v{VY+6}, 5, v{VY+6}
    v_lshl_add_u32 v{VY+6}, v{VY+1}, 3, v{VY+6}
    v_lshrrev_b32 v{VY+7}, 3, v{VY}
    v_lshl_add_u32 v{VD2}, v{VY+7}, 2, v{VY+6}
    """)
    for i in range(2):
        for p in range(2):
            r = VRES + i*8 + p*4
            kk.e(f"v_permlane16_swap_b32 v{r}, v{r+2}\nv_permlane16_swap_b32 v{r+1}, v{r+3}")
    kk.e(f"""
    v_mov_b32 v{VCSD+2}, v{VCSD}
    v_mov_b32_dpp v{VCSD}, v{VCSD+1} row_ror:8 row_mask:0xf bank_mask:0xc
    s_nop 0
    v_mov_b32_dpp v{VCSD+1}, v{VCSD+2} row_ror:8 row_mask:0xf bank_mask:0x3
    """)
    for r in range(2): kk.e(f"buffer_atomic_add_f32 v{VCSD+r}, v{VD2}, s[28:31], s95 offen offset:{256*r} @o")
    for x in Q3: kk.e(x)
    kk.e(f"v_mov_b32 v{VXA}, v{VL16}")
    reloc(kk, VXA, VY+7)
    kk.e(f"""
    v_add_u32 v{VXA}, s64, v{VXA}
    v_add_u32 v{VXA+1}, 32768, v{VXA}
    v_and_b32 v{VY+7}, 31, v{VL2}
    v_lshrrev_b32 v{VY+7}, 2, v{VY+7}
    v_lshrrev_b32 v{VY+8}, 5, v{VL2}
    v_lshl_add_u32 v{VY+8}, v{VY+8}, 4, v{VY+7}
    v_lshrrev_b32 v{VY+7}, 1, v{VY+7}
    v_lshlrev_b32 v{VY+7}, 5, v{VY+7}
    v_lshl_add_u32 v{VY+7}, v{VY+8}, 7, v{VY+7}
    v_and_b32 v{VY+8}, 3, v{VL2}
    v_lshl_add_u32 v{VR3}, v{VY+8}, 3, v{VY+7}
    """)
    for fb in range(1, 4): kk.e(f"v_xor_b32 v{VR3+fb}, {fb*32}, v{VR3}")
    for rg in range(1, 3):
        for fb in range(4): kk.e(f"v_add_u32 v{VR3+4*rg+fb}, {rg*0x10000}, v{VR3+fb}")
    kk.e(f"""
    v_mov_b32 v{VX2}, 1
    s_lshl_b32 s60, s46, 7
    s_add_u32 s60, s60, 2048
    s_lshl_b32 s61, s3, 20
    s_add_u32 s61, s61, s60
    s_lshl_b32 s60, s92, 7
    s_add_u32 s60, s60, 2048
    """)
    E += ["s_waitcnt vmcnt(15)"] + lines("\n".join(kk.lines))
    E += ["WAITVM o", "s_barrier", f"buffer_atomic_add v{VX2}, v{VFA}, s[88:91], s61 offen sc1", "STAMP8"]
    emit(["s_" + x if x.startswith("STAMP") else x for x in resolve_vm(E)])
    waitcnt(60, 16, VX2 + 1)
    fstamp(k, 9)
    qbase = [0x20000, 0, 0x8000, 0x10000]
    def wreads3(G):
        sp, fb = G // 4, G % 4
        out = []
        for s_ in range(2):
            ks = 2 * sp + s_; ad = qbase[ks // 8] + (ks % 8) * 4096
            out += [f"ds_read_b64_tr_b16 {v(VW3(G,s_)+2*rd,2)}, v{VR3+4*(ad>>16)+fb} offset:{(ad & 0xffff) + rd*1024}" for rd in range(2)]
        return out
    def xl(sp):
        out = []
        for s_ in range(2):
            ks = 2 * sp + s_
            for i in range(2):
                o_ = [f"buffer_load_dwordx4 {a(AX3(ks,i),4)}, v{VXA+i}, s[32:35], s57 offen offset:{(ks%4)*1024} sc1 @x{sp}"]
                if ks % 4 == 0 and i == 0: o_ = [f"s_mov_b32 s57, {(ks//4)*4096}"] + o_
                out.append(o_)
        return out
    Q = []
    for sp in range(LA):
        for o_ in xl(sp): Q += o_
        if sp == 0:
            for G in range(3): Q += wreads3(G)
    main = []; side = {}
    for G in range(64):
        sp, fb = G // 4, G % 4
        if fb == 0: side.setdefault(4*G - 1, []).insert(0, f"WAITVM x{sp}")
        for i in range(2):
            for s_ in range(2):
                c_ = v(ACC3(fb,i),4) if (sp or s_) else "0"
                main.append(f"v_mfma_f32_16x16x32_bf16 {v(ACC3(fb,i),4)}, {v(VW3(G,s_),4)}, {a(AX3(2*sp+s_,i),4)}, {c_}")
        if G + 3 < 64:
            for q, x in enumerate(wreads3(G + 3)): side.setdefault(4*G + q, []).append(x)
        if sp + LA < 16: side.setdefault(4*G + 1, []).extend(xl(sp + LA)[fb])
    Q += flatten(main, side)
    emit(salu_first(auto_lgkm(resolve_vm(Q), cyclic=False, merge=1, hoist=True)))
    fstamp(k, 10)
    if full: k.e("s_barrier")
    srd(k, 36, 22, 23, S_*D_*2, WS_H)
    srd(k, 40, 22, 23, S_*8, WS_ST)
    k.e(f"""
    s_lshl_b32 s61, s93, 11
    s_add_u32 s60, s64, s61
    s_add_u32 s61, s60, 32768
    """)
    for i in range(2):
        for p in range(2):
            for fb in (2*p, 2*p+1):
                o = ACC3(fb, i); r = VRES + i*8 + fb*2
                k.e(f"""
                v_lshlrev_b32 v{VY+4}, 16, v{r}
                v_and_b32 v{VY+5}, 0xffff0000, v{r}
                v_lshlrev_b32 v{VY+6}, 16, v{r+1}
                v_and_b32 v{VY+7}, 0xffff0000, v{r+1}
                {pk("add", o, o, VY+4)}
                {pk("add", o+2, o+2, VY+6)}
                v_cvt_pk_bf16_f32 v{r}, v{o}, v{o+1}
                v_cvt_pk_bf16_f32 v{r+1}, v{o+2}, v{o+3}
                """)
            k.e(f"buffer_store_dwordx4 {v(VRES+i*8+p*4,4)}, v{VL16}, s[36:39], s{60+i} offen offset:{p*1024} {OPT.st}")
    for i in range(2):
        regs = [ACC3(fb, i) + r for fb in range(4) for r in (0, 2)]
        k.e(pk("add", 36, regs[0], regs[1]) + "\n" + pk("mul", 38, regs[0], regs[0]) + "\n" + pk("fma", 38, regs[1], regs[1], 38))
        for r in regs[2:]: k.e(pk("add", 36, 36, r) + "\n" + pk("fma", 38, r, r, 38))
        k.e(f"v_add_f32 v{32+2*i}, v36, v37\nv_add_f32 v{33+2*i}, v38, v39")
    k.e(f"""
    v_lshrrev_b32 v{VY+3}, 1, v{VY+1}
    v_lshl_add_u32 v{VY+3}, v{VY+3}, 4, v{VY}
    v_permlane32_swap_b32 v32, v34
    v_permlane32_swap_b32 v33, v35
    v_and_b32 v{VY+4}, 1, v{VY+1}
    v_add_f32 v32, v32, v34
    v_add_f32 v33, v33, v35
    v_lshlrev_b32 v{VY+3}, 3, v{VY+3}
    v_lshl_add_u32 v{VY+3}, v{VY+4}, 2, v{VY+3}
    v_permlane16_swap_b32 v32, v33
    s_lshl_b32 s60, s76, 7
    v_add_f32 v32, v32, v33
    buffer_atomic_add_f32 v32, v{VY+3}, s[40:43], s60 offen
    """)
    cold = []
    if full:
        phase4(k, LAST, cold, **p4)
        phase5(k, LAST, cold, **p5)
    Lfin = k.label("fin")
    k.e(f"s_branch {Lfin}" if OPT.diag else "s_endpgm")
    k.e(";WARMEND")
    for x in cold: k.e(x)
    k.e(f"""
    {Lsp}:
    s_mov_b32 s94, {SPIN}
    {Lsp}_l:
    s_sleep 2
    s_sub_u32 s94, s94, 1
    s_cbranch_scc1 {Lok}
    buffer_load_dword v{VT+6}, v{VT+7}, s[32:35], 0 offen sc1
    s_waitcnt vmcnt(0)
    v_cmp_ne_u32 vcc, v{VT+5}, v{VT+6}
    s_nop 4
    s_cbranch_vccnz {Lsp}_l
    s_branch {Lok}
    """)
    Lm = k.label("maxloop"); Lp2 = k.label("pass2")
    k.e(f"{Lfb}:")
    srd(k, 24, 22, 23, S_*D_*4, WS_KV)
    ldk = [f"buffer_load_dwordx4 {a(AK(0,s_),4)}, v{VL16}, s[24:27], s51 offen offset:{s_*1024} sc1" for s_ in range(2)]
    ldv = [f"buffer_load_dwordx4 {a(AV(0,s_),4)}, v{VL16}, s[24:27], s51 offen offset:{2048+s_*1024} sc1" for s_ in range(2)]
    nxt = lambda L_: f"s_add_u32 s51, s51, 4096\ns_sub_u32 s50, s50, 1\ns_cmp_lg_u32 s50, 0\ns_cbranch_scc1 {L_}"
    k.e(f"s_waitcnt lgkmcnt(0)\ns_lshl_b32 s51, s67, 18\ns_mov_b32 s50, 64\nv_mov_b32 v{VX2}, 0xff800000\nv_mov_b32 v{VX2+1}, 0xff800000\n{Lm}:")
    k.e("\n".join(ldk + ["s_waitcnt vmcnt(0)"] + qk0(0) + qk0(1) + ["s_nop 15"]))
    for q in range(2):
        for r in range(0, 16, 2): k.e(f"v_max3_f32 v{VX2+q}, v{VX2+q}, v{VS(q)+r}, v{VS(q)+r+1}")
    k.e(nxt(Lm))
    k.e("\n".join(maxfin()))
    for r in list(range(VO(0), VO(0) + 32)) + list(range(VLs(0), VLs(0) + 8)): k.e(f"v_mov_b32 v{r}, 0")
    k.e(f"s_lshl_b32 s51, s67, 18\ns_mov_b32 s50, 64\n{Lp2}:")
    k.e("\n".join(ldk + ldv + ["s_waitcnt vmcnt(0)"] + qk(0) + qk(1) + ["s_nop 15"]))
    for q in range(2):
        for r in range(16): k.e(f"v_exp_f32 v{VS(q)+r}, v{VS(q)+r}")
        for r in range(8): k.e(f"v_cvt_pk_bf16_f32 v{VP(q)+r}, v{VS(q)+2*r}, v{VS(q)+2*r+1}")
    k.e("s_nop 1\n" + "\n".join(pv(0) + pv(1)) + "\ns_nop 7\n" + nxt(Lp2))
    k.e(f"""
    s_nop 15
    v_add_f32 v{VY+4}, v{VLs(0)}, v{VLs(0)+1}
    v_add_f32 v{VY+5}, v{VLs(1)}, v{VLs(1)+1}
    v_rcp_f32 v{VY+4}, v{VY+4}
    v_rcp_f32 v{VY+5}, v{VY+5}
    s_nop 0
    s_branch {Lno}
    {Lfin}:
    """)
    ffinish(k, k.nst - 1)
    if full and OPT.warm:
        st_ = add_warm_chains(k)
        if OPT.rep: print(st_, file=sys.stderr)
    return k


def gen_nop():
    k = KB("k9_kernel", 8, 0, 0)
    k.e("s_endpgm")
    return k

def all_kernels(**kw):
    g = lambda n: kw.get(n, {})
    if kw.get('mega'):
        OPT.mega = True
        return merge(all_kernels(**{a_: b_ for a_, b_ in kw.items() if a_ != 'mega'}))
    if kw.get('probe'):
        OPT.probe = True
        return all_kernels(**{a_: b_ for a_, b_ in kw.items() if a_ != 'probe'}) + [gen_probe(*kw['probe'])]
    if kw.get('dup'):
        ks = all_kernels(**{a_: b_ for a_, b_ in kw.items() if a_ != 'dup'})
        return sum([[x] * (2 if int(x.name[1]) in kw['dup'] else 1) for x in ks], [])
    if kw.get('nops'):
        ks = all_kernels(**{a_: b_ for a_, b_ in kw.items() if a_ != 'nops'}); n = gen_nop()
        return ks[:3] + [n] * kw['nops'] + ks[3:]
    if kw.get('nosplit'):
        return [gen_k0(**g('k0')), gen_k1(**g('k1')), gen_k2(**g('k2')), gen_small(3, **g('k3')), gen_k4(**g('k4')), gen_small(5, **g('k5'))]
    if not kw.get('nofront') and not kw.get('nofuse1') and not kw.get('nofull'):
        return [gen_front(full=True, p4=g('p4'), p5=g('p5'), **g('f'))]
    if not kw.get('nofront') and not kw.get('nofuse1'):
        return [gen_front(**g('f')), gen_k4(retile=True, **g('k4')), gen_k5s(**g('k5'))]
    first = [gen_k0(**g('k0')), gen_k1(**g('k1'))] if kw.get('nofuse1') else [gen_k1f(**g('k1'))]
    return first + [gen_k2(W2COLS=128, **g('k2')), gen_small(3, **g('k3')), gen_k4(**g('k4')), gen_k5s(**g('k5'))]

if __name__ == "__main__":
    hdr = "".join(l for l in open("sequential_preLN__softmax_full_mha__glu_gated_swiglu__prompt.s.ref") if l.startswith(";") and "@launch" not in l and "Override" not in l and "grid=ceil" not in l)
    kw = eval("dict(" + (sys.argv[1] if len(sys.argv) > 1 else "") + ")")
    for a_, b_ in kw.pop("opt", {}).items(): setattr(OPT, a_, b_)
    print(build_file(all_kernels(**kw), hdr))
```

```python
class KB:
    def __init__(self, name, nvgpr, nagpr, lds, block=256, grid=256):
        self.name = name; self.lines = []; self.nvgpr = nvgpr; self.nagpr = nagpr
        self.lds = lds; self.block = block; self.grid = grid; self._lab = 0
    def e(self, s):
        for l in s.strip("\n").split("\n"):
            l = l.strip()
            if not l: continue
            if l.endswith(":") or l.startswith("."): self.lines.append(l)
            else: self.lines.append("    " + l)
    def label(self, base):
        self._lab += 1
        return f"L_{self.name}_{base}_{self._lab}"
    def text(self):
        h = f".globl {self.name}\n" + (".p2align 12\n" if getattr(self, "page", False) else "") + f".p2align 8\n.type {self.name},@function\n{self.name}:\n"
        return h + "\n".join(self.lines) + "\n"
    def desc(self):
        acc = (self.nvgpr + 3) // 4 * 4
        nfv = acc + self.nagpr if self.nagpr else self.nvgpr
        return f""".p2align 6
.amdhsa_kernel {self.name}
  .amdhsa_next_free_vgpr {nfv}
  .amdhsa_next_free_sgpr 102
  .amdhsa_accum_offset {acc}
  .amdhsa_group_segment_fixed_size 0
  .amdhsa_kernarg_size 80
  .amdhsa_user_sgpr_count 2
  .amdhsa_user_sgpr_kernarg_segment_ptr 1
  .amdhsa_system_sgpr_workgroup_id_x 1
.end_amdhsa_kernel
"""
    def launch(self):
        return f"; @launch kernel={self.name} grid=({self.grid},1,1) block=({self.block},1,1) lds={self.lds}\n"

def v(i, n=1): return f"v{i}" if n == 1 else f"v[{i}:{i+n-1}]"
def a(i, n=1): return f"a{i}" if n == 1 else f"a[{i}:{i+n-1}]"
def s(i, n=1): return f"s{i}" if n == 1 else f"s[{i}:{i+n-1}]"

def srd(k, r, lo, hi, nbytes, off=0):
    if off:
        k.e(f"s_add_u32 s{r}, s{lo}, {hex(off)}\ns_addc_u32 s{r+1}, s{hi}, 0")
    else:
        k.e(f"s_mov_b32 s{r}, s{lo}\ns_mov_b32 s{r+1}, s{hi}")
    k.e(f"s_mov_b32 s{r+2}, {hex(nbytes)}\ns_mov_b32 s{r+3}, 0x20000")

def interleave(k, main, side):
    for x in side.get(-1, []): k.e(x)
    for i, m in enumerate(main):
        k.e(m)
        for x in side.get(i, []): k.e(x)

def build_file(kernels, header=""):
    out = header
    for k in kernels: out += k.launch()
    out += '.amdgcn_target "amdgcn-amd-amdhsa--gfx950"\n.text\n'
    seen = []
    for k in kernels:
        if k in seen: continue
        seen.append(k); out += k.text()
    out += '.section .rodata,"a"\n'
    for k in seen: out += k.desc()
    return out

import re
_reg = re.compile(r"\b([va])(?:\[(\d+):(\d+)\]|(\d+))")
def regs_of(opnd):
    out = set()
    for m in _reg.finditer(opnd):
        if m.group(2) is not None:
            for i in range(int(m.group(2)), int(m.group(3)) + 1): out.add((m.group(1), i))
        else: out.add((m.group(1), int(m.group(4))))
    return out
def flatten(main, side):
    out = list(side.get(-1, []))
    for i, m in enumerate(main):
        out.append(m); out += side.get(i, [])
    return out
def _is_mfma(x): return x.startswith(("v_mfma", "v_smfmac"))
def auto_lgkm(body, pre=(), cyclic=True, merge=0, hoist=False):
    def uses(ins):
        op = ins.split()[0]; ops = ins[len(op):].split(",")
        if op.startswith("ds_read"): return regs_of(",".join(ops[1:])), regs_of(ops[0])
        if op.startswith("ds_write"): return regs_of(",".join(ops)), set()
        if op.startswith("ds_"): return regs_of(",".join(ops[1:])), regs_of(ops[0])
        return regs_of(",".join(ops)), None
    def run(seq, pend):
        out = []
        for idx, ins in enumerate(seq):
            op = ins.split()[0]
            if op == "s_waitcnt":
                m = re.search(r"lgkmcnt\((\d+)\)", ins)
                if m:
                    n = int(m.group(1)); pend = pend[len(pend) - n:] if n < len(pend) else pend
                    if n == 0: pend = []
                out.append(ins); continue
            if op.startswith("s_"):
                out.append(ins); continue
            used, dst = uses(ins)
            last = -1
            for q, d in enumerate(pend):
                if d & used: last = q
            if last >= 0:
                pos = len(out); skipped = 0
                if hoist and _is_mfma(ins):
                    p2 = pos; sk = 0; ok = False
                    while p2 > 0:
                        y = out[p2 - 1]
                        if _is_mfma(y): ok = True; break
                        if y.startswith(("s_cbranch", "s_branch")) or y.endswith(":"): break
                        if y.startswith("ds_"): sk += 1
                        p2 -= 1
                    if ok and last < len(pend) - sk: pos, skipped = p2, sk
                if merge:
                    cnt = 0
                    for y in seq[idx + 1:]:
                        if _is_mfma(y):
                            u2, _ = uses(y)
                            for q, d in enumerate(pend[:len(pend) - skipped]):
                                if d & u2: last = max(last, q)
                            cnt += 1
                            if cnt >= merge: break
                n = len(pend) - 1 - last
                nn = min(n - skipped, 15)
                out.insert(pos, f"s_waitcnt lgkmcnt({nn})")
                keep = nn + skipped
                pend = pend[len(pend) - keep:] if keep else []
            out.append(ins)
            if dst is not None: pend = pend + [dst]
        return out, pend
    _, p0 = run(list(pre), [])
    o1, p1 = run(body, p0)
    if not cyclic:
        assert run(o1, p0)[0] == o1
        return o1
    o2, p2 = run(o1, p1)
    o3, p3 = run(o2, p2)
    assert o3 == o2
    o4, _ = run(o2, p0)
    assert o4 == o2
    return o2

def salu_first(seq):
    out = []; i = 0; n = len(seq)
    while i < n:
        out.append(seq[i])
        if _is_mfma(seq[i]):
            j = i + 1
            while j < n and not _is_mfma(seq[j]): j += 1
            gap = seq[i+1:j]
            if gap and not gap[0].startswith("s_"):
                for q, y in enumerate(gap):
                    if y.startswith("s_"):
                        if y.startswith(("s_waitcnt", "s_barrier", "s_cbranch", "s_branch", "s_nop", "s_STAMP", "s_mem")): break
                        if all(z.startswith("ds_") for z in gap[:q]): gap = [y] + gap[:q] + gap[q+1:]
                        break
            out += gap; i = j
        else: i += 1
    return out

def slot_report(seq, per=16):
    tot = 0; exc = 0; i = 0; n = len(seq)
    while i < n and not _is_mfma(seq[i]): i += 1
    while i < n:
        j = i + 1
        while j < n and not _is_mfma(seq[j]): j += 1
        gap = seq[i+1:j]
        c = 8 + sum(8 if y.startswith(("v_exp", "v_rcp", "v_rsq")) else 4 for y in gap) - (4 if gap and gap[0].startswith("s_") else 0)
        tot += max(c, per); exc += max(0, c - per); i = j
    return tot, exc

def resolve_vm(seq):
    out = []; ops = []; done = 0
    for ins in seq:
        if ins.startswith("WAITVM"):
            tags = set(ins.split()[1:])
            last = max([i for i, t in enumerate(ops) if t in tags], default=-1)
            assert last >= 0, ins
            if last + 1 > done:
                n = len(ops) - 1 - last
                assert n <= 63
                out.append(f"s_waitcnt vmcnt({n})"); done = last + 1
            continue
        tag = None
        if " @" in ins: ins, tag = ins.rsplit(" @", 1)
        op = ins.split()[0]
        if op.startswith(("buffer_load", "buffer_store", "buffer_atomic", "global_load", "global_store")): ops.append(tag)
        m = re.match(r"s_waitcnt.*vmcnt\((\d+)\)", ins)
        if m: done = max(done, len(ops) - int(m.group(1)))
        out.append(ins)
    return out
def lines(s): return [x.split(";")[0].strip() for x in s.strip().split("\n") if x.split(";")[0].strip()]

import subprocess, os, tempfile
def line_sizes(k):
    txt = '.amdgcn_target "amdgcn-amd-amdhsa--gfx950"\n.text\n' + f"{k.name}:\n" + "\n".join(l for l in k.lines if not l.startswith(".p2align")) + "\n"
    d = tempfile.mkdtemp(); s_ = os.path.join(d, "a.s"); o_ = os.path.join(d, "a.o")
    open(s_, "w").write(txt)
    subprocess.check_call(["clang", "-x", "assembler", "-target", "amdgcn-amd-amdhsa", "-mcpu=gfx950", "-c", s_, "-o", o_])
    dis = subprocess.check_output(["llvm-objdump", "-d", "--mcpu=gfx950", o_]).decode()
    sz = [4 * len(l.split("//")[1].split(":")[1].split("<")[0].split()) for l in dis.split("\n") if "//" in l]
    out = []; q = 0
    for l in k.lines:
        if l.startswith("    ") and not l.strip().startswith(";"): out.append(sz[q]); q += 1
        else: out.append(0)
    assert q == len(sz), (q, len(sz))
    return out

def add_warm_chains(k):
    L = []; marks = []
    for l in k.lines:
        t = l.strip()
        if t.startswith(";WARM "):
            _, name, nw, w0 = t.split(); nw = int(nw); w0 = int(w0); marks.append((name, nw))
            L.append("    s_mov_b64 exec, 0")
            for w in range(nw - 1): L += [f"    s_cmp_eq_u32 s3, {w0 + w}", f"    s_cbranch_scc1 @{name}@{w}"]
            L += [f"    s_branch @{name}@{nw-1}", f"L_warm_{name}_ret:", "    s_mov_b64 exec, -1", f"    ;MARK {name}"]
        else: L.append(l)
    k.lines = [re.sub(r"@(\w+)@\d+", r"L_warm_\1_ret", l) for l in L]
    sz = line_sizes(k)
    out = []; addr = None; cur = None; stubs = {n: [] for n, _ in marks}; page = 0; on = True; ez = False
    for l, n in zip(L, sz):
        t = l.strip()
        if t.startswith(".p2align"):
            al = 1 << int(t.split()[1])
            if al == 4096 and addr is None: addr = 0; page = 0
            elif addr is not None: addr = (addr + al - 1) // al * al
            out.append(l); continue
        if t.startswith(";MARK"): cur = t.split()[1]; continue
        if t == ";WARMEND": on = False; continue
        force = t == ";STUB"
        if addr is not None and on and cur and not ez and (force or (n and addr // 4096 > page)):
            page = max(page, addr // 4096)
            lab = f"L_stub_{sum(len(x) for x in stubs.values())}"; stubs[cur].append(lab)
            out += [f"{lab}:", f"    s_cbranch_execz @@{lab}"]; addr += 4
        if force: continue
        if t == "s_mov_b64 exec, 0": ez = True
        if t == "s_mov_b64 exec, -1": ez = False
        out.append(l)
        if addr is not None: addr += n
    nxt = {}; first = {}
    for name, nw in marks:
        for w in range(nw):
            ch = stubs[name][w::nw]
            first[(name, w)] = ch[0] if ch else f"L_warm_{name}_ret"
            for q, lab in enumerate(ch): nxt[lab] = ch[q+1] if q + 1 < len(ch) else f"L_warm_{name}_ret"
    res = []
    for l in out:
        l = re.sub(r"@@(\w+)", lambda m: nxt[m.group(1)], l)
        l = re.sub(r"@(\w+)@(\d+)", lambda m: first[(m.group(1), int(m.group(2)))], l)
        res.append(l)
    ez = False
    for l in res:
        t = l.strip()
        if t.startswith("s_mov_b64 exec"): ez = t.endswith(" 0")
        assert not (ez and t.startswith("s_cbranch_execz"))
    k.lines = res
    return stubs

class Sched:
    def __init__(self, main, budget=8):
        self.main = main; self.n = len(main); self.budget = budget
        self.front = [[] for _ in main]; self.ops = [[] for _ in main]; self.used = [0] * self.n; self.pre = []
    @staticmethod
    def cost(x):
        if x.startswith(("WAITVM", "STAMP", ";")): return 0 if not x.startswith("WAITVM") else 4
        c = 0
        for y in x.split("\n"):
            if y.endswith(":"): continue
            c += 8 if y.startswith(("v_exp", "v_rcp", "v_rsq")) else 4
            m = re.match(r"s_nop (\d+)", y)
            if m: c += 4 * int(m.group(1))
        return c
    @staticmethod
    def scalar(x): return x.startswith(("s_", "WAITVM"))
    def put(self, i, x, front_ok=True):
        if i < 0: self.pre.append(x); return
        if front_ok and self.scalar(x) and not self.front[i]:
            self.front[i].append(x); self.used[i] += self.cost(x) - 4
        else:
            self.ops[i].append(x); self.used[i] += self.cost(x)
    def free(self, i): return self.budget - self.used[i]
    def near(self, i, need=4, lo=None, hi=None):
        hi = self.n if hi is None else hi
        for q in range(i, hi):
            if self.free(q) >= need: return q
        return i
    def stream(self, ins, lo, hi):
        if not ins: return
        tot = sum(self.cost(x) for x in ins)
        cap = [max(0, self.free(q)) for q in range(lo, hi)]
        if sum(cap) < tot:
            ex = (tot - sum(cap)) / (hi - lo); cap = [c + ex for c in cap]; scale = 1.0
        else: scale = tot / sum(cap)
        q = lo; credit = 0.0; i = 0; fits = scale < 1.0
        while i < len(ins):
            credit += cap[q - lo] * scale; first = True
            while i < len(ins):
                c = self.cost(ins[i])
                freeslot = first and self.scalar(ins[i]) and not self.front[q]
                last = q == hi - 1
                if not last:
                    if credit < c / 2: break
                    if fits and not freeslot and self.free(q) < c: break
                self.put(q, ins[i], front_ok=first); credit -= c; i += 1; first = False
            q += 1
        return q
    def flat(self):
        out = list(self.pre)
        for i, m in enumerate(self.main): out += [m] + self.front[i] + self.ops[i]
        return out
```

```python
import sys, struct
from asmlib import *

S_, D_, F_ = 2048, 1024, 3584
MB = 1 << 20
PLANE = 16 * MB
WS_XN = 0; WS_Q = 4*MB; WS_KV = 8*MB; WS_H = 16*MB
WS_ST = 20*MB; WS_CS = WS_ST + 0x4000; WS_FLAG = WS_ST + 0x10000; WS_CNT = WS_ST + 0x38000; ZERO_BYTES = 0x40000
WS_STAMP = 21*MB
WS_CSP1 = 22*MB; WS_MU = WS_CSP1 + 0x40000; WS_RS = WS_MU + 0x2000
WS_O = 32*MB; WS_W2T = 38*MB
WS_G = 64*MB
WS_EX = 96*MB
RELOC = PLANE - 384
LOG2E = 1.4426950408889634
OOB = 0x40000000
SPIN = 0x40000
KNAME = "sequential_preLN__softmax_full_mha__glu_gated_swiglu__prompt_kernel"
def fbits(x): return hex(struct.unpack("<I", struct.pack("<f", x))[0])

class Opt:
    diag = False
    st = "sc1"
    reloc = True
    codepf = True
    rep = False
    only = None
    warm = True
OPT = Opt()

def prologue(k, nwg=256):
    k.e(f"""
    s_cmp_ge_u32 s2, {nwg}
    s_cbranch_scc1 L_{k.name}_end
    s_load_dwordx16 s[4:19], s[0:1], 0
    s_load_dwordx4 s[20:23], s[0:1], 64
    v_lshrrev_b32 v1, 6, v0
    v_and_b32 v0, 63, v0
    v_readfirstlane_b32 s3, v1
    s_and_b32 s44, s2, 7
    s_lshr_b32 s45, s2, 3
    """)

def udiv_const(k, dst, src, c):
    sh = 20
    m = (1 << sh) // c + 1
    for x in range(0, 4096): assert (x * m) >> sh == x // c
    k.e(f"v_mul_u32_u24 v{dst}, {m}, v{src}\nv_lshrrev_b32 v{dst}, {sh}, v{dst}")

def tile_map(k, nb_m, nb_x, sm, sn):
    k.e(f"""
    s_and_b32 s{sm}, s44, {(1<<nb_x)-1}
    s_lshl_b32 s{sm}, s{sm}, {nb_m}
    s_and_b32 s{sn}, s45, {(1<<nb_m)-1}
    s_add_u32 s{sm}, s{sm}, s{sn}
    s_lshr_b32 s{sn}, s44, {nb_x}
    s_lshl_b32 s{sn}, s{sn}, {5-nb_m}
    s_lshr_b32 s79, s45, {nb_m}
    s_add_u32 s{sn}, s{sn}, s79
    """)

def reloc(k, addr, tmp):
    if not OPT.reloc: return
    k.e(f"""
    v_bfe_u32 v{tmp}, v{addr}, 7, 2
    v_add_u32 v{tmp}, 1, v{tmp}
    v_lshrrev_b32 v{tmp}, 2, v{tmp}
    v_mul_u32_u24 v{tmp}, {RELOC}, v{tmp}
    v_add_u32 v{addr}, v{addr}, v{tmp}
    """)

def code_pf_addr(k, first, last, vaddr, lane, chunk_s):
    L = k.label("pc")
    k.e(f"""
    s_getpc_b64 s[76:77]
    {L}:
    s_add_u32 s76, s76, {first}-{L}
    s_addc_u32 s77, s77, ({first}-{L})>>32
    s_lshl_b32 s78, s45, 2
    s_add_u32 s78, s78, s3
    s_lshl_b32 s78, s78, 9
    v_and_b32 v{vaddr}, 3, v{lane}
    v_lshl_add_u32 v{vaddr}, v{vaddr}, 7, s78
    v_min_u32 v{vaddr}, {last}-{first}, v{vaddr}
    v_mov_b32 v{vaddr+1}, s77
    v_add_co_u32 v{vaddr}, vcc, s76, v{vaddr}
    s_nop 1
    v_addc_co_u32 v{vaddr+1}, vcc, 0, v{vaddr+1}, vcc
    """)
def code_pf(vdst, vaddr):
    return f"global_load_dword v{vdst}, v[{vaddr}:{vaddr+1}], off"

def pk(op, d, *srcs):
    ops = []; lo = []; hi = []; neg = []
    for s_ in srcs:
        if isinstance(s_, tuple):
            r = s_[1]; ops.append(v(r & ~1, 2)); lo.append(r & 1); hi.append(r & 1); neg.append(int(s_[0] == 'nb'))
        else:
            assert s_ % 2 == 0
            ops.append(v(s_, 2)); lo.append(0); hi.append(1); neg.append(0)
    f = lambda x: "[" + ",".join(map(str, x)) + "]"
    t = f"v_pk_{op}_f32 {v(d,2)}, " + ", ".join(ops) + f" op_sel:{f(lo)} op_sel_hi:{f(hi)}"
    if any(neg): t += f" neg_lo:{f(neg)} neg_hi:{f(neg)}"
    return t

def sprinkle(base, extra):
    out = []; n = len(base); m = len(extra); q = 0
    for i, b in enumerate(base):
        out.append(b)
        while q < m and (q + 1) * n <= (i + 1) * (m + 1):
            out += extra[q]; q += 1
    for x in extra[q:]: out += x
    return out
def with_nop(op):
    return [op[0], "s_nop 0", op[1]] if len(op) > 1 else list(op)

def allreduce64(k, regs, tmp):
    for sh in (8, 4, 2, 1):
        k.e("s_nop 1")
        for r in regs: k.e(f"v_add_f32_dpp v{r}, v{r}, v{r} row_ror:{sh} row_mask:0xf bank_mask:0xf")
    for sw in ("v_permlane16_swap_b32", "v_permlane32_swap_b32"):
        for q, r in enumerate(regs): k.e(f"v_mov_b32 v{tmp+q}, v{r}")
        k.e("s_nop 1")
        for q, r in enumerate(regs): k.e(f"{sw} v{r}, v{tmp+q}")
        k.e("s_nop 1")
        for q, r in enumerate(regs): k.e(f"v_add_f32 v{r}, v{r}, v{tmp+q}")

def fstamp(k, i):
    if OPT.diag and (OPT.only is None or i in OPT.only):
        k.e(f"s_memrealtime s[96:97]\ns_memtime s[98:99]\ns_waitcnt lgkmcnt(0)\nv_writelane_b32 v254, s96, {i}\nv_writelane_b32 v255, s98, {i}")
def ffinish(k, i):
    if OPT.diag:
        k.e("s_waitcnt vmcnt(0)")
        fstamp(k, i)
        srd(k, 96, 22, 23, MB, WS_STAMP + 0x80000)
        k.e("v_mbcnt_lo_u32_b32 v0, -1, 0\nv_mbcnt_hi_u32_b32 v0, -1, v0\nv_lshlrev_b32 v0, 3, v0\ns_lshl_b32 s100, s2, 2\ns_add_u32 s100, s100, s3\ns_lshl_b32 s100, s100, 9")
        k.e("buffer_store_dwordx2 v[254:255], v0, s[96:99], s100 offen")
    k.e(f"L_{k.name}_end:\ns_endpgm")


def lane_id(k, r): k.e(f"v_mbcnt_lo_u32_b32 v{r}, -1, 0\nv_mbcnt_hi_u32_b32 v{r}, -1, v{r}")
def signal(k, vone, vfa, off_s, tmp_s):
    k.e(f"s_lshl_b32 s{tmp_s}, s3, 20\ns_add_u32 s{tmp_s}, s{tmp_s}, s{off_s}\nbuffer_atomic_add v{vone}, v{vfa}, s[88:91], s{tmp_s} offen sc1")
def wait_multi(k, vaddr, nl, soff, target, vt, nwait=0):
    L2 = k.label("pdone"); L0 = k.label("poller"); L1 = k.label("poll"); L3 = k.label("pend")
    if OPT.warm: k.e(f"s_cmp_eq_u32 s3, 0\ns_cbranch_scc1 {L0}\ns_branch {L2}\n{L0}:")
    else: k.e(f"s_cmp_lg_u32 s3, 0\ns_cbranch_scc1 {L2}")
    k.e(f"""
    s_mov_b32 s50, {SPIN}
    s_mov_b64 exec, {(1 << nl) - 1}
    {L1}:
    v_mov_b32 v{vt}, 0
    s_sub_u32 s50, s50, 1
    s_cbranch_scc1 {L3}
    buffer_atomic_add v{vt}, v{vaddr}, s[88:91], {soff} offen sc0 sc1
    s_waitcnt vmcnt(0)
    v_cmp_gt_u32 vcc, {target}, v{vt}
    s_nop 4
    s_cbranch_vccnz {L1}
    {L3}:
    s_mov_b64 exec, -1
    {L2}:
    s_waitcnt vmcnt({nwait})
    s_barrier
    """)
C2 = 2048; C3 = 4096; C4 = 6144; C6 = 8192

def phase4(k, LAST, cold, D=3, MG=1, M=4, PL=7, EF=4, LEAD=56, GAP=4, PRE1=True, fine=False):
    STG = 28672; NSL = 5; CSB = NSL * STG
    ACC = lambda j, i: (j * 4 + i) * 4
    VD = 224; VX = 231; VR = 232; VFA = 249; VA = 236; CT = 244; VL = 235; VPD = 253; VPF = 252; VPA = 250
    T = 40
    AX = lambda n, i, s_: (n % NSL) * 32 + (i * 2 + s_) * 4
    AW = lambda g, s_: 160 + (g % 7) * 8 + s_ * 4
    Lst = k.label("code4")
    lane_id(k, VL)
    tile_map(k, 2, 1, 46, 47)
    k.e(f"""
    s_and_b32 s50, s3, 1
    s_mul_i32 s50, s50, 448
    s_mul_i32 s51, s47, 224
    s_cmp_lt_u32 s3, 2
    s_cselect_b32 s24, s12, s14
    s_cselect_b32 s25, s13, s15
    s_mov_b32 s26, {D_*F_*2}
    s_mov_b32 s27, 0x20000
    s_mul_i32 s53, s3, 7168
    """)
    def dops(n):
        d = []
        for i in range(7):
            pre = []
            if i == 0: pre.append(f"s_mov_b32 s56, {n*64*7168}")
            if i % 4 == 0: pre.append(f"s_add_u32 m0, s53, {(n % NSL)*STG + i*1024}")
            d.append((pre, f"buffer_load_dwordx4 v{VD+i}, s[24:27], s56 offen offset:{(i%4)*1024} lds @s{n}"))
        return d
    def xops(n):
        return [([f"s_add_u32 s57, s49, {i*32768 + n*2048}"] if s_ == 0 else [],
                 f"buffer_load_dwordx4 {a(AX(n,i,s_),4)}, v{VX}, s[28:31], s57 offen offset:{s_*1024} sc1 @s{n}") for i in range(4) for s_ in range(2)]
    strip = lambda x: x.split(" @")[0]
    def direct(ops):
        o_ = []
        for pre, x in ops: o_ += pre + (["s_nop 0"] if any("m0" in y for y in pre) else []) + [x]
        return o_
    d0 = dops(0)
    for i in range(7):
        k.e(f"v_add_u32 v{T}, s50, v{VL}")
        if i: k.e(f"v_add_u32 v{T}, {64*i}, v{T}")
        udiv_const(k, T+1, T, 14)
        k.e(f"""
        v_mul_u32_u24 v{T+1}, {7168 - 224}, v{T+1}
        v_lshl_add_u32 v{T+1}, v{T}, 4, v{T+1}
        v_add_u32 v{VD+i}, s51, v{T+1}
        """)
        if i % 4: k.e(f"v_subrev_u32 v{VD+i}, {(i%4)*1024}, v{VD+i}")
        for x in direct(d0[i:i+1]): k.e(strip(x))
    k.e(f"""
    v_lshlrev_b32 v{VFA}, 20, v{VL}
    v_mov_b32 v{VPD}, 1
    s_lshl_b32 s60, s92, 7
    s_add_u32 s60, s60, {C3}
    s_waitcnt vmcnt(7)
    s_barrier
    """)
    signal(k, VPD, VFA, 60, 61)
    fstamp(k, 11)
    if PRE1:
        for x in direct(dops(1)): k.e(strip(x))
    k.e(f"""
    s_lshl_b32 s48, s46, 4
    s_lshl_b32 s49, s3, 2
    s_add_u32 s48, s48, s49
    s_lshl_b32 s49, s48, 15
    v_lshlrev_b32 v{VX}, 4, v{VL}
    s_lshl_b32 s55, s3, 10
    s_add_u32 s55, s55, {CSB}
    v_lshrrev_b32 v4, 2, v{VL}
    v_mul_u32_u24 v4, 224, v4
    v_and_b32 v5, 3, v{VL}
    v_lshl_add_u32 v{VR}, v5, 3, v4
    v_add_u32 v{VR+1}, {2*STG}, v{VR}
    v_add_u32 v{VR+2}, {4*STG}, v{VR}
    s_lshl_b32 s62, s46, 8
    s_add_u32 s62, s62, {C3}
    v_and_b32 v{T+8}, 1, v{VL}
    v_lshlrev_b32 v{T+8}, 7, v{T+8}
    """)
    srd(k, 40, 22, 23, 2*F_*4, WS_CS); srd(k, 36, 22, 23, S_*8, WS_ST); srd(k, 28, 22, 23, S_*D_*2, WS_H)
    srd(k, 32, 22, 23, PLANE + S_*F_*2, WS_G)
    k.e(f"""
    s_mul_i32 s60, s48, {224*512}
    s_mul_i32 s61, s47, {7*512}
    s_add_u32 s60, s60, s61
    s_add_u32 s61, s60, {2*224*512}
    s_mul_i32 s58, s47, 448
    s_lshl_b32 s63, s48, 7
    s_lshl_b32 s94, s46, 1
    s_lshr_b32 s51, s47, 4
    s_add_u32 s94, s94, s51
    s_lshl_b32 s94, s94, 7
    s_add_u32 s94, s94, {C4}
    """)
    if OPT.codepf:
        code_pf_addr(k, Lst, LAST, VPA, VL, 3); k.e(code_pf(VPF, VPA))
    wait_multi(k, T+8, 2, "s62", 16, T+3)
    k.e(f"{Lst}:")
    fstamp(k, 12)
    groups = [(n, j) for n in range(16 - M) for j in range(14)]
    for p in range(7):
        for j in (p, p + 7): groups += [(n, j) for n in range(16 - M, 16)]
    def reads(g):
        n, j = groups[g]; sl = n % NSL
        off0 = (sl % 2) * STG + (j // 7) * 14336 + (j % 7) * 32
        return [f"ds_read_b64_tr_b16 {a(AW(g, s_) + 2*rd, 2)}, v{VR + sl//2} offset:{off0 + (32*s_ + 16*rd)*224}" for s_ in range(2) for rd in range(2)]
    main = []
    for g, (n, j) in enumerate(groups):
        for i in range(4):
            for s_ in range(2):
                c_ = v(ACC(j,i),4) if (n or s_) else "0"
                main.append(f"v_mfma_f32_16x16x32_bf16 {v(ACC(j,i),4)}, {a(AW(g,s_),4)}, {a(AX(n,i,s_),4)}, {c_}")
    S = Sched(main)
    SB = lambda n: 112 * n
    NB = 8 * (14 - D)
    NR = 16 - M
    early = lambda n: n + NSL < 16 and n >= EF
    for g in range(D, len(groups)):
        n, j = groups[g]
        if g < 14 * NR and early(n) and j >= 12:
            for q, x in enumerate(reads(g)): S.put(SB(n) + 8 * (12 - D) + 5 * (j - 12) + q + (q > 1), x)
        else:
            for q, x in enumerate(reads(g)): S.put(8 * (g - D) + 2 * q, x)
    for n in range(1, NR + 1):
        tags = f"s{n}" if n < NR else " ".join(f"s{q}" for q in range(NR, 16))
        if early(n - 1): S.put(SB(n-1) + NB - 2, "s_waitcnt lgkmcnt(0)")
        S.put(SB(n-1) + NB - 1, "WAITVM " + tags); S.put(SB(n-1) + NB - 1, "s_barrier")
    ld = [(1, o) for o in (xops(1)[4:] if PRE1 else dops(1)[4:] + xops(1))]
    for n in range(2, 16):
        d_, x_ = dops(n), xops(n)
        ld += [(n, o) for o in (d_[:4] + x_[:4] + d_[4:] + x_[4:] if n < 8 else d_ + x_)]
    end_all = SB(NR - 1) + NB - LEAD
    pos = 1; step = (end_all - 1) / len(ld)
    for q, (n, (pre, x)) in enumerate(ld):
        want = max(pos, int(1 + q * step)) if n > 1 else pos
        if n >= NSL:
            fr = n - NSL
            lo = SB(fr) + NB if early(fr) else SB(fr + 1) + NB
            if "lds" not in x: lo = SB(fr + 1)
            want = max(want, lo + 1)
        want = S.near(want | 1, 8)
        if n < NR: assert want <= SB(n - 1) + NB - 40, (n, want)
        else: assert want < SB(NR - 1) + NB - 24, (n, want)
        for y in pre: S.put(want - 1, y)
        S.put(want, x); pos = want + GAP
        if OPT.rep and pre and "s56" in pre[0]: print("stage", n, "starts at", want / 112, file=sys.stderr)
    if OPT.codepf:
        for n in (4, NR - 3): S.put(S.near(SB(n) + 33, 8), code_pf(VPF, VPA))
    def gcheck(va, vd, mask, soff, target, p0, p1, tag):
        Lsp = k.label("gspin")
        S.stream([f"v_and_b32 v{va}, {mask}, v{VL}", f"v_lshlrev_b32 v{va}, 7, v{va}", f"s_mov_b32 s73, {soff}"], p0 - 12, p0 - 1)
        S.put(S.near(p0, 4), f"buffer_load_dword v{vd}, v{va}, s[88:91], s73 offen sc1 @{tag}")
        S.put(p1, f"WAITVM {tag}"); S.put(p1, f"v_cmp_gt_u32 vcc, {target}, v{vd}"); S.put(p1 + 4, f"s_cbranch_vccnz {Lsp}\n{Lsp}_r:")
        cold.extend(lines(f"""
        {Lsp}:
        s_mov_b32 s50, {SPIN}
        {Lsp}_l:
        s_sub_u32 s50, s50, 1
        s_cbranch_scc1 {Lsp}_r
        s_sleep 16
        buffer_load_dword v{vd}, v{va}, s[88:91], s73 offen sc1
        s_waitcnt vmcnt(0)
        v_cmp_gt_u32 vcc, {target}, v{vd}
        s_nop 4
        s_cbranch_vccnz {Lsp}_l
        s_branch {Lsp}_r
        """))
    S.stream(lines(f"""
    v_cmp_lt_u32 vcc, 27, v{VL}
    v_mov_b32 v{CT+2}, {F_*4 - 28*16}
    v_and_b32 v{CT+3}, 15, v{VL}
    v_cndmask_b32 v{CT+2}, 0, v{CT+2}, vcc
    v_add_u32 v{CT+2}, v{CT+2}, v{VX}
    v_lshlrev_b32 v{CT+3}, 3, v{CT+3}
    """), SB(PL - 1), SB(PL) - 20)
    p_ = SB(PL + 1)
    gcheck(CT, CT + 1, 15, C3, 16, SB(PL) + 1, p_, "pl")
    p_ += 6
    for i in range(4):
        p_ = S.near(p_ + 1, 8); S.put(p_, f"buffer_load_dwordx2 {v(VA+2*i,2)}, v{CT+3}, s[36:39], s63 offen offset:{i*128} sc1 @st")
    q_ = next(q for q in range(p_ + 2, S.n) if any("m0" in y for y in S.front[q] + S.ops[q]))
    assert not any("lds" in y for y in S.ops[q_ - 1] + S.ops[q_ - 2] + S.ops[q_])
    S.put(q_ - 2, "s_mov_b32 m0, s55"); S.put(q_ - 1, f"buffer_load_dwordx4 v{CT+2}, s[40:43], s58 offen sc1 lds @st")
    st2 = ["WAITVM st"]
    for i in range(4):
        b = VA + 2 * i
        st2 += lines(f"""v_mul_f32 v{b}, {fbits(-1.0/D_)}, v{b}
        v_mul_f32 v{b+1}, {fbits(1.0/D_)}, v{b+1}
        v_fma_f32 v{b+1}, -v{b}, v{b}, v{b+1}
        v_max_f32 v{b+1}, 0, v{b+1}
        v_add_f32 v{b+1}, {fbits(1e-5)}, v{b+1}""")
    st2 += [f"v_lshrrev_b32 v{CT+4}, 4, v{VL}", f"v_lshl_add_u32 v{CT+4}, v{CT+4}, 4, s55"]
    assert q_ < SB(PL + 2) - 16
    S.stream(st2, SB(PL + 2) + 40, SB(PL + 3) - 10)
    c0 = SB(PL + 3); assert PL + 5 <= NR
    for q in range(14):
        g0 = 2 * q; j = (g0 + 7 + q // 7) % 14
        w0 = c0 + 8 * g0
        S.put(w0 - 1, f"ds_read_b128 {v(CT,4)}, v{CT+4} offset:{j*64}")
        S.stream([f"v_fmac_f32 v{ACC(j,i)+r}, v{CT+r}, v{VA+2*i}" for i in range(4) for r in range(4)], w0 + 4, w0 + 15)
    c1 = c0 + 224
    kk = KB("t", 0, 0, 0)
    for i in range(4): kk.e(f"v_rsq_f32 v{VA+2*i}, v{VA+2*i+1}")
    kk.e(f"v_and_b32 v{CT}, 31, v{VL}\nv_lshlrev_b32 v{CT}, 4, v{CT}")
    reloc(kk, CT, CT+1)
    kk.e(f"v_lshrrev_b32 v{CT+1}, 5, v{VL}\nv_mul_u32_u24 v{CT+1}, {224*512}, v{CT+1}\nv_add_u32 v{CT}, v{CT}, v{CT+1}")
    for i in range(4): kk.e(f"v_mul_f32 v{VA+2*i}, {fbits(-LOG2E)}, v{VA+2*i}")
    T0 = SB(NR)
    S.stream(lines("\n".join(kk.lines)), c1, min(c1 + 40, T0 + 16 * M))
    def epi(j, p, packed):
        ii = (2*p, 2*p+1); o_ = []
        G = lambda i: ACC(j, i); Uu = lambda i: ACC(j + 7, i)
        def op(name, d, s0, s1, s2=None):
            if packed: return [pk(name, d + r, *[(x + r if isinstance(x, int) else x) for x in (s0, s1, s2) if x is not None]) for r in (0, 2)]
            f_ = lambda x, r: f"v{x + r}" if isinstance(x, int) else f"v{x[1]}"
            return [f"v_{name}_f32 v{d+r}, " + ", ".join(f_(x, r) for x in (s0, s1, s2) if x is not None) for r in range(4)]
        for i in ii: o_ += op("mul", Uu(i), Uu(i), G(i)) + op("mul", G(i), G(i), ('b', VA+2*i))
        ex = [f"v_exp_f32 v{G(i)+r}, v{G(i)+r}" for i in ii for r in range(4)]
        fm = sum([op("fma", G(i), G(i), ('b', VA+2*i+1), ('b', VA+2*i+1)) for i in ii], [])
        rc = [f"v_rcp_f32 v{G(i)+r}, v{G(i)+r}" for i in ii for r in range(4)]
        ml = sum([op("mul", Uu(i), Uu(i), G(i)) for i in ii], [])
        o = G(2*p)
        fin_ = [f"v_cvt_pk_bf16_f32 v{o}, v{Uu(2*p)}, v{Uu(2*p)+1}", f"v_cvt_pk_bf16_f32 v{o+2}, v{Uu(2*p+1)}, v{Uu(2*p+1)+1}",
                f"v_cvt_pk_bf16_f32 v{o+1}, v{Uu(2*p)+2}, v{Uu(2*p)+3}", f"v_cvt_pk_bf16_f32 v{o+3}, v{Uu(2*p+1)+2}, v{Uu(2*p+1)+3}",
                f"v_permlane32_swap_b32 v{o}, v{o+2}", "s_nop 0", f"v_permlane32_swap_b32 v{o+1}, v{o+3}",
                f"buffer_store_dwordx4 {v(o,4)}, v{CT}, s[32:35], s{60+p} offen offset:{j*512} sc1"]
        return o_, ex, fm, rc, ml, fin_
    def zipl(x, y):
        o_ = []
        for q in range(max(len(x), len(y))): o_ += x[q:q+1] + y[q:q+1]
        return o_
    for p in range(6):
        A_, B_ = epi(p, 0, False), epi(p, 1, False)
        seq = A_[0] + zipl(A_[1], B_[0][:8]) + A_[2] + zipl(A_[3], B_[0][8:]) + zipl(B_[1], A_[4]) + B_[2] + zipl(B_[3], A_[5]) + B_[4] + B_[5]
        w0 = T0 + 16 * M * (p + 1)
        S.stream(seq, w0 + 2, w0 + 16 * M)
    if OPT.diag and fine:
        for q in range(32):
            S.put(56 * q + 1, "s_memtime s[98:99]"); S.put(56 * q + 41, f"v_writelane_b32 v255, s98, {24 + q}")
    Z = direct(xops(0)) + sum([reads(g) for g in range(D)], []) + direct(xops(1)[:4] if PRE1 else dops(1)[:4]) + ["WAITVM s0", "STAMP13"] + S.flat() + ["STAMP14", "s_barrier", "s_nop 5"]
    for p in range(2): Z += sum([list(x) for x in epi(6, p, True)], [])
    Z = auto_lgkm([x if not x.startswith("STAMP") else "s_" + x for x in resolve_vm(Z)], cyclic=False, merge=MG, hoist=True)
    if OPT.rep: print("p4", slot_report(Z[:Z.index("s_STAMP14")]), file=sys.stderr)
    for x in Z:
        if x.startswith("s_STAMP"): fstamp(k, int(x[7:]))
        else: k.e(x)

def phase5(k, LAST, cold, D=3, DIST=3, U=6, MG=1):
    NS = 28; STG = 16384; NH = 3
    NT = DIST + 1
    assert (NS - NT) % U == 0 and U >= DIST + 2
    ACC = lambda j, i: (j * 2 + i) * 4
    VW = lambda g, s_: 64 + (g % 4) * 8 + s_ * 4
    VD = 128; VX = 130; VR = 132; VL = 235; VFA = 249; VONE = 253; VL16 = 148; VT = 150; VRES = 160
    AX = lambda st, i, s_: st * 16 + (i * 2 + s_) * 4
    k.e(f"""
    s_and_b32 s52, s44, 1            ; kh
    s_bfe_u32 s46, s44, 0x10001
    s_lshl_b32 s46, s46, 3
    s_and_b32 s47, s45, 7
    s_add_u32 s46, s46, s47          ; tm
    s_lshr_b32 s47, s44, 2
    s_lshl_b32 s47, s47, 2
    s_lshr_b32 s48, s45, 3
    s_add_u32 s47, s47, s48          ; cn
    s_xor_b32 s63, s2, 1             ; partner
    v_lshlrev_b32 v{VL16}, 4, v{VL}
    v_mov_b32 v{VT}, v{VL16}
    s_lshl_b32 s53, s3, 12
    s_mul_i32 s50, s47, {F_*256}
    s_add_u32 s50, s50, s53
    s_mul_i32 s56, s52, {1792*256}
    s_mul_i32 s57, s52, {56*1024}
    """)
    reloc(k, VT, VT+1)
    k.e(f"v_add_u32 v{VD}, s50, v{VT}")
    srd(k, 24, 22, 23, PLANE + F_*D_*2, WS_W2T)
    def wops(slot):
        ops = []
        for q in range(4):
            o = [f"buffer_load_dwordx4 v{VD}, s[24:27], s56 offen offset:{q*1024} sc1 lds"]
            if q == 0: o = [f"s_add_u32 m0, s53, {slot*STG}"] + o
            ops.append(o)
        return ops
    def xops(slot): return [[f"buffer_load_dwordx4 {a(AX(slot,q//2,q%2),4)}, v{VX+q//2}, s[32:35], s57 offen offset:{(q%2)*1024} sc1"] for q in range(4)]
    def vmem_ops(slot): return sum([[w_, x_] for w_, x_ in zip(wops(slot), xops(slot))], [])
    for st in range(2):
        for o in wops(st): k.e("\n".join(with_nop(o)))
        k.e("s_add_u32 s56, s56, 16384")
    k.e(f"""
    s_lshl_b32 s48, s46, 3
    s_lshl_b32 s49, s3, 1
    s_add_u32 s48, s48, s49
    s_mul_i32 s49, s48, {F_*32}
    s_lshl_b32 s51, s47, 1
    s_add_u32 s93, s51, s52
    v_add_u32 v{VX}, s49, v{VT}
    v_add_u32 v{VX+1}, {F_*32}, v{VX}
    v_and_b32 v{VT}, 31, v{VL}
    v_lshrrev_b32 v{VT}, 2, v{VT}
    v_lshrrev_b32 v{VT+1}, 5, v{VL}
    v_lshl_add_u32 v{VT+1}, v{VT+1}, 4, v{VT}
    s_lshl_b32 s54, s52, 2
    v_xor_b32 v{VT}, s54, v{VT}
    v_lshlrev_b32 v{VT}, 5, v{VT}
    v_lshl_add_u32 v{VT}, v{VT+1}, 8, v{VT}
    v_and_b32 v{VT+1}, 3, v{VL}
    v_lshl_add_u32 v{VR}, v{VT+1}, 3, v{VT}
    """)
    for fb in range(1, 8): k.e(f"v_xor_b32 v{VR+fb}, {fb*32}, v{VR}")
    for fb in range(8): k.e(f"v_add_u32 v{VR+8+fb}, 0x10000, v{VR+fb}")
    for r in range(64): k.e(f"v_mov_b32 v{r}, 0")
    k.e("s_waitcnt vmcnt(8)\ns_barrier")
    signal(k, VONE, VFA, 94, 61)
    fstamp(k, 15)
    for st in range(2, DIST):
        for o in wops(st): k.e("\n".join(with_nop(o)))
        k.e("s_add_u32 s56, s56, 16384")
    k.e(f"""
    s_lshl_b32 s60, s48, 15
    s_lshl_b32 s61, s93, 11
    s_add_u32 s60, s60, s61
    s_add_u32 s61, s60, 32768
    s_lshr_b32 s62, s46, 1
    s_lshl_b32 s62, s62, 1
    s_add_u32 s62, s62, s52
    s_lshl_b32 s62, s62, 7
    s_add_u32 s62, s62, {C4}
    """)
    for i in range(2):
        for p in range(2): k.e(f"buffer_load_dwordx4 {v(VRES+i*8+p*4,4)}, v{VL16}, s[28:31], s{60+i} offen offset:{p*1024} sc1")
    wait_multi(k, VFA, 1, "s62", 16, VT+3)
    fstamp(k, 16)
    def wreads(slot, g):
        return [f"ds_read_b64_tr_b16 {v(VW(g,s_)+2*rd,2)}, v{VR+8*(slot//4)+g} offset:{(slot%4)*STG + s_*8192 + rd*2048}" for s_ in range(2) for rd in range(2)]
    adv = ["s_add_u32 s56, s56, 16384", "s_add_u32 s57, s57, 2048"]
    def stage(n, left, loopend=False):
        st = n % U
        main = []; side = {}
        vm_a = vmem_ops((st + DIST) % U)[NH:] if left >= DIST else []
        vm_b = vmem_ops((st + DIST + 1) % U)[:NH] if left >= DIST + 1 else []
        nwait = 8 * (min(left, DIST) - 1)
        if left > DIST and st < DIST - 2: nwait -= 4 * (DIST - 2 - st)
        for g in range(8):
            for i in range(2):
                for s_ in range(2):
                    main.append(f"v_mfma_f32_16x16x32_bf16 {v(ACC(g,i),4)}, {v(VW(g,s_),4)}, {a(AX(st,i,s_),4)}, {v(ACC(g,i),4)}")
        def place(o, pos):
            if len(o) > 1: side.setdefault(pos - 1, []).append(o[0])
            side.setdefault(pos, []).append(o[-1])
        nb = 4 * (8 - D)
        for q, o in enumerate(vm_a): place(o, 1 + q * (nb - 2) // len(vm_a))
        if left >= DIST + 1:
            for q, x in enumerate(adv): side.setdefault(nb - 1 - len(adv) + q, []).append(x)
        if left >= 1: side.setdefault(nb - 1, []).extend([f"s_waitcnt vmcnt({nwait})", "s_barrier"])
        for q, o in enumerate(vm_b): place(o, nb + 1 + q * (4 * D - 1) // len(vm_b))
        heads = []
        for g in range(8):
            gg = g + D
            if gg >= 8 and left == 0: continue
            rd = wreads(st if gg < 8 else (st + 1) % U, gg % 8)
            if gg >= 8: heads += rd
            for q, x in enumerate(rd): side.setdefault(4 * g + q, []).append(x)
        if loopend:
            side.setdefault(29, []).append("s_sub_u32 s62, s62, 1")
            side.setdefault(30, []).append("s_cmp_lg_u32 s62, 0")
        return flatten(main, side), heads
    body = []
    for st in range(U):
        b_, heads = stage(st, 99, st == U - 1); body += b_
    tail = []
    for st in range(NT): tail += stage(st, NT - 1 - st)[0]
    body = salu_first(auto_lgkm(body, heads, merge=MG, hoist=True))
    tail = salu_first(auto_lgkm(tail, heads, cyclic=False, merge=MG, hoist=True))
    for st in range(DIST):
        for o in xops(st): k.e(o[0])
        k.e("s_add_u32 s57, s57, 2048")
        if st == 0:
            for x in heads: k.e(x)
    for o in vmem_ops(DIST)[:NH]: k.e("\n".join(with_nop(o)))
    L = k.label("loop5")
    k.e(f"s_mov_b32 s62, {(NS - NT)//U}\ns_waitcnt vmcnt({4*(DIST-1) + NH})")
    fstamp(k, 17)
    k.e(f".p2align 6\n{L}:")
    for x in body: k.e(x)
    k.e(f"s_cbranch_scc1 {L}")
    for x in tail: k.e(x)
    fstamp(k, 18)
    srd(k, 40, 22, 23, 4*MB, WS_EX)
    srd(k, 24, 22, 23, 1024*128, WS_FLAG)
    k.e(f"""
    s_lshl_b32 s64, s2, 2
    s_add_u32 s64, s64, s3
    s_lshl_b32 s65, s63, 2
    s_add_u32 s65, s65, s3
    s_lshl_b32 s66, s64, 12
    s_lshl_b32 s67, s65, 12
    s_min_u32 s64, s64, s65
    s_lshl_b32 s64, s64, 7
    """)
    for p in range(2):
        for i in range(2):
            o = ACC(4+2*p, i); u = ACC(5+2*p, i)
            k.e(f"v_cvt_pk_bf16_f32 v{o}, v{o}, v{o+1}\nv_cvt_pk_bf16_f32 v{o+1}, v{o+2}, v{o+3}")
            k.e(f"v_cvt_pk_bf16_f32 v{o+2}, v{u}, v{u+1}\nv_cvt_pk_bf16_f32 v{o+3}, v{u+2}, v{u+3}")
            k.e(f"buffer_store_dwordx4 {v(o,4)}, v{VL16}, s[40:43], s66 offen offset:{(i*2+p)*1024} sc1")
    def addin(base):
        for i in range(2):
            for fb in range(4):
                o = ACC(fb, i); r = base + i*8 + fb*2
                k.e(f"""
                v_lshlrev_b32 v{VT+4}, 16, v{r}
                v_and_b32 v{VT+5}, 0xffff0000, v{r}
                v_lshlrev_b32 v{VT+6}, 16, v{r+1}
                v_and_b32 v{VT+7}, 0xffff0000, v{r+1}
                {pk("add", o, o, VT+4)}
                {pk("add", o+2, o+2, VT+6)}
                """)
                yield i, fb
    for _ in addin(VRES): pass
    srd(k, 36, 18, 19, S_*D_*2)
    Lp = k.label("poll")
    k.e(f"""
    v_and_b32 v{VT}, 15, v{VL}
    v_lshrrev_b32 v{VT+1}, 4, v{VL}
    v_and_b32 v{VT+2}, 1, v{VT+1}
    v_lshrrev_b32 v{VT+3}, 1, v{VT+1}
    v_lshlrev_b32 v{VT+2}, 5, v{VT+2}
    v_lshl_add_u32 v{VT+2}, v{VT+3}, 4, v{VT+2}
    v_lshl_add_u32 v{VT+2}, v{VT}, 11, v{VT+2}
    s_lshl_b32 s60, s48, 15
    s_lshl_b32 s61, s93, 7
    s_add_u32 s60, s60, s61
    s_add_u32 s61, s60, 32768
    s_waitcnt vmcnt(0)
    s_mov_b64 exec, 1
    v_mov_b32 v{VT+3}, 1
    s_mov_b32 s68, 1
    s_mov_b32 s69, {SPIN}
    {Lp}:
    s_sub_u32 s69, s69, 1
    s_cbranch_scc1 {Lp}_x
    buffer_atomic_add v{VT+3}, v{VFA}, s[24:27], s64 offen sc0 sc1
    s_waitcnt vmcnt(0)
    v_cmp_gt_u32 vcc, s68, v{VT+3}
    v_mov_b32 v{VT+3}, 0
    s_mov_b32 s68, 2
    s_nop 2
    s_cbranch_vccnz {Lp}
    {Lp}_x:
    s_mov_b64 exec, -1
    """)
    for i in range(2):
        for p in range(2):
            k.e(f"buffer_load_dwordx4 {v(VRES+i*8+p*4,4)}, v{VL16}, s[40:43], s67 offen offset:{(i*2+p)*1024} sc1")
    k.e("s_waitcnt vmcnt(3)")
    nst = 0
    for i, fb in addin(VRES):
        o = ACC(fb, i); r = 64 + i*8 + fb*2
        k.e(f"v_cvt_pk_bf16_f32 v{r}, v{o}, v{o+1}\nv_cvt_pk_bf16_f32 v{r+1}, v{o+2}, v{o+3}")
        if fb % 2:
            p = fb // 2; r = 64 + i*8 + p*4
            k.e(f"s_nop 1\nv_permlane16_swap_b32 v{r}, v{r+2}\nv_permlane16_swap_b32 v{r+1}, v{r+3}")
            k.e(f"buffer_store_dwordx4 {v(r,4)}, v{VT+2}, s[36:39], s{60+i} offen offset:{p*64} {OPT.st}")
            nst += 1
            if nst < 4: k.e(f"s_waitcnt vmcnt(3)")

def gen_front(NB=22, POLL=12, NSH=4, NBG=3, MG=3, SIG=1, PP=5, TB=1, LA=4, force_fb=False, full=True, p4={}, p5={}, abl=''):
    STG = 40960
    k = KB(KNAME if full else "k1_kernel", 256, 256, 4 * STG)
    k.fine = True; k.nst = 20 if full else 12; k.page = full
    LAST = f"L_{k.name}_end" if full else "L_k5_kernel_end"
    if full: k.launch = lambda: "; @launch grid=(256,1,1) block=(256,1,1) lds=163840\n"
    ACC = lambda j, i: (j * 4 + i) * 4
    VDX = 96; VDW = 100; VRX = 106; VRW = 114
    VL = 122; VPF = 123; VT = 124; VPA = 132; VZ = 134; VSA = 135
    VRAW = 136; VU = 152; VSUM = 156; VRT = 160
    VSEL = 164; VCD = 180; VCD2 = 184
    VCQ = 192; VCV = 208; VMT = 216; VRSt = 220; VMR = 224; VRR = 228
    AX = lambda st, i, s_: (st % 2) * 32 + (i * 2 + s_) * 4
    AW = lambda j, s_: 64 + j * 8 + s_ * 4
    prologue(k)
    fstamp(k, 0)
    k.e(f"""
    v_mov_b32 v{VL}, v0
    s_and_b32 s46, s45, 7
    s_lshl_b32 s46, s46, 1
    s_and_b32 s47, s44, 1
    s_add_u32 s46, s46, s47          ; rb
    s_lshr_b32 s47, s44, 1
    s_lshl_b32 s47, s47, 2
    s_lshr_b32 s48, s45, 3
    s_add_u32 s47, s47, s48          ; cb
    s_lshr_b32 s48, s3, 1            ; wm
    s_and_b32 s49, s3, 1             ; wn
    v_lshrrev_b32 v{VT}, 3, v{VL}       ; l/8
    v_and_b32 v{VT+1}, 7, v{VL}         ; p
    v_lshrrev_b32 v{VT+2}, 1, v{VT}     ; (l/8)>>1  (0..3)
    v_xor_b32 v{VT+3}, v{VT+1}, v{VT+2}
    s_lshl_b32 s50, s46, 7
    s_lshl_b32 s51, s3, 5
    s_add_u32 s50, s50, s51
    s_lshl_b32 s50, s50, 11             ; (rb*128 + w*32)*2048
    v_lshlrev_b32 v{VT+4}, 11, v{VT}
    v_add_u32 v{VT+4}, s50, v{VT+4}
    v_lshl_add_u32 v{VDX}, v{VT+3}, 4, v{VT+4}
    v_xor_b32 v{VT+3}, 4, v{VT+3}
    v_lshl_add_u32 v{VDX+1}, v{VT+3}, 4, v{VT+4}
    v_add_u32 v{VDX+2}, {2*15360}, v{VDX}
    v_add_u32 v{VDX+3}, {3*15360}, v{VDX+1}
    v_add_u32 v{VDX+1}, {15360}, v{VDX+1}
    v_and_b32 v{VT+2}, 1, v{VT+2}
    v_lshlrev_b32 v{VT+2}, 1, v{VT+2}
    v_xor_b32 v{VT+3}, v{VT+1}, v{VT+2}
    v_mul_u32_u24 v{VT+4}, 6144, v{VT}
    s_mul_i32 s50, s3, {16*6144}
    s_lshl_b32 s51, s47, 7
    s_add_u32 s50, s50, s51
    v_add_u32 v{VT+4}, s50, v{VT+4}
    v_lshl_add_u32 v{VDW}, v{VT+3}, 4, v{VT+4}
    v_xor_b32 v{VT+3}, 4, v{VT+3}
    v_lshl_add_u32 v{VDW+1}, v{VT+3}, 4, v{VT+4}
    v_add_u32 v{VDW+1}, {8*6144 - 1024}, v{VDW+1}
    """)
    for sg in range(1, 3):
        k.e(f"v_add_u32 v{VDW+2*sg}, {2048*sg}, v{VDW}\nv_add_u32 v{VDW+2*sg+1}, {2048*sg}, v{VDW+1}")
    k.e(f"""
    s_lshl_b32 s53, s3, 12
    s_lshl_b32 s54, s3, 11
    s_add_u32 s54, s54, 16384
    s_mov_b32 s59, {OOB}
    s_mov_b32 s63, s46
    s_mul_i32 s56, s63, {64*6144}
    s_lshl_b32 s57, s63, 7
    v_lshlrev_b32 v{VSA}, 4, v{VL}
    s_lshl_b32 s64, s46, 4
    s_add_u32 s64, s64, s47
    s_lshl_b32 s64, s64, 2
    s_add_u32 s64, s64, s3
    s_lshl_b32 s65, s64, 12
    s_lshl_b32 s66, s64, 8
    s_lshl_b32 s67, s47, 1
    s_add_u32 s67, s67, s49          ; head
    """)
    if OPT.codepf: code_pf_addr(k, k.name, LAST, VPA, VL, 3)
    k.e("s_waitcnt lgkmcnt(0)")
    srd(k, 24, 6, 7, D_*3*D_*2)
    srd(k, 28, 4, 5, S_*D_*2)
    def vmem_ops(n):
        slot = n % 4; ops = []
        for q in range(4):
            o = [f"buffer_load_dwordx4 v{VDX+q}, s[28:31], s57 offen offset:{q*1024} lds @s{n}"]
            if q == 0: o = [f"s_add_u32 m0, s53, {slot*STG}"] + o
            ops.append(o)
        for sg in range(3):
            for q in range(2):
                o = [f"buffer_load_dwordx4 v{VDW+2*sg+q}, s[24:27], s56 offen offset:{q*1024} lds @s{n}"]
                if q == 0: o = [f"s_add_u32 m0, s54, {slot*STG + sg*8192}"] + o
                ops.append(o)
        return ops
    adv = ["s_add_u32 s63, s63, 1", "s_and_b32 s63, s63, 15", f"s_mul_i32 s56, s63, {64*6144}", "s_lshl_b32 s57, s63, 7"]
    P = []
    if OPT.codepf: P.append(code_pf(VPF, VPA))
    for o in vmem_ops(0): P += with_nop(o)
    for q in range(4): P.append(f"buffer_load_dwordx4 {v(VRAW+4*q,4)}, v{VSA}, s[28:31], s65 offen offset:{q*1024} @raw")
    P += adv
    setup = lines(f"""
    v_and_b32 v{VT}, 15, v{VL}
    v_lshrrev_b32 v{VT+1}, 4, v{VL}
    v_lshrrev_b32 v{VT+2}, 1, v{VT}
    v_xor_b32 v{VT+2}, v{VT+1}, v{VT+2}
    s_lshl_b32 s50, s48, 13
    v_lshlrev_b32 v{VT+3}, 7, v{VT}
    v_add_u32 v{VT+3}, s50, v{VT+3}
    v_lshl_add_u32 v{VRX}, v{VT+2}, 4, v{VT+3}
    v_xor_b32 v{VRX+1}, 64, v{VRX}
    v_lshrrev_b32 v{VT+2}, 2, v{VT}
    v_lshl_add_u32 v{VT+3}, v{VT+1}, 3, v{VT+2}
    v_lshrrev_b32 v{VT+2}, 1, v{VT+2}
    v_and_b32 v{VT+4}, 1, v{VT+1}
    v_lshl_add_u32 v{VT+2}, v{VT+4}, 1, v{VT+2}
    s_lshl_b32 s50, s49, 1
    v_xor_b32 v{VT+2}, s50, v{VT+2}
    v_lshlrev_b32 v{VT+2}, 5, v{VT+2}
    v_lshl_add_u32 v{VT+2}, v{VT+3}, 7, v{VT+2}
    v_and_b32 v{VT+4}, 3, v{VL}
    v_lshl_add_u32 v{VT+2}, v{VT+4}, 3, v{VT+2}
    v_add_u32 v{VRW}, 16384, v{VT+2}
    v_xor_b32 v{VRW+1}, 32, v{VRW}
    v_mov_b32 v{VT+5}, 0x3f803f80
    """)
    for sl in range(1, 4):
        for q in range(2):
            setup += [f"v_add_u32 v{VRX+2*sl+q}, {sl*STG}, v{VRX+q}", f"v_add_u32 v{VRW+2*sl+q}, {sl*STG}, v{VRW+q}"]
    for j in range(4):
        setup += [f"v_cmp_eq_u32 vcc, {j}, v{VT}", "s_nop 1", f"v_cndmask_b32 v{VSEL+4*j}, 0, v{VT+5}, vcc"]
        setup += [f"v_mov_b32 v{VSEL+4*j+r}, v{VSEL+4*j}" for r in (1, 2, 3)]
    kk = KB("t", 0, 0, 0)
    srd(kk, 36, 22, 23, ZERO_BYTES, WS_ST); srd(kk, 40, 22, 23, 0x44000, WS_CSP1); srd(kk, 32, 20, 21, 256)
    P += [x.strip() for x in kk.lines]
    P += [f"v_mov_b32 v{VZ}, 0", f"v_lshlrev_b32 v{VT+6}, 2, v{VL}", f"buffer_store_dword v{VZ}, v{VT+6}, s[36:39], s66 offen sc1 @pub"]
    if full: P += ["s_branch L_page1\n.p2align 12\nL_page1:"] + (["s_nop 0\n;WARM start 4 0"] if OPT.warm else [])
    P += setup
    for o in vmem_ops(1): P += with_nop(o)
    P += adv
    def wreads(slot, j):
        return [f"ds_read_b64_tr_b16 {a(AW(j,s_)+2*rd,2)}, v{VRW+2*slot+j%2} offset:{(j//2)*8192 + (32*s_+4*rd)*128}" for s_ in range(2) for rd in range(2)]
    def xreads(slot):
        return [f"ds_read_b128 {a(AX(slot,i,s_),4)}, v{VRX+2*slot+s_} offset:{i*2048}" for i in range(4) for s_ in range(2)]
    def allreads(slot):
        xr = xreads(slot)
        return xr[:2] + wreads(slot, 0) + xr[2:] + sum([wreads(slot, j) for j in range(1, 6)], [])
    rpos = [NB + q + q // 2 for q in range(32)]
    free = [p for p in range(NB, NB + 48) if p not in rpos]
    vpos = [free[(q * 15) // 10] for q in range(10)]
    NHR = sum(p < 48 for p in rpos); NH = sum(p < 48 for p in vpos)
    P += ["WAITVM s0", "s_barrier", "STAMP1"]
    P += allreads(0)[:NHR]
    for o in vmem_ops(2)[:NH]: P += with_nop(o)
    st1 = ["WAITVM raw"]
    for r in range(2):
        for q in range(8):
            x = VRAW + 8*r + q; u = VU + 2*(q % 2)
            st1 += [f"v_lshlrev_b32 v{u}, 16, v{x}", f"v_and_b32 v{u+1}, 0xffff0000, v{x}"]
            if q == 0:
                st1 += [f"v_add_f32 v{VSUM+2*r}, v{u}, v{u+1}", f"v_mul_f32 v{VSUM+2*r+1}, v{u}, v{u}", f"v_fmac_f32 v{VSUM+2*r+1}, v{u+1}, v{u+1}"]
            else:
                st1 += [f"v_add_f32 v{VSUM+2*r}, v{VSUM+2*r}, v{u}", f"v_fmac_f32 v{VSUM+2*r+1}, v{u}, v{u}",
                        f"v_add_f32 v{VSUM+2*r}, v{VSUM+2*r}, v{u+1}", f"v_fmac_f32 v{VSUM+2*r+1}, v{u+1}, v{u+1}"]
    kk = KB("t", 0, 0, 0); allreduce64(kk, [VSUM, VSUM+1, VSUM+2, VSUM+3], VRT); st1 += [x.strip() for x in kk.lines]
    for r in range(2):
        b = VSUM + 2*r
        st1 += lines(f"""
        v_mul_f32 v{b}, {fbits(-1.0/D_)}, v{b}
        v_mul_f32 v{b+1}, {fbits(1.0/D_)}, v{b+1}
        v_fma_f32 v{b+1}, -v{b}, v{b}, v{b+1}
        v_max_f32 v{b+1}, 0, v{b+1}
        v_add_f32 v{b+1}, {fbits(1e-5)}, v{b+1}
        v_rsq_f32 v{b+1}, v{b+1}
        """)
    st1 += lines(f"""
    v_and_b32 v{VRT+2}, 1, v{VL}
    v_cmp_eq_u32 vcc, 0, v{VRT+2}
    v_lshrrev_b32 v{VRT+3}, 1, v{VL}
    s_lshr_b32 s68, s64, 5
    v_cndmask_b32 v{VRT}, v{VSUM+2}, v{VSUM}, vcc
    v_cndmask_b32 v{VRT+1}, v{VSUM+3}, v{VSUM+1}, vcc
    v_cmp_eq_u32 vcc, 0, v{VRT+3}
    v_lshlrev_b32 v{VRT+3}, 13, v{VRT+3}
    v_lshl_add_u32 v{VRT+2}, v{VRT+2}, 4, v{VRT+3}
    v_cndmask_b32 v{VRT}, v{VRT+1}, v{VRT}, vcc
    s_lshl_b32 s68, s68, 8
    s_and_b32 s75, s64, 7
    s_lshl_b32 s75, s75, 5
    s_add_u32 s68, s68, s75
    s_bfe_u32 s75, s64, 0x20003
    s_lshl_b32 s75, s75, 2
    s_add_u32 s68, s68, s75
    s_add_u32 s68, s68, {WS_MU - WS_CSP1}
    buffer_store_dword v{VRT}, v{VRT+2}, s[40:43], s68 offen sc1 @pub
    """)
    cst = lines(f"""
    v_lshlrev_b32 v{VT+6}, 10, v{VT}
    v_lshl_add_u32 v{VT+6}, v{VT+1}, 8, v{VT+6}
    v_cmp_gt_u32 vcc, 4, v{VT}
    v_mov_b32 v{VT+7}, {OOB}
    s_mul_i32 s69, s67, 6144
    v_cndmask_b32 v{VT+6}, v{VT+7}, v{VT+6}, vcc
    s_lshl_b32 s70, s48, 29
    s_add_u32 s69, s69, s70
    s_lshl_b32 s70, s46, 4
    s_add_u32 s70, s70, s69
    buffer_store_dwordx4 {v(VCD,4)}, v{VT+6}, s[40:43], s70 offen sc1 @pub
    v_lshlrev_b32 v{VT+7}, 4, v{VT}
    v_lshl_add_u32 v{VT+7}, v{VT+1}, 27, v{VT+7}
    s_lshr_b32 s70, s46, 2
    s_lshl_b32 s70, s70, 8
    s_add_u32 s69, s69, s70
    s_bfe_u32 s70, s46, 0x10001
    s_lshl_b32 s70, s70, 10
    s_add_u32 s69, s69, s70
    s_and_b32 s70, s46, 1
    s_lshl_b32 s70, s70, 3
    s_add_u32 s69, s69, s70
    s_add_u32 s69, s69, 4096
    buffer_store_dwordx2 {v(VCD2,2)}, v{VT+7}, s[40:43], s69 offen sc1 @pub
    """)
    sig = lines(f"""
    v_mov_b32 v{VT+6}, 1
    v_lshlrev_b32 v{VT+7}, 8, v{VL}
    s_lshl_b32 s70, s3, 8
    s_and_b32 s71, s45, {NSH-1}
    s_mul_i32 s71, s71, {256//NSH}
    s_add_u32 s70, s70, s71
    buffer_atomic_add v{VT+6}, v{VT+7}, s[32:35], s70 offen sc1
    """)
    Lsp = k.label("spin"); Lok = k.label("ok")
    pol = lines(f"""
    v_mov_b32 v{VT+5}, {256//NSH}
    v_and_b32 v{VT+7}, {NSH-1}, v{VL}
    v_mul_u32_u24 v{VT+7}, {256//NSH}, v{VT+7}
    buffer_load_dword v{VT+6}, v{VT+7}, s[32:35], 0 offen sc1 @poll
    """)
    chk = ["WAITVM poll", f"v_cmp_gt_u32 vcc, v{VT+5}, v{VT+6}", "s_nop 4", f"s_cbranch_vccnz {Lsp}\n{Lok}:"]
    A = VRAW
    ld = lines(f"""
    v_lshlrev_b32 v{A+2}, 4, v{VT}
    v_and_b32 v{A+3}, 3, v{VT}
    v_lshl_add_u32 v{A+3}, v{VT+1}, 2, v{A+3}
    v_lshlrev_b32 v{A+3}, 4, v{A+3}
    s_mul_i32 s69, s67, 6144
    s_add_u32 s72, s69, 4096
    s_lshl_b32 s70, s46, 9
    s_lshl_b32 s71, s48, 8
    s_add_u32 s70, s70, s71
    s_add_u32 s70, s70, {WS_MU - WS_CSP1}
    s_add_u32 s71, s70, {WS_RS - WS_MU}
    """)
    nld0 = len(ld)
    for j in range(4): ld.append(f"buffer_load_dwordx4 {v(VCQ+4*j,4)}, v{VSA}, s[40:43], s69 offen offset:{j*1024} sc1 @cs")
    for j in range(2): ld.append(f"buffer_load_dwordx4 {v(VCV+4*j,4)}, v{VSA}, s[40:43], s72 offen offset:{j*1024} sc1 @cs")
    ld.append(f"buffer_load_dwordx4 {v(VMT,4)}, v{A+2}, s[40:43], s70 offen sc1 @st")
    ld.append(f"buffer_load_dwordx4 {v(VRSt,4)}, v{A+2}, s[40:43], s71 offen sc1 @st")
    ld.append(f"buffer_load_dwordx4 {v(VMR,4)}, v{A+3}, s[40:43], s70 offen sc1 @st")
    ld.append(f"buffer_load_dwordx4 {v(VRR,4)}, v{A+3}, s[40:43], s71 offen sc1 @st")
    red = ["WAITVM cs"]
    for j in range(2):
        b = VCV + j
        red += [f"v_add_f32 v{b}, v{b}, v{b+2}", f"v_add_f32 v{b+4}, v{b+4}, v{b+6}", f"v_add_f32 v{b}, v{b}, v{b+4}"]
    for sw in ("v_permlane16_swap_b32", "v_permlane32_swap_b32"):
        red += [f"v_mov_b32 v{VCV+2}, v{VCV}", f"v_mov_b32 v{VCV+3}, v{VCV+1}", "s_nop 1", f"{sw} v{VCV}, v{VCV+2}", f"{sw} v{VCV+1}, v{VCV+3}",
                f"v_add_f32 v{VCV}, v{VCV}, v{VCV+2}", f"v_add_f32 v{VCV+1}, v{VCV+1}, v{VCV+3}"]
    for sh in (8, 4, 2, 1):
        for r in range(16): red.append(f"v_add_f32_dpp v{VCQ+r}, v{VCQ+r}, v{VCQ+r} row_ror:{sh} row_mask:0xf bank_mask:0xf")
    epi_setup = lines(f"""
    s_lshl_b32 s50, s67, 6
    s_lshl_b32 s51, s46, 2
    s_add_u32 s50, s50, s51
    s_lshl_b32 s51, s48, 1
    s_add_u32 s50, s50, s51
    s_lshl_b32 s60, s50, 11
    s_lshl_b32 s61, s50, 12
    s_add_u32 s62, s61, 4096
    v_lshlrev_b32 v{A+4}, 9, v{VT+1}
    v_lshl_add_u32 v{A+5}, v{VT}, 4, v{A+4}
    v_lshrrev_b32 v{A+6}, 3, v{VT}
    v_and_b32 v{A+7}, 7, v{VT}
    v_lshl_add_u32 v{A+6}, v{A+6}, 4, v{A+7}
    v_and_b32 v{A+7}, 1, v{VT+1}
    v_lshlrev_b32 v{A+7}, 10, v{A+7}
    v_lshrrev_b32 v{A+4}, 1, v{VT+1}
    v_lshl_add_u32 v{A+7}, v{A+4}, 9, v{A+7}
    v_lshl_add_u32 v{A+6}, v{A+6}, 4, v{A+7}
    s_lshl_b32 s55, s3, 13
    v_add_u32 v{A+8}, s55, v{A+5}
    v_add_u32 v{A+9}, s55, v{A+6}
    """)
    QR = lambda q, s_: v(q * 8 + s_ * 4, 4) if q < 2 else a(112 + (q - 2) * 8 + s_ * 4, 4)
    VS = lambda b_: 16 + b_ * 16; VC = lambda q: 48 + q * 16; VP = lambda b_: 112 + b_ * 8
    VRES = 128
    VOK = lambda q: 192 + q * 16; AOS = lambda q: 128 + (q - 2) * 16
    OR = lambda q: v(VOK(q), 16) if q < 2 else a(AOS(q), 16)
    VONE = 152; VIDX = 156; VKA = 157; VQW = 158; VCSA = 159; VQR = 160; VWO = 161; VCPS = 162; VCPD = 163; VM = 164; VSL = 168; VCSD = 172
    VLs = lambda q: 176 + 4 * q
    VX2 = 224
    VL2 = 232; VL16 = 233; VTP = 234; VOA = 235; VRA = 236; VFA = 237; VD1 = 238; VD2 = 239; VY = 240
    AK = lambda u, s_: (u % 6) * 16 + s_ * 4
    AV = lambda u, s_: (u % 6) * 16 + 8 + s_ * 4
    ACSL = lambda b_: 160 + b_ * 4
    M18 = (1 << 16) // 18 + 1
    for x in range(1024): assert (x * M18) >> 16 == x // 18
    att_setup = lines(f"""
    v_mov_b32 v{VL2}, v{VL}
    v_mov_b32 v{VL16}, v{VSA}
    v_mul_u32_u24 v{VX2}, 7168, v{VT+1}
    v_lshl_add_u32 v{VCSA}, v{VT}, 4, v{VX2}
    v_mov_b32 v{VX2+1}, 0x3f80
    v_mov_b32 v{VX2+2}, 0x3f800000
    """)
    for r in range(4):
        att_setup += [f"v_cmp_eq_u32 vcc, {4*r}, v{VT}", f"v_mov_b32 v{VCSD+r}, 0", f"v_mov_b32 v{VLs(0)+r}, 0", f"v_cndmask_b32 v{VSL+r}, 0, v{VX2+1}, vcc",
                      f"v_cmp_eq_u32 vcc, {4*r+1}, v{VT}", f"v_mov_b32 v{VLs(2)+r}, 0", f"v_mov_b32 v{VLs(1)+r}, 0", f"v_cndmask_b32 v{VSL+r}, v{VSL+r}, v{VX2+2}, vcc",
                      f"v_mov_b32 v{VLs(3)+r}, 0"]
    att_setup += lines(f"""
    v_and_b32 v{VX2}, 6, v{VT}
    v_cmp_eq_u32 vcc, 0, v{VX2}
    v_mov_b32 v{VX2+1}, 0x3f803f80
    v_mov_b32 v{VX2+2}, 0x44444444
    v_cndmask_b32 v{VONE}, 0, v{VX2+1}, vcc
    v_cmp_eq_u32 vcc, 4, v{VX2}
    v_mov_b32 v{VONE+1}, v{VONE}
    v_and_b32 v{VX2}, 1, v{VT}
    v_cndmask_b32 v{VONE+2}, 0, v{VX2+1}, vcc
    v_cmp_eq_u32 vcc, 0, v{VX2}
    v_mov_b32 v{VONE+3}, v{VONE+2}
    v_mov_b32 v{VX2+3}, 0xeeeeeeee
    v_cndmask_b32 v{VIDX}, v{VX2+3}, v{VX2+2}, vcc
    s_lshl_b32 s51, s3, 13
    v_add_u32 v{VKA}, s51, v{VSA}
    s_lshl_b32 s51, s3, 12
    s_add_u32 s51, s51, 0x8000
    v_add_u32 v{VQW}, s51, v{VSA}
    v_xor_b32 v{VQR}, 0x2000, v{VQW}
    v_lshrrev_b32 v{VX2}, 3, v{VL}
    v_and_b32 v{VX2+1}, 7, v{VL}
    v_and_b32 v{VX2+2}, 6, v{VX2}
    v_xor_b32 v{VX2+1}, v{VX2+1}, v{VX2+2}
    v_lshlrev_b32 v{VX2}, 11, v{VX2}
    v_lshl_add_u32 v{VWO}, v{VX2+1}, 4, v{VX2}
    v_lshrrev_b32 v{VX2}, 3, v{VL}
    v_and_b32 v{VX2+1}, 7, v{VL}
    v_lshrrev_b32 v{VX2+2}, 1, v{VX2+1}
    v_xor_b32 v{VX2+2}, v{VX2+2}, v{VX2}
    v_lshlrev_b32 v{VX2+2}, 5, v{VX2+2}
    v_and_b32 v{VX2+3}, 1, v{VX2+1}
    v_lshl_add_u32 v{VX2+2}, v{VX2+3}, 4, v{VX2+2}
    s_lshl_b32 s51, s49, 7
    v_xor_b32 v{VX2+2}, s51, v{VX2+2}
    v_lshl_add_u32 v{VCPS}, v{VX2}, 11, v{VX2+2}
    v_lshlrev_b32 v{VX2+2}, 8, v{VX2}
    v_lshl_add_u32 v{VX2+2}, v{VX2+1}, 4, v{VX2+2}
    v_add_u32 v{VCPD}, s51, v{VX2+2}
    v_and_b32 v{VX2}, 1, v{VT+1}
    v_lshrrev_b32 v{VX2+1}, 1, v{VT+1}
    v_lshlrev_b32 v{VX2}, 5, v{VX2}
    v_lshl_add_u32 v{VX2}, v{VX2+1}, 4, v{VX2}
    v_lshl_add_u32 v{VRA}, v{VT}, 11, v{VX2}
    v_lshlrev_b32 v{VFA}, 20, v{VL}
    """)
    kk = KB("t", 0, 0, 0); reloc(kk, VCPD, VX2); att_setup += lines("\n".join(kk.lines))
    for r in range(12): att_setup.append(f"v_accvgpr_write_b32 a{ACSL(0)+r}, 0")
    kk = KB("t", 0, 0, 0)
    tile_map(kk, TB, 4 - TB, 92, 93)
    sc = lines("\n".join(kk.lines))
    sc += ["s_mov_b32 s80, s8", "s_mov_b32 s81, s9", f"s_mov_b32 s82, {D_*D_*2}", "s_mov_b32 s83, 0x20000",
           f"s_add_u32 s88, s22, {WS_CNT}\ns_addc_u32 s89, s23, 0", "s_mov_b32 s90, 0x8000", "s_mov_b32 s91, 0x20000"]
    sc += lines(f"""
    s_lshl_b32 s64, s2, 2
    s_add_u32 s64, s64, s3
    s_mul_i32 s68, s64, {M18}
    s_lshr_b32 s68, s68, 16
    s_mul_i32 s75, s68, 18
    s_sub_u32 s75, s64, s75
    s_lshl_b32 s95, s68, 9""")
    sc += ["s_cmp_lt_u32 s68, 28\ns_cselect_b32 s36, s12, s14\ns_cselect_b32 s37, s13, s15\ns_cselect_b32 s65, 0, 28"]
    sc += lines(f"""
    s_sub_u32 s68, s68, s65
    s_mul_i32 s66, s75, {60*7168}
    s_lshl_b32 s68, s68, 8
    s_add_u32 s66, s66, s68
    s_mov_b32 s38, {D_*F_*2}
    s_mov_b32 s39, 0x20000
    s_mov_b32 s84, s16
    s_mov_b32 s85, s17
    s_mov_b32 s86, {F_*D_*2}
    s_mov_b32 s87, 0x20000""")
    sc += ["s_cmp_lt_u32 s64, 1008\ns_cselect_b32 s66, s66, s59\ns_cselect_b32 s95, s95, s59"]
    sc += lines(f"""
    s_bfe_u32 s68, s64, 0x30001
    s_lshr_b32 s65, s64, 4
    s_mul_i32 s65, s65, 7
    s_lshl_b32 s74, s65, 14
    s_lshl_b32 s75, s68, 8
    s_add_u32 s74, s74, s75
    s_mul_i32 s68, s68, {F_*256}
    s_lshl_b32 s79, s65, 11
    s_add_u32 s79, s79, s68
    s_sub_u32 s79, s79, 4096
    s_lshl_b32 s76, s92, 3
    s_lshl_b32 s77, s3, 1
    s_add_u32 s76, s76, s77
    s_lshl_b32 s64, s76, 15
    s_lshl_b32 s77, s93, 7
    s_add_u32 s77, s77, s64
    s_add_u32 s78, s77, 32768
    s_lshl_b32 s52, s67, 18
    s_lshl_b32 s75, s48, 13
    s_add_u32 s52, s52, s75""")
    att_setup = sprinkle(att_setup, [[x] for x in sc])

    n1 = len(st1)
    bg = {}
    bg[1] = cst + st1[:n1//8]
    for q in range(NBG): bg[2+q] = st1[n1//8 + q*(n1 - n1//8)//NBG : n1//8 + (q+1)*(n1 - n1//8)//NBG]
    bg[NBG + 4] = sig
    na = len(att_setup)
    bg[NBG + 4] = sig + att_setup[:na//3]; bg[8] = att_setup[na//3:2*na//3]; bg[9] = att_setup[2*na//3:]
    bg[POLL - 2] = pol[:3] + ld[:nld0] + epi_setup; bg[POLL - 1] = pol[3:]; bg[POLL] = chk + ld[nld0:nld0+6]; bg[POLL + 1] = ld[nld0+6:]
    ARES = 172
    resl = [f"buffer_load_dwordx4 {a(ARES+i*8+p*4,4)}, v{VRA}, s[28:31], s{77+i} offen offset:{p*64}" for i in range(2) for p in range(2)]
    bg[14] = bg.get(14, []) + sprinkle(red[:len(red)//2], [[x] for x in resl]); bg[15] = red[len(red)//2:]
    if 'nobg' in abl:
        for n in list(bg): bg[n] = [x for x in bg[n] if not x.startswith(('v_add_f32', 'v_fmac', 'v_lshlrev_b32 v15', 'v_and_b32 v15', 's_nop', 'v_perm'))]
    for n in range(16):
        st = n % 4
        main = []; side = {}
        vm_a = vmem_ops(n + 2)[NH:] if n + 2 < 16 else []
        vm_b = vmem_ops(n + 3)[:NH] if n + 3 < 16 else []
        for j in range(6):
            for i in range(4):
                for s_ in range(2):
                    w_, x_ = a(AW(j,s_),4), a(AX(st,i,s_),4)
                    if j >= 4: w_, x_ = x_, w_
                    c_ = v(ACC(j,i),4) if (n or s_) else "0"
                    main.append(f"v_mfma_f32_16x16x32_bf16 {v(ACC(j,i),4)}, {w_}, {x_}, {c_}")
            if n == 0:
                for s_ in range(2):
                    d_ = v(VCD if j < 4 else VCD2, 4)
                    c_ = d_ if (j % 4 or s_) else "0"
                    o1, o2 = a(AW(j,s_),4), v(VSEL+4*(j%4),4)
                    if j >= 4: o1, o2 = o2, o1
                    side.setdefault(8*j + 7, []).append(f"v_mfma_f32_16x16x32_bf16 {d_}, {o1}, {o2}, {c_}")
        def place(o, pos):
            if len(o) > 1: side.setdefault(pos - 1, []).append(o[0])
            side.setdefault(pos, []).append(o[-1])
        nb = NB
        for q, o in enumerate(vm_a): place(o, vpos[NH + q] - 48)
        if vm_b:
            assert vpos[9] - 48 < nb - 4
            for q, x in enumerate(adv): side.setdefault(nb - 5 + q, []).append(x)
        if n < 15:
            side.setdefault(nb - 1, []).extend([f"WAITVM s{n+1}" + (" pub" if n == NBG + 3 else ""), "s_barrier"])
        for q, o in enumerate(vm_b): place(o, vpos[q])
        for q, x in enumerate(allreads(st)[NHR:]): side.setdefault(rpos[NHR + q] - 48, []).insert(0, x)
        if n < 15:
            for q, x in enumerate(allreads((st + 1) % 4)[:NHR]): side.setdefault(rpos[q], []).insert(0, x)
        b_ = bg.get(n, [])
        for q, x in enumerate(b_): side.setdefault(8 + (q * 39) // len(b_) if n == 1 else (q * 47) // len(b_), []).append(x)
        P += flatten(main, side)
    P.append("STAMP2")
    kk = KB("t", 0, 0, 0); srd(kk, 24, 22, 23, S_*D_*4, WS_KV); P += [x.strip() for x in kk.lines]
    P.append("WAITVM st")
    def cvt4(o, u):
        return [f"v_cvt_pk_bf16_f32 v{o}, v{o}, v{o+1}", f"v_cvt_pk_bf16_f32 v{o+1}, v{o+2}, v{o+3}",
                f"v_cvt_pk_bf16_f32 v{o+2}, v{u}, v{u+1}", f"v_cvt_pk_bf16_f32 v{o+3}, v{u+2}, v{u+3}"]
    def normqk(j, i):
        o = ACC(j, i)
        return [pk("fma", o+r, VCQ+4*j+r, ('b', VMT+i), o+r) for r in (0, 2)] + [pk("mul", o+r, o+r, ('b', VRSt+i)) for r in (0, 2)]
    def normv(j, i):
        o = ACC(j, i)
        q_ = lambda r: f"quad_perm:[{r},{r},{r},{r}] row_mask:0xf bank_mask:0xf"
        return [f"v_fmac_f32_dpp v{o+r}, v{VMR+i}, v{VCV+j-4} {q_(r)}" for r in range(4)] + [f"v_mul_f32_dpp v{o+r}, v{VRR+i}, v{o+r} {q_(r)}" for r in range(4)]
    for i in range(4):
        o = ACC(2, i); P += normqk(2, i) + normqk(3, i) + cvt4(o, ACC(3, i))
        P.append(f"buffer_store_dwordx4 {v(o,4)}, v{A+6}, s[24:27], s{61 if i < 2 else 62} offen offset:{(i%2)*128} sc1 @kv")
        P.append(f"ds_write_b128 v{A+9}, {v(o,4)} offset:{(i//2)*4096 + (i%2)*128}")
    for p in range(2):
        for fb in range(2):
            o = ACC(4 + fb, 2*p); P += normv(4+fb, 2*p) + normv(4+fb, 2*p+1) + cvt4(o, ACC(4 + fb, 2*p + 1))
            P.append(f"buffer_store_dwordx4 {v(o,4)}, v{A+5}, s[24:27], s{61 if p == 0 else 62} offen offset:{2048 + fb*256} sc1 @kv")
            P.append(f"ds_write_b128 v{A+8}, {v(o,4)} offset:{p*4096 + 2048 + fb*256}")
    for i in range(4): P.append(f"v_mul_f32 v{VRSt+i}, {fbits(LOG2E / 32 ** 0.5)}, v{VRSt+i}")
    for i in range(4): P += normqk(0, i) + normqk(1, i) + cvt4(ACC(0, i), ACC(1, i))
    P.append('s_nop 0')
    for p in range(2):
        for r in range(4): P.append(f"v_permlane16_swap_b32 v{8*p+r}, v{8*p+4+r}")
    P += [f"ds_write_b128 v{VQW}, {v(4*q,4)} offset:{q*1024}" for q in range(4)]
    own = lambda u: [f"ds_read_b128 {a(AK(u,0)+4*q,4)}, v{VKA} offset:{u*4096 + q*1024}" for q in range(4)]
    P += own(0) + own(1)
    def qk0(q, u=0): return [f"v_mfma_f32_32x32x16_bf16 {v(VS(q%2),16)}, {a(AK(u,0),4)}, {QR(q,0)}, 0",
                             f"v_mfma_f32_32x32x16_bf16 {v(VS(q%2),16)}, {a(AK(u,1),4)}, {QR(q,1)}, {v(VS(q%2),16)}"]
    def rowmax(q):
        b_ = VS(q % 2); m_ = VM + q; t_ = VX2 + q % 2
        o_ = [f"v_max3_f32 v{m_}, v{b_}, v{b_+1}, v{b_+2}", f"v_max3_f32 v{t_}, v{b_+3}, v{b_+4}, v{b_+5}"]
        for r in range(6, 14, 4): o_ += [f"v_max3_f32 v{m_}, v{m_}, v{b_+r}, v{b_+r+1}", f"v_max3_f32 v{t_}, v{t_}, v{b_+r+2}, v{b_+r+3}"]
        return o_ + [f"v_max3_f32 v{m_}, v{m_}, v{b_+14}, v{b_+15}", f"v_max_f32 v{m_}, v{m_}, v{t_}"]
    def maxfin(q0, packed=True):
        o_ = [f"v_mov_b32 v{VX2+2}, v{VM+q0}", f"v_mov_b32 v{VX2+3}, v{VM+q0+1}", f"v_mov_b32 v{VX2+4}, -1.0",
              f"v_permlane32_swap_b32 v{VM+q0}, v{VX2+2}", f"v_permlane32_swap_b32 v{VM+q0+1}, v{VX2+3}",
              f"v_max_f32 v{VM+q0}, v{VM+q0}, v{VX2+2}", f"v_max_f32 v{VM+q0+1}, v{VM+q0+1}, v{VX2+3}"]
        for q in (q0, q0 + 1): o_ += [pk("mul", VC(q)+r, ('b', VM+q), ('b', VX2+4)) for r in range(0, 16, 2)]
        return o_
    P += qk0(0) + qk0(1)
    P += ["s_waitcnt lgkmcnt(0)", "s_barrier", "STAMP3"]
    P += [f"ds_read_b128 {a(112+4*q,4)}, v{VQR} offset:{q*1024}" for q in range(4)]
    P += ["s_lshl_b32 s72, s3, 19", "s_lshl_b32 s73, s93, 7", "s_add_u32 s72, s72, s73", "s_lshl_b32 s73, s3, 15",
          "s_lshl_b32 s65, s92, 1", "s_mov_b32 s63, -1", f"s_add_u32 s40, s22, {WS_W2T}", "s_addc_u32 s41, s23, 0", f"s_mov_b32 s42, {PLANE + F_*D_*2}",
          f"s_mov_b32 s70, {(1 << 2) | (1 << 3) | (1 << 4)}"]
    P += rowmax(0) + qk0(2) + rowmax(1) + qk0(3) + maxfin(0) + rowmax(2)
    def qk(n):
        q = n % 4; u = n // 4
        return [f"v_mfma_f32_32x32x16_bf16 {v(VS(n%2),16)}, {a(AK(u,0),4)}, {QR(q,0)}, {v(VC(q),16)}",
                f"v_mfma_f32_32x32x16_bf16 {v(VS(n%2),16)}, {a(AK(u,1),4)}, {QR(q,1)}, {v(VS(n%2),16)}"]
    def pv(n, first=False):
        q = n % 4; u = n // 4
        return [f"v_mfma_f32_32x32x16_bf16 {OR(q)}, {a(AV(u,s_),4)}, {v(VP(n%2)+4*s_,4)}, {'0' if first and s_ == 0 else OR(q)}" for s_ in range(2)] + \
               [f"v_smfmac_f32_16x16x64_bf16 {v(VLs(q),4)}, {v(VONE,4)}, {v(VP(n%2),8)}, v{VIDX}"]
    P += qk(0) + rowmax(3) + maxfin(2)
    csm = lambda st: f"v_mfma_f32_16x16x32_bf16 {v(VCSD,4)}, {v(VSL,4)}, {a(ACSL(st),4)}, {v(VCSD,4)}"
    csl = lambda st: f"buffer_load_dwordx4 {a(ACSL(st),4)}, v{VCSA}, s[36:39], s66 offen"
    ACP = lambda h: 188 + 4 * h
    cpl = lambda h: f"buffer_load_dwordx4 {a(ACP(h),4)}, v{VCPS}, s[84:87], s74 offen"
    cps = lambda h: f"buffer_store_dwordx4 {a(ACP(h),4)}, v{VCPD}, s[40:43], s71 offen sc1"
    kvl = lambda u, tag="": [f"buffer_load_dwordx4 {a(AK(u,0)+4*q,4)}, v{VL16}, s[24:27], s57 offen offset:{q*1024} sc1{tag}" for q in range(4)]
    def kvadv(u):
        if u % 2: return ["s_add_u32 s57, s57, 4096"]
        return ["s_add_u32 s63, s63, 1", "s_cmp_eq_u32 s63, s46", "s_addc_u32 s63, s63, 0", "s_lshl_b32 s57, s63, 14", "s_add_u32 s57, s57, s52",
                "s_cmp_lt_u32 s63, 16", "s_cselect_b32 s57, s57, s59"]
    wol = f"buffer_load_dwordx4 v{VWO}, s[80:83], s68 offen lds"
    woadv = ["s_add_u32 s65, s65, 1", "s_and_b32 s65, s65, 31", "s_lshl_b32 s68, s65, 14", "s_add_u32 s68, s68, s72", "s_lshl_b32 s69, s65, 10", "s_add_u32 m0, s69, s73"]
    fil = f"buffer_load_dword v{VD1}, v{VL16}, s[84:87], s59 offen"
    def slot(n, m, after, mid1=()):
        b_ = VS(n % 2); p_ = VP(n % 2)
        ex = lambda r: f"v_exp_f32 v{b_+r}, v{b_+r}"
        cv = lambda r: f"v_cvt_pk_bf16_f32 v{p_+r}, v{b_+2*r}, v{b_+2*r+1}"
        seg = [[ex(0), ex(1), ex(2), ex(3)], [ex(4), cv(0), ex(5)] + list(mid1) + [cv(1), ex(6)], [ex(7), cv(2), ex(8), ex(9), cv(3)],
               [ex(10), ex(11), cv(4), ex(12), cv(5)], [ex(13), ex(14), ex(15), cv(6), cv(7)]]
        out = []
        for j_ in range(5):
            if m[j_]: out.append(m[j_])
            out += after.get(j_, []) + seg[j_]
        return out
    def emit(seq):
        for x in seq:
            if x.startswith("s_STAMP"): fstamp(k, int(x[7:]))
            else: k.e(x)
    fin = lambda Z: salu_first(auto_lgkm([x if not x.startswith("STAMP") else "s_" + x for x in resolve_vm(Z)], cyclic=False, merge=MG, hoist=True))
    def waitcnt(soff, target, vt):
        wait_multi(k, VFA, 1, f"s{soff}", target, vt)
    assert SIG <= PP <= 5
    VPA2 = 252
    for n in range(8):
        m = qk(n + 1) + (pv(n - 1, n <= 4) if n > 0 else [None] * 3)
        after = {}
        if n == SIG:
            after[1] = ["WAITVM kv", "s_barrier", f"v_mov_b32 v{VX2}, 1", "s_lshl_b32 s60, s47, 7", "s_lshl_b32 s61, s3, 20", "s_add_u32 s61, s61, s60",
                        f"buffer_atomic_add v{VX2}, v{VFA}, s[88:91], s61 offen sc1"]
        if n == 6: after[1] = kvadv(4); after[2] = woadv; after[4] = ["WAITVM u2"] + kvl(4) + [fil] * 2
        if n == 7: after[0] = kvadv(5); after[3] = kvl(5) + [wol] + woadv + ["s_mov_b32 s62, 5", wol]; after[4] = kvadv(6) + woadv
        P += slot(n, m, after)
        if n == PP:
            P.append("STAMP4")
            emit(fin(P))
            if OPT.codepf:
                kk = KB(k.name + "_b", 0, 0, 0); code_pf_addr(kk, "L_att_code", LAST, VPA2, VL2, 3)
                k.e("\n".join(kk.lines).replace("s76", "s100").replace("s77", "s101").replace("s[76:77]", "s[100:101]").replace("s78", "s51"))
                k.e(code_pf(VD1, VPA2))
            k.e("\n".join(kvadv(2)))
            waitcnt(60, 16, VX2 + 1)
            k.e("L_att_code:")
            fstamp(k, 5)
            P = kvl(2, " @u2") + kvadv(3) + kvl(3) + [fil] * 2
    P.append("STAMP6")
    emit(fin(P))
    L = k.label("loop")
    body = []
    sides = [[csl(0)], [csl(1)], [csl(2)], [cps(0), cpl(0)], [cps(1), cpl(1)], []]
    for j in range(6):
        u = 2 + j
        pre = []
        if j == 3: pre = ["s_cmp_lg_u32 s62, 5", "s_cselect_b32 s71, s79, s59"]
        if j == 4: pre = ["s_bitcmp1_b32 s70, s62", "s_cselect_b32 s71, s79, s59", "s_cmp_lg_u32 s62, 2", "s_cselect_b32 s74, s74, s59"]
        if j == 5: pre = ["s_sub_u32 s62, s62, 1"]
        sal = kvadv(u + 5) + woadv
        if j < 3: sal.append(f"s_add_u32 s66, s66, {4*7168}")
        elif j < 5: sal += ["s_add_u32 s74, s74, 16384", "s_add_u32 s79, s79, 2048"]
        else: sal.append("s_cmp_lg_u32 s62, 0")
        sd = sides[j]
        aft = [{q: [x] for q, x in enumerate(pre)}, {0: sd[:1] * (len(sd) == 2) + kvl(u + 4) + [wol] + sd[-1:]}, {}, {}]
        spots = [(1, 1), (1, 2), (1, 3), (1, 4), (2, 0), (2, 1), (2, 2), (2, 3), (3, 0), (3, 1), (3, 2), (3, 3), (3, 4)]
        for q, x in enumerate(sal):
            t_, j_ = spots[q * len(spots) // len(sal)] if len(sal) > len(spots) else spots[len(spots) - len(sal) + q]
            aft[t_].setdefault(j_, []).append(x)
        nw = 1 + min(1, len(sides[(j - 3) % 6])) + sum(5 + len(sides[(j - q) % 6]) for q in range(3))
        aft[2].setdefault(4, []).append(f"s_waitcnt vmcnt({nw})")
        for t_ in range(4):
            n = 4 * u + t_
            body += slot(n, qk(n + 1) + pv(n - 1), aft[t_], mid1=[csm(j)] if (t_ == 0 and j < 3) else ())
    k.e(f".p2align 6\n{L}:")
    for x in body: k.e(x)
    k.e(f"s_cbranch_scc1 {L}")
    if OPT.codepf: k.e(code_pf(VD1, VPA2))
    else: k.e("s_nop 0")
    for x in pv(31): k.e(x)
    fstamp(k, 7)
    Lfb = k.label("fb"); Lno = k.label("nofb")
    VSV = VX2 + 4
    k.e(f"""
    s_lshl_b32 s69, s92, 1
    s_add_u32 s69, s69, 8
    s_and_b32 s69, s69, 31
    s_lshl_b32 s69, s69, 10
    s_add_u32 s69, s69, s73
    v_add_u32 v{VQR}, s69, v{VL16}
    ds_read_b128 {v(VSV,4)}, v{VQR}
    v_add_u32 v{VKA}, 0x20000, v{VKA}
    """)
    for r in range(4): k.e(f"ds_write_b128 v{VKA}, {a(AOS(2)+4*r,4)} offset:{r*1024}")
    k.e(f"""
    v_add_f32 v{VX2}, v{VLs(2)}, v{VLs(2)+1}
    v_mov_b32 v{VX2+2}, v{VM+2}
    v_mov_b32 v{VX2+3}, v{VM+3}
    v_add_f32 v{VX2+1}, v{VLs(3)}, v{VLs(3)+1}
    """)
    for r in range(4): k.e(f"ds_write_b128 v{VKA}, {a(AOS(3)+4*r,4)} offset:{4096 + r*1024}")
    k.e(f"ds_write_b128 v{VQR}, {v(VX2,4)}")
    srd(k, 32, 22, 23, PLANE + S_*D_*2, WS_O)
    k.e(f"""
    v_xor_b32 v{VKA}, 0x4000, v{VKA}
    v_xor_b32 v{VQW}, 0x10000, v{VQR}
    v_and_b32 v{VY}, 15, v{VL2}
    v_bfe_u32 v{VY+1}, v{VL2}, 4, 1
    v_lshrrev_b32 v{VY+2}, 5, v{VL2}
    v_lshlrev_b32 v{VOA}, 4, v{VY}
    v_lshl_add_u32 v{VOA}, v{VY+1}, 15, v{VOA}
    v_lshl_add_u32 v{VOA}, v{VY+2}, 8, v{VOA}
    s_lshl_b32 s60, s46, 18
    s_lshl_b32 s61, s48, 17
    s_add_u32 s60, s60, s61
    s_lshl_b32 s61, s67, 10
    s_add_u32 s60, s60, s61
    s_add_u32 s61, s60, 65536
    """)
    reloc(k, VOA, VY+1)
    k.e(f"""
    v_add_f32 v{VY+4}, v{VLs(0)}, v{VLs(0)+1}
    v_add_f32 v{VY+5}, v{VLs(1)}, v{VLs(1)+1}
    v_mov_b32 v{VY+3}, {fbits(2.0**40 if not force_fb else 0.5)}
    s_waitcnt lgkmcnt(0)
    s_barrier
    ds_read_b128 {v(VX2,4)}, v{VQW}
    """)
    for r in range(8): k.e(f"ds_read_b128 {v(VS(0)+4*r,4)}, v{VKA} offset:{r*1024}")
    k.e(f"""
    s_waitcnt lgkmcnt(8)
    {pk("add", VY+8, VY+4, VX2)}
    v_max_f32 v{VY+10}, v{VM}, v{VX2+2}
    v_max_f32 v{VY+11}, v{VM+1}, v{VX2+3}
    v_add_f32 v{VY+2}, v{VY+8}, v{VY+9}
    v_sub_f32 v{VY+8}, v{VM}, v{VY+10}
    v_sub_f32 v{VY+9}, v{VM+1}, v{VY+11}
    v_sub_f32 v{VY+6}, v{VX2+2}, v{VY+10}
    v_sub_f32 v{VY+7}, v{VX2+3}, v{VY+11}
    v_cmp_nlt_f32 vcc, v{VY+2}, v{VY+3}
    v_exp_f32 v{VY+8}, v{VY+8}
    v_exp_f32 v{VY+9}, v{VY+9}
    v_exp_f32 v{VY+6}, v{VY+6}
    v_exp_f32 v{VY+7}, v{VY+7}
    {pk("mul", VY+4, VY+4, VY+8)}
    s_cbranch_vccnz {Lfb}
    {pk("fma", VY+4, VX2, VY+6, VY+4)}
    v_rcp_f32 v{VY+10}, v{VY+4}
    v_rcp_f32 v{VY+11}, v{VY+5}
    s_waitcnt lgkmcnt(0)
    {pk("mul", VY+4, VY+8, VY+10)}
    {pk("mul", VY+6, VY+6, VY+10)}
    {Lno}:
    """)
    E = []
    for q in range(2):
        b_ = VOK(q); o_ = VS(q)
        for a_ in range(2):
            E += [pk("mul", b_+8*a_+r, b_+8*a_+r, ('b', VY+4+q)) for r in range(0, 8, 2)]
            E += [pk("fma", b_+8*a_+r, o_+8*a_+r, ('b', VY+6+q), b_+8*a_+r) for r in range(0, 8, 2)]
            E += [f"v_cvt_pk_bf16_f32 v{b_+8*a_+r}, v{b_+8*a_+2*r}, v{b_+8*a_+2*r+1}" for r in range(4)]
            E.append(f"buffer_store_dwordx4 {v(b_+8*a_,4)}, v{VOA}, s[32:35], s{60+q} offen offset:{a_*512} sc1 @o")
    ACC3 = lambda j, i: (j * 2 + i) * 4
    VW3 = lambda g, s_: 32 + (g % 4) * 8 + s_ * 4
    VR3 = 64
    VXA = 76
    AX3 = lambda ks, i: ((ks % 32) * 2 + i) * 4
    kk = KB("t", 0, 0, 0)
    srd(kk, 28, 22, 23, 2*F_*4, WS_CS)
    kk.e(f"""
    {csm(0)}
    {csm(1)}
    {csm(2)}
    v_lshrrev_b32 v{VY+1}, 4, v{VL2}
    v_and_b32 v{VY+6}, 7, v{VY}
    v_lshlrev_b32 v{VY+6}, 5, v{VY+6}
    v_lshl_add_u32 v{VY+6}, v{VY+1}, 3, v{VY+6}
    v_lshrrev_b32 v{VY+7}, 3, v{VY}
    v_lshl_add_u32 v{VD2}, v{VY+7}, 2, v{VY+6}
    """)
    for r in range(4): kk.e(f"v_accvgpr_read_b32 v{VRES+r}, a{ARES+r}")
    kk.e(f"""
    v_mov_b32 v{VCSD+2}, v{VCSD}
    v_mov_b32_dpp v{VCSD}, v{VCSD+1} row_ror:8 row_mask:0xf bank_mask:0xc
    s_nop 0
    v_mov_b32_dpp v{VCSD+1}, v{VCSD+2} row_ror:8 row_mask:0xf bank_mask:0x3
    """)
    AT = [f"buffer_atomic_add_f32 v{VCSD+r}, v{VD2}, s[28:31], s95 offen offset:{256*r}" for r in range(2)]
    for r in range(4, 16): kk.e(f"v_accvgpr_read_b32 v{VRES+r}, a{ARES+r}")
    kk.e(f"v_mov_b32 v{VXA}, v{VL16}")
    for i in range(2):
        for p in range(2):
            r = VRES + i*8 + p*4
            kk.e(f"v_permlane16_swap_b32 v{r}, v{r+2}\nv_permlane16_swap_b32 v{r+1}, v{r+3}")
    reloc(kk, VXA, VY+7)
    kk.e(f"""
    v_add_u32 v{VXA}, s64, v{VXA}
    v_add_u32 v{VXA+1}, 32768, v{VXA}
    v_and_b32 v{VY+7}, 31, v{VL2}
    v_lshrrev_b32 v{VY+7}, 2, v{VY+7}
    v_lshrrev_b32 v{VY+8}, 5, v{VL2}
    v_lshl_add_u32 v{VY+8}, v{VY+8}, 4, v{VY+7}
    v_lshrrev_b32 v{VY+7}, 1, v{VY+7}
    v_lshlrev_b32 v{VY+7}, 5, v{VY+7}
    v_lshl_add_u32 v{VY+7}, v{VY+8}, 7, v{VY+7}
    v_and_b32 v{VY+8}, 3, v{VL2}
    v_lshl_add_u32 v{VR3}, v{VY+8}, 3, v{VY+7}
    """)
    for fb in range(1, 4): kk.e(f"v_xor_b32 v{VR3+fb}, {fb*32}, v{VR3}")
    for rg in range(1, 2):
        for fb in range(4): kk.e(f"v_add_u32 v{VR3+4*rg+fb}, {rg*0x10000}, v{VR3+fb}")
    kk.e(f"""
    v_mov_b32 v{VX2}, 1
    s_lshl_b32 s60, s46, 7
    s_add_u32 s60, s60, 2048
    s_lshl_b32 s61, s3, 20
    s_add_u32 s61, s61, s60
    s_lshl_b32 s60, s92, 7
    s_add_u32 s60, s60, 2048
    """)
    E += ["s_waitcnt vmcnt(23)"] + lines("\n".join(kk.lines))
    E += ["WAITVM o", "s_barrier", f"buffer_atomic_add v{VX2}, v{VFA}, s[88:91], s61 offen sc1", f"ds_write_b128 v{VQR}, {v(VSV,4)}", "s_waitcnt lgkmcnt(0)", "STAMP8"]
    emit(["s_" + x if x.startswith("STAMP") else x for x in resolve_vm(E)])
    waitcnt(60, 16, VX2 + 1)
    fstamp(k, 9)
    qbase = [0, 0x8000, 0x10000, 0x18000]
    def wreads3(G):
        sp, fb = G // 4, G % 4
        out = []
        for s_ in range(2):
            ks = 2 * sp + s_; ad = qbase[ks // 8] + (ks % 8) * 4096
            out += [f"ds_read_b64_tr_b16 {v(VW3(G,s_)+2*rd,2)}, v{VR3+4*(ad>>16)+fb} offset:{(ad & 0xffff) + rd*1024}" for rd in range(2)]
        return out
    def xl(sp):
        out = []
        for s_ in range(2):
            ks = 2 * sp + s_
            for i in range(2):
                o_ = [f"buffer_load_dwordx4 {a(AX3(ks,i),4)}, v{VXA+i}, s[32:35], s57 offen offset:{(ks%4)*1024} sc1 @x{sp}"]
                if ks % 4 == 0 and i == 0: o_ = [f"s_mov_b32 s57, {(ks//4)*4096}"] + o_
                out.append(o_)
        return out
    Q = []
    for sp in range(LA):
        for o_ in xl(sp): Q += o_
        if sp == 0:
            for G in range(3): Q += wreads3(G)
    main = []; side = {}
    for G in range(64):
        sp, fb = G // 4, G % 4
        if fb == 0: side.setdefault(4*G - 1, []).insert(0, f"WAITVM x{sp}")
        for i in range(2):
            for s_ in range(2):
                c_ = v(ACC3(fb,i),4) if (sp or s_) else "0"
                main.append(f"v_mfma_f32_16x16x32_bf16 {v(ACC3(fb,i),4)}, {v(VW3(G,s_),4)}, {a(AX3(2*sp+s_,i),4)}, {c_}")
        if G + 3 < 64:
            for q, x in enumerate(wreads3(G + 3)): side.setdefault(4*G + q, []).append(x)
        if sp + LA < 16: side.setdefault(4*G + 1, []).extend(xl(sp + LA)[fb])
        if sp + LA == 16 and fb < 2: side.setdefault(4*G + 1, []).append(AT[fb])
    Q += flatten(main, side)
    emit(salu_first(auto_lgkm(resolve_vm(Q), cyclic=False, merge=1, hoist=True)))
    fstamp(k, 10)
    if full: k.e("s_barrier")
    srd(k, 36, 22, 23, S_*D_*2, WS_H)
    srd(k, 40, 22, 23, S_*8, WS_ST)
    k.e(f"""
    s_lshl_b32 s61, s93, 11
    s_add_u32 s60, s64, s61
    s_add_u32 s61, s60, 32768
    """)
    for i in range(2):
        for p in range(2):
            for fb in (2*p, 2*p+1):
                o = ACC3(fb, i); r = VRES + i*8 + fb*2
                k.e(f"""
                v_lshlrev_b32 v{VY+4}, 16, v{r}
                v_and_b32 v{VY+5}, 0xffff0000, v{r}
                v_lshlrev_b32 v{VY+6}, 16, v{r+1}
                v_and_b32 v{VY+7}, 0xffff0000, v{r+1}
                {pk("add", o, o, VY+4)}
                {pk("add", o+2, o+2, VY+6)}
                v_cvt_pk_bf16_f32 v{r}, v{o}, v{o+1}
                v_cvt_pk_bf16_f32 v{r+1}, v{o+2}, v{o+3}
                """)
            k.e(f"buffer_store_dwordx4 {v(VRES+i*8+p*4,4)}, v{VL16}, s[36:39], s{60+i} offen offset:{p*1024} {OPT.st}")
    for i in range(2):
        regs = [ACC3(fb, i) + r for fb in range(4) for r in (0, 2)]
        k.e(pk("add", 36, regs[0], regs[1]) + "\n" + pk("mul", 38, regs[0], regs[0]) + "\n" + pk("fma", 38, regs[1], regs[1], 38))
        for r in regs[2:]: k.e(pk("add", 36, 36, r) + "\n" + pk("fma", 38, r, r, 38))
        k.e(f"v_add_f32 v{32+2*i}, v36, v37\nv_add_f32 v{33+2*i}, v38, v39")
    k.e(f"""
    v_lshrrev_b32 v{VY+3}, 1, v{VY+1}
    v_lshl_add_u32 v{VY+3}, v{VY+3}, 4, v{VY}
    v_permlane32_swap_b32 v32, v34
    v_permlane32_swap_b32 v33, v35
    v_and_b32 v{VY+4}, 1, v{VY+1}
    v_add_f32 v32, v32, v34
    v_add_f32 v33, v33, v35
    v_lshlrev_b32 v{VY+3}, 3, v{VY+3}
    v_lshl_add_u32 v{VY+3}, v{VY+4}, 2, v{VY+3}
    v_permlane16_swap_b32 v32, v33
    s_lshl_b32 s60, s76, 7
    v_add_f32 v32, v32, v33
    buffer_atomic_add_f32 v32, v{VY+3}, s[40:43], s60 offen
    """)
    cold = []
    if full:
        phase4(k, LAST, cold, **p4)
        phase5(k, LAST, cold, **p5)
    Lfin = k.label("fin")
    k.e(f"s_branch {Lfin}" if OPT.diag else "s_endpgm")
    k.e(";WARMEND")
    for x in cold: k.e(x)
    k.e(f"""
    {Lsp}:
    s_mov_b32 s94, {SPIN}
    {Lsp}_l:
    s_sleep 2
    s_sub_u32 s94, s94, 1
    s_cbranch_scc1 {Lok}
    buffer_load_dword v{VT+6}, v{VT+7}, s[32:35], 0 offen sc1
    s_waitcnt vmcnt(0)
    v_cmp_gt_u32 vcc, v{VT+5}, v{VT+6}
    s_nop 4
    s_cbranch_vccnz {Lsp}_l
    s_branch {Lok}
    """)
    Lm = k.label("maxloop"); Lp2 = k.label("pass2")
    k.e(f"{Lfb}:")
    ldk = [f"buffer_load_dwordx4 {a(AK(0,s_),4)}, v{VL16}, s[24:27], s51 offen offset:{s_*1024} sc1" for s_ in range(2)]
    ldv = [f"buffer_load_dwordx4 {a(AV(0,s_),4)}, v{VL16}, s[24:27], s51 offen offset:{2048+s_*1024} sc1" for s_ in range(2)]
    nxt = lambda L_: f"s_add_u32 s51, s51, 4096\ns_sub_u32 s50, s50, 1\ns_cmp_lg_u32 s50, 0\ns_cbranch_scc1 {L_}"
    k.e(f"s_waitcnt vmcnt(0) lgkmcnt(0)\ns_lshl_b32 s51, s67, 18\ns_mov_b32 s50, 64\nv_mov_b32 v{VM}, 0xff800000\nv_mov_b32 v{VM+1}, 0xff800000\nv_mov_b32 v{VY+8}, v{VSV}\n{Lm}:")
    k.e("\n".join(ldk + ["s_waitcnt vmcnt(0)"] + qk0(0) + qk0(1) + ["s_nop 15"]))
    for q in range(2):
        for r in range(0, 16, 2): k.e(f"v_max3_f32 v{VM+q}, v{VM+q}, v{VS(q)+r}, v{VS(q)+r+1}")
    k.e(nxt(Lm))
    k.e("\n".join(maxfin(0)) + f"\nv_mov_b32 v{VSV}, v{VY+8}")
    for r in list(range(VOK(0), VOK(0) + 32)) + list(range(VLs(0), VLs(0) + 8)): k.e(f"v_mov_b32 v{r}, 0")
    k.e(f"s_lshl_b32 s51, s67, 18\ns_mov_b32 s50, 64\n{Lp2}:")
    k.e("\n".join(ldk + ldv + ["s_waitcnt vmcnt(0)"] + qk(0) + qk(1) + ["s_nop 15"]))
    for q in range(2):
        for r in range(16): k.e(f"v_exp_f32 v{VS(q)+r}, v{VS(q)+r}")
        for r in range(8): k.e(f"v_cvt_pk_bf16_f32 v{VP(q)+r}, v{VS(q)+2*r}, v{VS(q)+2*r+1}")
    k.e("s_nop 1\n" + "\n".join(pv(0) + pv(1)) + "\ns_nop 7\n" + nxt(Lp2))
    for r in range(VS(0), VS(0) + 32): k.e(f"v_mov_b32 v{r}, 0")
    k.e(f"""
    v_add_f32 v{VY+4}, v{VLs(0)}, v{VLs(0)+1}
    v_add_f32 v{VY+5}, v{VLs(1)}, v{VLs(1)+1}
    v_rcp_f32 v{VY+4}, v{VY+4}
    v_rcp_f32 v{VY+5}, v{VY+5}
    v_mov_b32 v{VY+6}, 0
    v_mov_b32 v{VY+7}, 0
    s_branch {Lno}
    {Lfin}:
    """)
    ffinish(k, k.nst - 1)
    if full and OPT.warm:
        st_ = add_warm_chains(k)
        if OPT.rep: print(st_, file=sys.stderr)
    return k


def all_kernels(**kw):
    g = lambda n: kw.get(n, {})
    return [gen_front(p4=g('p4'), p5=g('p5'), **g('f'))]

if __name__ == "__main__":
    hdr = "".join(l for l in open("sequential_preLN__softmax_full_mha__glu_gated_swiglu__prompt.s.ref") if l.startswith(";") and "@launch" not in l and "Override" not in l and "grid=ceil" not in l)
    kw = eval("dict(" + (sys.argv[1] if len(sys.argv) > 1 else "") + ")")
    for a_, b_ in kw.pop("opt", {}).items(): setattr(OPT, a_, b_)
    print(build_file(all_kernels(**kw), hdr))
```

```python
import sys, struct
from asmlib import *

S_, D_, F_ = 2048, 1024, 3584
MB = 1 << 20
PLANE = 16 * MB
WS_XN = 0; WS_Q = 4*MB; WS_KV = 8*MB; WS_H = 16*MB
WS_ST = 20*MB; WS_CS = WS_ST + 0x4000; WS_FLAG = WS_ST + 0x10000; WS_CNT = WS_ST + 0x10000; ZERO_BYTES = 0x40000
WS_STAMP = 21*MB
WS_CSP1 = 22*MB; WS_MU = WS_CSP1 + 0x40000; WS_RS = WS_MU + 0x2000
WS_O = 32*MB; WS_W2T = 38*MB
WS_G = 64*MB
WS_EX = 96*MB
RELOC = PLANE - 384
LOG2E = 1.4426950408889634
OOB = 0x40000000
SPIN = 0x40000
KNAME = "sequential_preLN__softmax_full_mha__glu_gated_swiglu__prompt_kernel"
def fbits(x): return hex(struct.unpack("<I", struct.pack("<f", x))[0])

class Opt:
    diag = False
    st = "sc1"
    reloc = True
    codepf = True
    rep = False
    only = None
    warm = True
    R = 4
    exw = 0
OPT = Opt()

def prologue(k, nwg=256):
    k.e(f"""
    s_cmp_ge_u32 s2, {nwg}
    s_cbranch_scc1 L_{k.name}_end
    s_load_dwordx16 s[4:19], s[0:1], 0
    s_load_dwordx4 s[20:23], s[0:1], 64
    v_lshrrev_b32 v1, 6, v0
    v_and_b32 v0, 63, v0
    v_readfirstlane_b32 s3, v1
    s_and_b32 s44, s2, 7
    s_lshr_b32 s45, s2, 3
    """)

def udiv_const(k, dst, src, c):
    sh = 20
    m = (1 << sh) // c + 1
    for x in range(0, 4096): assert (x * m) >> sh == x // c
    k.e(f"v_mul_u32_u24 v{dst}, {m}, v{src}\nv_lshrrev_b32 v{dst}, {sh}, v{dst}")

def tile_map(k, nb_m, nb_x, sm, sn):
    k.e(f"""
    s_and_b32 s{sm}, s44, {(1<<nb_x)-1}
    s_lshl_b32 s{sm}, s{sm}, {nb_m}
    s_and_b32 s{sn}, s45, {(1<<nb_m)-1}
    s_add_u32 s{sm}, s{sm}, s{sn}
    s_lshr_b32 s{sn}, s44, {nb_x}
    s_lshl_b32 s{sn}, s{sn}, {5-nb_m}
    s_lshr_b32 s79, s45, {nb_m}
    s_add_u32 s{sn}, s{sn}, s79
    """)

def reloc(k, addr, tmp):
    if not OPT.reloc: return
    k.e(f"""
    v_bfe_u32 v{tmp}, v{addr}, 7, 2
    v_add_u32 v{tmp}, 1, v{tmp}
    v_lshrrev_b32 v{tmp}, 2, v{tmp}
    v_mul_u32_u24 v{tmp}, {RELOC}, v{tmp}
    v_add_u32 v{addr}, v{addr}, v{tmp}
    """)

def code_pf_addr(k, first, last, vaddr, lane, chunk_s):
    L = k.label("pc")
    k.e(f"""
    s_getpc_b64 s[76:77]
    {L}:
    s_add_u32 s76, s76, {first}-{L}
    s_addc_u32 s77, s77, ({first}-{L})>>32
    s_lshl_b32 s78, s45, 2
    s_add_u32 s78, s78, s3
    s_lshl_b32 s78, s78, 9
    v_and_b32 v{vaddr}, 3, v{lane}
    v_lshl_add_u32 v{vaddr}, v{vaddr}, 7, s78
    v_min_u32 v{vaddr}, {last}-{first}, v{vaddr}
    v_mov_b32 v{vaddr+1}, s77
    v_add_co_u32 v{vaddr}, vcc, s76, v{vaddr}
    s_nop 1
    v_addc_co_u32 v{vaddr+1}, vcc, 0, v{vaddr+1}, vcc
    """)
def code_pf(vdst, vaddr):
    return f"global_load_dword v{vdst}, v[{vaddr}:{vaddr+1}], off"

def pk(op, d, *srcs):
    ops = []; lo = []; hi = []; neg = []
    for s_ in srcs:
        if isinstance(s_, tuple):
            r = s_[1]; ops.append(v(r & ~1, 2)); lo.append(r & 1); hi.append(r & 1); neg.append(int(s_[0] == 'nb'))
        else:
            assert s_ % 2 == 0
            ops.append(v(s_, 2)); lo.append(0); hi.append(1); neg.append(0)
    f = lambda x: "[" + ",".join(map(str, x)) + "]"
    t = f"v_pk_{op}_f32 {v(d,2)}, " + ", ".join(ops) + f" op_sel:{f(lo)} op_sel_hi:{f(hi)}"
    if any(neg): t += f" neg_lo:{f(neg)} neg_hi:{f(neg)}"
    return t

def sprinkle(base, extra):
    out = []; n = len(base); m = len(extra); q = 0
    for i, b in enumerate(base):
        out.append(b)
        while q < m and (q + 1) * n <= (i + 1) * (m + 1):
            out += extra[q]; q += 1
    for x in extra[q:]: out += x
    return out
def with_nop(op):
    return [op[0], "s_nop 0", op[1]] if len(op) > 1 else list(op)

def allreduce64(k, regs, tmp):
    for sh in (8, 4, 2, 1):
        k.e("s_nop 1")
        for r in regs: k.e(f"v_add_f32_dpp v{r}, v{r}, v{r} row_ror:{sh} row_mask:0xf bank_mask:0xf")
    for sw in ("v_permlane16_swap_b32", "v_permlane32_swap_b32"):
        for q, r in enumerate(regs): k.e(f"v_mov_b32 v{tmp+q}, v{r}")
        k.e("s_nop 1")
        for q, r in enumerate(regs): k.e(f"{sw} v{r}, v{tmp+q}")
        k.e("s_nop 1")
        for q, r in enumerate(regs): k.e(f"v_add_f32 v{r}, v{r}, v{tmp+q}")

def fstamp(k, i):
    if OPT.diag and (OPT.only is None or i in OPT.only):
        k.e(f"s_memrealtime s[96:97]\ns_memtime s[98:99]\ns_waitcnt lgkmcnt(0)\nv_writelane_b32 v254, s96, {i}\nv_writelane_b32 v255, s98, {i}")
def ffinish(k, i):
    if OPT.diag:
        k.e("s_waitcnt vmcnt(0)")
        fstamp(k, i)
        srd(k, 96, 22, 23, MB, WS_STAMP + 0x80000)
        k.e("v_mbcnt_lo_u32_b32 v0, -1, 0\nv_mbcnt_hi_u32_b32 v0, -1, v0\nv_lshlrev_b32 v0, 3, v0\ns_lshl_b32 s100, s2, 2\ns_add_u32 s100, s100, s3\ns_lshl_b32 s100, s100, 9")
        k.e("buffer_store_dwordx2 v[254:255], v0, s[96:99], s100 offen")
    k.e(f"L_{k.name}_end:\ns_endpgm")


def lane_id(k, r): k.e(f"v_mbcnt_lo_u32_b32 v{r}, -1, 0\nv_mbcnt_hi_u32_b32 v{r}, -1, v{r}")
NL = chr(10)
def signal(k, vone, vfa, off_s, tmp_s):
    k.e(f"s_lshl_b32 s{tmp_s}, s3, 20\ns_add_u32 s{tmp_s}, s{tmp_s}, s{off_s}\nbuffer_atomic_add v{vone}, v{vfa}, s[88:91], s{tmp_s} offen sc1")
def wait_multi(k, vaddr, nl, soff, target, vt, nwait=0, got=None):
    L2 = k.label("pdone"); L0 = k.label("poller"); L1 = k.label("poll"); L3 = k.label("pend")
    if OPT.warm: k.e(f"s_cmp_eq_u32 s3, 0\ns_cbranch_scc1 {L0}\ns_branch {L2}\n{L0}:")
    else: k.e(f"s_cmp_lg_u32 s3, 0\ns_cbranch_scc1 {L2}")
    k.e(f"""
    s_mov_b32 s50, {SPIN}
    s_mov_b64 exec, {(1 << nl) - 1}
    {f's_waitcnt vmcnt(0){NL}v_cmp_gt_u32 vcc, {target - 1}, v{got}{NL}s_nop 4{NL}s_cbranch_vccz {L3}' if got is not None else ''}
    {L1}:
    v_mov_b32 v{vt}, 0
    s_sub_u32 s50, s50, 1
    s_cbranch_scc1 {L3}
    buffer_atomic_add v{vt}, v{vaddr}, s[88:91], {soff} offen sc0 sc1
    s_waitcnt vmcnt(0)
    v_cmp_gt_u32 vcc, {target}, v{vt}
    s_nop 4
    s_cbranch_vccnz {L1}
    {L3}:
    s_mov_b64 exec, -1
    {L2}:
    s_waitcnt vmcnt({nwait})
    s_barrier
    """)
C2 = 0x4000; C3 = 0x8000; C4 = 0xc000; C6 = 0x10000

def phase4(k, LAST, cold, D=3, MG=1, M=4, PL=7, EF=4, LEAD=56, GAP=4, PRE1=True, fine=False):
    STG = 28672; NSL = 5; CSB = NSL * STG
    ACC = lambda j, i: (j * 4 + i) * 4
    VD = 224; VX = 231; VR = 232; VFA = 249; VA = 236; CT = 244; VL = 235; VPD = 253; VPF = 252; VPA = 250
    T = 40
    AX = lambda n, i, s_: (n % NSL) * 32 + (i * 2 + s_) * 4
    AW = lambda g, s_: 160 + (g % 7) * 8 + s_ * 4
    Lst = k.label("code4")
    lane_id(k, VL)
    tile_map(k, 2, 1, 46, 47)
    k.e(f"""
    s_and_b32 s50, s3, 1
    s_mul_i32 s50, s50, 448
    s_mul_i32 s51, s47, 224
    s_cmp_lt_u32 s3, 2
    s_cselect_b32 s24, s12, s14
    s_cselect_b32 s25, s13, s15
    s_mov_b32 s26, {D_*F_*2}
    s_mov_b32 s27, 0x20000
    s_mul_i32 s53, s3, 7168
    """)
    def dops(n):
        d = []
        for i in range(7):
            pre = []
            if i == 0: pre.append(f"s_mov_b32 s56, {n*64*7168}")
            if i % 4 == 0: pre.append(f"s_add_u32 m0, s53, {(n % NSL)*STG + i*1024}")
            d.append((pre, f"buffer_load_dwordx4 v{VD+i}, s[24:27], s56 offen offset:{(i%4)*1024} lds @s{n}"))
        return d
    def xops(n):
        return [([f"s_add_u32 s57, s49, {i*32768 + n*2048}"] if s_ == 0 else [],
                 f"buffer_load_dwordx4 {a(AX(n,i,s_),4)}, v{VX}, s[28:31], s57 offen offset:{s_*1024} sc1 @s{n}") for i in range(4) for s_ in range(2)]
    strip = lambda x: x.split(" @")[0]
    def direct(ops):
        o_ = []
        for pre, x in ops: o_ += pre + (["s_nop 0"] if any("m0" in y for y in pre) else []) + [x]
        return o_
    d0 = dops(0)
    for i in range(7):
        k.e(f"v_add_u32 v{T}, s50, v{VL}")
        if i: k.e(f"v_add_u32 v{T}, {64*i}, v{T}")
        udiv_const(k, T+1, T, 14)
        k.e(f"""
        v_mul_u32_u24 v{T+1}, {7168 - 224}, v{T+1}
        v_lshl_add_u32 v{T+1}, v{T}, 4, v{T+1}
        v_add_u32 v{VD+i}, s51, v{T+1}
        """)
        if i % 4: k.e(f"v_subrev_u32 v{VD+i}, {(i%4)*1024}, v{VD+i}")
        for x in direct(d0[i:i+1]): k.e(strip(x))
    k.e(f"""
    v_mov_b32 v{VFA}, v237
    v_mov_b32 v{VPD}, 1
    s_lshl_b32 s60, s92, 10
    s_add_u32 s60, s60, {C3}
    s_lshl_b32 s72, s3, 20
    s_add_u32 s72, s72, s60
    s_add_u32 s72, s72, {C6 - C3}
    s_waitcnt vmcnt(8)
    s_barrier
    """)
    signal(k, VPD, VFA, 60, 61)
    fstamp(k, 11)
    if PRE1:
        for x in direct(dops(1)): k.e(strip(x))
    k.e(f"""
    s_lshl_b32 s48, s46, 4
    s_lshl_b32 s49, s3, 2
    s_add_u32 s48, s48, s49
    s_lshl_b32 s49, s48, 15
    v_lshlrev_b32 v{VX}, 4, v{VL}
    s_lshl_b32 s55, s3, 10
    s_add_u32 s55, s55, {CSB}
    v_lshrrev_b32 v4, 2, v{VL}
    v_mul_u32_u24 v4, 224, v4
    v_and_b32 v5, 3, v{VL}
    v_lshl_add_u32 v{VR}, v5, 3, v4
    v_add_u32 v{VR+1}, {2*STG}, v{VR}
    v_add_u32 v{VR+2}, {4*STG}, v{VR}
    s_lshl_b32 s62, s46, 11
    s_add_u32 s62, s62, {C3}
    s_and_b32 s51, s47, {OPT.R - 1}
    s_lshl_b32 s51, s51, 7
    s_add_u32 s62, s62, s51
    v_and_b32 v{T+8}, 1, v{VL}
    v_lshlrev_b32 v{T+8}, 10, v{T+8}
    """)
    srd(k, 40, 22, 23, 2*F_*4, WS_CS); srd(k, 36, 22, 23, S_*8, WS_ST); srd(k, 28, 22, 23, S_*D_*2, WS_H)
    srd(k, 32, 22, 23, PLANE + S_*F_*2, WS_G)
    k.e(f"""
    s_mul_i32 s60, s48, {224*512}
    s_mul_i32 s61, s47, {7*512}
    s_add_u32 s60, s60, s61
    s_add_u32 s61, s60, {2*224*512}
    s_mul_i32 s58, s47, 448
    s_lshl_b32 s63, s48, 7
    s_lshl_b32 s94, s46, 1
    s_lshr_b32 s51, s47, 4
    s_add_u32 s94, s94, s51
    s_lshl_b32 s94, s94, 10
    s_add_u32 s94, s94, {C4}
    """)
    if OPT.codepf:
        code_pf_addr(k, Lst, LAST, VPA, VL, 3); k.e(code_pf(VPF, VPA))
    wait_multi(k, T+8, 2, "s62", 16, T+3)
    k.e(f"{Lst}:")
    fstamp(k, 12)
    groups = [(n, j) for n in range(16 - M) for j in range(14)]
    for p in range(7):
        for j in (p, p + 7): groups += [(n, j) for n in range(16 - M, 16)]
    def reads(g):
        n, j = groups[g]; sl = n % NSL
        off0 = (sl % 2) * STG + (j // 7) * 14336 + (j % 7) * 32
        return [f"ds_read_b64_tr_b16 {a(AW(g, s_) + 2*rd, 2)}, v{VR + sl//2} offset:{off0 + (32*s_ + 16*rd)*224}" for s_ in range(2) for rd in range(2)]
    main = []
    for g, (n, j) in enumerate(groups):
        for i in range(4):
            for s_ in range(2):
                c_ = v(ACC(j,i),4) if (n or s_) else "0"
                main.append(f"v_mfma_f32_16x16x32_bf16 {v(ACC(j,i),4)}, {a(AW(g,s_),4)}, {a(AX(n,i,s_),4)}, {c_}")
    S = Sched(main)
    SB = lambda n: 112 * n
    NB = 8 * (14 - D)
    NR = 16 - M
    early = lambda n: n <= NR - 1 and n >= EF
    for g in range(D, len(groups)):
        n, j = groups[g]
        if g < 14 * NR and early(n) and j >= 12:
            for q, x in enumerate(reads(g)): S.put(SB(n) + 8 * (12 - D) + 5 * (j - 12) + q + (q > 1), x)
        else:
            for q, x in enumerate(reads(g)): S.put(8 * (g - D) + 2 * q, x)
    for n in range(1, NR + 1):
        tags = f"s{n}" if n < NR else " ".join(f"s{q}" for q in range(NR, 16))
        if early(n - 1): S.put(SB(n-1) + NB - 2, "s_waitcnt lgkmcnt(0)")
        S.put(SB(n-1) + NB - 1, "WAITVM " + tags); S.put(SB(n-1) + NB - 1, "s_barrier")
    ld = [(1, o) for o in (xops(1)[4:] if PRE1 else dops(1)[4:] + xops(1))]
    for n in range(2, 16):
        d_, x_ = dops(n), xops(n)
        ld += [(n, o) for o in (d_[:4] + x_[:4] + d_[4:] + x_[4:] if n < 8 else d_ + x_)]
    end_all = SB(NR - 1) + NB - LEAD
    pos = 1; step = (end_all - 1) / len(ld)
    for q, (n, (pre, x)) in enumerate(ld):
        want = max(pos, int(1 + q * step)) if n > 1 else pos
        if n >= NSL:
            fr = n - NSL
            lo = SB(fr) + NB if early(fr) else SB(fr + 1) + NB
            if "lds" not in x: lo = SB(fr + 1)
            want = max(want, lo + 1)
        want = S.near(want | 1, 8)
        if n < NR: assert want <= SB(n - 1) + NB - 40, (n, want)
        else: assert want < SB(NR - 1) + NB - 24, (n, want)
        for y in pre: S.put(want - 1, y)
        S.put(want, x); pos = want + GAP
        if OPT.rep and pre and "s56" in pre[0]: print("stage", n, "starts at", want / 112, file=sys.stderr)
    if OPT.codepf:
        for n in (4, NR - 3): S.put(S.near(SB(n) + 33, 8), code_pf(VPF, VPA))
    def gcheck(va, vd, mask, soff, target, p0, p1, tag):
        Lsp = k.label("gspin")
        S.stream([f"v_and_b32 v{va}, {mask}, v{VL}", f"v_lshlrev_b32 v{va}, 10, v{va}", f"s_mov_b32 s73, {soff}"], p0 - 12, p0 - 1)
        S.put(S.near(p0, 4), f"buffer_load_dword v{vd}, v{va}, s[88:91], s73 offen sc1 @{tag}")
        S.put(p1, f"WAITVM {tag}"); S.put(p1, f"v_cmp_gt_u32 vcc, {target}, v{vd}"); S.put(p1 + 4, f"s_cbranch_vccnz {Lsp}\n{Lsp}_r:")
        cold.extend(lines(f"""
        {Lsp}:
        s_mov_b32 s50, {SPIN}
        {Lsp}_l:
        s_sub_u32 s50, s50, 1
        s_cbranch_scc1 {Lsp}_r
        s_sleep 16
        buffer_load_dword v{vd}, v{va}, s[88:91], s73 offen sc1
        s_waitcnt vmcnt(0)
        v_cmp_gt_u32 vcc, {target}, v{vd}
        s_nop 4
        s_cbranch_vccnz {Lsp}_l
        s_branch {Lsp}_r
        """))
    S.stream(lines(f"""
    v_cmp_lt_u32 vcc, 27, v{VL}
    v_mov_b32 v{CT+2}, {F_*4 - 28*16}
    v_and_b32 v{CT+3}, 15, v{VL}
    v_cndmask_b32 v{CT+2}, 0, v{CT+2}, vcc
    v_add_u32 v{CT+2}, v{CT+2}, v{VX}
    v_lshlrev_b32 v{CT+3}, 3, v{CT+3}
    """), SB(PL - 1), SB(PL) - 20)
    p_ = SB(PL + 1)
    S.put(S.near(SB(0) + NB + 1, 8), f"buffer_atomic_add v{VPD}, v{VFA}, s[88:91], s72 offen sc1")
    gcheck(CT, CT + 1, 15, C6, 16, SB(PL) + 1, p_, "pl")
    p_ += 6
    for i in range(4):
        p_ = S.near(p_ + 1, 8); S.put(p_, f"buffer_load_dwordx2 {v(VA+2*i,2)}, v{CT+3}, s[36:39], s63 offen offset:{i*128} sc1 @st")
    q_ = next(q for q in range(p_ + 2, S.n) if any("m0" in y for y in S.front[q] + S.ops[q]))
    assert not any("lds" in y for y in S.ops[q_ - 1] + S.ops[q_ - 2] + S.ops[q_])
    S.put(q_ - 2, "s_mov_b32 m0, s55"); S.put(q_ - 1, f"buffer_load_dwordx4 v{CT+2}, s[40:43], s58 offen sc1 lds @st")
    st2 = ["WAITVM st"]
    for i in range(4):
        b = VA + 2 * i
        st2 += lines(f"""v_mul_f32 v{b}, {fbits(-1.0/D_)}, v{b}
        v_mul_f32 v{b+1}, {fbits(1.0/D_)}, v{b+1}
        v_fma_f32 v{b+1}, -v{b}, v{b}, v{b+1}
        v_max_f32 v{b+1}, 0, v{b+1}
        v_add_f32 v{b+1}, {fbits(1e-5)}, v{b+1}""")
    st2 += [f"v_lshrrev_b32 v{CT+4}, 4, v{VL}", f"v_lshl_add_u32 v{CT+4}, v{CT+4}, 4, s55"]
    assert q_ < SB(PL + 2) - 16
    S.stream(st2, SB(PL + 2) + 40, SB(PL + 3) - 10)
    c0 = SB(PL + 3); assert PL + 5 <= NR
    for q in range(14):
        g0 = 2 * q; j = (g0 + 7 + q // 7) % 14
        w0 = c0 + 8 * g0
        S.put(w0 - 1, f"ds_read_b128 {v(CT,4)}, v{CT+4} offset:{j*64}")
        S.stream([f"v_fmac_f32 v{ACC(j,i)+r}, v{CT+r}, v{VA+2*i}" for i in range(4) for r in range(4)], w0 + 4, w0 + 15)
    c1 = c0 + 224
    kk = KB("t", 0, 0, 0)
    for i in range(4): kk.e(f"v_rsq_f32 v{VA+2*i}, v{VA+2*i+1}")
    kk.e(f"v_and_b32 v{CT}, 31, v{VL}\nv_lshlrev_b32 v{CT}, 4, v{CT}")
    reloc(kk, CT, CT+1)
    kk.e(f"v_lshrrev_b32 v{CT+1}, 5, v{VL}\nv_mul_u32_u24 v{CT+1}, {224*512}, v{CT+1}\nv_add_u32 v{CT}, v{CT}, v{CT+1}")
    for i in range(4): kk.e(f"v_mul_f32 v{VA+2*i}, {fbits(-LOG2E)}, v{VA+2*i}")
    T0 = SB(NR)
    S.stream(lines("\n".join(kk.lines)), c1, min(c1 + 40, T0 + 16 * M))
    assert M == 4
    S.stream(p5_early(VL), T0 + 2, T0 + 40)
    p_ = T0 + 44
    for n in range(2):
        for pre, x in p5_wops(n):
            p_ = S.near(p_ + 4, 8)
            for z, y in enumerate(pre): S.put(p_ - len(pre) + z, y)
            S.put(p_, x)
    def epi(j, p, packed):
        ii = (2*p, 2*p+1); o_ = []
        G = lambda i: ACC(j, i); Uu = lambda i: ACC(j + 7, i)
        def op(name, d, s0, s1, s2=None):
            if packed: return [pk(name, d + r, *[(x + r if isinstance(x, int) else x) for x in (s0, s1, s2) if x is not None]) for r in (0, 2)]
            f_ = lambda x, r: f"v{x + r}" if isinstance(x, int) else f"v{x[1]}"
            return [f"v_{name}_f32 v{d+r}, " + ", ".join(f_(x, r) for x in (s0, s1, s2) if x is not None) for r in range(4)]
        for i in ii: o_ += op("mul", Uu(i), Uu(i), G(i)) + op("mul", G(i), G(i), ('b', VA+2*i))
        ex = [f"v_exp_f32 v{G(i)+r}, v{G(i)+r}" for i in ii for r in range(4)]
        fm = sum([op("fma", G(i), G(i), ('b', VA+2*i+1), ('b', VA+2*i+1)) for i in ii], [])
        rc = [f"v_rcp_f32 v{G(i)+r}, v{G(i)+r}" for i in ii for r in range(4)]
        ml = sum([op("mul", Uu(i), Uu(i), G(i)) for i in ii], [])
        o = G(2*p)
        fin_ = [f"v_cvt_pk_bf16_f32 v{o}, v{Uu(2*p)}, v{Uu(2*p)+1}", f"v_cvt_pk_bf16_f32 v{o+2}, v{Uu(2*p+1)}, v{Uu(2*p+1)+1}",
                f"v_cvt_pk_bf16_f32 v{o+1}, v{Uu(2*p)+2}, v{Uu(2*p)+3}", f"v_cvt_pk_bf16_f32 v{o+3}, v{Uu(2*p+1)+2}, v{Uu(2*p+1)+3}",
                f"v_permlane32_swap_b32 v{o}, v{o+2}", "s_nop 0", f"v_permlane32_swap_b32 v{o+1}, v{o+3}",
                f"buffer_store_dwordx4 {v(o,4)}, v{CT}, s[32:35], s{60+p} offen offset:{j*512} sc1"]
        return o_, ex, fm, rc, ml, fin_
    def zipl(x, y):
        o_ = []
        for q in range(max(len(x), len(y))): o_ += x[q:q+1] + y[q:q+1]
        return o_
    for p in range(6):
        A_, B_ = epi(p, 0, False), epi(p, 1, False)
        seq = A_[0] + zipl(A_[1], B_[0][:8]) + A_[2] + zipl(A_[3], B_[0][8:]) + zipl(B_[1], A_[4]) + B_[2] + zipl(B_[3], A_[5]) + B_[4] + B_[5]
        w0 = T0 + 16 * M * (p + 1)
        S.stream(seq, w0 + 2, w0 + 16 * M)
    if OPT.diag and fine:
        for q in range(32):
            S.put(56 * q + 1, "s_memtime s[98:99]"); S.put(56 * q + 41, f"v_writelane_b32 v255, s98, {24 + q}")
    Z = direct(xops(0)) + sum([reads(g) for g in range(D)], []) + direct(xops(1)[:4] if PRE1 else dops(1)[:4]) + ["WAITVM s0", "STAMP13"] + S.flat() + ["STAMP14", "s_barrier", "s_nop 5"]
    for p in range(2): Z += sum([list(x) for x in epi(6, p, True)], [])
    Z = auto_lgkm([x if not x.startswith("STAMP") else "s_" + x for x in resolve_vm(Z)], cyclic=False, merge=MG, hoist=True)
    if OPT.rep: print("p4", slot_report(Z[:Z.index("s_STAMP14")]), file=sys.stderr)
    for x in Z:
        if x.startswith("s_STAMP"): fstamp(k, int(x[7:]))
        else: k.e(x)

P5_SLOTS = [2, 9, 0, 1, 3, 4, 5, 6, 7, 8]
def p5_wops(n):
    return [([f"s_add_u32 s56, s52, {n*16384}", f"s_add_u32 m0, s53, {P5_SLOTS[n % 10]*16384}"] if q == 0 else [],
             f"buffer_load_dwordx4 v224, s[24:27], s56 offen offset:{q*1024} sc1 lds @w{n}") for q in range(4)]
def p5_early(VL):
    kk = KB("t", 0, 0, 0)
    kk.e(f"""
    s_and_b32 s54, s44, 1            ; kh
    s_bfe_u32 s46, s44, 0x10001
    s_lshl_b32 s46, s46, 3
    s_and_b32 s47, s45, 7
    s_add_u32 s46, s46, s47          ; tm
    s_lshr_b32 s47, s44, 2
    s_lshl_b32 s47, s47, 2
    s_lshr_b32 s48, s45, 3
    s_add_u32 s47, s47, s48          ; cn
    v_lshlrev_b32 v224, 4, v{VL}
    s_lshl_b32 s53, s3, 12
    s_mul_i32 s52, s47, {F_*256}
    s_add_u32 s52, s52, s53
    s_mul_i32 s51, s54, {1792*256}
    s_add_u32 s52, s52, s51
    """)
    reloc(kk, 224, 225)
    o_ = lines("\n".join(kk.lines)) + [f"s_add_u32 s24, s22, {WS_W2T}\ns_addc_u32 s25, s23, 0", f"s_mov_b32 s26, {PLANE + F_*D_*2}"]
    return o_

def phase5(k, LAST, cold, D=3, MG=1, NPRE=6, XPRE=2, LEAD=40, BP=1, DW=1, fine=False):
    NS = 28; STG = 16384; UX = 8
    ACC = lambda j, i: (j * 2 + i) * 4
    VW = lambda g, s_: 64 + (g % 4) * 8 + s_ * 4
    VD = 224; VR = 128; VL = 235; VFA = 249; VONE = 253; VL16 = 231; VT = 152; VRES = 160
    AX = lambda n, i, s_: (n % UX) * 16 + (i * 2 + s_) * 4
    strip = lambda x: x.split(" @")[0]
    def direct(ops):
        o_ = []
        for pre, x in ops: o_ += pre + (["s_nop 0"] if any("m0" in y for y in pre) else []) + [x]
        return o_
    def xops(n): return [([f"s_add_u32 s57, s49, {(q//2)*F_*32 + n*2048}"] if q % 2 == 0 else [],
                          f"buffer_load_dwordx4 {a(AX(n,q//2,q%2),4)}, v{VD}, s[32:35], s57 offen offset:{(q%2)*1024} sc1 @x{n}") for q in range(4)]
    for n in (2, 3):
        for x in direct(p5_wops(n)): k.e(strip(x))
    k.e(f"""
    s_xor_b32 s63, s2, 1             ; partner
    s_lshl_b32 s48, s46, 3
    s_lshl_b32 s49, s3, 1
    s_add_u32 s48, s48, s49
    s_mul_i32 s49, s48, {F_*32}
    s_mul_i32 s51, s54, {56*1024}
    s_add_u32 s49, s49, s51
    s_lshl_b32 s51, s47, 1
    s_add_u32 s93, s51, s54
    v_and_b32 v{VT}, 31, v{VL}
    v_lshrrev_b32 v{VT}, 2, v{VT}
    v_lshrrev_b32 v{VT+1}, 5, v{VL}
    v_lshl_add_u32 v{VT+1}, v{VT+1}, 4, v{VT}
    s_lshl_b32 s51, s54, 2
    v_xor_b32 v{VT}, s51, v{VT}
    v_lshlrev_b32 v{VT}, 5, v{VT}
    v_lshl_add_u32 v{VT}, v{VT+1}, 8, v{VT}
    v_and_b32 v{VT+1}, 3, v{VL}
    v_lshl_add_u32 v{VR}, v{VT+1}, 3, v{VT}
    """)
    for fb in range(1, 8): k.e(f"v_xor_b32 v{VR+fb}, {fb*32}, v{VR}")
    for rg in (1, 2):
        for fb in range(8): k.e(f"v_add_u32 v{VR+8*rg+fb}, {rg*0x10000}, v{VR+fb}")
    k.e(f"""
    s_lshl_b32 s60, s48, 15
    s_lshl_b32 s61, s93, 11
    s_add_u32 s60, s60, s61
    s_add_u32 s58, s60, 32768
    s_lshr_b32 s62, s46, 1
    s_lshl_b32 s62, s62, 1
    s_add_u32 s62, s62, s54
    s_lshl_b32 s62, s62, 10
    s_add_u32 s62, s62, {C4}
    s_and_b32 s51, s47, {OPT.R - 1}
    s_lshl_b32 s51, s51, 7
    s_add_u32 s62, s62, s51
    s_waitcnt vmcnt(8)
    s_barrier
    """)
    signal(k, VONE, VFA, 94, 61)
    fstamp(k, 15)
    for i in range(2):
        for p in range(2): k.e(f"buffer_load_dwordx4 {v(VRES+i*8+p*4,4)}, v{VL16}, s[28:31], s{60 if i == 0 else 58} offen offset:{p*1024} sc1")
    for n in range(4, NPRE):
        for x in direct(p5_wops(n)): k.e(strip(x))
    Lst = k.label("code5")
    if OPT.codepf:
        code_pf_addr(k, Lst, LAST, 250, VL, 3); k.e(code_pf(252, 250))
    wait_multi(k, VFA, 1, "s62", 16, VT+3)
    k.e(f"{Lst}:")
    fstamp(k, 16)
    def wreads(G):
        n, g = G // 8, G % 8; ad = P5_SLOTS[n % 10] * STG
        return [f"ds_read_b64_tr_b16 {v(VW(G,s_)+2*rd,2)}, v{VR+8*(ad>>16)+g} offset:{(ad & 0xffff) + s_*8192 + rd*2048}" for s_ in range(2) for rd in range(2)]
    main = []
    for n in range(NS):
        for g in range(8):
            for i in range(2):
                for s_ in range(2):
                    c_ = v(ACC(g,i),4) if (n or s_ or g < 4) else "0"
                    main.append(f"v_mfma_f32_16x16x32_bf16 {v(ACC(g,i),4)}, {v(VW(8*n+g,s_),4)}, {a(AX(n,i,s_),4)}, {c_}")
    S = Sched(main)
    for G in range(D, 8 * NS):
        for q, x in enumerate(wreads(G)): S.put(4 * (G - D) + q, x)
    SB = lambda n: 32 * n
    bars = list(range(NPRE, NS, BP))
    bpos = {n: SB(n) - 4 * D - 1 for n in bars}
    pub = {m: max(b for b in bars if b <= m) for m in range(NPRE, NS)}
    for n in bars:
        S.put(bpos[n] - 1, "WAITVM " + " ".join(f"w{m}" for m in range(n, min(n + BP, NS)))); S.put(bpos[n], "s_barrier", front_ok=False)
    for n in range(1, NS): S.put(SB(n) - 2, f"WAITVM x{n}")
    items = [(bpos[pub[n]] - DW * (n == pub[n]), n, p5_wops(n)) for n in range(NPRE, NS)] + [(SB(n) - 2, n, xops(n)) for n in range(XPRE, NS)]
    nop = 4 * len(items)
    last = SB(NS - 1) - 2 - LEAD
    step = last / nop
    order = sorted(items, key=lambda t: t[:2])
    pos = 0; q = 0
    for dl, n, ops in order:
        for pre, x in ops:
            want = max(pos, int(q * step))
            if "lds" in x and n >= 10:
                fr = n - 10; want = max(want, min(bpos[b] for b in bars if bpos[b] >= SB(fr + 1)) + 2)
            if "lds" not in x and n >= UX: want = max(want, SB(n - UX + 1) + 1)
            want = S.near(max(want, 1), 4)
            assert want <= dl - 16, (n, x, want, dl)
            for z, y in enumerate(pre): S.put(want - len(pre) + z if want - len(pre) + z >= pos - 1 else want - 1, y)
            S.put(want, x); pos = want + 3; q += 1
        if OPT.rep: print("p5", "w" if "lds" in ops[0][1] else "x", n, "at", want / 32, "slack", dl - want, file=sys.stderr)
    if OPT.codepf: S.put(S.near(SB(12) + 2, 4), code_pf(252, 250))
    kk = KB("t", 0, 0, 0)
    kk.e(f"""
    s_lshl_b32 s64, s2, 2
    s_add_u32 s64, s64, s3
    s_lshl_b32 s65, s63, 2
    s_add_u32 s65, s65, s3
    s_lshl_b32 s66, s64, 12
    s_lshl_b32 s67, s65, 12
    s_mov_b32 s42, {4*MB}
    s_mov_b32 s36, s18
    s_mov_b32 s37, s19
    s_mov_b32 s38, {S_*D_*2}
    v_and_b32 v{VT}, 15, v{VL}
    v_lshrrev_b32 v{VT+1}, 4, v{VL}
    v_and_b32 v{VT+2}, 1, v{VT+1}
    v_lshrrev_b32 v{VT+3}, 1, v{VT+1}
    v_lshlrev_b32 v{VT+2}, 5, v{VT+2}
    v_lshl_add_u32 v{VT+2}, v{VT+3}, 4, v{VT+2}
    v_lshl_add_u32 v{VT+2}, v{VT}, 11, v{VT+2}
    s_lshl_b32 s60, s48, 15
    s_lshl_b32 s61, s93, 7
    s_add_u32 s60, s60, s61
    s_add_u32 s61, s60, 32768
    s_mov_b32 s69, {SPIN}
    """)
    S.stream(lines("\n".join(kk.lines)) + [f"s_add_u32 s40, s22, {WS_EX}\ns_addc_u32 s41, s23, 0"], SB(NS - 4), SB(NS - 1))
    if OPT.diag and fine:
        for q in range(28):
            S.put(32 * q + 1, "s_memtime s[98:99]"); S.put(32 * q + 21, f"v_writelane_b32 v255, s98, {24 + q}")
    Z = direct(xops(0)) + sum([wreads(G) for G in range(D)], [])
    for n in range(1, XPRE): Z += direct(xops(n))
    for i in range(2):
        for fb in range(4):
            o = ACC(fb, i); r = VRES + i*8 + fb*2
            Z += [f"v_lshlrev_b32 v{o}, 16, v{r}", f"v_and_b32 v{o+1}, 0xffff0000, v{r}", f"v_lshlrev_b32 v{o+2}, 16, v{r+1}", f"v_and_b32 v{o+3}, 0xffff0000, v{r+1}"]
    Z.append("s_nop 0")
    Z += ["WAITVM x0", "STAMP17"] + S.flat() + ["STAMP18", "s_nop 1"]
    Z = auto_lgkm([x if not x.startswith("STAMP") else "s_" + x for x in resolve_vm(Z)], cyclic=False, merge=MG, hoist=True)
    if OPT.rep: print("p5", slot_report(Z), file=sys.stderr)
    for x in Z:
        if x.startswith("s_STAMP"): fstamp(k, int(x[7:]))
        else: k.e(x)
    for p in range(2):
        for i in range(2):
            o = ACC(4+2*p, i); u = ACC(5+2*p, i)
            k.e(f"v_cvt_pk_bf16_f32 v{o}, v{o}, v{o+1}\nv_cvt_pk_bf16_f32 v{o+1}, v{o+2}, v{o+3}")
            k.e(f"v_cvt_pk_bf16_f32 v{o+2}, v{u}, v{u+1}\nv_cvt_pk_bf16_f32 v{o+3}, v{u+2}, v{u+3}")
            for r in range(4): k.e(f"v_min_u32 v{o+r}, -2, v{o+r}")
            k.e(f"buffer_store_dwordx4 {v(o,4)}, v{VL16}, s[40:43], s66 offen offset:{(i*2+p)*1024} sc1")
    def addin(base):
        for i in range(2):
            for fb in range(4):
                o = ACC(fb, i); r = base + i*8 + fb*2
                k.e(f"""
                v_lshlrev_b32 v{VT+4}, 16, v{r}
                v_and_b32 v{VT+5}, 0xffff0000, v{r}
                v_lshlrev_b32 v{VT+6}, 16, v{r+1}
                v_and_b32 v{VT+7}, 0xffff0000, v{r+1}
                {pk("add", o, o, VT+4)}
                {pk("add", o+2, o+2, VT+6)}
                """)
                yield i, fb
    Lp = k.label("poll")
    k.e(f"s_waitcnt vmcnt({OPT.exw})\n{Lp}:\ns_sub_u32 s69, s69, 1\ns_cbranch_scc1 {Lp}_x")
    for i in range(2):
        for p in range(2):
            k.e(f"buffer_load_dwordx4 {v(VRES+i*8+p*4,4)}, v{VL16}, s[40:43], s67 offen offset:{(i*2+p)*1024} sc1")
    for q in range(4):
        b = VRES + 4 * q
        k.e(f"s_waitcnt vmcnt({3-q})")
        if q == 0: k.e(f"v_max3_u32 v{VT}, v{b}, v{b+1}, v{b+2}\nv_max_u32 v{VT}, v{VT}, v{b+3}")
        else: k.e(f"v_max3_u32 v{VT}, v{VT}, v{b}, v{b+1}\nv_max3_u32 v{VT}, v{VT}, v{b+2}, v{b+3}")
    k.e(f"v_cmp_eq_u32 vcc, -1, v{VT}\ns_nop 4\ns_cbranch_vccnz {Lp}\n{Lp}_x:")
    for i, fb in addin(VRES):
        o = ACC(fb, i); r = 64 + i*8 + fb*2
        k.e(f"v_cvt_pk_bf16_f32 v{r}, v{o}, v{o+1}\nv_cvt_pk_bf16_f32 v{r+1}, v{o+2}, v{o+3}")
        if fb % 2:
            p = fb // 2; r = 64 + i*8 + p*4
            k.e(f"s_nop 1\nv_permlane16_swap_b32 v{r}, v{r+2}\nv_permlane16_swap_b32 v{r+1}, v{r+3}")
            k.e(f"buffer_store_dwordx4 {v(r,4)}, v{VT+2}, s[36:39], s{60+i} offen offset:{p*64} {OPT.st}")

def gen_front(NB=22, POLL=11, NSH=4, PUB=3, LSP=6, PAR=True, fine=False, MG=3, SIG=0, PP=2, TB=1, LA=4, force_fb=False, full=True, p4={}, p5={}, abl=''):
    STG = 40960
    k = KB(KNAME if full else "k1_kernel", 256, 256, 4 * STG)
    k.fine = True; k.nst = 20 if full else 12; k.page = full
    LAST = f"L_{k.name}_end" if full else "L_k5_kernel_end"
    if full: k.launch = lambda: "; @launch grid=(256,1,1) block=(256,1,1) lds=163840\n"
    ACC = lambda j, i: (j * 4 + i) * 4
    VDX = 96; VDW = 100; VRX = 106; VRW = 114
    VL = 122; VPF = 123; VT = 124; VPA = 132; VZ = 134; VSA = 135
    VRAW = 136; VU = 216; VSUM = 220; VRT = 224
    VSEL = 192; VCD = 208; VCD2 = 212
    VCQ = 192; VCV = 208; VMT = 216; VRSt = 220; VMR = 224; VRR = 228
    AX = lambda st, i, s_: (st % 2) * 32 + (i * 2 + s_) * 4
    AW = lambda j, s_: 64 + j * 8 + s_ * 4
    prologue(k)
    fstamp(k, 0)
    k.e(f"""
    v_mov_b32 v{VL}, v0
    s_and_b32 s46, s45, 7
    s_and_b32 s47, s44, 1
    {'s_lshl_b32 s46, s46, 1' if PAR else 's_lshl_b32 s47, s47, 3'}
    s_add_u32 s46, s46, s47          ; rb
    s_lshr_b32 s47, s44, 1
    s_lshl_b32 s47, s47, 2
    s_lshr_b32 s48, s45, 3
    s_add_u32 s47, s47, s48          ; cb
    s_lshr_b32 s48, s3, 1            ; wm
    s_and_b32 s49, s3, 1             ; wn
    v_lshrrev_b32 v{VT}, 3, v{VL}       ; l/8
    v_and_b32 v{VT+1}, 7, v{VL}         ; p
    v_lshrrev_b32 v{VT+2}, 1, v{VT}     ; (l/8)>>1  (0..3)
    v_xor_b32 v{VT+3}, v{VT+1}, v{VT+2}
    s_lshl_b32 s50, s46, 7
    s_lshl_b32 s51, s3, 5
    s_add_u32 s50, s50, s51
    s_lshl_b32 s50, s50, 11             ; (rb*128 + w*32)*2048
    v_lshlrev_b32 v{VT+4}, 11, v{VT}
    v_add_u32 v{VT+4}, s50, v{VT+4}
    v_lshl_add_u32 v{VDX}, v{VT+3}, 4, v{VT+4}
    v_xor_b32 v{VT+3}, 4, v{VT+3}
    v_lshl_add_u32 v{VDX+1}, v{VT+3}, 4, v{VT+4}
    v_add_u32 v{VDX+2}, {2*15360}, v{VDX}
    v_add_u32 v{VDX+3}, {3*15360}, v{VDX+1}
    v_add_u32 v{VDX+1}, {15360}, v{VDX+1}
    v_and_b32 v{VT+2}, 1, v{VT+2}
    v_lshlrev_b32 v{VT+2}, 1, v{VT+2}
    v_xor_b32 v{VT+3}, v{VT+1}, v{VT+2}
    v_mul_u32_u24 v{VT+4}, 6144, v{VT}
    s_mul_i32 s50, s3, {16*6144}
    s_lshl_b32 s51, s47, 7
    s_add_u32 s50, s50, s51
    v_add_u32 v{VT+4}, s50, v{VT+4}
    v_lshl_add_u32 v{VDW}, v{VT+3}, 4, v{VT+4}
    v_xor_b32 v{VT+3}, 4, v{VT+3}
    v_lshl_add_u32 v{VDW+1}, v{VT+3}, 4, v{VT+4}
    v_add_u32 v{VDW+1}, {8*6144 - 1024}, v{VDW+1}
    """)
    for sg in range(1, 3):
        k.e(f"v_add_u32 v{VDW+2*sg}, {2048*sg}, v{VDW}\nv_add_u32 v{VDW+2*sg+1}, {2048*sg}, v{VDW+1}")
    k.e(f"""
    s_lshl_b32 s53, s3, 12
    s_lshl_b32 s54, s3, 11
    s_add_u32 s54, s54, 16384
    s_mov_b32 s59, {OOB}
    s_mov_b32 s63, s46
    s_mul_i32 s56, s63, {64*6144}
    s_lshl_b32 s57, s63, 7
    v_lshlrev_b32 v{VSA}, 4, v{VL}
    s_lshl_b32 s64, s46, 4
    s_add_u32 s64, s64, s47
    s_lshl_b32 s64, s64, 2
    s_add_u32 s64, s64, s3
    s_lshl_b32 s65, s64, 12
    s_lshl_b32 s66, s64, 8
    s_lshl_b32 s67, s47, 1
    s_add_u32 s67, s67, s49          ; head
    """)
    if OPT.codepf: code_pf_addr(k, k.name, LAST, VPA, VL, 3)
    k.e("s_waitcnt lgkmcnt(0)")
    srd(k, 24, 6, 7, D_*3*D_*2)
    srd(k, 28, 4, 5, S_*D_*2)
    def vmem_ops(n):
        slot = n % 4; ops = []
        for q in range(4):
            o = [f"buffer_load_dwordx4 v{VDX+q}, s[28:31], s57 offen offset:{q*1024} lds @s{n}"]
            if q == 0: o = [f"s_add_u32 m0, s53, {slot*STG}"] + o
            ops.append(o)
        for sg in range(3):
            for q in range(2):
                o = [f"buffer_load_dwordx4 v{VDW+2*sg+q}, s[24:27], s56 offen offset:{q*1024} lds @s{n}"]
                if q == 0: o = [f"s_add_u32 m0, s54, {slot*STG + sg*8192}"] + o
                ops.append(o)
        return ops
    adv = ["s_add_u32 s63, s63, 1", "s_and_b32 s63, s63, 15", f"s_mul_i32 s56, s63, {64*6144}", "s_lshl_b32 s57, s63, 7"]
    P = []
    if OPT.codepf: P.append(code_pf(VPF, VPA))
    for o in vmem_ops(0): P += with_nop(o)
    for q in range(4): P.append(f"buffer_load_dwordx4 {v(VRAW+4*q,4)}, v{VSA}, s[28:31], s65 offen offset:{q*1024} @raw")
    P += adv
    setup = lines(f"""
    v_and_b32 v{VT}, 15, v{VL}
    v_lshrrev_b32 v{VT+1}, 4, v{VL}
    v_lshrrev_b32 v{VT+2}, 1, v{VT}
    v_xor_b32 v{VT+2}, v{VT+1}, v{VT+2}
    s_lshl_b32 s50, s48, 13
    v_lshlrev_b32 v{VT+3}, 7, v{VT}
    v_add_u32 v{VT+3}, s50, v{VT+3}
    v_lshl_add_u32 v{VRX}, v{VT+2}, 4, v{VT+3}
    v_xor_b32 v{VRX+1}, 64, v{VRX}
    v_lshrrev_b32 v{VT+2}, 2, v{VT}
    v_lshl_add_u32 v{VT+3}, v{VT+1}, 3, v{VT+2}
    v_lshrrev_b32 v{VT+2}, 1, v{VT+2}
    v_and_b32 v{VT+4}, 1, v{VT+1}
    v_lshl_add_u32 v{VT+2}, v{VT+4}, 1, v{VT+2}
    s_lshl_b32 s50, s49, 1
    v_xor_b32 v{VT+2}, s50, v{VT+2}
    v_lshlrev_b32 v{VT+2}, 5, v{VT+2}
    v_lshl_add_u32 v{VT+2}, v{VT+3}, 7, v{VT+2}
    v_and_b32 v{VT+4}, 3, v{VL}
    v_lshl_add_u32 v{VT+2}, v{VT+4}, 3, v{VT+2}
    v_add_u32 v{VRW}, 16384, v{VT+2}
    v_xor_b32 v{VRW+1}, 32, v{VRW}
    v_mov_b32 v{VT+5}, 0x3f803f80
    """)
    for sl in range(1, 4):
        for q in range(2):
            setup += [f"v_add_u32 v{VRX+2*sl+q}, {sl*STG}, v{VRX+q}", f"v_add_u32 v{VRW+2*sl+q}, {sl*STG}, v{VRW+q}"]
    for j in range(4):
        setup += [f"v_cmp_eq_u32 vcc, {j}, v{VT}", "s_nop 1", f"v_cndmask_b32 v{VSEL+4*j}, 0, v{VT+5}, vcc"]
        setup += [f"v_mov_b32 v{VSEL+4*j+r}, v{VSEL+4*j}" for r in (1, 2, 3)]
    kk = KB("t", 0, 0, 0)
    srd(kk, 36, 22, 23, ZERO_BYTES, WS_ST); srd(kk, 40, 22, 23, 0x44000, WS_CSP1); srd(kk, 32, 20, 21, 256)
    P += [x.strip() for x in kk.lines]
    P += [f"v_mov_b32 v{VZ}, 0", f"v_lshlrev_b32 v{VT+6}, 2, v{VL}", f"buffer_store_dword v{VZ}, v{VT+6}, s[36:39], s66 offen sc1 @pub"]
    if full: P += ["s_branch L_page1\n.p2align 12\nL_page1:"] + (["s_nop 0\n;WARM start 4 0"] if OPT.warm else [])
    P += setup + ["IDLE"]
    for o in vmem_ops(1): P += with_nop(o)
    P += adv
    def wreads(slot, j):
        return [f"ds_read_b64_tr_b16 {a(AW(j,s_)+2*rd,2)}, v{VRW+2*slot+j%2} offset:{(j//2)*8192 + (32*s_+4*rd)*128}" for s_ in range(2) for rd in range(2)]
    def xreads(slot):
        return [f"ds_read_b128 {a(AX(slot,i,s_),4)}, v{VRX+2*slot+s_} offset:{i*2048}" for i in range(4) for s_ in range(2)]
    def allreads(slot):
        xr = xreads(slot)
        return xr[:2] + wreads(slot, 0) + xr[2:] + sum([wreads(slot, j) for j in range(1, 6)], [])
    rpos = [NB + q + q // 2 for q in range(32)]
    free = [p for p in range(NB, NB + 48) if p not in rpos]
    vpos = [free[(q * 15) // 10] for q in range(10)]
    NHR = sum(p < 48 for p in rpos); NH = sum(p < 48 for p in vpos)
    P += ["WAITVM s0", "s_barrier", "STAMP1"]
    P += allreads(0)[:NHR]
    for o in vmem_ops(2)[:NH]: P += with_nop(o)
    st1 = ["WAITVM raw"]
    for q in range(8):
        for r in range(2):
            x = VRAW + 8*r + q
            st1 += [f"v_dot2_f32_bf16 v{VSUM+2*r}, v{x}, v{VU}, {'0' if q == 0 else v(VSUM+2*r)}", f"v_dot2_f32_bf16 v{VSUM+2*r+1}, v{x}, v{x}, {'0' if q == 0 else v(VSUM+2*r+1)}"]
    st1.append("s_nop 0")
    kk = KB("t", 0, 0, 0); allreduce64(kk, [VSUM, VSUM+1, VSUM+2, VSUM+3], VRT); st1 += [x.strip() for x in kk.lines]
    for r in range(2):
        b = VSUM + 2*r
        st1 += lines(f"""
        v_mul_f32 v{b}, {fbits(-1.0/D_)}, v{b}
        v_mul_f32 v{b+1}, {fbits(1.0/D_)}, v{b+1}
        v_fma_f32 v{b+1}, -v{b}, v{b}, v{b+1}
        v_max_f32 v{b+1}, 0, v{b+1}
        v_add_f32 v{b+1}, {fbits(1e-5)}, v{b+1}
        v_rsq_f32 v{b+1}, v{b+1}
        """)
    st1 += lines(f"""
    v_and_b32 v{VRT+2}, 1, v{VL}
    v_cmp_eq_u32 vcc, 0, v{VRT+2}
    v_lshrrev_b32 v{VRT+3}, 1, v{VL}
    s_lshr_b32 s68, s64, 5
    v_cndmask_b32 v{VRT}, v{VSUM+2}, v{VSUM}, vcc
    v_cndmask_b32 v{VRT+1}, v{VSUM+3}, v{VSUM+1}, vcc
    v_cmp_eq_u32 vcc, 0, v{VRT+3}
    v_lshlrev_b32 v{VRT+3}, 13, v{VRT+3}
    v_lshl_add_u32 v{VRT+2}, v{VRT+2}, 4, v{VRT+3}
    v_cndmask_b32 v{VRT}, v{VRT+1}, v{VRT}, vcc
    s_lshl_b32 s68, s68, 8
    s_and_b32 s75, s64, 7
    s_lshl_b32 s75, s75, 5
    s_add_u32 s68, s68, s75
    s_bfe_u32 s75, s64, 0x20003
    s_lshl_b32 s75, s75, 2
    s_add_u32 s68, s68, s75
    s_add_u32 s68, s68, {WS_MU - WS_CSP1}
    buffer_store_dword v{VRT}, v{VRT+2}, s[40:43], s68 offen sc1 @pub
    """)
    cst = lines(f"""
    v_lshlrev_b32 v{VT+6}, 10, v{VT}
    v_lshl_add_u32 v{VT+6}, v{VT+1}, 8, v{VT+6}
    v_cmp_gt_u32 vcc, 4, v{VT}
    v_mov_b32 v{VT+7}, {OOB}
    s_mul_i32 s69, s67, 6144
    v_cndmask_b32 v{VT+6}, v{VT+7}, v{VT+6}, vcc
    s_lshl_b32 s70, s48, 29
    s_add_u32 s69, s69, s70
    s_lshl_b32 s70, s46, 4
    s_add_u32 s70, s70, s69
    buffer_store_dwordx4 {v(VCD,4)}, v{VT+6}, s[40:43], s70 offen sc1 @pub
    v_lshlrev_b32 v{VT+7}, 4, v{VT}
    v_lshl_add_u32 v{VT+7}, v{VT+1}, 27, v{VT+7}
    s_lshr_b32 s70, s46, 2
    s_lshl_b32 s70, s70, 8
    s_add_u32 s69, s69, s70
    s_bfe_u32 s70, s46, 0x10001
    s_lshl_b32 s70, s70, 10
    s_add_u32 s69, s69, s70
    s_and_b32 s70, s46, 1
    s_lshl_b32 s70, s70, 3
    s_add_u32 s69, s69, s70
    s_add_u32 s69, s69, 4096
    buffer_store_dwordx2 {v(VCD2,2)}, v{VT+7}, s[40:43], s69 offen sc1 @pub
    """)
    sig = lines(f"""
    v_mov_b32 v{VT+6}, 1
    v_lshlrev_b32 v{VT+7}, 8, v{VL}
    s_lshl_b32 s70, s3, 8
    s_and_b32 s71, s45, {NSH-1}
    s_mul_i32 s71, s71, {256//NSH}
    s_add_u32 s70, s70, s71
    buffer_atomic_add v{VT+6}, v{VT+7}, s[32:35], s70 offen sc1
    """)
    Lsp = k.label("spin"); Lok = k.label("ok")
    pol = lines(f"""
    v_mov_b32 v{VT+5}, {256//NSH}
    v_and_b32 v{VT+7}, {NSH-1}, v{VL}
    v_mul_u32_u24 v{VT+7}, {256//NSH}, v{VT+7}
    buffer_load_dword v{VT+6}, v{VT+7}, s[32:35], 0 offen sc1 @poll
    """)
    chk = ["WAITVM poll", f"v_cmp_gt_u32 vcc, v{VT+5}, v{VT+6}", "s_nop 4", f"s_cbranch_vccnz {Lsp}\n{Lok}:"]
    A = 238
    ld = lines(f"""
    v_lshlrev_b32 v{A+2}, 4, v{VT}
    v_and_b32 v{A+3}, 3, v{VT}
    v_lshl_add_u32 v{A+3}, v{VT+1}, 2, v{A+3}
    v_lshlrev_b32 v{A+3}, 4, v{A+3}
    s_mul_i32 s69, s67, 6144
    s_add_u32 s72, s69, 4096
    s_lshl_b32 s70, s46, 9
    s_lshl_b32 s71, s48, 8
    s_add_u32 s70, s70, s71
    s_add_u32 s70, s70, {WS_MU - WS_CSP1}
    s_add_u32 s71, s70, {WS_RS - WS_MU}
    """)
    nld0 = len(ld)
    for j in range(4): ld.append(f"buffer_load_dwordx4 {v(VCQ+4*j,4)}, v{VSA}, s[40:43], s69 offen offset:{j*1024} sc1 @cs")
    for j in range(2): ld.append(f"buffer_load_dwordx4 {v(VCV+4*j,4)}, v{VSA}, s[40:43], s72 offen offset:{j*1024} sc1 @cs")
    ld.append(f"buffer_load_dwordx4 {v(VMT,4)}, v{A+2}, s[40:43], s70 offen sc1 @st")
    ld.append(f"buffer_load_dwordx4 {v(VRSt,4)}, v{A+2}, s[40:43], s71 offen sc1 @st")
    ld.append(f"buffer_load_dwordx4 {v(VMR,4)}, v{A+3}, s[40:43], s70 offen sc1 @st")
    ld.append(f"buffer_load_dwordx4 {v(VRR,4)}, v{A+3}, s[40:43], s71 offen sc1 @st")
    red = ["WAITVM cs"]
    for j in range(2):
        b = VCV + j
        red += [f"v_add_f32 v{b}, v{b}, v{b+2}", f"v_add_f32 v{b+4}, v{b+4}, v{b+6}", f"v_add_f32 v{b}, v{b}, v{b+4}"]
    for sw in ("v_permlane16_swap_b32", "v_permlane32_swap_b32"):
        red += [f"v_mov_b32 v{VCV+2}, v{VCV}", f"v_mov_b32 v{VCV+3}, v{VCV+1}", "s_nop 1", f"{sw} v{VCV}, v{VCV+2}", f"{sw} v{VCV+1}, v{VCV+3}",
                f"v_add_f32 v{VCV}, v{VCV}, v{VCV+2}", f"v_add_f32 v{VCV+1}, v{VCV+1}, v{VCV+3}"]
    for sh in (8, 4, 2, 1):
        for r in range(16): red.append(f"v_add_f32_dpp v{VCQ+r}, v{VCQ+r}, v{VCQ+r} row_ror:{sh} row_mask:0xf bank_mask:0xf")
    epi_setup = lines(f"""
    s_lshl_b32 s50, s67, 6
    s_lshl_b32 s51, s46, 2
    s_add_u32 s50, s50, s51
    s_lshl_b32 s51, s48, 1
    s_add_u32 s50, s50, s51
    s_lshl_b32 s60, s50, 11
    s_lshl_b32 s61, s50, 12
    s_add_u32 s62, s61, 4096
    v_lshlrev_b32 v{A+4}, 9, v{VT+1}
    v_lshl_add_u32 v{A+5}, v{VT}, 4, v{A+4}
    v_lshrrev_b32 v{A+6}, 3, v{VT}
    v_and_b32 v{A+7}, 7, v{VT}
    v_lshl_add_u32 v{A+6}, v{A+6}, 4, v{A+7}
    v_and_b32 v{A+7}, 1, v{VT+1}
    v_lshlrev_b32 v{A+7}, 10, v{A+7}
    v_lshrrev_b32 v{A+4}, 1, v{VT+1}
    v_lshl_add_u32 v{A+7}, v{A+4}, 9, v{A+7}
    v_lshl_add_u32 v{A+6}, v{A+6}, 4, v{A+7}
    s_lshl_b32 s55, s3, 13
    v_add_u32 v{A+8}, s55, v{A+5}
    v_add_u32 v{A+9}, s55, v{A+6}
    """)
    QR = lambda q, s_: v(q * 8 + s_ * 4, 4) if q < 2 else a(112 + (q - 2) * 8 + s_ * 4, 4)
    VS = lambda b_: 16 + b_ * 16; VC = lambda q: 48 + q * 16; VP = lambda b_: 112 + b_ * 8
    VRES = 128
    VOK = lambda q: 192 + q * 16; AOS = lambda q: 128 + (q - 2) * 16
    OR = lambda q: v(VOK(q), 16) if q < 2 else a(AOS(q), 16)
    VONE = 152; VIDX = 156; VKA = 157; VQW = 158; VCSA = 159; VQR = 160; VWO = 161; VCPS = 162; VCPD = 163; VM = 164; VSL = 168; VCSD = 172
    VLs = lambda q: 176 + 4 * q
    VX2 = 224
    VL2 = 232; VL16 = 233; VTP = 234; VOA = 235; VRA = 236; VFA = 237; VD1 = 238; VD2 = 239; VY = 240
    AK = lambda u, s_: (u % 6) * 16 + s_ * 4
    AV = lambda u, s_: (u % 6) * 16 + 8 + s_ * 4
    ACSL = lambda b_: 160 + b_ * 4
    M18 = (1 << 16) // 18 + 1
    for x in range(1024): assert (x * M18) >> 16 == x // 18
    att_setup = lines(f"""
    v_mov_b32 v{VL2}, v{VL}
    v_mov_b32 v{VL16}, v{VSA}
    v_mul_u32_u24 v{VX2}, 7168, v{VT+1}
    v_lshl_add_u32 v{VCSA}, v{VT}, 4, v{VX2}
    v_mov_b32 v{VX2+1}, 0x3f80
    v_mov_b32 v{VX2+2}, 0x3f800000
    """)
    for r in range(4):
        att_setup += [f"v_cmp_eq_u32 vcc, {4*r}, v{VT}", f"v_mov_b32 v{VCSD+r}, 0", f"v_mov_b32 v{VLs(0)+r}, 0", f"v_cndmask_b32 v{VSL+r}, 0, v{VX2+1}, vcc",
                      f"v_cmp_eq_u32 vcc, {4*r+1}, v{VT}", f"v_mov_b32 v{VLs(2)+r}, 0", f"v_mov_b32 v{VLs(1)+r}, 0", f"v_cndmask_b32 v{VSL+r}, v{VSL+r}, v{VX2+2}, vcc",
                      f"v_mov_b32 v{VLs(3)+r}, 0"]
    att_setup += lines(f"""
    v_and_b32 v{VX2}, 6, v{VT}
    v_cmp_eq_u32 vcc, 0, v{VX2}
    v_mov_b32 v{VX2+1}, 0x3f803f80
    v_mov_b32 v{VX2+2}, 0x44444444
    v_cndmask_b32 v{VONE}, 0, v{VX2+1}, vcc
    v_cmp_eq_u32 vcc, 4, v{VX2}
    v_mov_b32 v{VONE+1}, v{VONE}
    v_and_b32 v{VX2}, 1, v{VT}
    v_cndmask_b32 v{VONE+2}, 0, v{VX2+1}, vcc
    v_cmp_eq_u32 vcc, 0, v{VX2}
    v_mov_b32 v{VONE+3}, v{VONE+2}
    v_mov_b32 v{VX2+3}, 0xeeeeeeee
    v_cndmask_b32 v{VIDX}, v{VX2+3}, v{VX2+2}, vcc
    s_lshl_b32 s51, s3, 13
    v_add_u32 v{VKA}, s51, v{VSA}
    s_lshl_b32 s51, s3, 12
    s_add_u32 s51, s51, 0x8000
    v_add_u32 v{VQW}, s51, v{VSA}
    v_xor_b32 v{VQR}, 0x2000, v{VQW}
    v_lshrrev_b32 v{VX2}, 3, v{VL}
    v_and_b32 v{VX2+1}, 7, v{VL}
    v_and_b32 v{VX2+2}, 6, v{VX2}
    v_xor_b32 v{VX2+1}, v{VX2+1}, v{VX2+2}
    v_lshlrev_b32 v{VX2}, 11, v{VX2}
    v_lshl_add_u32 v{VWO}, v{VX2+1}, 4, v{VX2}
    v_lshrrev_b32 v{VX2}, 3, v{VL}
    v_and_b32 v{VX2+1}, 7, v{VL}
    v_lshrrev_b32 v{VX2+2}, 1, v{VX2+1}
    v_xor_b32 v{VX2+2}, v{VX2+2}, v{VX2}
    v_lshlrev_b32 v{VX2+2}, 5, v{VX2+2}
    v_and_b32 v{VX2+3}, 1, v{VX2+1}
    v_lshl_add_u32 v{VX2+2}, v{VX2+3}, 4, v{VX2+2}
    s_lshl_b32 s51, s49, 7
    v_xor_b32 v{VX2+2}, s51, v{VX2+2}
    v_lshl_add_u32 v{VCPS}, v{VX2}, 11, v{VX2+2}
    v_lshlrev_b32 v{VX2+2}, 8, v{VX2}
    v_lshl_add_u32 v{VX2+2}, v{VX2+1}, 4, v{VX2+2}
    v_add_u32 v{VCPD}, s51, v{VX2+2}
    v_and_b32 v{VX2}, 1, v{VT+1}
    v_lshrrev_b32 v{VX2+1}, 1, v{VT+1}
    v_lshlrev_b32 v{VX2}, 5, v{VX2}
    v_lshl_add_u32 v{VX2}, v{VX2+1}, 4, v{VX2}
    v_lshl_add_u32 v{VRA}, v{VT}, 11, v{VX2}
    v_lshrrev_b32 v{VX2}, {OPT.R.bit_length() - 1}, v{VL}
    v_lshlrev_b32 v{VFA}, 7, v{VL}
    v_lshl_add_u32 v{VFA}, v{VX2}, 20, v{VFA}
    """)
    kk = KB("t", 0, 0, 0); reloc(kk, VCPD, VX2); att_setup += lines("\n".join(kk.lines))
    for r in range(12): att_setup.append(f"v_accvgpr_write_b32 a{ACSL(0)+r}, 0")
    for r in range(4): att_setup.append(f"v_accvgpr_write_b32 a{196+r}, -1")
    kk = KB("t", 0, 0, 0)
    tile_map(kk, TB, 4 - TB, 92, 93)
    sc = lines("\n".join(kk.lines))
    sc += ["s_mov_b32 s80, s8", "s_mov_b32 s81, s9", f"s_mov_b32 s82, {D_*D_*2}", "s_mov_b32 s83, 0x20000",
           f"s_add_u32 s88, s22, {WS_CNT}\ns_addc_u32 s89, s23, 0", "s_mov_b32 s90, 0x14000", "s_mov_b32 s91, 0x20000"]
    sc += lines(f"""
    s_lshl_b32 s64, s2, 2
    s_add_u32 s64, s64, s3
    s_mul_i32 s68, s64, {M18}
    s_lshr_b32 s68, s68, 16
    s_mul_i32 s75, s68, 18
    s_sub_u32 s75, s64, s75
    s_lshl_b32 s95, s68, 9""")
    sc += ["s_cmp_lt_u32 s68, 28\ns_cselect_b32 s36, s12, s14\ns_cselect_b32 s37, s13, s15\ns_cselect_b32 s65, 0, 28"]
    sc += lines(f"""
    s_sub_u32 s68, s68, s65
    s_mul_i32 s66, s75, {60*7168}
    s_lshl_b32 s68, s68, 8
    s_add_u32 s66, s66, s68
    s_mov_b32 s38, {D_*F_*2}
    s_mov_b32 s39, 0x20000
    s_mov_b32 s84, s16
    s_mov_b32 s85, s17
    s_mov_b32 s86, {F_*D_*2}
    s_mov_b32 s87, 0x20000""")
    sc += ["s_cmp_lt_u32 s64, 1008\ns_cselect_b32 s66, s66, s59\ns_cselect_b32 s95, s95, s59"]
    sc += lines(f"""
    s_bfe_u32 s68, s64, 0x30001
    s_lshr_b32 s65, s64, 4
    s_mul_i32 s65, s65, 7
    s_lshl_b32 s74, s65, 14
    s_lshl_b32 s75, s68, 8
    s_add_u32 s74, s74, s75
    s_mul_i32 s68, s68, {F_*256}
    s_lshl_b32 s79, s65, 11
    s_add_u32 s79, s79, s68
    s_sub_u32 s79, s79, 4096
    s_lshl_b32 s76, s92, 3
    s_lshl_b32 s77, s3, 1
    s_add_u32 s76, s76, s77
    s_lshl_b32 s64, s76, 15
    s_lshl_b32 s77, s93, 7
    s_add_u32 s77, s77, s64
    s_add_u32 s78, s77, 32768
    s_lshl_b32 s52, s67, 18
    s_lshl_b32 s75, s48, 13
    s_add_u32 s52, s52, s75""")
    att_valu, att_salu = att_setup, sc

    ARES = 172
    resl = [f"buffer_load_dwordx4 {a(ARES+i*8+p*4,4)}, v{VRA}, s[28:31], s{77+i} offen offset:{p*64}" for i in range(2) for p in range(2)]
    idle = att_valu + epi_setup + [x for x in ld[:nld0] if x.startswith("v_")] + [f"v_mov_b32 v{VU}, 0x3f803f80"]
    P[P.index("IDLE"):P.index("IDLE") + 1] = idle
    main = []
    for n in range(16):
        for j in range(6):
            for i in range(4):
                for s_ in range(2):
                    w_, x_ = a(AW(j,s_),4), a(AX(n,i,s_),4)
                    if j >= 4: w_, x_ = x_, w_
                    c_ = v(ACC(j,i),4) if (n or s_) else "0"
                    main.append(f"v_mfma_f32_16x16x32_bf16 {v(ACC(j,i),4)}, {w_}, {x_}, {c_}")
    S = Sched(main); SB = lambda n: 48 * n
    for n in range(16):
        for q, x in enumerate(allreads(n % 4)):
            if n or q >= NHR: S.put(SB(n - 1) + rpos[q], x)
    for j in range(6):
        for s_ in range(2):
            d_ = v(VCD if j < 4 else VCD2, 4)
            c_ = d_ if (j % 4 or s_) else "0"
            o1, o2 = a(AW(j,s_),4), v(VSEL+4*(j%4),4)
            if j >= 4: o1, o2 = o2, o1
            S.put(8*j + 7, f"v_mfma_f32_16x16x32_bf16 {d_}, {o1}, {o2}, {c_}")
    for n in range(2, 16):
        for q, o in enumerate(vmem_ops(n)):
            if n == 2 and q < NH: continue
            pos = SB(n - 3) + vpos[q]
            if len(o) > 1: S.put(pos - 1, o[0])
            S.put(pos, o[-1])
        if n < 15:
            assert vpos[9] - 48 < NB - 4
            for q, x in enumerate(adv): S.put(SB(n - 2) + NB - 5 + q, x)
    for x in st1: S.put(NB - 1, x, front_ok=False)
    for n in range(15):
        S.put(SB(n) + NB - 1, f"WAITVM s{n+1}" + (" pub" if n == PUB else ""), front_ok=n > 0); S.put(SB(n) + NB - 1, "s_barrier", front_ok=False)
    S.stream(cst, SB(1) + 6, SB(2) - 8)
    S.stream(sig, SB(PUB) + NB - 12, SB(PUB) + NB - 2) if False else None
    S.stream(sig[:-1], SB(PUB), SB(PUB) + NB - 6); S.put(S.near(SB(PUB) + NB, 4), sig[-1])
    S.stream(att_salu, SB(PUB + 1), SB(POLL - 3))
    S.stream(pol[:3] + [x for x in ld[:nld0] if not x.startswith("v_")], SB(POLL - 3), SB(POLL - 1) - 2)
    S.put(S.near(SB(POLL - 1), 4), pol[3])
    S.put(SB(POLL), chk[0]); S.put(SB(POLL), chk[1]); S.put(SB(POLL) + 4, chk[3])
    p_ = SB(POLL) + 4
    for q, x in enumerate(ld[nld0:] + resl):
        if q == 6: p_ = max(p_, SB(12) + vpos[9])
        p_ = S.near(p_ + LSP, 8); S.put(p_, x)
    S.stream(red, SB(14) - 8, SB(16) - 1)
    if OPT.diag and fine:
        for q in range(16):
            S.put(48 * q + 1, "s_memtime s[98:99]"); S.put(48 * q + 31, f"v_writelane_b32 v255, s98, {24 + q}")
    if OPT.rep: print("p1", slot_report(S.flat()), "last load", p_ / 48, file=sys.stderr)
    P += S.flat()
    P.append("STAMP2")
    kk = KB("t", 0, 0, 0); srd(kk, 24, 22, 23, S_*D_*4, WS_KV); P += [x.strip() for x in kk.lines]
    P.append("WAITVM st")
    def cvt4(o, u):
        return [f"v_cvt_pk_bf16_f32 v{o}, v{o}, v{o+1}", f"v_cvt_pk_bf16_f32 v{o+1}, v{o+2}, v{o+3}",
                f"v_cvt_pk_bf16_f32 v{o+2}, v{u}, v{u+1}", f"v_cvt_pk_bf16_f32 v{o+3}, v{u+2}, v{u+3}"]
    def normqk(j, i):
        o = ACC(j, i)
        return [pk("fma", o+r, VCQ+4*j+r, ('b', VMT+i), o+r) for r in (0, 2)] + [pk("mul", o+r, o+r, ('b', VRSt+i)) for r in (0, 2)]
    def normv(j, i):
        o = ACC(j, i)
        q_ = lambda r: f"quad_perm:[{r},{r},{r},{r}] row_mask:0xf bank_mask:0xf"
        return [f"v_fmac_f32_dpp v{o+r}, v{VMR+i}, v{VCV+j-4} {q_(r)}" for r in range(4)] + [f"v_mul_f32_dpp v{o+r}, v{VRR+i}, v{o+r} {q_(r)}" for r in range(4)]
    for i in range(4):
        o = ACC(2, i); P += normqk(2, i) + normqk(3, i) + cvt4(o, ACC(3, i))
        P.append(f"buffer_store_dwordx4 {v(o,4)}, v{A+6}, s[24:27], s{61 if i < 2 else 62} offen offset:{(i%2)*128} sc1 @kv")
        P.append(f"ds_write_b128 v{A+9}, {v(o,4)} offset:{(i//2)*4096 + (i%2)*128}")
    for p in range(2):
        for fb in range(2):
            o = ACC(4 + fb, 2*p); P += normv(4+fb, 2*p) + normv(4+fb, 2*p+1) + cvt4(o, ACC(4 + fb, 2*p + 1))
            P.append(f"buffer_store_dwordx4 {v(o,4)}, v{A+5}, s[24:27], s{61 if p == 0 else 62} offen offset:{2048 + fb*256} sc1 @kv")
            P.append(f"ds_write_b128 v{A+8}, {v(o,4)} offset:{p*4096 + 2048 + fb*256}")
    for i in range(4): P.append(f"v_mul_f32 v{VRSt+i}, {fbits(LOG2E / 32 ** 0.5)}, v{VRSt+i}")
    for i in range(4): P += normqk(0, i) + normqk(1, i) + cvt4(ACC(0, i), ACC(1, i))
    P.append('s_nop 0')
    for p in range(2):
        for r in range(4): P.append(f"v_permlane16_swap_b32 v{8*p+r}, v{8*p+4+r}")
    P += [f"ds_write_b128 v{VQW}, {v(4*q,4)} offset:{q*1024}" for q in range(4)]
    own = lambda u: [f"ds_read_b128 {a(AK(u,0)+4*q,4)}, v{VKA} offset:{u*4096 + q*1024}" for q in range(4)]
    P += own(0) + own(1)
    def qk0(q, u=0): return [f"v_mfma_f32_32x32x16_bf16 {v(VS(q%2),16)}, {a(AK(u,0),4)}, {QR(q,0)}, 0",
                             f"v_mfma_f32_32x32x16_bf16 {v(VS(q%2),16)}, {a(AK(u,1),4)}, {QR(q,1)}, {v(VS(q%2),16)}"]
    def rowmax(q):
        b_ = VS(q % 2); m_ = VM + q; t_ = VX2 + q % 2
        o_ = [f"v_max3_f32 v{m_}, v{b_}, v{b_+1}, v{b_+2}", f"v_max3_f32 v{t_}, v{b_+3}, v{b_+4}, v{b_+5}"]
        for r in range(6, 14, 4): o_ += [f"v_max3_f32 v{m_}, v{m_}, v{b_+r}, v{b_+r+1}", f"v_max3_f32 v{t_}, v{t_}, v{b_+r+2}, v{b_+r+3}"]
        return o_ + [f"v_max3_f32 v{m_}, v{m_}, v{b_+14}, v{b_+15}", f"v_max_f32 v{m_}, v{m_}, v{t_}"]
    def maxfin(q0, packed=True):
        o_ = [f"v_mov_b32 v{VX2+2}, v{VM+q0}", f"v_mov_b32 v{VX2+3}, v{VM+q0+1}", f"v_mov_b32 v{VX2+4}, -1.0",
              f"v_permlane32_swap_b32 v{VM+q0}, v{VX2+2}", f"v_permlane32_swap_b32 v{VM+q0+1}, v{VX2+3}",
              f"v_max_f32 v{VM+q0}, v{VM+q0}, v{VX2+2}", f"v_max_f32 v{VM+q0+1}, v{VM+q0+1}, v{VX2+3}"]
        for q in (q0, q0 + 1): o_ += [pk("mul", VC(q)+r, ('b', VM+q), ('b', VX2+4)) for r in range(0, 16, 2)]
        return o_
    P += qk0(0) + qk0(1)
    P += ["s_waitcnt lgkmcnt(0)", "s_barrier", "STAMP3"]
    P += [f"ds_read_b128 {a(112+4*q,4)}, v{VQR} offset:{q*1024}" for q in range(4)]
    P += ["s_lshl_b32 s72, s3, 19", "s_lshl_b32 s73, s93, 7", "s_add_u32 s72, s72, s73", "s_lshl_b32 s73, s3, 15",
          "s_lshl_b32 s65, s92, 1", "s_mov_b32 s63, -1", f"s_add_u32 s40, s22, {WS_W2T}", "s_addc_u32 s41, s23, 0", f"s_mov_b32 s42, {WS_EX + 4*MB - WS_W2T}",
          "s_lshl_b32 s56, s2, 2", "s_add_u32 s56, s56, s3", "s_lshl_b32 s56, s56, 12", f"s_add_u32 s56, s56, {WS_EX - WS_W2T}", f"s_mov_b32 s70, {(1 << 2) | (1 << 3) | (1 << 4)}"]
    P += rowmax(0) + qk0(2) + rowmax(1) + qk0(3) + maxfin(0) + rowmax(2)
    def qk(n):
        q = n % 4; u = n // 4
        return [f"v_mfma_f32_32x32x16_bf16 {v(VS(n%2),16)}, {a(AK(u,0),4)}, {QR(q,0)}, {v(VC(q),16)}",
                f"v_mfma_f32_32x32x16_bf16 {v(VS(n%2),16)}, {a(AK(u,1),4)}, {QR(q,1)}, {v(VS(n%2),16)}"]
    def pv(n, first=False):
        q = n % 4; u = n // 4
        return [f"v_mfma_f32_32x32x16_bf16 {OR(q)}, {a(AV(u,s_),4)}, {v(VP(n%2)+4*s_,4)}, {'0' if first and s_ == 0 else OR(q)}" for s_ in range(2)] + \
               [f"v_smfmac_f32_16x16x64_bf16 {v(VLs(q),4)}, {v(VONE,4)}, {v(VP(n%2),8)}, v{VIDX}"]
    P += qk(0) + rowmax(3) + maxfin(2)
    csm = lambda st: f"v_mfma_f32_16x16x32_bf16 {v(VCSD,4)}, {v(VSL,4)}, {a(ACSL(st),4)}, {v(VCSD,4)}"
    csl = lambda st: f"buffer_load_dwordx4 {a(ACSL(st),4)}, v{VCSA}, s[36:39], s66 offen"
    ACP = lambda h: 188 + 4 * h
    cpl = lambda h: f"buffer_load_dwordx4 {a(ACP(h),4)}, v{VCPS}, s[84:87], s74 offen"
    cps = lambda h: f"buffer_store_dwordx4 {a(ACP(h),4)}, v{VCPD}, s[40:43], s71 offen sc1"
    kvl = lambda u, tag="": [f"buffer_load_dwordx4 {a(AK(u,0)+4*q,4)}, v{VL16}, s[24:27], s57 offen offset:{q*1024} sc1{tag}" for q in range(4)]
    def kvadv(u):
        if u % 2: return ["s_add_u32 s57, s57, 4096"]
        return ["s_add_u32 s63, s63, 1", "s_cmp_eq_u32 s63, s46", "s_addc_u32 s63, s63, 0", "s_lshl_b32 s57, s63, 14", "s_add_u32 s57, s57, s52",
                "s_cmp_lt_u32 s63, 16", "s_cselect_b32 s57, s57, s59"]
    wol = f"buffer_load_dwordx4 v{VWO}, s[80:83], s68 offen lds"
    woadv = ["s_add_u32 s65, s65, 1", "s_and_b32 s65, s65, 31", "s_lshl_b32 s68, s65, 14", "s_add_u32 s68, s68, s72", "s_lshl_b32 s69, s65, 10", "s_add_u32 m0, s69, s73"]
    fil = f"buffer_load_dword v{VD1}, v{VL16}, s[84:87], s59 offen"
    def slot(n, m, after, mid1=()):
        b_ = VS(n % 2); p_ = VP(n % 2)
        ex = lambda r: f"v_exp_f32 v{b_+r}, v{b_+r}"
        cv = lambda r: f"v_cvt_pk_bf16_f32 v{p_+r}, v{b_+2*r}, v{b_+2*r+1}"
        seg = [[ex(0), ex(1), ex(2), ex(3)], [ex(4), cv(0), ex(5)] + list(mid1) + [cv(1), ex(6)], [ex(7), cv(2), ex(8), ex(9), cv(3)],
               [ex(10), ex(11), cv(4), ex(12), cv(5)], [ex(13), ex(14), ex(15), cv(6), cv(7)]]
        out = []
        for j_ in range(5):
            if m[j_]: out.append(m[j_])
            out += after.get(j_, []) + seg[j_]
        return out
    def emit(seq):
        for x in seq:
            if x.startswith("s_STAMP"): fstamp(k, int(x[7:]))
            else: k.e(x)
    fin = lambda Z: salu_first(auto_lgkm([x if not x.startswith("STAMP") else "s_" + x for x in resolve_vm(Z)], cyclic=False, merge=MG, hoist=True))
    def waitcnt(soff, target, vt):
        wait_multi(k, VFA, 1, f"s{soff}", target, vt)
    assert SIG <= PP <= 3
    VPA2 = 252
    pfa = []
    if OPT.codepf:
        kk = KB(k.name + "_b", 0, 0, 0); code_pf_addr(kk, "L_att_code", LAST, VPA2, VL2, 3)
        pfa = ["\n".join(x.strip() for x in kk.lines).replace("s76", "s100").replace("s77", "s101").replace("s[76:77]", "s[100:101]").replace("s78", "s51")]
    for n in range(8):
        m = qk(n + 1) + (pv(n - 1, n <= 4) if n > 0 else [None] * 3)
        after = {}
        def spread(lst, j0=1):
            for q, x in enumerate(lst): after.setdefault(j0 + q * (5 - j0) // len(lst), []).append(x)
        if n == 0: after[0] = [f"v_mov_b32 v{VX2}, 1", "s_lshl_b32 s60, s47, 10", "s_lshl_b32 s61, s3, 20", "s_add_u32 s61, s61, s60",
                               f"s_and_b32 s51, s46, {OPT.R - 1}", "s_lshl_b32 s51, s51, 7", "s_add_u32 s60, s60, s51"] + pfa
        if n == SIG: after[1] = ["WAITVM kv", "s_barrier", f"buffer_atomic_add v{VX2}, v{VFA}, s[88:91], s61 offen sc0 sc1"]
        if n == PP: spread(kvadv(2), 2)
        r_ = n - PP - 1
        if r_ == 0: spread(kvadv(3))
        if r_ == 1: after[0] = kvl(3, " @u3"); spread(kvadv(4) + woadv)
        if r_ == 2: after[0] = kvl(4) + [wol, fil]; spread(kvadv(5) + woadv)
        if r_ == 3: after[0] = kvl(5) + [wol, code_pf(VD1, VPA2) if OPT.codepf else fil]; spread(kvadv(6) + woadv)
        if n == 6: after.setdefault(4, []).append("WAITVM u2")
        if n == 7: after.setdefault(4, []).extend(["s_mov_b32 s62, 5", "WAITVM u3"])
        P += slot(n, m, after)
        if n == PP:
            P.append("STAMP4")
            emit(fin(P))
            wait_multi(k, VFA, 1, "s60", 16, VX2 + 1, got=VX2)
            k.e("L_att_code:")
            fstamp(k, 5)
            P = kvl(2, " @u2")
    P.append("STAMP6")
    emit(fin(P))
    L = k.label("loop")
    body = []
    snt = f"buffer_store_dwordx4 a[196:199], v{VL16}, s[40:43], s56 offen sc1"
    sides = [([], [csl(0)]), ([], [csl(1)]), ([], [csl(2)]), ([cps(0)], [cpl(0)]), ([cps(1)], [cpl(1)]), ([snt], [])]
    for j in range(6):
        u = 2 + j
        pre = []
        if j == 3: pre = ["s_cmp_lg_u32 s62, 5", "s_cselect_b32 s71, s79, s59"]
        if j == 4: pre = ["s_bitcmp1_b32 s70, s62", "s_cselect_b32 s71, s79, s59", "s_cmp_lg_u32 s62, 2", "s_cselect_b32 s74, s74, s59"]
        if j == 5: pre = ["s_sub_u32 s62, s62, 1", "s_cmp_lg_u32 s62, 0", "s_cselect_b32 s56, s56, s59"]
        sal = kvadv(u + 5) + woadv
        if j < 3: sal.append(f"s_add_u32 s66, s66, {4*7168}")
        elif j < 5: sal += ["s_add_u32 s74, s74, 16384", "s_add_u32 s79, s79, 2048"]
        else: sal += ["s_add_u32 s56, s56, 1024", "s_cmp_lg_u32 s62, 0"]
        sd = sides[j]
        aft = [{q: [x] for q, x in enumerate(pre)}, {0: sd[0] + kvl(u + 4) + [wol] + sd[1]}, {}, {}]
        spots = [(1, 1), (1, 2), (1, 3), (1, 4), (2, 0), (2, 1), (2, 2), (2, 3), (3, 0), (3, 1), (3, 2), (3, 3), (3, 4)]
        for q, x in enumerate(sal):
            t_, j_ = spots[q * len(spots) // len(sal)] if len(sal) > len(spots) else spots[len(spots) - len(sal) + q]
            aft[t_].setdefault(j_, []).append(x)
        nw = 1 + len(sides[(j - 3) % 6][1]) + sum(5 + len(sides[(j - q) % 6][0]) + len(sides[(j - q) % 6][1]) for q in range(3))
        if j < 3: assert nw <= [99, 2 + 6, 2][j] + 6 * (j + 1)
        aft[2].setdefault(4, []).append(f"s_waitcnt vmcnt({nw})")
        for t_ in range(4):
            n = 4 * u + t_
            body += slot(n, qk(n + 1) + pv(n - 1), aft[t_], mid1=[csm(j)] if (t_ == 0 and j < 3) else ())
    k.e(f".p2align 6\n{L}:")
    for x in body: k.e(x)
    k.e(f"s_cbranch_scc1 {L}")
    if OPT.codepf: k.e(code_pf(VD1, VPA2))
    else: k.e("s_nop 0")
    for x in pv(31): k.e(x)
    fstamp(k, 7)
    Lfb = k.label("fb"); Lno = k.label("nofb")
    VSV = VX2 + 4
    k.e(f"""
    s_lshl_b32 s69, s92, 1
    s_add_u32 s69, s69, 8
    s_and_b32 s69, s69, 31
    s_lshl_b32 s69, s69, 10
    s_add_u32 s69, s69, s73
    v_add_u32 v{VQR}, s69, v{VL16}
    ds_read_b128 {v(VSV,4)}, v{VQR}
    v_add_u32 v{VKA}, 0x20000, v{VKA}
    """)
    for r in range(4): k.e(f"ds_write_b128 v{VKA}, {a(AOS(2)+4*r,4)} offset:{r*1024}")
    k.e(f"""
    v_add_f32 v{VX2}, v{VLs(2)}, v{VLs(2)+1}
    v_mov_b32 v{VX2+2}, v{VM+2}
    v_mov_b32 v{VX2+3}, v{VM+3}
    v_add_f32 v{VX2+1}, v{VLs(3)}, v{VLs(3)+1}
    """)
    for r in range(4): k.e(f"ds_write_b128 v{VKA}, {a(AOS(3)+4*r,4)} offset:{4096 + r*1024}")
    k.e(f"ds_write_b128 v{VQR}, {v(VX2,4)}")
    srd(k, 32, 22, 23, PLANE + S_*D_*2, WS_O)
    k.e(f"""
    v_xor_b32 v{VKA}, 0x4000, v{VKA}
    v_xor_b32 v{VQW}, 0x10000, v{VQR}
    v_and_b32 v{VY}, 15, v{VL2}
    v_bfe_u32 v{VY+1}, v{VL2}, 4, 1
    v_lshrrev_b32 v{VY+2}, 5, v{VL2}
    v_lshlrev_b32 v{VOA}, 4, v{VY}
    v_lshl_add_u32 v{VOA}, v{VY+1}, 15, v{VOA}
    v_lshl_add_u32 v{VOA}, v{VY+2}, 8, v{VOA}
    s_lshl_b32 s60, s46, 18
    s_lshl_b32 s61, s48, 17
    s_add_u32 s60, s60, s61
    s_lshl_b32 s61, s67, 10
    s_add_u32 s60, s60, s61
    s_add_u32 s61, s60, 65536
    """)
    reloc(k, VOA, VY+1)
    k.e(f"""
    v_add_f32 v{VY+4}, v{VLs(0)}, v{VLs(0)+1}
    v_add_f32 v{VY+5}, v{VLs(1)}, v{VLs(1)+1}
    v_mov_b32 v{VY+3}, {fbits(2.0**40 if not force_fb else 0.5)}
    s_waitcnt lgkmcnt(0)
    s_barrier
    ds_read_b128 {v(VX2,4)}, v{VQW}
    """)
    for r in range(8): k.e(f"ds_read_b128 {v(VS(0)+4*r,4)}, v{VKA} offset:{r*1024}")
    k.e(f"""
    s_waitcnt lgkmcnt(8)
    {pk("add", VY+8, VY+4, VX2)}
    v_max_f32 v{VY+10}, v{VM}, v{VX2+2}
    v_max_f32 v{VY+11}, v{VM+1}, v{VX2+3}
    v_add_f32 v{VY+2}, v{VY+8}, v{VY+9}
    v_sub_f32 v{VY+8}, v{VM}, v{VY+10}
    v_sub_f32 v{VY+9}, v{VM+1}, v{VY+11}
    v_sub_f32 v{VY+6}, v{VX2+2}, v{VY+10}
    v_sub_f32 v{VY+7}, v{VX2+3}, v{VY+11}
    v_cmp_nlt_f32 vcc, v{VY+2}, v{VY+3}
    v_exp_f32 v{VY+8}, v{VY+8}
    v_exp_f32 v{VY+9}, v{VY+9}
    v_exp_f32 v{VY+6}, v{VY+6}
    v_exp_f32 v{VY+7}, v{VY+7}
    {pk("mul", VY+4, VY+4, VY+8)}
    s_cbranch_vccnz {Lfb}
    {pk("fma", VY+4, VX2, VY+6, VY+4)}
    v_rcp_f32 v{VY+10}, v{VY+4}
    v_rcp_f32 v{VY+11}, v{VY+5}
    s_waitcnt lgkmcnt(0)
    {pk("mul", VY+4, VY+8, VY+10)}
    {pk("mul", VY+6, VY+6, VY+10)}
    {Lno}:
    """)
    E = []
    for q in range(2):
        b_ = VOK(q); o_ = VS(q)
        for a_ in range(2):
            E += [pk("mul", b_+8*a_+r, b_+8*a_+r, ('b', VY+4+q)) for r in range(0, 8, 2)]
            E += [pk("fma", b_+8*a_+r, o_+8*a_+r, ('b', VY+6+q), b_+8*a_+r) for r in range(0, 8, 2)]
            E += [f"v_cvt_pk_bf16_f32 v{b_+8*a_+r}, v{b_+8*a_+2*r}, v{b_+8*a_+2*r+1}" for r in range(4)]
            E.append(f"buffer_store_dwordx4 {v(b_+8*a_,4)}, v{VOA}, s[32:35], s{60+q} offen offset:{a_*512} sc1 @o")
    ACC3 = lambda j, i: (j * 2 + i) * 4
    VW3 = lambda g, s_: 32 + (g % 4) * 8 + s_ * 4
    VR3 = 64
    VXA = 76
    AX3 = lambda ks, i: ((ks % 32) * 2 + i) * 4
    kk = KB("t", 0, 0, 0)
    srd(kk, 28, 22, 23, 2*F_*4, WS_CS)
    kk.e(f"""
    {csm(0)}
    {csm(1)}
    {csm(2)}
    v_lshrrev_b32 v{VY+1}, 4, v{VL2}
    v_and_b32 v{VY+6}, 7, v{VY}
    v_lshlrev_b32 v{VY+6}, 5, v{VY+6}
    v_lshl_add_u32 v{VY+6}, v{VY+1}, 3, v{VY+6}
    v_lshrrev_b32 v{VY+7}, 3, v{VY}
    v_lshl_add_u32 v{VD2}, v{VY+7}, 2, v{VY+6}
    """)
    for r in range(4): kk.e(f"v_accvgpr_read_b32 v{VRES+r}, a{ARES+r}")
    kk.e(f"""
    v_mov_b32 v{VCSD+2}, v{VCSD}
    v_mov_b32_dpp v{VCSD}, v{VCSD+1} row_ror:8 row_mask:0xf bank_mask:0xc
    s_nop 0
    v_mov_b32_dpp v{VCSD+1}, v{VCSD+2} row_ror:8 row_mask:0xf bank_mask:0x3
    """)
    AT = [f"buffer_atomic_add_f32 v{VCSD+r}, v{VD2}, s[28:31], s95 offen offset:{256*r} sc1" for r in range(2)]
    for r in range(4, 16): kk.e(f"v_accvgpr_read_b32 v{VRES+r}, a{ARES+r}")
    kk.e(f"v_mov_b32 v{VXA}, v{VL16}")
    for i in range(2):
        for p in range(2):
            r = VRES + i*8 + p*4
            kk.e(f"v_permlane16_swap_b32 v{r}, v{r+2}\nv_permlane16_swap_b32 v{r+1}, v{r+3}")
    for i in range(2):
        for fb in range(4):
            o = ACC3(fb, i); r = VRES + i*8 + fb*2
            kk.e(f"v_lshlrev_b32 v{o}, 16, v{r}\nv_and_b32 v{o+1}, 0xffff0000, v{r}\nv_lshlrev_b32 v{o+2}, 16, v{r+1}\nv_and_b32 v{o+3}, 0xffff0000, v{r+1}")
    reloc(kk, VXA, VY+7)
    kk.e(f"""
    v_add_u32 v{VXA}, s64, v{VXA}
    v_add_u32 v{VXA+1}, 32768, v{VXA}
    v_and_b32 v{VY+7}, 31, v{VL2}
    v_lshrrev_b32 v{VY+7}, 2, v{VY+7}
    v_lshrrev_b32 v{VY+8}, 5, v{VL2}
    v_lshl_add_u32 v{VY+8}, v{VY+8}, 4, v{VY+7}
    v_lshrrev_b32 v{VY+7}, 1, v{VY+7}
    v_lshlrev_b32 v{VY+7}, 5, v{VY+7}
    v_lshl_add_u32 v{VY+7}, v{VY+8}, 7, v{VY+7}
    v_and_b32 v{VY+8}, 3, v{VL2}
    v_lshl_add_u32 v{VR3}, v{VY+8}, 3, v{VY+7}
    """)
    for fb in range(1, 4): kk.e(f"v_xor_b32 v{VR3+fb}, {fb*32}, v{VR3}")
    for rg in range(1, 2):
        for fb in range(4): kk.e(f"v_add_u32 v{VR3+4*rg+fb}, {rg*0x10000}, v{VR3+fb}")
    kk.e(f"""
    v_mov_b32 v{VX2}, 1
    s_lshl_b32 s60, s46, 10
    s_add_u32 s60, s60, {C2}
    s_lshl_b32 s61, s3, 20
    s_add_u32 s61, s61, s60
    s_lshl_b32 s60, s92, 10
    s_add_u32 s60, s60, {C2}
    s_and_b32 s51, s93, {OPT.R - 1}
    s_lshl_b32 s51, s51, 7
    s_add_u32 s60, s60, s51
    """)
    E += ["s_waitcnt vmcnt(24)"] + lines("\n".join(kk.lines))
    E += ["WAITVM o", "s_barrier", f"buffer_atomic_add v{VX2}, v{VFA}, s[88:91], s61 offen sc1", f"ds_write_b128 v{VQR}, {v(VSV,4)}", "s_waitcnt lgkmcnt(0)", "STAMP8"]
    emit(["s_" + x if x.startswith("STAMP") else x for x in resolve_vm(E)])
    waitcnt(60, 16, VX2 + 1)
    fstamp(k, 9)
    qbase = [0, 0x8000, 0x10000, 0x18000]
    def wreads3(G):
        sp, fb = G // 4, G % 4
        out = []
        for s_ in range(2):
            ks = 2 * sp + s_; ad = qbase[ks // 8] + (ks % 8) * 4096
            out += [f"ds_read_b64_tr_b16 {v(VW3(G,s_)+2*rd,2)}, v{VR3+4*(ad>>16)+fb} offset:{(ad & 0xffff) + rd*1024}" for rd in range(2)]
        return out
    def xl(sp):
        out = []
        for s_ in range(2):
            ks = 2 * sp + s_
            for i in range(2):
                o_ = [f"buffer_load_dwordx4 {a(AX3(ks,i),4)}, v{VXA+i}, s[32:35], s57 offen offset:{(ks%4)*1024} sc1 @x{sp}"]
                if ks % 4 == 0 and i == 0: o_ = [f"s_mov_b32 s57, {(ks//4)*4096}"] + o_
                out.append(o_)
        return out
    Q = []
    for sp in range(LA):
        for o_ in xl(sp): Q += o_
        if sp == 0:
            for G in range(3): Q += wreads3(G)
    main = []; side = {}
    for G in range(64):
        sp, fb = G // 4, G % 4
        if fb == 0: side.setdefault(4*G - 1, []).insert(0, f"WAITVM x{sp}")
        for i in range(2):
            for s_ in range(2):
                c_ = v(ACC3(fb,i),4)
                main.append(f"v_mfma_f32_16x16x32_bf16 {v(ACC3(fb,i),4)}, {v(VW3(G,s_),4)}, {a(AX3(2*sp+s_,i),4)}, {c_}")
        if G + 3 < 64:
            for q, x in enumerate(wreads3(G + 3)): side.setdefault(4*G + q, []).append(x)
        if sp + LA < 16: side.setdefault(4*G + 1, []).extend(xl(sp + LA)[fb])
        if sp + LA == 16 and fb < 2: side.setdefault(4*G + 1, []).append(AT[fb])
    Q += flatten(main, side)
    emit(salu_first(auto_lgkm(resolve_vm(Q), cyclic=False, merge=1, hoist=True)))
    fstamp(k, 10)
    if full: k.e("s_barrier")
    srd(k, 36, 22, 23, S_*D_*2, WS_H)
    srd(k, 40, 22, 23, S_*8, WS_ST)
    k.e(f"""
    s_lshl_b32 s61, s93, 11
    s_add_u32 s60, s64, s61
    s_add_u32 s61, s60, 32768
    """)
    for i in range(2):
        for p in range(2):
            for fb in (2*p, 2*p+1):
                o = ACC3(fb, i); r = VRES + i*8 + fb*2
                k.e(f"v_cvt_pk_bf16_f32 v{r}, v{o}, v{o+1}\nv_cvt_pk_bf16_f32 v{r+1}, v{o+2}, v{o+3}")
            k.e(f"buffer_store_dwordx4 {v(VRES+i*8+p*4,4)}, v{VL16}, s[36:39], s{60+i} offen offset:{p*1024} {OPT.st}")
    for i in range(2):
        regs = [ACC3(fb, i) + r for fb in range(4) for r in (0, 2)]
        k.e(pk("add", 36, regs[0], regs[1]) + "\n" + pk("mul", 38, regs[0], regs[0]) + "\n" + pk("fma", 38, regs[1], regs[1], 38))
        for r in regs[2:]: k.e(pk("add", 36, 36, r) + "\n" + pk("fma", 38, r, r, 38))
        k.e(f"v_add_f32 v{32+2*i}, v36, v37\nv_add_f32 v{33+2*i}, v38, v39")
    k.e(f"""
    v_lshrrev_b32 v{VY+3}, 1, v{VY+1}
    v_lshl_add_u32 v{VY+3}, v{VY+3}, 4, v{VY}
    v_permlane32_swap_b32 v32, v34
    v_permlane32_swap_b32 v33, v35
    v_and_b32 v{VY+4}, 1, v{VY+1}
    v_add_f32 v32, v32, v34
    v_add_f32 v33, v33, v35
    v_lshlrev_b32 v{VY+3}, 3, v{VY+3}
    v_lshl_add_u32 v{VY+3}, v{VY+4}, 2, v{VY+3}
    v_permlane16_swap_b32 v32, v33
    s_lshl_b32 s60, s76, 7
    v_add_f32 v32, v32, v33
    buffer_atomic_add_f32 v32, v{VY+3}, s[40:43], s60 offen sc1
    """)
    cold = []
    if full:
        phase4(k, LAST, cold, **p4)
        phase5(k, LAST, cold, **p5)
    Lfin = k.label("fin")
    k.e(f"s_branch {Lfin}" if OPT.diag else "s_endpgm")
    k.e(";WARMEND")
    for x in cold: k.e(x)
    k.e(f"""
    {Lsp}:
    s_mov_b32 s94, {SPIN}
    {Lsp}_l:
    s_sleep 2
    s_sub_u32 s94, s94, 1
    s_cbranch_scc1 {Lok}
    buffer_load_dword v{VT+6}, v{VT+7}, s[32:35], 0 offen sc1
    s_waitcnt vmcnt(0)
    v_cmp_gt_u32 vcc, v{VT+5}, v{VT+6}
    s_nop 4
    s_cbranch_vccnz {Lsp}_l
    s_branch {Lok}
    """)
    Lm = k.label("maxloop"); Lp2 = k.label("pass2")
    k.e(f"{Lfb}:")
    ldk = [f"buffer_load_dwordx4 {a(AK(0,s_),4)}, v{VL16}, s[24:27], s51 offen offset:{s_*1024} sc1" for s_ in range(2)]
    ldv = [f"buffer_load_dwordx4 {a(AV(0,s_),4)}, v{VL16}, s[24:27], s51 offen offset:{2048+s_*1024} sc1" for s_ in range(2)]
    nxt = lambda L_: f"s_add_u32 s51, s51, 4096\ns_sub_u32 s50, s50, 1\ns_cmp_lg_u32 s50, 0\ns_cbranch_scc1 {L_}"
    k.e(f"s_waitcnt vmcnt(0) lgkmcnt(0)\ns_lshl_b32 s51, s67, 18\ns_mov_b32 s50, 64\nv_mov_b32 v{VM}, 0xff800000\nv_mov_b32 v{VM+1}, 0xff800000\nv_mov_b32 v{VY+8}, v{VSV}\n{Lm}:")
    k.e("\n".join(ldk + ["s_waitcnt vmcnt(0)"] + qk0(0) + qk0(1) + ["s_nop 15"]))
    for q in range(2):
        for r in range(0, 16, 2): k.e(f"v_max3_f32 v{VM+q}, v{VM+q}, v{VS(q)+r}, v{VS(q)+r+1}")
    k.e(nxt(Lm))
    k.e("\n".join(maxfin(0)) + f"\nv_mov_b32 v{VSV}, v{VY+8}")
    for r in list(range(VOK(0), VOK(0) + 32)) + list(range(VLs(0), VLs(0) + 8)): k.e(f"v_mov_b32 v{r}, 0")
    k.e(f"s_lshl_b32 s51, s67, 18\ns_mov_b32 s50, 64\n{Lp2}:")
    k.e("\n".join(ldk + ldv + ["s_waitcnt vmcnt(0)"] + qk(0) + qk(1) + ["s_nop 15"]))
    for q in range(2):
        for r in range(16): k.e(f"v_exp_f32 v{VS(q)+r}, v{VS(q)+r}")
        for r in range(8): k.e(f"v_cvt_pk_bf16_f32 v{VP(q)+r}, v{VS(q)+2*r}, v{VS(q)+2*r+1}")
    k.e("s_nop 1\n" + "\n".join(pv(0) + pv(1)) + "\ns_nop 7\n" + nxt(Lp2))
    for r in range(VS(0), VS(0) + 32): k.e(f"v_mov_b32 v{r}, 0")
    k.e(f"""
    v_add_f32 v{VY+4}, v{VLs(0)}, v{VLs(0)+1}
    v_add_f32 v{VY+5}, v{VLs(1)}, v{VLs(1)+1}
    v_rcp_f32 v{VY+4}, v{VY+4}
    v_rcp_f32 v{VY+5}, v{VY+5}
    v_mov_b32 v{VY+6}, 0
    v_mov_b32 v{VY+7}, 0
    s_branch {Lno}
    {Lfin}:
    """)
    ffinish(k, k.nst - 1)
    if full and OPT.warm:
        st_ = add_warm_chains(k)
        if OPT.rep: print(st_, file=sys.stderr)
    return k


def all_kernels(**kw):
    g = lambda n: kw.get(n, {})
    return [gen_front(p4=g('p4'), p5=g('p5'), **g('f'))]

if __name__ == "__main__":
    hdr = "".join(l for l in open("sequential_preLN__softmax_full_mha__glu_gated_swiglu__prompt.s.ref") if l.startswith(";") and "@launch" not in l and "Override" not in l and "grid=ceil" not in l)
    kw = eval("dict(" + (sys.argv[1] if len(sys.argv) > 1 else "") + ")")
    for a_, b_ in kw.pop("opt", {}).items(): setattr(OPT, a_, b_)
    print(build_file(all_kernels(**kw), hdr))
```

```python
import re, sys
from asmlib import regs_of
TRANS = ("v_exp", "v_rcp", "v_rsq", "v_log", "v_sqrt", "v_sin", "v_cos")
def parse(l):
    op = l.split()[0]; rest = l[len(op):]
    rest = re.sub(r"(op_sel|op_sel_hi|neg_lo|neg_hi|quad_perm):\[[^\]]*\]", "", rest)
    ops = [x.strip() for x in rest.split(",")]
    R = lambda xs: regs_of(",".join(xs))
    d = dict(op=op, w=set(), r=set(), kind="s", c=set(), ab=set(), passes=0, data=set())
    if op.startswith(("v_mfma", "v_smfmac")):
        d["kind"] = "m"; d["w"] = R(ops[:1]); d["ab"] = R(ops[1:3]); d["passes"] = 8 if "32x32" in op else 4
        if op.startswith("v_smfmac"): d["c"] = d["w"]; d["ab"] |= R(ops[3:4])
        else: d["c"] = R(ops[3:4])
        d["r"] = d["ab"] | d["c"]
    elif op.startswith("v_"):
        d["kind"] = "v"
        if op.startswith("v_cmp") or op.startswith(("v_readfirstlane", "v_readlane")): d["r"] = R(ops[1:])
        else:
            d["w"] = R(ops[:1]); d["r"] = R(ops[1:])
            if op.startswith(("v_fmac", "v_permlane", "v_writelane", "v_dot2c")) or "dpp" in op: d["r"] |= d["w"]
            if op.startswith("v_permlane"): d["w"] |= R(ops[1:2])
    elif op.startswith("ds_read"): d["kind"] = "x"; d["ld"] = R(ops[:1]); d["r"] = R(ops[1:])
    elif op.startswith("ds_write"): d["kind"] = "x"; d["r"] = R(ops)
    elif op.startswith(("buffer_load", "global_load")):
        d["kind"] = "x"
        if " lds" in l: d["r"] = R(ops)
        else: d["ld"] = R(ops[:1]); d["r"] = R(ops[1:])
    elif op.startswith(("buffer_store", "buffer_atomic")):
        d["kind"] = "x"; d["r"] = R(ops)
        if "x4" in op or "x3" in op: d["data"] = R(ops[:1])
    d["n"] = int(ops[0]) + 1 if op == "s_nop" else 1
    d["vccw"] = op.startswith("v_cmp") and ops[0] == "vcc" or "_co_" in op
    d["vccr"] = op.startswith("v_cndmask") or op.startswith("v_addc")
    d["m0w"] = op.startswith("s_") and ops[0] == "m0"
    d["lds"] = " lds" in l
    return d
def check(seq, name=""):
    ins = [(i, l, parse(l)) for i, l in seq]; bad = 0
    for q, (i, l, a) in enumerate(ins):
        ws = 0
        for (i2, l2, b) in ins[q+1:q+14]:
            need = 0
            if a["kind"] == "m":
                big = 12 if a["passes"] == 8 else 8
                if b["kind"] == "m":
                    if a["w"] & b["ab"]: need = big
                    elif a["w"] & b["c"] and not (a["w"] == b["c"] and a["passes"] == b["passes"]): need = big - 2
                elif b["kind"] in "vx":
                    if a["w"] & (b["r"] | b["w"] | b.get("ld", set())): need = big
                    elif b["kind"] == "v" and a["c"] & b["w"]: need = 7 if a["passes"] == 8 else 3
            elif a["kind"] == "v":
                if b["kind"] == "m" and a["w"] & b["r"]: need = 2
                if b["kind"] == "v":
                    if a["op"].startswith(TRANS) and not b["op"].startswith(TRANS) and a["w"] & b["r"]: need = 1
                    if (b["op"].startswith("v_permlane") or "dpp" in b["op"]) and a["w"] & b["r"]: need = max(need, 2)
                    if b["op"].startswith(("v_readfirstlane", "v_readlane")) and a["w"] & b["r"]: need = max(need, 1)
                    if a["vccw"] and b["vccr"]: need = max(need, 2)
                    if a["op"].startswith("v_dot") and b["op"] != a["op"] and a["w"] & (b["r"] | b["w"]): need = max(need, 3)
                if a["vccw"] and b["op"].startswith("s_cbranch_vcc"): need = 5
            elif a["data"] and b["kind"] == "v" and a["data"] & b["w"]: need = 2
            elif a["m0w"] and b["lds"]: need = 1
            if ws < need:
                bad += 1; print(f"{name} HAZARD need {need} have {ws}: line {i}: {l}  ->  line {i2}: {l2}")
            if b["op"] in ("s_branch", "s_endpgm"): break
            if a["vccw"] and b["vccw"]: a = dict(a); a["vccw"] = False
            ws += b["n"]
            if ws >= 12: break
    return bad
if __name__ == "__main__":
    L = [(i + 1, l.split(";")[0].strip()) for i, l in enumerate(open(sys.argv[1])) if l.startswith("    ")]
    L = [x for x in L if x[1] and not x[1].startswith(".")]
    bad = check(L)
    raw = [l.rstrip() for l in open(sys.argv[1])]
    lab = {l[:-1]: i + 1 for i, l in enumerate(raw) if l.endswith(":") and not l.startswith(" ")}
    for q, (i, l) in enumerate(L):
        m = re.match(r"s_c?branch\w* (\S+)", l)
        if m and m.group(1) in lab and "execz" not in l:
            t = lab[m.group(1)]
            head = [x for x in L if x[0] > t][:14]
            tail = [(a_, b_ if a_ != i else "s_nop 0") for a_, b_ in L[max(0, q-13):q+1]]
            cut = max([z for z, x in enumerate(tail) if x[1].startswith(("s_branch", "s_endpgm"))], default=-1)
            bad += check(tail[cut+1:] + head, f"[edge {i}->{t}]")
    print("hazards:", bad)
```

```python
import sys, struct
from asmlib import *

S_, D_, F_ = 2048, 1024, 3584
MB = 1 << 20
PLANE = 16 * MB
WS_XN = 0; WS_Q = 4*MB; WS_KV = 8*MB; WS_H = 16*MB
WS_ST = 20*MB; WS_CS = WS_ST + 0x4000; WS_FLAG = WS_ST + 0x10000; WS_CNT = WS_ST + 0x10000; ZERO_BYTES = 0x40000
WS_STAMP = 21*MB
WS_CSP1 = 22*MB; WS_MU = WS_CSP1 + 0x40000; WS_RS = WS_MU + 0x2000
WS_O = 32*MB; WS_W2T = 38*MB
WS_G = 64*MB
WS_EX = 96*MB
RELOC = PLANE - 384
LOG2E = 1.4426950408889634
OOB = 0x40000000
SPIN = 0x40000
KNAME = "sequential_preLN__softmax_full_mha__glu_gated_swiglu__prompt_kernel"
def fbits(x): return hex(struct.unpack("<I", struct.pack("<f", x))[0])

class Opt:
    diag = False
    st = "sc1"
    reloc = True
    codepf = True
    rep = False
    only = None
    warm = True
    w1 = ''
    w4 = ''
    ost = 'sc1'
    probe = None
    R = 4
    exw = 0
OPT = Opt()

def prologue(k, nwg=256):
    k.e(f"""
    s_cmp_ge_u32 s2, {nwg}
    s_cbranch_scc1 L_{k.name}_end
    s_load_dwordx16 s[4:19], s[0:1], 0
    s_load_dwordx4 s[20:23], s[0:1], 64
    v_lshrrev_b32 v1, 6, v0
    v_and_b32 v0, 63, v0
    v_readfirstlane_b32 s3, v1
    s_and_b32 s44, s2, 7
    s_lshr_b32 s45, s2, 3
    """)

def udiv_const(k, dst, src, c):
    sh = 20
    m = (1 << sh) // c + 1
    for x in range(0, 4096): assert (x * m) >> sh == x // c
    k.e(f"v_mul_u32_u24 v{dst}, {m}, v{src}\nv_lshrrev_b32 v{dst}, {sh}, v{dst}")

def tile_map(k, nb_m, nb_x, sm, sn):
    k.e(f"""
    s_and_b32 s{sm}, s44, {(1<<nb_x)-1}
    s_lshl_b32 s{sm}, s{sm}, {nb_m}
    s_and_b32 s{sn}, s45, {(1<<nb_m)-1}
    s_add_u32 s{sm}, s{sm}, s{sn}
    s_lshr_b32 s{sn}, s44, {nb_x}
    s_lshl_b32 s{sn}, s{sn}, {5-nb_m}
    s_lshr_b32 s79, s45, {nb_m}
    s_add_u32 s{sn}, s{sn}, s79
    """)

def reloc(k, addr, tmp):
    if not OPT.reloc: return
    k.e(f"""
    v_bfe_u32 v{tmp}, v{addr}, 7, 2
    v_add_u32 v{tmp}, 1, v{tmp}
    v_lshrrev_b32 v{tmp}, 2, v{tmp}
    v_mul_u32_u24 v{tmp}, {RELOC}, v{tmp}
    v_add_u32 v{addr}, v{addr}, v{tmp}
    """)

def code_pf_addr(k, first, last, vaddr, lane, chunk_s):
    L = k.label("pc")
    k.e(f"""
    s_getpc_b64 s[76:77]
    {L}:
    s_add_u32 s76, s76, {first}-{L}
    s_addc_u32 s77, s77, ({first}-{L})>>32
    s_lshl_b32 s78, s45, 2
    s_add_u32 s78, s78, s3
    s_lshl_b32 s78, s78, 9
    v_and_b32 v{vaddr}, 3, v{lane}
    v_lshl_add_u32 v{vaddr}, v{vaddr}, 7, s78
    v_min_u32 v{vaddr}, {last}-{first}, v{vaddr}
    v_mov_b32 v{vaddr+1}, s77
    v_add_co_u32 v{vaddr}, vcc, s76, v{vaddr}
    s_nop 1
    v_addc_co_u32 v{vaddr+1}, vcc, 0, v{vaddr+1}, vcc
    """)
def code_pf(vdst, vaddr):
    return f"global_load_dword v{vdst}, v[{vaddr}:{vaddr+1}], off"

def pk(op, d, *srcs):
    ops = []; lo = []; hi = []; neg = []
    for s_ in srcs:
        if isinstance(s_, tuple):
            r = s_[1]; ops.append(v(r & ~1, 2)); lo.append(r & 1); hi.append(r & 1); neg.append(int(s_[0] == 'nb'))
        else:
            assert s_ % 2 == 0
            ops.append(v(s_, 2)); lo.append(0); hi.append(1); neg.append(0)
    f = lambda x: "[" + ",".join(map(str, x)) + "]"
    t = f"v_pk_{op}_f32 {v(d,2)}, " + ", ".join(ops) + f" op_sel:{f(lo)} op_sel_hi:{f(hi)}"
    if any(neg): t += f" neg_lo:{f(neg)} neg_hi:{f(neg)}"
    return t

def sprinkle(base, extra):
    out = []; n = len(base); m = len(extra); q = 0
    for i, b in enumerate(base):
        out.append(b)
        while q < m and (q + 1) * n <= (i + 1) * (m + 1):
            out += extra[q]; q += 1
    for x in extra[q:]: out += x
    return out
def with_nop(op):
    return [op[0], "s_nop 0", op[1]] if len(op) > 1 else list(op)

def allreduce64(k, regs, tmp):
    for sh in (8, 4, 2, 1):
        k.e("s_nop 1")
        for r in regs: k.e(f"v_add_f32_dpp v{r}, v{r}, v{r} row_ror:{sh} row_mask:0xf bank_mask:0xf")
    for sw in ("v_permlane16_swap_b32", "v_permlane32_swap_b32"):
        for q, r in enumerate(regs): k.e(f"v_mov_b32 v{tmp+q}, v{r}")
        k.e("s_nop 1")
        for q, r in enumerate(regs): k.e(f"{sw} v{r}, v{tmp+q}")
        k.e("s_nop 1")
        for q, r in enumerate(regs): k.e(f"v_add_f32 v{r}, v{r}, v{tmp+q}")

def fstamp(k, i):
    if OPT.probe and i in OPT.probe[:2]:
        for q in range(2):
            if OPT.probe[q] == i: k.e(f"s_memrealtime s[{96+2*q}:{97+2*q}]\ns_waitcnt lgkmcnt(0)")
    if OPT.diag and (OPT.only is None or i in OPT.only):
        k.e(f"s_memrealtime s[96:97]\ns_memtime s[98:99]\ns_waitcnt lgkmcnt(0)\nv_writelane_b32 v254, s96, {i}\nv_writelane_b32 v255, s98, {i}")
def ffinish(k, i):
    if OPT.probe:
        k.e("s_waitcnt vmcnt(0)"); fstamp(k, i)
        k.e(f"""
        s_cmp_lg_u32 s2, {OPT.probe[2]}
        s_cbranch_scc1 L_{k.name}_end
        s_sub_u32 s28, s98, s96
        s_min_u32 s28, s28, 20000
        s_mul_i32 s28, s28, 8
        s_memrealtime s[30:31]
        s_waitcnt lgkmcnt(0)
        L_probe_spin:
        s_memrealtime s[32:33]
        s_waitcnt lgkmcnt(0)
        s_sub_u32 s29, s32, s30
        s_cmp_lt_u32 s29, s28
        s_cbranch_scc1 L_probe_spin
        """)
    if OPT.diag:
        k.e("s_waitcnt vmcnt(0)")
        fstamp(k, i)
        srd(k, 96, 22, 23, MB, WS_STAMP + 0x80000)
        k.e("v_mbcnt_lo_u32_b32 v0, -1, 0\nv_mbcnt_hi_u32_b32 v0, -1, v0\nv_lshlrev_b32 v0, 3, v0\ns_lshl_b32 s100, s2, 2\ns_add_u32 s100, s100, s3\ns_lshl_b32 s100, s100, 9")
        k.e("buffer_store_dwordx2 v[254:255], v0, s[96:99], s100 offen")
    k.e(f"L_{k.name}_end:\ns_endpgm")


def lane_id(k, r): k.e(f"v_mbcnt_lo_u32_b32 v{r}, -1, 0\nv_mbcnt_hi_u32_b32 v{r}, -1, v{r}")
NL = chr(10)
def signal(k, vone, vfa, off_s, tmp_s):
    k.e(f"s_lshl_b32 s{tmp_s}, s3, 20\ns_add_u32 s{tmp_s}, s{tmp_s}, s{off_s}\nbuffer_atomic_add v{vone}, v{vfa}, s[88:91], s{tmp_s} offen sc1")
def wait_multi(k, vaddr, nl, soff, target, vt, nwait=0, got=None):
    L2 = k.label("pdone"); L0 = k.label("poller"); L1 = k.label("poll"); L3 = k.label("pend")
    if OPT.warm: k.e(f"s_cmp_eq_u32 s3, 0\ns_cbranch_scc1 {L0}\ns_branch {L2}\n{L0}:")
    else: k.e(f"s_cmp_lg_u32 s3, 0\ns_cbranch_scc1 {L2}")
    k.e(f"""
    s_mov_b32 s50, {SPIN}
    s_mov_b64 exec, {(1 << nl) - 1}
    {f's_waitcnt vmcnt(0){NL}v_cmp_gt_u32 vcc, {got[1]}, v{got[0]}{NL}s_nop 4{NL}s_cbranch_vccz {L3}' if got is not None else ''}
    {L1}:
    v_mov_b32 v{vt}, 0
    s_sub_u32 s50, s50, 1
    s_cbranch_scc1 {L3}
    buffer_atomic_add v{vt}, v{vaddr}, s[88:91], {soff} offen sc0 sc1
    s_waitcnt vmcnt(0)
    v_cmp_gt_u32 vcc, {target}, v{vt}
    s_nop 4
    s_cbranch_vccnz {L1}
    {L3}:
    s_mov_b64 exec, -1
    {L2}:
    s_waitcnt vmcnt({nwait})
    s_barrier
    """)
C2 = 0x4000; C3 = 0x8000; C4 = 0xc000; C6 = 0x10000

def phase4(k, LAST, cold, D=3, MG=1, M=4, PL=7, EF=4, LEAD=56, GAP=4, PRE1=True, fine=False):
    STG = 28672; NSL = 5; CSB = NSL * STG
    ACC = lambda j, i: (j * 4 + i) * 4
    VD = 224; VX = 231; VR = 232; VFA = 249; VA = 236; CT = 244; VL = 235; VPD = 253; VPF = 252; VPA = 250
    T = 40
    AX = lambda n, i, s_: (n % NSL) * 32 + (i * 2 + s_) * 4
    AW = lambda g, s_: 160 + (g % 7) * 8 + s_ * 4
    Lst = k.label("code4")
    lane_id(k, VL)
    tile_map(k, 2, 1, 46, 47)
    k.e(f"""
    s_and_b32 s50, s3, 1
    s_mul_i32 s50, s50, 448
    s_mul_i32 s51, s47, 224
    s_cmp_lt_u32 s3, 2
    s_cselect_b32 s24, s12, s14
    s_cselect_b32 s25, s13, s15
    s_mov_b32 s26, {D_*F_*2}
    s_mov_b32 s27, 0x20000
    s_mul_i32 s53, s3, 7168
    """)
    def dops(n):
        d = []
        for i in range(7):
            pre = []
            if i == 0: pre.append(f"s_mov_b32 s56, {n*64*7168}")
            if i % 4 == 0: pre.append(f"s_add_u32 m0, s53, {(n % NSL)*STG + i*1024}")
            d.append((pre, f"buffer_load_dwordx4 v{VD+i}, s[24:27], s56 offen offset:{(i%4)*1024} {OPT.w4} lds @s{n}"))
        return d
    def xops(n):
        return [([f"s_add_u32 s57, s49, {i*32768 + n*2048}"] if s_ == 0 else [],
                 f"buffer_load_dwordx4 {a(AX(n,i,s_),4)}, v{VX}, s[28:31], s57 offen offset:{s_*1024} sc1 @s{n}") for i in range(4) for s_ in range(2)]
    strip = lambda x: x.split(" @")[0]
    def direct(ops):
        o_ = []
        for pre, x in ops: o_ += pre + (["s_nop 0"] if any("m0" in y for y in pre) else []) + [x]
        return o_
    d0 = dops(0)
    for i in range(7):
        k.e(f"v_add_u32 v{T}, s50, v{VL}")
        if i: k.e(f"v_add_u32 v{T}, {64*i}, v{T}")
        udiv_const(k, T+1, T, 14)
        k.e(f"""
        v_mul_u32_u24 v{T+1}, {7168 - 224}, v{T+1}
        v_lshl_add_u32 v{T+1}, v{T}, 4, v{T+1}
        v_add_u32 v{VD+i}, s51, v{T+1}
        """)
        if i % 4: k.e(f"v_subrev_u32 v{VD+i}, {(i%4)*1024}, v{VD+i}")
        for x in direct(d0[i:i+1]): k.e(strip(x))
    k.e(f"""
    v_mov_b32 v{VFA}, v237
    v_mov_b32 v{VPD}, 1
    s_lshl_b32 s60, s92, 10
    s_add_u32 s60, s60, {C3}
    s_lshl_b32 s72, s3, 20
    s_add_u32 s72, s72, s60
    s_add_u32 s72, s72, {C6 - C3}
    s_waitcnt vmcnt(8)
    s_barrier
    """)
    signal(k, VPD, VFA, 60, 61)
    fstamp(k, 11)
    if PRE1:
        for x in direct(dops(1)): k.e(strip(x))
    k.e(f"""
    s_lshl_b32 s48, s46, 4
    s_lshl_b32 s49, s3, 2
    s_add_u32 s48, s48, s49
    s_lshl_b32 s49, s48, 15
    v_lshlrev_b32 v{VX}, 4, v{VL}
    s_lshl_b32 s55, s3, 10
    s_add_u32 s55, s55, {CSB}
    v_lshrrev_b32 v4, 2, v{VL}
    v_mul_u32_u24 v4, 224, v4
    v_and_b32 v5, 3, v{VL}
    v_lshl_add_u32 v{VR}, v5, 3, v4
    v_add_u32 v{VR+1}, {2*STG}, v{VR}
    v_add_u32 v{VR+2}, {4*STG}, v{VR}
    s_lshl_b32 s62, s46, 11
    s_add_u32 s62, s62, {C3}
    s_and_b32 s51, s47, {OPT.R - 1}
    s_lshl_b32 s51, s51, 7
    s_add_u32 s62, s62, s51
    v_and_b32 v{T+8}, 1, v{VL}
    v_lshlrev_b32 v{T+8}, 10, v{T+8}
    """)
    srd(k, 40, 22, 23, 2*F_*4, WS_CS); srd(k, 36, 22, 23, S_*8, WS_ST); srd(k, 28, 22, 23, S_*D_*2, WS_H)
    srd(k, 32, 22, 23, PLANE + S_*F_*2, WS_G)
    k.e(f"""
    s_mul_i32 s60, s48, {224*512}
    s_mul_i32 s61, s47, {7*512}
    s_add_u32 s60, s60, s61
    s_add_u32 s61, s60, {2*224*512}
    s_mul_i32 s58, s47, 448
    s_lshl_b32 s63, s48, 7
    s_lshl_b32 s94, s46, 1
    s_lshr_b32 s51, s47, 4
    s_add_u32 s94, s94, s51
    s_lshl_b32 s94, s94, 10
    s_add_u32 s94, s94, {C4}
    """)
    if OPT.codepf:
        code_pf_addr(k, Lst, LAST, VPA, VL, 3); k.e(code_pf(VPF, VPA))
    wait_multi(k, T+8, 2, "s62", 16, T+3)
    k.e(f"{Lst}:")
    fstamp(k, 12)
    groups = [(n, j) for n in range(16 - M) for j in range(14)]
    for p in range(7):
        for j in (p, p + 7): groups += [(n, j) for n in range(16 - M, 16)]
    def reads(g):
        n, j = groups[g]; sl = n % NSL
        off0 = (sl % 2) * STG + (j // 7) * 14336 + (j % 7) * 32
        return [f"ds_read_b64_tr_b16 {a(AW(g, s_) + 2*rd, 2)}, v{VR + sl//2} offset:{off0 + (32*s_ + 16*rd)*224}" for s_ in range(2) for rd in range(2)]
    main = []
    for g, (n, j) in enumerate(groups):
        for i in range(4):
            for s_ in range(2):
                c_ = v(ACC(j,i),4) if (n or s_) else "0"
                main.append(f"v_mfma_f32_16x16x32_bf16 {v(ACC(j,i),4)}, {a(AW(g,s_),4)}, {a(AX(n,i,s_),4)}, {c_}")
    S = Sched(main)
    SB = lambda n: 112 * n
    NB = 8 * (14 - D)
    NR = 16 - M
    early = lambda n: n <= NR - 1 and n >= EF
    for g in range(D, len(groups)):
        n, j = groups[g]
        if g < 14 * NR and early(n) and j >= 12:
            for q, x in enumerate(reads(g)): S.put(SB(n) + 8 * (12 - D) + 5 * (j - 12) + q + (q > 1), x)
        else:
            for q, x in enumerate(reads(g)): S.put(8 * (g - D) + 2 * q, x)
    for n in range(1, NR + 1):
        tags = f"s{n}" if n < NR else " ".join(f"s{q}" for q in range(NR, 16))
        if early(n - 1): S.put(SB(n-1) + NB - 2, "s_waitcnt lgkmcnt(0)")
        S.put(SB(n-1) + NB - 1, "WAITVM " + tags); S.put(SB(n-1) + NB - 1, "s_barrier")
    ld = [(1, o) for o in (xops(1)[4:] if PRE1 else dops(1)[4:] + xops(1))]
    for n in range(2, 16):
        d_, x_ = dops(n), xops(n)
        ld += [(n, o) for o in (d_[:4] + x_[:4] + d_[4:] + x_[4:] if n < 8 else d_ + x_)]
    end_all = SB(NR - 1) + NB - LEAD
    pos = 1; step = (end_all - 1) / len(ld)
    for q, (n, (pre, x)) in enumerate(ld):
        want = max(pos, int(1 + q * step)) if n > 1 else pos
        if n >= NSL:
            fr = n - NSL
            lo = SB(fr) + NB if early(fr) else SB(fr + 1) + NB
            if "lds" not in x: lo = SB(fr + 1)
            want = max(want, lo + 1)
        want = S.near(want | 1, 8)
        if n < NR: assert want <= SB(n - 1) + NB - 40, (n, want)
        else: assert want < SB(NR - 1) + NB - 24, (n, want)
        for y in pre: S.put(want - 1, y)
        S.put(want, x); pos = want + GAP
        if OPT.rep and pre and "s56" in pre[0]: print("stage", n, "starts at", want / 112, file=sys.stderr)
    if OPT.codepf:
        for n in (4, NR - 3): S.put(S.near(SB(n) + 33, 8), code_pf(VPF, VPA))
    def gcheck(va, vd, mask, soff, target, p0, p1, tag):
        Lsp = k.label("gspin")
        S.stream([f"v_and_b32 v{va}, {mask}, v{VL}", f"v_lshlrev_b32 v{va}, 10, v{va}", f"s_mov_b32 s73, {soff}"], p0 - 12, p0 - 1)
        S.put(S.near(p0, 4), f"buffer_load_dword v{vd}, v{va}, s[88:91], s73 offen sc1 @{tag}")
        S.put(p1, f"WAITVM {tag}"); S.put(p1, f"v_cmp_gt_u32 vcc, {target}, v{vd}"); S.put(p1 + 4, f"s_cbranch_vccnz {Lsp}\n{Lsp}_r:")
        cold.extend(lines(f"""
        {Lsp}:
        s_mov_b32 s50, {SPIN}
        {Lsp}_l:
        s_sub_u32 s50, s50, 1
        s_cbranch_scc1 {Lsp}_r
        s_sleep 16
        buffer_load_dword v{vd}, v{va}, s[88:91], s73 offen sc1
        s_waitcnt vmcnt(0)
        v_cmp_gt_u32 vcc, {target}, v{vd}
        s_nop 4
        s_cbranch_vccnz {Lsp}_l
        s_branch {Lsp}_r
        """))
    S.stream(lines(f"""
    v_cmp_lt_u32 vcc, 27, v{VL}
    v_mov_b32 v{CT+2}, {F_*4 - 28*16}
    v_and_b32 v{CT+3}, 15, v{VL}
    v_cndmask_b32 v{CT+2}, 0, v{CT+2}, vcc
    v_add_u32 v{CT+2}, v{CT+2}, v{VX}
    v_lshlrev_b32 v{CT+3}, 3, v{CT+3}
    """), SB(PL - 1), SB(PL) - 20)
    p_ = SB(PL + 1)
    S.put(S.near(SB(0) + NB + 1, 8), f"buffer_atomic_add v{VPD}, v{VFA}, s[88:91], s72 offen sc1")
    gcheck(CT, CT + 1, 15, C6, 16, SB(PL) + 1, p_, "pl")
    p_ += 6
    for i in range(4):
        p_ = S.near(p_ + 1, 8); S.put(p_, f"buffer_load_dwordx2 {v(VA+2*i,2)}, v{CT+3}, s[36:39], s63 offen offset:{i*128} sc1 @st")
    q_ = next(q for q in range(p_ + 2, S.n) if any("m0" in y for y in S.front[q] + S.ops[q]))
    assert not any("lds" in y for y in S.ops[q_ - 1] + S.ops[q_ - 2] + S.ops[q_])
    S.put(q_ - 2, "s_mov_b32 m0, s55"); S.put(q_ - 1, f"buffer_load_dwordx4 v{CT+2}, s[40:43], s58 offen sc1 lds @st")
    st2 = ["WAITVM st"]
    for i in range(4):
        b = VA + 2 * i
        st2 += lines(f"""v_mul_f32 v{b}, {fbits(-1.0/D_)}, v{b}
        v_mul_f32 v{b+1}, {fbits(1.0/D_)}, v{b+1}
        v_fma_f32 v{b+1}, -v{b}, v{b}, v{b+1}
        v_max_f32 v{b+1}, 0, v{b+1}
        v_add_f32 v{b+1}, {fbits(1e-5)}, v{b+1}""")
    st2 += [f"v_lshrrev_b32 v{CT+4}, 4, v{VL}", f"v_lshl_add_u32 v{CT+4}, v{CT+4}, 4, s55"]
    assert q_ < SB(PL + 2) - 16
    S.stream(st2, SB(PL + 2) + 40, SB(PL + 3) - 10)
    c0 = SB(PL + 3); assert PL + 5 <= NR
    for q in range(14):
        g0 = 2 * q; j = (g0 + 7 + q // 7) % 14
        w0 = c0 + 8 * g0
        S.put(w0 - 1, f"ds_read_b128 {v(CT,4)}, v{CT+4} offset:{j*64}")
        S.stream([f"v_fmac_f32 v{ACC(j,i)+r}, v{CT+r}, v{VA+2*i}" for i in range(4) for r in range(4)], w0 + 4, w0 + 15)
    c1 = c0 + 224
    kk = KB("t", 0, 0, 0)
    for i in range(4): kk.e(f"v_rsq_f32 v{VA+2*i}, v{VA+2*i+1}")
    kk.e(f"v_and_b32 v{CT}, 31, v{VL}\nv_lshlrev_b32 v{CT}, 4, v{CT}")
    reloc(kk, CT, CT+1)
    kk.e(f"v_lshrrev_b32 v{CT+1}, 5, v{VL}\nv_mul_u32_u24 v{CT+1}, {224*512}, v{CT+1}\nv_add_u32 v{CT}, v{CT}, v{CT+1}")
    for i in range(4): kk.e(f"v_mul_f32 v{VA+2*i}, {fbits(-LOG2E)}, v{VA+2*i}")
    T0 = SB(NR)
    S.stream(lines("\n".join(kk.lines)), c1, min(c1 + 40, T0 + 16 * M))
    assert M == 4
    S.stream(p5_early(VL), T0 + 2, T0 + 40)
    p_ = T0 + 44
    for n in range(P5_EARLY):
        for pre, x in p5_wops(n, p5_seq(1)):
            p_ = S.near(p_ + 4, 8)
            for z, y in enumerate(pre): S.put(p_ - len(pre) + z, y)
            S.put(p_, x)
    def epi(j, p, packed):
        ii = (2*p, 2*p+1); o_ = []
        G = lambda i: ACC(j, i); Uu = lambda i: ACC(j + 7, i)
        def op(name, d, s0, s1, s2=None):
            if packed: return [pk(name, d + r, *[(x + r if isinstance(x, int) else x) for x in (s0, s1, s2) if x is not None]) for r in (0, 2)]
            f_ = lambda x, r: f"v{x + r}" if isinstance(x, int) else f"v{x[1]}"
            return [f"v_{name}_f32 v{d+r}, " + ", ".join(f_(x, r) for x in (s0, s1, s2) if x is not None) for r in range(4)]
        for i in ii: o_ += op("mul", Uu(i), Uu(i), G(i)) + op("mul", G(i), G(i), ('b', VA+2*i))
        ex = [f"v_exp_f32 v{G(i)+r}, v{G(i)+r}" for i in ii for r in range(4)]
        fm = sum([op("fma", G(i), G(i), ('b', VA+2*i+1), ('b', VA+2*i+1)) for i in ii], [])
        rc = [f"v_rcp_f32 v{G(i)+r}, v{G(i)+r}" for i in ii for r in range(4)]
        ml = sum([op("mul", Uu(i), Uu(i), G(i)) for i in ii], [])
        o = G(2*p)
        fin_ = [f"v_cvt_pk_bf16_f32 v{o}, v{Uu(2*p)}, v{Uu(2*p)+1}", f"v_cvt_pk_bf16_f32 v{o+2}, v{Uu(2*p+1)}, v{Uu(2*p+1)+1}",
                f"v_cvt_pk_bf16_f32 v{o+1}, v{Uu(2*p)+2}, v{Uu(2*p)+3}", f"v_cvt_pk_bf16_f32 v{o+3}, v{Uu(2*p+1)+2}, v{Uu(2*p+1)+3}",
                f"v_permlane32_swap_b32 v{o}, v{o+2}", "s_nop 0", f"v_permlane32_swap_b32 v{o+1}, v{o+3}",
                f"buffer_store_dwordx4 {v(o,4)}, v{CT}, s[32:35], s{60+p} offen offset:{j*512} sc1"]
        return o_, ex, fm, rc, ml, fin_
    def zipl(x, y):
        o_ = []
        for q in range(max(len(x), len(y))): o_ += x[q:q+1] + y[q:q+1]
        return o_
    for p in range(6):
        A_, B_ = epi(p, 0, False), epi(p, 1, False)
        seq = A_[0] + zipl(A_[1], B_[0][:8]) + A_[2] + zipl(A_[3], B_[0][8:]) + zipl(B_[1], A_[4]) + B_[2] + zipl(B_[3], A_[5]) + B_[4] + B_[5]
        w0 = T0 + 16 * M * (p + 1)
        S.stream(seq, w0 + 2, w0 + 16 * M)
    if OPT.diag and fine:
        for q in range(32):
            S.put(56 * q + 1, "s_memtime s[98:99]"); S.put(56 * q + 41, f"v_writelane_b32 v255, s98, {24 + q}")
    Z = direct(xops(0)) + sum([reads(g) for g in range(D)], []) + direct(xops(1)[:4] if PRE1 else dops(1)[:4]) + ["WAITVM s0", "STAMP13"] + S.flat() + ["STAMP14", "s_barrier", "s_nop 5"]
    for p in range(2): Z += sum([list(x) for x in epi(6, p, True)], [])
    Z = auto_lgkm([x if not x.startswith("STAMP") else "s_" + x for x in resolve_vm(Z)], cyclic=False, merge=MG, hoist=True)
    if OPT.rep: print("p4", slot_report(Z[:Z.index("s_STAMP14")]), file=sys.stderr)
    for x in Z:
        if x.startswith("s_STAMP"): fstamp(k, int(x[7:]))
        else: k.e(x)

P5_UNITS = [4, 5, 6, 18, 19, 0, 1, 2, 3] + list(range(7, 18))
P5_EARLY = 5
def p5_seq(M):
    return [(n, h) for n in range(28 - M) for h in (0, 1)] + [(n, 1) for n in range(28 - M, 28)] + [(n, 0) for n in range(28 - M, 28)]
def p5_wops(c, seq):
    n, h = seq[c]
    return [([f"s_add_u32 s56, s{52 if h == 0 else 55}, {n*8192}", f"s_add_u32 m0, s53, {P5_UNITS[c % 20]*8192}"] if q == 0 else [],
             f"buffer_load_dwordx4 v224, s[24:27], s56 offen offset:{q*1024} sc1 lds @w{c}") for q in range(2)]
def p5_early(VL):
    kk = KB("t", 0, 0, 0)
    kk.e(f"""
    s_and_b32 s54, s44, 1            ; kh
    s_bfe_u32 s46, s44, 0x10001
    s_lshl_b32 s46, s46, 3
    s_and_b32 s47, s45, 7
    s_add_u32 s46, s46, s47          ; tm
    s_lshr_b32 s47, s44, 2
    s_lshl_b32 s47, s47, 2
    s_lshr_b32 s48, s45, 3
    s_add_u32 s47, s47, s48          ; cn
    v_lshlrev_b32 v224, 4, v{VL}
    s_lshl_b32 s93, s47, 1
    s_add_u32 s93, s93, s54
    s_lshl_b32 s53, s3, 11
    s_mul_i32 s51, s54, {1792*128}
    s_add_u32 s51, s51, s53
    s_mul_i32 s52, s93, {F_*128}
    s_add_u32 s52, s52, s51
    s_xor_b32 s55, s93, 1
    s_mul_i32 s55, s55, {F_*128}
    s_add_u32 s55, s55, s51
    """)
    reloc(kk, 224, 225)
    return lines("\n".join(kk.lines)) + [f"s_add_u32 s24, s22, {WS_W2T}\ns_addc_u32 s25, s23, 0", f"s_mov_b32 s26, {PLANE + F_*D_*2}"]

def phase5(k, LAST, cold, D=3, MG=1, M=7, NPRE=12, XPRE=2, LOPS=10, STEP=4.1, XL=40, BP=2, SW=9, RL=40, KD=9, fine=False):
    NS = 28; UX = 16
    seq = p5_seq(M); NC = len(seq)
    ACC = lambda j, i: (j * 2 + i) * 4
    VW = lambda g, s_: 64 + (g % 4) * 8 + s_ * 4
    VD = 224; VR = 128; VL = 235; VFA = 249; VONE = 253; VL16 = 231; VT = 152; VRES = 160
    AX = lambda n, i, s_: (n % UX) * 16 + (i * 2 + s_) * 4
    strip = lambda x: x.split(" @")[0]
    def direct(ops):
        o_ = []
        for pre, x in ops: o_ += pre + (["s_nop 0"] if any("m0" in y for y in pre) else []) + [x]
        return o_
    def xops(n): return [([f"s_add_u32 s57, s49, {(q//2)*F_*32 + n*2048}"] if q % 2 == 0 else [],
                          f"buffer_load_dwordx4 {a(AX(n,q//2,q%2),4)}, v{VD}, s[32:35], s57 offen offset:{(q%2)*1024} sc1 @x{n}") for q in range(4)]
    for c in range(P5_EARLY, P5_EARLY + 4):
        for x in direct(p5_wops(c, seq)): k.e(strip(x))
    k.e(f"""
    s_xor_b32 s63, s2, 1             ; partner
    s_lshl_b32 s48, s46, 3
    s_lshl_b32 s49, s3, 1
    s_add_u32 s48, s48, s49
    s_mul_i32 s49, s48, {F_*32}
    s_mul_i32 s51, s54, {56*1024}
    s_add_u32 s49, s49, s51
    v_mov_b32 v{VR}, v{VL16}
    v_add_u32 v{VR+1}, 0x10000, v{VL16}
    v_add_u32 v{VR+2}, 0x20000, v{VL16}
    s_lshl_b32 s60, s48, 15
    s_lshl_b32 s61, s93, 11
    s_add_u32 s60, s60, s61
    s_add_u32 s58, s60, 32768
    s_lshr_b32 s62, s46, 1
    s_lshl_b32 s62, s62, 1
    s_add_u32 s62, s62, s54
    s_lshl_b32 s62, s62, 10
    s_add_u32 s62, s62, {C4}
    s_and_b32 s51, s47, {OPT.R - 1}
    s_lshl_b32 s51, s51, 7
    s_add_u32 s62, s62, s51
    s_waitcnt vmcnt(8)
    s_barrier
    """)
    signal(k, VONE, VFA, 94, 61)
    fstamp(k, 15)
    for i in range(2):
        for p in range(2): k.e(f"buffer_load_dwordx4 {v(VRES+i*8+p*4,4)}, v{VL16}, s[28:31], s{60 if i == 0 else 58} offen offset:{p*1024} sc1")
    for c in range(P5_EARLY + 4, NPRE):
        for x in direct(p5_wops(c, seq)): k.e(strip(x))
    Lst = k.label("code5")
    if OPT.codepf:
        code_pf_addr(k, Lst, LAST, 250, VL, 3); k.e(code_pf(252, 250))
    wait_multi(k, VFA, 1, "s62", 16, VT+3)
    k.e(f"{Lst}:")
    fstamp(k, 16)
    def wreads(G):
        c, g = G // 4, G % 4; ad = P5_UNITS[c % 20] * 8192
        return [f"ds_read_b128 {v(VW(G,s_),4)}, v{VR+(ad>>16)} offset:{(ad & 0xffff) + s_*4096 + g*1024}" for s_ in range(2)]
    main = []
    for c, (n, h) in enumerate(seq):
        for g in range(4):
            for i in range(2):
                for s_ in range(2):
                    d_ = v(ACC(4*h+g,i),4)
                    main.append(f"v_mfma_f32_16x16x32_bf16 {d_}, {v(VW(4*c+g,s_),4)}, {a(AX(n,i,s_),4)}, {d_ if (n or s_ or h == 0) else '0'}")
    S = Sched(main)
    for G in range(D, 4 * NC):
        for q, x in enumerate(wreads(G)): S.put(4 * (G - D) + 2 * q, x)
    SB = lambda c: 16 * c
    bars = list(range(NPRE, NC, BP))
    bpos = {c: SB(c) - 4 * D - 1 for c in bars}
    pub = {m: max(b for b in bars if b <= m) for m in range(NPRE, NC)}
    for c in bars:
        S.put(bpos[c] - 1, "WAITVM " + " ".join(f"w{m}" for m in range(c, min(c + BP, NC)))); S.put(bpos[c], "s_barrier", front_ok=False)
    first = {}; lastuse = {}
    for c, (n, h) in enumerate(seq): first.setdefault(n, c); lastuse[n] = c
    for n in range(1, NS): S.put(SB(first[n]) - 2, f"WAITVM x{n}")
    items = [(bpos[pub[c]] - 1, c, p5_wops(c, seq)) for c in range(NPRE, NC)] + [(SB(first[n]) - 2, n, xops(n)) for n in range(XPRE, NS)]
    ops = [(dl, n, pre, x) for dl, n, o_ in sorted(items, key=lambda t: t[:2]) for pre, x in o_]
    late = [0] * len(ops); nxt = 10 ** 9
    for q in range(len(ops) - 1, -1, -1):
        lim = min(ops[max(q - LOPS, 0)][0] - 1, ops[q][0] - XL)
        keep = "lds" in ops[q][3] and ops[q][1] >= NC - M + 2
        if keep: lim = ops[q][0] - XL
        late[q] = nxt = min(lim, nxt - (4 if keep else 2))
    pos = 0
    for q, (dl, n, pre, x) in enumerate(ops):
        want = max(pos, min(int(q * STEP), late[q]), 1)
        if "lds" in x and n >= NC - M + KD: want = max(pos, late[q])
        if "lds" in x and n >= 20: want = max(want, min(bpos[b] for b in bars if bpos[b] >= SB(n - 20 + 1)) + 2)
        if "lds" not in x and n >= UX: want = max(want, SB(lastuse[n - UX] + 1) + 1)
        want |= 1
        assert want <= dl - 10, (n, x, want, dl)
        for y in pre: S.put(want - 1, y)
        S.put(want, x); pos = want + 2
        if OPT.rep and pre: print("p5", "w" if "lds" in x else "x", n, "at", want / 16, "slack", dl - want, file=sys.stderr)
    if OPT.codepf: S.put(S.near(SB(20) + 2, 4), code_pf(252, 250))
    kk = KB("t", 0, 0, 0)
    kk.e(f"""
    s_lshl_b32 s64, s2, 2
    s_add_u32 s64, s64, s3
    s_lshl_b32 s65, s63, 2
    s_add_u32 s65, s65, s3
    s_lshl_b32 s66, s64, 12
    s_lshl_b32 s67, s65, 12
    s_mov_b32 s42, {4*MB}
    s_mov_b32 s36, s18
    s_mov_b32 s37, s19
    s_mov_b32 s38, {S_*D_*2}
    v_and_b32 v{VT}, 15, v{VL}
    v_lshrrev_b32 v{VT+1}, 4, v{VL}
    v_and_b32 v{VT+2}, 1, v{VT+1}
    v_lshrrev_b32 v{VT+3}, 1, v{VT+1}
    v_lshlrev_b32 v{VT+2}, 5, v{VT+2}
    v_lshl_add_u32 v{VT+2}, v{VT+3}, 4, v{VT+2}
    v_lshl_add_u32 v{VT+2}, v{VT}, 11, v{VT+2}
    s_lshl_b32 s60, s48, 15
    s_lshl_b32 s61, s93, 7
    s_add_u32 s60, s60, s61
    s_add_u32 s61, s60, 32768
    s_mov_b32 s69, {SPIN}
    """)
    S.stream(lines("\n".join(kk.lines)) + [f"s_add_u32 s40, s22, {WS_EX}\ns_addc_u32 s41, s23, 0"], SB(4), SB(12))
    snd = []
    for p in range(2):
        for i in range(2):
            o = ACC(4+2*p, i); u = ACC(5+2*p, i)
            snd += [f"v_cvt_pk_bf16_f32 v{o}, v{o}, v{o+1}", f"v_cvt_pk_bf16_f32 v{o+1}, v{o+2}, v{o+3}",
                    f"v_cvt_pk_bf16_f32 v{o+2}, v{u}, v{u+1}", f"v_cvt_pk_bf16_f32 v{o+3}, v{u+2}, v{u+3}"]
            snd += [f"v_min_u32 v{o+r}, -2, v{o+r}" for r in range(4)]
            snd.append(f"buffer_store_dwordx4 {v(o,4)}, v{VL16}, s[40:43], s66 offen offset:{(i*2+p)*1024} sc1")
    rcv = [f"buffer_load_dwordx4 {v(VRES+i*8+p*4,4)}, v{VL16}, s[40:43], s67 offen offset:{(i*2+p)*1024} sc1" for i in range(2) for p in range(2)]
    K0 = SB(NC - M)
    S.stream(snd, K0 - 3, K0 + SW)
    for q, x in enumerate(rcv): S.put(max(K0 + SW + 1 + q, S.n - RL + 3 * q), x)
    if OPT.diag and fine:
        for q in range(28):
            S.put(32 * q + 1, "s_memtime s[98:99]"); S.put(32 * q + 21, f"v_writelane_b32 v255, s98, {24 + q}")
    Z = direct(xops(0)) + sum([wreads(G) for G in range(D)], [])
    for n in range(1, XPRE): Z += direct(xops(n))
    for i in range(2):
        for fb in range(4):
            o = ACC(fb, i); r = VRES + i*8 + fb*2
            Z += [f"v_lshlrev_b32 v{o}, 16, v{r}", f"v_and_b32 v{o+1}, 0xffff0000, v{r}", f"v_lshlrev_b32 v{o+2}, 16, v{r+1}", f"v_and_b32 v{o+3}, 0xffff0000, v{r+1}"]
    Z += ["s_nop 0", "WAITVM x0", "STAMP17"] + S.flat() + ["STAMP18"]
    Z = auto_lgkm([x if not x.startswith("STAMP") else "s_" + x for x in resolve_vm(Z)], cyclic=False, merge=MG, hoist=True)
    if OPT.rep: print("p5", slot_report(Z), file=sys.stderr)
    for x in Z:
        if x.startswith("s_STAMP"): fstamp(k, int(x[7:]))
        else: k.e(x)
    Lp = k.label("xpoll")
    chk = ["s_waitcnt vmcnt(0)", f"v_max3_u32 v{VT}, v{VRES}, v{VRES+1}, v{VRES+2}", f"v_max3_u32 v{VT+1}, v{VRES+3}, v{VRES+4}, v{VRES+5}"]
    for r in range(6, 14, 4): chk += [f"v_max3_u32 v{VT}, v{VT}, v{VRES+r}, v{VRES+r+1}", f"v_max3_u32 v{VT+1}, v{VT+1}, v{VRES+r+2}, v{VRES+r+3}"]
    chk += [f"v_max3_u32 v{VT}, v{VT}, v{VRES+14}, v{VRES+15}", f"v_max_u32 v{VT}, v{VT}, v{VT+1}", f"v_cmp_eq_u32 vcc, -1, v{VT}", "s_nop 4"]
    k.e(f"{Lp}:\n" + "\n".join(chk) + f"\ns_cbranch_vccz {Lp}_x\ns_sub_u32 s69, s69, 1\ns_cbranch_scc1 {Lp}_x\n" + "\n".join(rcv) + f"\ns_branch {Lp}\n{Lp}_x:")
    for i in range(2):
        for fb in range(4):
            o = ACC(fb, i); r = VRES + i*8 + fb*2; t = 64 + i*8 + fb*2
            k.e(f"""
            v_lshlrev_b32 v{VT+4}, 16, v{r}
            v_and_b32 v{VT+5}, 0xffff0000, v{r}
            v_lshlrev_b32 v{VT+6}, 16, v{r+1}
            v_and_b32 v{VT+7}, 0xffff0000, v{r+1}
            {pk("add", o, o, VT+4)}
            {pk("add", o+2, o+2, VT+6)}
            v_cvt_pk_bf16_f32 v{t}, v{o}, v{o+1}
            v_cvt_pk_bf16_f32 v{t+1}, v{o+2}, v{o+3}
            """)
            if fb % 2:
                p = fb // 2; r = 64 + i*8 + p*4
                k.e(f"s_nop 1\nv_permlane16_swap_b32 v{r}, v{r+2}\nv_permlane16_swap_b32 v{r+1}, v{r+3}")
                k.e(f"buffer_store_dwordx4 {v(r,4)}, v{VT+2}, s[36:39], s{60+i} offen offset:{p*64} {OPT.ost}")

def gen_front(HLP=7, NB=22, POLL=8, CW=48, NSH=4, PUB=3, LSP=9, EW=36, AP=0, RP=2, PAR=True, fine=False, MG=3, SIG=-1, PP=2, TB=1, LA=4, force_fb=False, full=True, p4={}, p5={}, abl=''):
    STG = 40960
    k = KB(KNAME if full else "k1_kernel", 256, 256, 4 * STG)
    k.fine = True; k.nst = 20 if full else 12; k.page = full
    LAST = f"L_{k.name}_end" if full else "L_k5_kernel_end"
    if full: k.launch = lambda: "; @launch grid=(256,1,1) block=(256,1,1) lds=163840\n"
    ACC = lambda j, i: (j * 4 + i) * 4
    VDX = 96; VDW = 100; VRX = 106; VRW = 114
    VL = 122; VPF = 123; VT = 124; VPA = 132; VZ = 134; VSA = 135
    VRAW = 136; VU = 216; VSUM = 220; VRT = 224
    VSEL = 192; VCD = 208; VCD2 = 212
    VCQ = 192; VCV = 208; VMT = 216; VRSt = 220; VMR = 224; VRR = 228
    AX = lambda st, i, s_: (st % 2) * 32 + (i * 2 + s_) * 4
    AW = lambda j, s_: 64 + j * 8 + s_ * 4
    prologue(k)
    fstamp(k, 0)
    k.e(f"""
    v_mov_b32 v{VL}, v0
    s_and_b32 s46, s45, 7
    s_and_b32 s47, s44, 1
    {'s_lshl_b32 s46, s46, 1' if PAR else 's_lshl_b32 s47, s47, 3'}
    s_add_u32 s46, s46, s47          ; rb
    s_lshr_b32 s47, s44, 1
    s_lshl_b32 s47, s47, 2
    s_lshr_b32 s48, s45, 3
    s_add_u32 s47, s47, s48          ; cb
    s_lshr_b32 s48, s3, 1            ; wm
    s_and_b32 s49, s3, 1             ; wn
    v_lshrrev_b32 v{VT}, 3, v{VL}       ; l/8
    v_and_b32 v{VT+1}, 7, v{VL}         ; p
    v_lshrrev_b32 v{VT+2}, 1, v{VT}     ; (l/8)>>1  (0..3)
    v_xor_b32 v{VT+3}, v{VT+1}, v{VT+2}
    s_lshl_b32 s50, s46, 7
    s_lshl_b32 s51, s3, 5
    s_add_u32 s50, s50, s51
    s_lshl_b32 s50, s50, 11             ; (rb*128 + w*32)*2048
    v_lshlrev_b32 v{VT+4}, 11, v{VT}
    v_add_u32 v{VT+4}, s50, v{VT+4}
    v_lshl_add_u32 v{VDX}, v{VT+3}, 4, v{VT+4}
    v_xor_b32 v{VT+3}, 4, v{VT+3}
    v_lshl_add_u32 v{VDX+1}, v{VT+3}, 4, v{VT+4}
    v_add_u32 v{VDX+2}, {2*15360}, v{VDX}
    v_add_u32 v{VDX+3}, {3*15360}, v{VDX+1}
    v_add_u32 v{VDX+1}, {15360}, v{VDX+1}
    v_and_b32 v{VT+2}, 1, v{VT+2}
    v_lshlrev_b32 v{VT+2}, 1, v{VT+2}
    v_xor_b32 v{VT+3}, v{VT+1}, v{VT+2}
    v_mul_u32_u24 v{VT+4}, 6144, v{VT}
    s_mul_i32 s50, s3, {16*6144}
    s_lshl_b32 s51, s47, 7
    s_add_u32 s50, s50, s51
    v_add_u32 v{VT+4}, s50, v{VT+4}
    v_lshl_add_u32 v{VDW}, v{VT+3}, 4, v{VT+4}
    v_xor_b32 v{VT+3}, 4, v{VT+3}
    v_lshl_add_u32 v{VDW+1}, v{VT+3}, 4, v{VT+4}
    v_add_u32 v{VDW+1}, {8*6144 - 1024}, v{VDW+1}
    """)
    for sg in range(1, 3):
        k.e(f"v_add_u32 v{VDW+2*sg}, {2048*sg}, v{VDW}\nv_add_u32 v{VDW+2*sg+1}, {2048*sg}, v{VDW+1}")
    k.e(f"""
    s_lshl_b32 s53, s3, 12
    s_lshl_b32 s54, s3, 11
    s_add_u32 s54, s54, 16384
    s_mov_b32 s59, {OOB}
    s_mov_b32 s63, s46
    s_mul_i32 s56, s63, {64*6144}
    s_lshl_b32 s57, s63, 7
    v_lshlrev_b32 v{VSA}, 4, v{VL}
    s_lshl_b32 s64, s46, 4
    s_add_u32 s64, s64, s47
    s_lshl_b32 s64, s64, 2
    s_add_u32 s64, s64, s3
    s_lshl_b32 s65, s64, 12
    s_lshl_b32 s66, s64, 8
    s_lshl_b32 s67, s47, 1
    s_add_u32 s67, s67, s49          ; head
    """)
    if OPT.codepf: code_pf_addr(k, k.name, LAST, VPA, VL, 3)
    if HLP:
        k.e(f"""
        v_min_u32 v{VZ}, 23, v{VL}
        v_lshlrev_b32 v{VZ}, 11, v{VZ}
        s_lshl_b32 s58, s45, 2
        s_add_u32 s58, s58, s3
        s_mul_i32 s58, s58, {24*2048}
        s_or_b32 s51, s47, 3
        s_lshl_b32 s51, s51, 7
        s_add_u32 s58, s58, s51
        {'s_bitcmp1_b32 s47, 2' + NL + 's_cselect_b32 s58, s59, s58' if HLP & 2 else ''}
        """)
    k.e("s_waitcnt lgkmcnt(0)")
    srd(k, 24, 6, 7, D_*3*D_*2)
    srd(k, 28, 4, 5, S_*D_*2)
    def vmem_ops(n):
        slot = n % 4; ops = []
        for q in range(4):
            o = [f"buffer_load_dwordx4 v{VDX+q}, s[28:31], s57 offen offset:{q*1024} {OPT.w1} lds @s{n}"]
            if q == 0: o = [f"s_add_u32 m0, s53, {slot*STG}"] + o
            ops.append(o)
        for sg in range(3):
            for q in range(2):
                o = [f"buffer_load_dwordx4 v{VDW+2*sg+q}, s[24:27], s56 offen offset:{q*1024} {OPT.w1} lds @s{n}"]
                if q == 0: o = [f"s_add_u32 m0, s54, {slot*STG + sg*8192}"] + o
                ops.append(o)
        return ops
    adv = ["s_add_u32 s63, s63, 1", "s_and_b32 s63, s63, 15", f"s_mul_i32 s56, s63, {64*6144}", "s_lshl_b32 s57, s63, 7"]
    P = []
    hlp = [f"buffer_load_dword v{VPF}, v{VZ}, s[24:27], s58 offen"] if HLP else []
    if not HLP & 4: P += hlp
    if OPT.codepf: P.append(code_pf(VPF, VPA))
    v0_ = vmem_ops(0)
    for o in (v0_[4:] + v0_[:4] if HLP & 8 else v0_): P += with_nop(o)
    if HLP & 4: P += hlp
    for q in range(4): P.append(f"buffer_load_dwordx4 {v(VRAW+4*q,4)}, v{VSA}, s[28:31], s65 offen offset:{q*1024} @raw")
    P += adv
    setup = lines(f"""
    v_and_b32 v{VT}, 15, v{VL}
    v_lshrrev_b32 v{VT+1}, 4, v{VL}
    v_lshrrev_b32 v{VT+2}, 1, v{VT}
    v_xor_b32 v{VT+2}, v{VT+1}, v{VT+2}
    s_lshl_b32 s50, s48, 13
    v_lshlrev_b32 v{VT+3}, 7, v{VT}
    v_add_u32 v{VT+3}, s50, v{VT+3}
    v_lshl_add_u32 v{VRX}, v{VT+2}, 4, v{VT+3}
    v_xor_b32 v{VRX+1}, 64, v{VRX}
    v_lshrrev_b32 v{VT+2}, 2, v{VT}
    v_lshl_add_u32 v{VT+3}, v{VT+1}, 3, v{VT+2}
    v_lshrrev_b32 v{VT+2}, 1, v{VT+2}
    v_and_b32 v{VT+4}, 1, v{VT+1}
    v_lshl_add_u32 v{VT+2}, v{VT+4}, 1, v{VT+2}
    s_lshl_b32 s50, s49, 1
    v_xor_b32 v{VT+2}, s50, v{VT+2}
    v_lshlrev_b32 v{VT+2}, 5, v{VT+2}
    v_lshl_add_u32 v{VT+2}, v{VT+3}, 7, v{VT+2}
    v_and_b32 v{VT+4}, 3, v{VL}
    v_lshl_add_u32 v{VT+2}, v{VT+4}, 3, v{VT+2}
    v_add_u32 v{VRW}, 16384, v{VT+2}
    v_xor_b32 v{VRW+1}, 32, v{VRW}
    v_mov_b32 v{VT+5}, 0x3f803f80
    """)
    for sl in range(1, 4):
        for q in range(2):
            setup += [f"v_add_u32 v{VRX+2*sl+q}, {sl*STG}, v{VRX+q}", f"v_add_u32 v{VRW+2*sl+q}, {sl*STG}, v{VRW+q}"]
    for j in range(4):
        setup += [f"v_cmp_eq_u32 vcc, {j}, v{VT}", "s_nop 1", f"v_cndmask_b32 v{VSEL+4*j}, 0, v{VT+5}, vcc"]
        setup += [f"v_mov_b32 v{VSEL+4*j+r}, v{VSEL+4*j}" for r in (1, 2, 3)]
    kk = KB("t", 0, 0, 0)
    srd(kk, 36, 22, 23, ZERO_BYTES, WS_ST); srd(kk, 40, 22, 23, 0x44000, WS_CSP1); srd(kk, 32, 20, 21, 256)
    P += [x.strip() for x in kk.lines]
    P += [f"v_mov_b32 v{VZ}, 0", f"v_lshlrev_b32 v{VT+6}, 2, v{VL}", f"buffer_store_dword v{VZ}, v{VT+6}, s[36:39], s66 offen sc1 @pub"]
    if full: P += ["s_branch L_page1\n.p2align 12\nL_page1:"] + (["s_nop 0\n;WARM start 4 0"] if OPT.warm else [])
    P += setup + ["IDLE"]
    for o in vmem_ops(1): P += with_nop(o)
    P += adv
    JO = [2, 3, 4, 5, 0, 1]
    def wreads(slot, pz, j=None):
        if j is None: j = JO[pz]
        return [f"ds_read_b64_tr_b16 {a(AW(pz,s_)+2*rd,2)}, v{VRW+2*slot+j%2} offset:{(j//2)*8192 + (32*s_+4*rd)*128}" for s_ in range(2) for rd in range(2)]
    def xreads(slot):
        return [f"ds_read_b128 {a(AX(slot,i,s_),4)}, v{VRX+2*slot+s_} offset:{i*2048}" for i in range(4) for s_ in range(2)]
    def allreads(slot):
        xr = xreads(slot)
        return xr[:2] + wreads(slot, 0) + xr[2:] + sum([wreads(slot, j) for j in range(1, 6)], [])
    rpos = [NB + q + q // 2 for q in range(32)]
    free = [p for p in range(NB, NB + 48) if p not in rpos]
    vpos = [free[(q * 15) // 10] for q in range(10)]
    NHR = sum(p < 48 for p in rpos); NH = sum(p < 48 for p in vpos)
    P += ["WAITVM s0", "s_barrier", "STAMP1"]
    P += allreads(0)[:NHR]
    for o in vmem_ops(2)[:NH]: P += with_nop(o)
    st1 = ["WAITVM raw"]
    for q in range(8):
        for r in range(2):
            x = VRAW + 8*r + q
            st1 += [f"v_dot2_f32_bf16 v{VSUM+2*r}, v{x}, v{VU}, {'0' if q == 0 else v(VSUM+2*r)}", f"v_dot2_f32_bf16 v{VSUM+2*r+1}, v{x}, v{x}, {'0' if q == 0 else v(VSUM+2*r+1)}"]
    st1.append("s_nop 0")
    kk = KB("t", 0, 0, 0); allreduce64(kk, [VSUM, VSUM+1, VSUM+2, VSUM+3], VRT); st1 += [x.strip() for x in kk.lines]
    for r in range(2):
        b = VSUM + 2*r
        st1 += lines(f"""
        v_mul_f32 v{b}, {fbits(-1.0/D_)}, v{b}
        v_mul_f32 v{b+1}, {fbits(1.0/D_)}, v{b+1}
        v_fma_f32 v{b+1}, -v{b}, v{b}, v{b+1}
        v_max_f32 v{b+1}, 0, v{b+1}
        v_add_f32 v{b+1}, {fbits(1e-5)}, v{b+1}
        v_rsq_f32 v{b+1}, v{b+1}
        """)
    st1 += lines(f"""
    v_lshlrev_b32 v{VRT}, 20, v{VL}
    s_lshl_b32 s68, s64, 4
    s_add_u32 s68, s68, {WS_MU - WS_CSP1}
    buffer_store_dwordx4 {v(VSUM,4)}, v{VRT}, s[40:43], s68 offen sc1 @pub
    """)
    cst = lines(f"""
    v_lshlrev_b32 v{VT+6}, 10, v{VT}
    v_lshl_add_u32 v{VT+6}, v{VT+1}, 8, v{VT+6}
    v_cmp_gt_u32 vcc, 4, v{VT}
    v_mov_b32 v{VT+7}, {OOB}
    s_mul_i32 s69, s67, 6144
    v_cndmask_b32 v{VT+6}, v{VT+7}, v{VT+6}, vcc
    s_lshl_b32 s70, s48, 29
    s_add_u32 s69, s69, s70
    s_lshl_b32 s70, s46, 4
    s_add_u32 s70, s70, s69
    buffer_store_dwordx4 {v(VCD,4)}, v{VT+6}, s[40:43], s70 offen sc1 @pub
    v_lshlrev_b32 v{VT+7}, 4, v{VT}
    v_lshl_add_u32 v{VT+7}, v{VT+1}, 27, v{VT+7}
    s_lshr_b32 s70, s46, 2
    s_lshl_b32 s70, s70, 8
    s_add_u32 s69, s69, s70
    s_bfe_u32 s70, s46, 0x10001
    s_lshl_b32 s70, s70, 10
    s_add_u32 s69, s69, s70
    s_and_b32 s70, s46, 1
    s_lshl_b32 s70, s70, 3
    s_add_u32 s69, s69, s70
    s_add_u32 s69, s69, 4096
    buffer_store_dwordx2 {v(VCD2,2)}, v{VT+7}, s[40:43], s69 offen sc1 @pub
    """)
    sig = lines(f"""
    v_mov_b32 v{VT+6}, 1
    v_lshlrev_b32 v{VT+7}, 8, v{VL}
    s_lshl_b32 s70, s3, 8
    s_and_b32 s71, s45, {NSH-1}
    s_mul_i32 s71, s71, {256//NSH}
    s_add_u32 s70, s70, s71
    buffer_atomic_add v{VT+6}, v{VT+7}, s[32:35], s70 offen sc1
    """)
    Lsp = k.label("spin"); Lok = k.label("ok")
    pol = [f"s_cmp_eq_u32 s3, 0\ns_cselect_b32 s73, {256//NSH}, 0", f"v_mov_b32 v{VT+5}, s73", f"v_and_b32 v{VT+7}, {NSH-1}, v{VL}",
           f"v_mul_u32_u24 v{VT+7}, {256//NSH}, v{VT+7}", "s_lshl_b32 s73, s3, 8", f"buffer_load_dword v{VT+6}, v{VT+7}, s[32:35], s73 offen sc1 @poll"]
    chk = ["WAITVM poll", f"v_cmp_gt_u32 vcc, v{VT+5}, v{VT+6}", "s_nop 4", f"s_cbranch_vccnz {Lsp}\n{Lok}:"]
    A = 238
    ld = lines(f"""
    v_lshrrev_b32 v{A+2}, 2, v{VT}
    v_and_b32 v{A+3}, 3, v{VT}
    v_lshl_add_u32 v{A+3}, v{VT+1}, 2, v{A+3}
    v_lshl_add_u32 v{A+3}, v{A+2}, 4, v{A+3}
    v_lshlrev_b32 v{A+3}, 3, v{A+3}
    v_lshlrev_b32 v{A+2}, 3, v{VL}
    s_mul_i32 s69, s67, 6144
    s_add_u32 s72, s69, 4096
    s_lshl_b32 s70, s46, 10
    s_lshl_b32 s71, s48, 9
    s_add_u32 s70, s70, s71
    s_add_u32 s70, s70, {WS_MU - WS_CSP1}
    """)
    nld0 = len(ld)
    ld.append(f"buffer_load_dwordx2 {v(VRAW,2)}, v{A+2}, s[40:43], s70 offen sc1 @cs")
    ld.append(f"buffer_load_dwordx2 {v(VMR,2)}, v{A+3}, s[40:43], s70 offen sc1 @cs")
    for j in range(4): ld.append(f"buffer_load_dwordx4 {v(VCQ+4*j,4)}, v{VSA}, s[40:43], s69 offen offset:{j*1024} sc1 @cs")
    for j in range(2): ld.append(f"buffer_load_dwordx4 {v(VCV+4*j,4)}, v{VSA}, s[40:43], s72 offen offset:{j*1024} sc1 @cs")
    bpm = [f"v_mov_b32 v{VMT}, v{VRAW}", f"v_mov_b32 v{VMT+2}, v{VRAW}", f"v_mov_b32 v{VRSt}, v{VRAW+1}", f"v_mov_b32 v{VRSt+2}, v{VRAW+1}", "s_nop 0",
           f"v_permlane32_swap_b32 v{VMT}, v{VMT+2}", f"v_permlane32_swap_b32 v{VRSt}, v{VRSt+2}"]
    bpm += [f"v_mov_b32 v{b+1}, v{b}" for b in (VMT, VMT+2, VRSt, VRSt+2)]
    bpm += [f"v_permlane16_swap_b32 v{b}, v{b+1}" for b in (VMT, VMT+2, VRSt, VRSt+2)]
    red = ["WAITVM cs"]
    for j in range(2):
        b = VCV + j
        red += [f"v_add_f32 v{b}, v{b}, v{b+2}", f"v_add_f32 v{b+4}, v{b+4}, v{b+6}", f"v_add_f32 v{b}, v{b}, v{b+4}"]
    for sw in ("v_permlane16_swap_b32", "v_permlane32_swap_b32"):
        red += [f"v_mov_b32 v{VCV+2}, v{VCV}", f"v_mov_b32 v{VCV+3}, v{VCV+1}", "s_nop 1", f"{sw} v{VCV}, v{VCV+2}", f"{sw} v{VCV+1}, v{VCV+3}",
                f"v_add_f32 v{VCV}, v{VCV}, v{VCV+2}", f"v_add_f32 v{VCV+1}, v{VCV+1}, v{VCV+3}"]
    for sh in (8, 4, 2, 1):
        for r in range(16): red.append(f"v_add_f32_dpp v{VCQ+r}, v{VCQ+r}, v{VCQ+r} row_ror:{sh} row_mask:0xf bank_mask:0xf")
    epi_setup = lines(f"""
    s_lshl_b32 s50, s67, 6
    s_lshl_b32 s51, s46, 2
    s_add_u32 s50, s50, s51
    s_lshl_b32 s51, s48, 1
    s_add_u32 s50, s50, s51
    s_lshl_b32 s60, s50, 11
    s_lshl_b32 s61, s50, 12
    s_add_u32 s62, s61, 4096
    v_lshlrev_b32 v{A+4}, 9, v{VT+1}
    v_lshl_add_u32 v{A+5}, v{VT}, 4, v{A+4}
    v_lshrrev_b32 v{A+6}, 3, v{VT}
    v_and_b32 v{A+7}, 7, v{VT}
    v_lshl_add_u32 v{A+6}, v{A+6}, 4, v{A+7}
    v_and_b32 v{A+7}, 1, v{VT+1}
    v_lshlrev_b32 v{A+7}, 10, v{A+7}
    v_lshrrev_b32 v{A+4}, 1, v{VT+1}
    v_lshl_add_u32 v{A+7}, v{A+4}, 9, v{A+7}
    v_lshl_add_u32 v{A+6}, v{A+6}, 4, v{A+7}
    s_lshl_b32 s55, s3, 13
    v_add_u32 v{A+8}, s55, v{A+5}
    v_add_u32 v{A+9}, s55, v{A+6}
    """)
    QR = lambda q, s_: v(q * 8 + s_ * 4, 4) if q < 2 else a(112 + (q - 2) * 8 + s_ * 4, 4)
    VS = lambda b_: 16 + b_ * 16; VC = lambda q: 48 + q * 16; VP = lambda b_: 112 + b_ * 8
    VRES = 128
    VOK = lambda q: 192 + q * 16; AOS = lambda q: 128 + (q - 2) * 16
    OR = lambda q: v(VOK(q), 16) if q < 2 else a(AOS(q), 16)
    VONE = 152; VIDX = 156; VKA = 157; VQW = 158; VCSA = 159; VQR = 160; VWO = 161; VCPS = 162; VCPD = 163; VM = 164; VSL = 168; VCSD = 172
    VLs = lambda q: 176 + 4 * q
    VX2 = 224
    VL2 = 232; VL16 = 233; VTP = 234; VOA = 235; VRA = 236; VFA = 237; VD1 = 238; VD2 = 239; VY = 240
    AK = lambda u, s_: [200, 216, 0, 16, 32, 48][u % 6] + s_ * 4
    AV = lambda u, s_: AK(u, s_) + 8
    ACSL = lambda b_: 160 + b_ * 4
    M18 = (1 << 16) // 18 + 1
    for x in range(1024): assert (x * M18) >> 16 == x // 18
    att_setup = lines(f"""
    v_mov_b32 v{VL2}, v{VL}
    v_mov_b32 v{VL16}, v{VSA}
    v_mul_u32_u24 v{VX2}, 7168, v{VT+1}
    v_lshl_add_u32 v{VCSA}, v{VT}, 4, v{VX2}
    v_mov_b32 v{VX2+1}, 0x3f80
    v_mov_b32 v{VX2+2}, 0x3f800000
    """)
    for r in range(4):
        att_setup += [f"v_cmp_eq_u32 vcc, {4*r}, v{VT}", f"v_mov_b32 v{VCSD+r}, 0", f"v_mov_b32 v{VLs(0)+r}, 0", f"v_cndmask_b32 v{VSL+r}, 0, v{VX2+1}, vcc",
                      f"v_cmp_eq_u32 vcc, {4*r+1}, v{VT}", f"v_mov_b32 v{VLs(2)+r}, 0", f"v_mov_b32 v{VLs(1)+r}, 0", f"v_cndmask_b32 v{VSL+r}, v{VSL+r}, v{VX2+2}, vcc",
                      f"v_mov_b32 v{VLs(3)+r}, 0"]
    att_setup += lines(f"""
    v_and_b32 v{VX2}, 6, v{VT}
    v_cmp_eq_u32 vcc, 0, v{VX2}
    v_mov_b32 v{VX2+1}, 0x3f803f80
    v_mov_b32 v{VX2+2}, 0x44444444
    v_cndmask_b32 v{VONE}, 0, v{VX2+1}, vcc
    v_cmp_eq_u32 vcc, 4, v{VX2}
    v_mov_b32 v{VONE+1}, v{VONE}
    v_and_b32 v{VX2}, 1, v{VT}
    v_cndmask_b32 v{VONE+2}, 0, v{VX2+1}, vcc
    v_cmp_eq_u32 vcc, 0, v{VX2}
    v_mov_b32 v{VONE+3}, v{VONE+2}
    v_mov_b32 v{VX2+3}, 0xeeeeeeee
    v_cndmask_b32 v{VIDX}, v{VX2+3}, v{VX2+2}, vcc
    s_lshl_b32 s51, s3, 13
    v_add_u32 v{VKA}, s51, v{VSA}
    s_lshl_b32 s51, s3, 12
    s_add_u32 s51, s51, 0x8000
    v_add_u32 v{VQW}, s51, v{VSA}
    v_xor_b32 v{VQR}, 0x2000, v{VQW}
    v_lshrrev_b32 v{VX2}, 3, v{VL}
    v_and_b32 v{VX2+1}, 7, v{VL}
    v_and_b32 v{VX2+2}, 6, v{VX2}
    v_xor_b32 v{VX2+1}, v{VX2+1}, v{VX2+2}
    v_lshlrev_b32 v{VX2}, 11, v{VX2}
    v_lshl_add_u32 v{VWO}, v{VX2+1}, 4, v{VX2}
    v_mov_b32 v{VCPD}, v{VSA}
    v_lshrrev_b32 v{VX2}, 1, v{VL}
    v_and_b32 v{VX2+1}, 1, v{VL}
    v_lshlrev_b32 v{VX2}, 11, v{VX2}
    v_lshl_add_u32 v{VCPS}, v{VX2+1}, 4, v{VX2}
    v_and_b32 v{VX2}, 31, v{VL}
    v_lshlrev_b32 v{VX2}, 3, v{VX2}
    v_lshrrev_b32 v{VX2+1}, 5, v{VL}
    v_lshl_add_u32 v{VX2}, v{VX2+1}, 9, v{VX2}
    s_lshl_b32 s51, s3, 13
    s_add_u32 s51, s51, 0x20000
    v_add_u32 v{VTP}, s51, v{VX2}
    v_and_b32 v{VX2}, 1, v{VT+1}
    v_lshrrev_b32 v{VX2+1}, 1, v{VT+1}
    v_lshlrev_b32 v{VX2}, 5, v{VX2}
    v_lshl_add_u32 v{VX2}, v{VX2+1}, 4, v{VX2}
    v_lshl_add_u32 v{VRA}, v{VT}, 11, v{VX2}
    v_lshrrev_b32 v{VX2}, {OPT.R.bit_length() - 1}, v{VL}
    v_lshlrev_b32 v{VFA}, 7, v{VL}
    v_lshl_add_u32 v{VFA}, v{VX2}, 20, v{VFA}
    """)
    kk = KB("t", 0, 0, 0); reloc(kk, VCPD, VX2)
    kk.e(f"""
    v_add_u32 v{VD2}, 15360, v{VWO}
    v_and_b32 v{VX2}, 1, v{VT+1}
    v_lshrrev_b32 v{VX2+1}, 1, v{VT+1}
    v_lshlrev_b32 v{VOA}, 4, v{VT}
    v_lshl_add_u32 v{VOA}, v{VX2}, 15, v{VOA}
    v_lshl_add_u32 v{VOA}, v{VX2+1}, 8, v{VOA}
    """)
    reloc(kk, VOA, VX2); att_setup += lines("\n".join(kk.lines))
    for r in range(4): att_setup.append(f"v_accvgpr_write_b32 a{196+r}, -1")
    kk = KB("t", 0, 0, 0)
    tile_map(kk, TB, 4 - TB, 92, 93)
    sc = lines("\n".join(kk.lines))
    sc += ["s_mov_b32 s80, s8", "s_mov_b32 s81, s9", f"s_mov_b32 s82, {D_*D_*2}", "s_mov_b32 s83, 0x20000",
           f"s_add_u32 s88, s22, {WS_CNT}\ns_addc_u32 s89, s23, 0", "s_mov_b32 s90, 0x14000", "s_mov_b32 s91, 0x20000"]
    sc += lines(f"""
    s_lshl_b32 s64, s2, 2
    s_add_u32 s64, s64, s3
    s_mul_i32 s68, s64, {M18}
    s_lshr_b32 s68, s68, 16
    s_mul_i32 s75, s68, 18
    s_sub_u32 s75, s64, s75
    s_lshl_b32 s95, s68, 9""")
    sc += ["s_cmp_lt_u32 s68, 28\ns_cselect_b32 s36, s12, s14\ns_cselect_b32 s37, s13, s15\ns_cselect_b32 s65, 0, 28"]
    sc += lines(f"""
    s_sub_u32 s68, s68, s65
    s_mul_i32 s66, s75, {60*7168}
    s_lshl_b32 s68, s68, 8
    s_add_u32 s66, s66, s68
    s_mov_b32 s38, {D_*F_*2}
    s_mov_b32 s39, 0x20000
    s_mov_b32 s84, s16
    s_mov_b32 s85, s17
    s_mov_b32 s86, {F_*D_*2}
    s_mov_b32 s87, 0x20000""")
    sc += ["s_cmp_lt_u32 s64, 1008\ns_cselect_b32 s66, s66, s59\ns_cselect_b32 s95, s95, s59"]
    sc += lines(f"""
    s_and_b32 s68, s2, 15
    s_lshr_b32 s65, s2, 4
    s_mul_i32 s65, s65, 7
    s_lshl_b32 s74, s65, 16
    s_lshl_b32 s75, s68, 7
    s_add_u32 s74, s74, s75
    s_lshl_b32 s75, s3, 5
    s_add_u32 s74, s74, s75
    s_mul_i32 s68, s68, {F_*128}
    s_lshl_b32 s79, s65, 12
    s_add_u32 s79, s79, s68
    s_lshl_b32 s75, s3, 10
    s_add_u32 s79, s79, s75
    s_lshl_b32 s76, s92, 3
    s_lshl_b32 s77, s3, 1
    s_add_u32 s76, s76, s77
    s_lshl_b32 s64, s76, 15
    s_lshl_b32 s77, s93, 7
    s_add_u32 s77, s77, s64
    s_add_u32 s78, s77, 32768
    s_lshl_b32 s52, s67, 18
    s_lshl_b32 s75, s48, 13
    s_add_u32 s52, s52, s75""")
    att_valu, att_salu = att_setup, sc

    ARES = 172
    resl = [f"buffer_load_dwordx4 {a(ARES+i*8+p*4,4)}, v{VRA}, s[28:31], s{77+i} offen offset:{p*64}" for i in range(2) for p in range(2)]
    idle = att_valu + epi_setup + [x for x in ld[:nld0] if x.startswith("v_")] + [f"v_mov_b32 v{VU}, 0x3f803f80"]
    P[P.index("IDLE"):P.index("IDLE") + 1] = idle
    groups = [(n, j) for n in range(14) for j in JO] + [(n, j) for n in (14, 15) for j in JO[:4]] + [(n, j) for n in (14, 15) for j in JO[4:]]
    main = []
    for g, (n, j) in enumerate(groups):
        for i in range(4):
            for s_ in range(2):
                w_, x_ = a(AW(g % 6,s_),4), a(AX(n,i,s_),4)
                if j >= 4: w_, x_ = x_, w_
                c_ = v(ACC(j,i),4) if (n or s_) else "0"
                main.append(f"v_mfma_f32_16x16x32_bf16 {v(ACC(j,i),4)}, {w_}, {x_}, {c_}")
    S = Sched(main); SB = lambda n: 48 * n
    for n in range(15):
        for q, x in enumerate(allreads(n % 4)):
            if (n or q >= NHR) and (n < 14 or q < 24): S.put(SB(n - 1) + rpos[q], x)
    B15 = SB(13) + rpos[23] + 1
    xr = xreads(3)
    for q, x in enumerate(xr[:2] + wreads(3, 88 % 6, 2) + xr[2:]): S.put(B15 + 1 + q + q // 4, x)
    for g in range(89, 96):
        for q, x in enumerate(wreads(groups[g][0] % 4, g % 6, groups[g][1])): S.put(8 * g - 15 + 2 * q, x)
    for g in range(6):
        j = JO[g]
        for s_ in range(2):
            d_ = v(VCD if j < 4 else VCD2, 4)
            c_ = d_ if (j not in (2, 4) or s_) else "0"
            o1, o2 = a(AW(g,s_),4), v(VSEL+4*(j%4),4)
            if j >= 4: o1, o2 = o2, o1
            S.put(8*g + 7, f"v_mfma_f32_16x16x32_bf16 {d_}, {o1}, {o2}, {c_}")
    for n in range(2, 16):
        for q, o in enumerate(vmem_ops(n)):
            if n == 2 and q < NH: continue
            pos = SB(n - 3) + vpos[q]
            if len(o) > 1: S.put(pos - 1, o[0])
            S.put(pos, o[-1])
        if n < 15:
            assert vpos[9] - 48 < NB - 4
            for q, x in enumerate(adv): S.put(SB(n - 2) + NB - 5 + q, x)
    for x in st1: S.put(NB - 1, x, front_ok=False)
    for n in range(15):
        bp = SB(n) + NB - 1 if n < 14 else B15
        S.put(bp, f"WAITVM s{n+1}" + (" pub" if n == PUB else ""), front_ok=n > 0); S.put(bp, "s_barrier", front_ok=False)
    S.stream(cst, SB(1) + 6, SB(2) - 8)
    S.stream(sig, SB(PUB) + NB - 12, SB(PUB) + NB - 2) if False else None
    S.stream(sig[:-1], SB(PUB), SB(PUB) + NB - 6); S.put(S.near(SB(PUB) + NB, 4), sig[-1])
    S.stream(att_salu, SB(PUB + 3), SB(PUB + 7))
    S.stream(pol[:-1] + [x for x in ld[:nld0] if not x.startswith("v_")], SB(PUB + 1), SB(PUB + 3))
    pc_ = SB(POLL) + NB - 8
    S.put(S.near(pc_ - 44, 4), pol[-1])
    S.put(pc_, chk[0]); S.put(pc_, chk[1]); S.put(pc_ + 4, chk[3])
    p_ = SB(POLL) + NB - LSP + 1
    for q, x in enumerate(ld[nld0:] + resl):
        if q == 8: p_ = max(p_, SB(12) + vpos[9])
        p_ = S.near(p_ + LSP, 4); S.put(p_, x)
        if q == 7: pcs = p_
    S.stream(red[:1] + bpm + red[1:], pcs + CW, SB(13) - 1)
    q_ = lambda r: f"row_newbcast:{r} row_mask:0xf bank_mask:0xf"
    for j, w0, w1 in ((5, 1, 16), (1, 17, 32), (3, 33, 48), (4, 48, 62), (2, 62, 78), (0, 79, 95)):
        if j < 4: cor = [f"v_fmac_f32 v{ACC(j,i)+r}, v{VCQ+4*j+r}, v{VMT+i}" for i in range(4) for r in range(4)]
        else: cor = [f"v_fmac_f32_dpp v{ACC(j,i)+r}, v{VMR}, v{VCV+j-4} {q_(4*i+r)}" for i in range(4) for r in range(4)]
        S.stream(cor, SB(13) + w0, SB(13) + w1)
    S.stream([f"s_add_u32 s24, s22, {WS_KV}\ns_addc_u32 s25, s23, 0", f"s_mov_b32 s26, {S_*D_*4}"] +
             [], SB(14) + 2, SB(14) + 40)
    def cvt4(o, u):
        return [f"v_cvt_pk_bf16_f32 v{o}, v{o}, v{o+1}", f"v_cvt_pk_bf16_f32 v{o+1}, v{o+2}, v{o+3}",
                f"v_cvt_pk_bf16_f32 v{o+2}, v{u}, v{u+1}", f"v_cvt_pk_bf16_f32 v{o+3}, v{u+2}, v{u+3}"]
    ek = []; ev = []
    for i in range(4):
        o = ACC(2, i)
        ek += [f"v_mul_f32 v{ACC(j,i)+r}, v{ACC(j,i)+r}, v{VRSt+i}" for j in (2, 3) for r in range(4)] + cvt4(o, ACC(3, i))
        ek += [f"buffer_store_dwordx4 {v(o,4)}, v{A+6}, s[24:27], s{61 if i < 2 else 62} offen offset:{(i%2)*128} sc1 @kv",
               f"ds_write_b128 v{A+9}, {v(o,4)} offset:{(i//2)*4096 + (i%2)*128}"]
    for fb in range(2):
        for p in range(2):
            o = ACC(4 + fb, 2*p)
            ev += [f"v_mul_f32_dpp v{ACC(4+fb,i)+r}, v{VMR+1}, v{ACC(4+fb,i)+r} {q_(4*i+r)}" for i in (2*p, 2*p+1) for r in range(4)] + cvt4(o, ACC(4 + fb, 2*p + 1))
            ev += [f"buffer_store_dwordx4 {v(o,4)}, v{A+5}, s[24:27], s{61 if p == 0 else 62} offen offset:{2048 + fb*256} sc1 @kv",
                   f"ds_write_b128 v{A+8}, {v(o,4)} offset:{p*4096 + 2048 + fb*256}"]
    own = lambda u: [f"ds_read_b128 {a(AK(u,0)+4*q,4)}, v{VKA} offset:{u*4096 + q*1024}" for q in range(4)]
    E1 = SB(15)
    S.stream(ek + ev, E1, E1 + EW)
    S.stream(own(0) + own(1) + [f"v_mul_f32 v{VMT+i}, {fbits(LOG2E / 32 ** 0.5)}, v{VRSt+i}" for i in range(4)], E1 + EW, E1 + 47)
    if OPT.diag and fine:
        for q in range(16):
            S.put(48 * q + 1, "s_memtime s[98:99]"); S.put(48 * q + 31, f"v_writelane_b32 v255, s98, {24 + q}")
    if OPT.rep: print("p1", slot_report(S.flat()), "last load", p_ / 48, file=sys.stderr)
    P += S.flat()
    P.append("STAMP2")
    for i in range(4):
        P += [pk("mul", ACC(0,i)+r, ACC(0,i)+r, ('b', VMT+i)) for r in (0, 2)]
    for i in range(4):
        P += [pk("mul", ACC(1,i)+r, ACC(1,i)+r, ('b', VMT+i)) for r in (0, 2)] + cvt4(ACC(0, i), ACC(1, i))
    P.append('s_nop 0')
    for p in range(2):
        for r in range(4): P.append(f"v_permlane16_swap_b32 v{8*p+r}, v{8*p+4+r}")
    P += [f"ds_write_b128 v{VQW}, {v(4*q,4)} offset:{q*1024}" for q in range(4)]
    def qk0(q, u=0): return [f"v_mfma_f32_32x32x16_bf16 {v(VS(q%2),16)}, {a(AK(u,0),4)}, {QR(q,0)}, 0",
                             f"v_mfma_f32_32x32x16_bf16 {v(VS(q%2),16)}, {a(AK(u,1),4)}, {QR(q,1)}, {v(VS(q%2),16)}"]
    def rowmax(q):
        b_ = VS(q % 2); m_ = VM + q; t_ = VX2 + q % 2
        o_ = [f"v_max3_f32 v{m_}, v{b_}, v{b_+1}, v{b_+2}", f"v_max3_f32 v{t_}, v{b_+3}, v{b_+4}, v{b_+5}"]
        for r in range(6, 14, 4): o_ += [f"v_max3_f32 v{m_}, v{m_}, v{b_+r}, v{b_+r+1}", f"v_max3_f32 v{t_}, v{t_}, v{b_+r+2}, v{b_+r+3}"]
        return o_ + [f"v_max3_f32 v{m_}, v{m_}, v{b_+14}, v{b_+15}", f"v_max_f32 v{m_}, v{m_}, v{t_}"]
    def maxfin(q0, packed=True):
        o_ = [f"v_mov_b32 v{VX2+2}, v{VM+q0}", f"v_mov_b32 v{VX2+3}, v{VM+q0+1}", f"v_mov_b32 v{VX2+4}, -1.0",
              f"v_permlane32_swap_b32 v{VM+q0}, v{VX2+2}", f"v_permlane32_swap_b32 v{VM+q0+1}, v{VX2+3}",
              f"v_max_f32 v{VM+q0}, v{VM+q0}, v{VX2+2}", f"v_max_f32 v{VM+q0+1}, v{VM+q0+1}, v{VX2+3}"]
        for q in (q0, q0 + 1): o_ += [pk("mul", VC(q)+r, ('b', VM+q), ('b', VX2+4)) for r in range(0, 16, 2)]
        return o_
    P += qk0(0) + qk0(1)
    sigpre = [f"v_mov_b32 v{VX2+5}, 1", "s_lshl_b32 s60, s47, 10", "s_lshl_b32 s61, s3, 20", "s_add_u32 s61, s61, s60",
              f"s_and_b32 s51, s46, {OPT.R - 1}", "s_lshl_b32 s51, s51, 7", "s_add_u32 s60, s60, s51"]
    sigop = f"buffer_atomic_add v{VX2+5}, v{VFA}, s[88:91], s61 offen sc0 sc1"
    P += sigpre + ["s_waitcnt lgkmcnt(0)"] + (["WAITVM kv"] if SIG == -2 else []) + ["s_barrier"] + ([sigop] if SIG == -2 else []) + ["STAMP3"]
    P += [f"ds_read_b128 {a(112+4*q,4)}, v{VQR} offset:{q*1024}" for q in range(4)]
    P += ["s_lshl_b32 s72, s3, 19", "s_lshl_b32 s73, s93, 7", "s_add_u32 s72, s72, s73", "s_lshl_b32 s73, s3, 15",
          "s_mov_b32 s65, s92", "s_mov_b32 s63, -1", f"s_add_u32 s40, s22, {WS_W2T}", "s_addc_u32 s41, s23, 0", f"s_mov_b32 s42, {WS_EX + 4*MB - WS_W2T}",
          "s_lshl_b32 s56, s2, 2", "s_add_u32 s56, s56, s3", "s_lshl_b32 s56, s56, 12", f"s_add_u32 s56, s56, {WS_EX - WS_W2T}"]
    P += rowmax(0) + qk0(2) + rowmax(1) + qk0(3) + maxfin(0) + (["WAITVM kv", "s_barrier", sigop] if SIG == -1 else []) + rowmax(2)
    tl = [(u, q) for u in range(30) for q in range(4)] + [(u, q) for h in (2, 0) for u in (30, 31) for q in (h, h + 1)]
    def qk(n):
        u, q = tl[n]
        return [f"v_mfma_f32_32x32x16_bf16 {v(VS(n%2),16)}, {a(AK(u,0),4)}, {QR(q,0)}, {v(VC(q),16)}",
                f"v_mfma_f32_32x32x16_bf16 {v(VS(n%2),16)}, {a(AK(u,1),4)}, {QR(q,1)}, {v(VS(n%2),16)}"]
    def pv(n, first=False):
        u, q = tl[n]
        return [f"v_mfma_f32_32x32x16_bf16 {OR(q)}, {a(AV(u,s_),4)}, {v(VP(n%2)+4*s_,4)}, {'0' if first and s_ == 0 else OR(q)}" for s_ in range(2)] + \
               [f"v_smfmac_f32_16x16x64_bf16 {v(VLs(q),4)}, {v(VONE,4)}, {v(VP(n%2),8)}, v{VIDX}"]
    P += qk(0) + rowmax(3) + maxfin(2)
    csm = lambda st: f"v_mfma_f32_16x16x32_bf16 {v(VCSD,4)}, {v(VSL,4)}, {a(ACSL(st),4)}, {v(VCSD,4)}"
    csl = lambda st: f"buffer_load_dwordx4 {a(ACSL(st),4)}, v{VCSA}, s[36:39], s66 offen"
    ACP = 188
    kvl = lambda u: [f"buffer_load_dwordx4 {a(AK(u,0)+4*q,4)}, v{VL16}, s[24:27], s57 offen offset:{q*1024} sc1 @u{u}" for q in range(4)]
    def kvadv(u):
        if u % 2: return ["s_add_u32 s57, s57, 4096"]
        return ["s_add_u32 s63, s63, 1", "s_cmp_eq_u32 s63, s46", "s_addc_u32 s63, s63, 0", "s_lshl_b32 s57, s63, 14", "s_add_u32 s57, s57, s52"]
    wol = [f"buffer_load_dwordx4 v{VWO}, s[80:83], s68 offen lds", f"buffer_load_dwordx4 v{VD2}, s[80:83], s68 offen offset:1024 lds"]
    woadv = ["s_add_u32 s65, s65, 1", "s_and_b32 s65, s65, 15", "s_lshl_b32 s68, s65, 15", "s_add_u32 s68, s68, s72", "s_lshl_b32 s69, s65, 11", "s_add_u32 m0, s69, s73"]
    def slot(n, m, after, mid1=()):
        b_ = VS(n % 2); p_ = VP(n % 2)
        ex = lambda r: f"v_exp_f32 v{b_+r}, v{b_+r}"
        cv = lambda r: f"v_cvt_pk_bf16_f32 v{p_+r}, v{b_+2*r}, v{b_+2*r+1}"
        seg = [[ex(0), ex(1), ex(2), ex(3)], [ex(4), cv(0), ex(5)] + list(mid1) + [cv(1), ex(6)], [ex(7), cv(2), ex(8), ex(9), cv(3)],
               [ex(10), ex(11), cv(4), ex(12), cv(5)], [ex(13), ex(14), ex(15), cv(6), cv(7)]]
        out = []
        for j_ in range(5):
            if m[j_]: out.append(m[j_])
            out += after.get(j_, []) + seg[j_]
        return out
    def emit(seq):
        for x in seq:
            if x.startswith("s_STAMP"): fstamp(k, int(x[7:]))
            else: k.e(x)
    fin = lambda Z: salu_first(auto_lgkm([x if not x.startswith("STAMP") else "s_" + x for x in resolve_vm(Z)], cyclic=False, merge=MG, hoist=True))
    def waitcnt(soff, target, vt):
        wait_multi(k, VFA, 1, f"s{soff}", target, vt)
    assert SIG <= PP <= 3
    VPA2 = 252
    pfa = []
    if OPT.codepf:
        kk = KB(k.name + "_b", 0, 0, 0); code_pf_addr(kk, "L_att_code", LAST, VPA2, VL2, 3)
        pfa = ["\n".join(x.strip() for x in kk.lines).replace("s76", "s100").replace("s77", "s101").replace("s[76:77]", "s[100:101]").replace("s78", "s51")]
    Lfb = k.label("fb"); Lno = k.label("nofb")
    VSV = VX2 + 4
    VPO = VC(2)
    AF = [dict() for _ in range(128)]; MID = [[] for _ in range(128)]
    put = lambda n, j_, xs: AF[n].setdefault(j_, []).extend(xs)
    ev = []
    csn = 0
    for u in range(3, 34):
        n = max(PP + RP * (u - 2), 4 * (u - 4)); b = u - 8
        pre = kvadv(u) if u < 32 else []; ops = kvl(u) if u < 32 else []
        if 0 <= b < 24 and b % 3 < 2: pre += woadv; ops += wol
        if 0 <= b <= 20 and b % 3 == 2:
            i = b // 3
            pre += [f"s_add_u32 m0, s55, {0x20000 + (i % 2)*1024}"] + (["s_add_u32 s74, s74, 65536"] if i else [])
            ops += [f"buffer_load_dwordx4 v{VCPS}, s[84:87], s74 offen lds @cp{i}"]
            if i < 4: ops = [f"buffer_store_dwordx4 a[196:199], v{VL16}, s[40:43], s56 offen offset:{i*1024} sc1"] + ops
        if 6 <= b <= 24 and b % 3 == 0:
            i = b // 3 - 2
            put(n - 2, 4, [f"WAITVM cp{i}"] + [f"ds_read_b64_tr_b16 {a(ACP+2*rd,2)}, v{VTP} offset:{(i % 2)*1024 + rd*256}" for rd in range(2)])
            pre += ["s_add_u32 s79, s79, 4096"] if i else []
            ops = ["s_waitcnt lgkmcnt(0)", f"buffer_store_dwordx4 {a(ACP,4)}, v{VCPD}, s[40:43], s79 offen sc1"] + ops
        if 0 <= b <= 22 and b % 3:
            if csn >= 3: put(n - 1, 4, [f"WAITVM cs{csn-3}"]); MID[n].append(csm(csn % 3))
            pre += [f"s_add_u32 s66, s66, {4*7168}"] if csn else []
            ops += [csl(csn % 3) + f" @cs{csn}"]; csn += 1
        if OPT.codepf and b in (-2, 11, 25): ops += [code_pf(VD1, VPA2)]
        if pre or ops: ev.append((n, pre, ops))
    assert csn == 15
    prev = PP
    for n, pre, ops in ev:
        spots = [(t_, j_) for t_ in range(prev + 1, n + 1) for j_ in range(4)]
        for q, x in enumerate(pre): put(*spots[q * len(spots) // len(pre)], [x])
        put(n, 4, ops); prev = n
    for u in range(2, 32): put(tl.index((u, 0 if u < 30 else 2)) - 2, 4, [f"WAITVM u{u}"])
    put(0, 0, pfa)
    if SIG >= 0: put(SIG, 1, ["WAITVM kv", "s_barrier", sigop])
    for q, x in enumerate(kvadv(2)): put(PP, min(q, 4), [x])
    if AP is not None: put(AP, 2, [f"v_mov_b32 v{VX2+6}, 0", "s_lshl_b32 s51, s3, 20", "s_add_u32 s51, s51, s60",
                                   f"buffer_atomic_add v{VX2+6}, v{VFA}, s[88:91], s51 offen sc0 sc1"])
    sx = lines(f"""
    s_add_u32 s69, s92, 4
    s_and_b32 s69, s69, 15
    s_lshl_b32 s69, s69, 11
    s_add_u32 s69, s69, s73
    s_lshl_b32 s60, s46, 18
    s_lshl_b32 s61, s48, 17
    s_add_u32 s60, s60, s61
    s_lshl_b32 s61, s67, 10
    s_add_u32 s60, s60, s61
    s_add_u32 s61, s60, 65536
    s_mov_b32 s34, {PLANE + S_*D_*2}
    s_mov_b32 s70, {fbits(2.0**40 if not force_fb else 0.5)}
    s_add_u32 s32, s22, {WS_O}
    s_addc_u32 s33, s23, 0
    """)
    for q, x in enumerate(sx): put(118 + q // 4, q % 4, [x])
    put(122, 4, [f"v_add_u32 v{VQR}, s69, v{VL16}", f"v_add_u32 v{VKA}, 0x20000, v{VKA}", f"ds_read_b128 {v(VSV,4)}, v{VQR}"])
    for r in range(4): put(124, 1 + r, [f"ds_write_b128 v{VKA}, {a(AOS(2)+4*r,4)} offset:{r*1024}"])
    for r in range(4): put(125, 1 + r, [f"ds_write_b128 v{VKA}, {a(AOS(3)+4*r,4)} offset:{4096 + r*1024}"])
    put(125, 4, [f"v_add_f32 v{VX2}, v{VLs(2)}, v{VLs(2)+1}", f"v_add_f32 v{VX2+1}, v{VLs(3)}, v{VLs(3)+1}", f"v_mov_b32 v{VX2+2}, v{VM+2}", f"v_mov_b32 v{VX2+3}, v{VM+3}"])
    put(126, 0, [f"ds_write_b128 v{VQR}, {v(VX2,4)}", f"v_xor_b32 v{VKA}, 0x4000, v{VKA}", f"v_xor_b32 v{VQW}, 0x10000, v{VQR}"])
    put(126, 4, ["s_waitcnt lgkmcnt(0)", "s_barrier", f"ds_read_b128 {v(VX2,4)}, v{VQW}"])
    for r in range(8): put(127, 2 + r // 3, [f"ds_read_b128 {v(VPO+4*r,4)}, v{VKA} offset:{r*1024}"])
    for n in range(128):
        P += slot(n, (qk(n + 1) if n < 127 else [None] * 2) + (pv(n - 1, n <= 4) if n > 0 else [None] * 3), AF[n], MID[n])
        if n == 7: P.append("STAMP6")
        if n == PP:
            P.append("STAMP4")
            emit(fin(P))
            wait_multi(k, VFA, 1, "s60", 16, VX2 + 1, got=(VX2 + 5, 15) if AP is None else (VX2 + 6, 16))
            k.e("L_att_code:")
            fstamp(k, 5)
            P = kvl(2)
    sm_ = pv(127)
    P += ["s_nop 1", sm_[2], sm_[0], sm_[1], "STAMP7"]
    emit([x if not x.startswith("STAMP") else "s_" + x for x in resolve_vm(P)])
    k.e(f"""
    s_waitcnt lgkmcnt(8)
    v_max_f32 v{VY+10}, v{VM}, v{VX2+2}
    v_max_f32 v{VY+11}, v{VM+1}, v{VX2+3}
    v_sub_f32 v{VY+8}, v{VM}, v{VY+10}
    v_sub_f32 v{VY+9}, v{VM+1}, v{VY+11}
    v_sub_f32 v{VY+6}, v{VX2+2}, v{VY+10}
    v_sub_f32 v{VY+7}, v{VX2+3}, v{VY+11}
    v_add_f32 v{VY+4}, v{VLs(0)}, v{VLs(0)+1}
    v_add_f32 v{VY+5}, v{VLs(1)}, v{VLs(1)+1}
    v_add_f32 v{VY+2}, v{VX2}, v{VX2+1}
    v_add_f32 v{VY+3}, v{VY+4}, v{VY+5}
    v_add_f32 v{VY+2}, v{VY+2}, v{VY+3}
    v_cmp_ngt_f32 vcc, s70, v{VY+2}
    v_exp_f32 v{VY+8}, v{VY+8}
    v_exp_f32 v{VY+9}, v{VY+9}
    v_exp_f32 v{VY+6}, v{VY+6}
    v_exp_f32 v{VY+7}, v{VY+7}
    {pk("mul", VY+4, VY+4, VY+8)}
    s_cbranch_vccnz {Lfb}
    {pk("fma", VY+4, VX2, VY+6, VY+4)}
    v_rcp_f32 v{VY+10}, v{VY+4}
    v_rcp_f32 v{VY+11}, v{VY+5}
    s_waitcnt lgkmcnt(0)
    {pk("mul", VY+4, VY+8, VY+10)}
    {pk("mul", VY+6, VY+6, VY+10)}
    {Lno}:
    """)
    E = []
    for q in range(2):
        b_ = VOK(q); o_ = VPO + 16 * q
        for a_ in range(2):
            E += [pk("mul", b_+8*a_+r, b_+8*a_+r, ('b', VY+4+q)) for r in range(0, 8, 2)]
            E += [pk("fma", b_+8*a_+r, o_+8*a_+r, ('b', VY+6+q), b_+8*a_+r) for r in range(0, 8, 2)]
            E += [f"v_cvt_pk_bf16_f32 v{b_+8*a_+r}, v{b_+8*a_+2*r}, v{b_+8*a_+2*r+1}" for r in range(4)]
            E.append(f"buffer_store_dwordx4 {v(b_+8*a_,4)}, v{VOA}, s[32:35], s{60+q} offen offset:{a_*512} sc1 @o")
    ACC3 = lambda j, i: (j * 2 + i) * 4
    VW3 = lambda g, s_: 32 + (g % 4) * 8 + s_ * 4
    VR3 = 64
    VXA = 76
    AX3 = lambda ks, i: ((ks % 32) * 2 + i) * 4
    kk = KB("t", 0, 0, 0)
    srd(kk, 28, 22, 23, 2*F_*4, WS_CS)
    kk.e(f"""
    {csm(0)}
    {csm(1)}
    {csm(2)}
    v_and_b32 v{VY}, 15, v{VL2}
    v_lshrrev_b32 v{VY+1}, 4, v{VL2}
    v_and_b32 v{VY+6}, 7, v{VY}
    v_lshlrev_b32 v{VY+6}, 5, v{VY+6}
    v_lshl_add_u32 v{VY+6}, v{VY+1}, 3, v{VY+6}
    v_lshrrev_b32 v{VY+7}, 3, v{VY}
    v_lshl_add_u32 v{VD2}, v{VY+7}, 2, v{VY+6}
    """)
    for r in range(4): kk.e(f"v_accvgpr_read_b32 v{VRES+r}, a{ARES+r}")
    kk.e(f"""
    v_mov_b32 v{VCSD+2}, v{VCSD}
    v_mov_b32_dpp v{VCSD}, v{VCSD+1} row_ror:8 row_mask:0xf bank_mask:0xc
    s_nop 0
    v_mov_b32_dpp v{VCSD+1}, v{VCSD+2} row_ror:8 row_mask:0xf bank_mask:0x3
    """)
    AT = [f"buffer_atomic_add_f32 v{VCSD+r}, v{VD2}, s[28:31], s95 offen offset:{256*r} sc1" for r in range(2)]
    for r in range(4, 16): kk.e(f"v_accvgpr_read_b32 v{VRES+r}, a{ARES+r}")
    kk.e(f"v_mov_b32 v{VXA}, v{VL16}")
    for i in range(2):
        for p in range(2):
            r = VRES + i*8 + p*4
            kk.e(f"v_permlane16_swap_b32 v{r}, v{r+2}\nv_permlane16_swap_b32 v{r+1}, v{r+3}")
    for i in range(2):
        for fb in range(4):
            o = ACC3(fb, i); r = VRES + i*8 + fb*2
            kk.e(f"v_lshlrev_b32 v{o}, 16, v{r}\nv_and_b32 v{o+1}, 0xffff0000, v{r}\nv_lshlrev_b32 v{o+2}, 16, v{r+1}\nv_and_b32 v{o+3}, 0xffff0000, v{r+1}")
    reloc(kk, VXA, VY+7)
    kk.e(f"""
    v_add_u32 v{VXA}, s64, v{VXA}
    v_add_u32 v{VXA+1}, 32768, v{VXA}
    v_and_b32 v{VY+7}, 31, v{VL2}
    v_lshrrev_b32 v{VY+7}, 2, v{VY+7}
    v_lshrrev_b32 v{VY+8}, 5, v{VL2}
    v_lshl_add_u32 v{VY+8}, v{VY+8}, 4, v{VY+7}
    v_lshrrev_b32 v{VY+7}, 1, v{VY+7}
    v_lshlrev_b32 v{VY+7}, 5, v{VY+7}
    v_lshl_add_u32 v{VY+7}, v{VY+8}, 7, v{VY+7}
    v_and_b32 v{VY+8}, 3, v{VL2}
    v_lshl_add_u32 v{VR3}, v{VY+8}, 3, v{VY+7}
    """)
    for fb in range(1, 4): kk.e(f"v_xor_b32 v{VR3+fb}, {fb*32}, v{VR3}")
    for rg in range(1, 2):
        for fb in range(4): kk.e(f"v_add_u32 v{VR3+4*rg+fb}, {rg*0x10000}, v{VR3+fb}")
    kk.e(f"""
    v_mov_b32 v{VX2}, 1
    s_lshl_b32 s60, s46, 10
    s_add_u32 s60, s60, {C2}
    s_lshl_b32 s61, s3, 20
    s_add_u32 s61, s61, s60
    s_lshl_b32 s60, s92, 10
    s_add_u32 s60, s60, {C2}
    s_and_b32 s51, s93, {OPT.R - 1}
    s_lshl_b32 s51, s51, 7
    s_add_u32 s60, s60, s51
    """)
    E += ["s_waitcnt vmcnt(4)"] + lines("\n".join(kk.lines))
    E += ["WAITVM o", "s_barrier", f"buffer_atomic_add v{VX2}, v{VFA}, s[88:91], s61 offen sc1", f"ds_write_b128 v{VQR}, {v(VSV,4)}", "s_waitcnt lgkmcnt(0)", "STAMP8"]
    emit(["s_" + x if x.startswith("STAMP") else x for x in resolve_vm(E)])
    waitcnt(60, 16, VX2 + 1)
    fstamp(k, 9)
    qbase = [0, 0x8000, 0x10000, 0x18000]
    def wreads3(G):
        sp, fb = G // 4, G % 4
        out = []
        for s_ in range(2):
            ks = 2 * sp + s_; ad = qbase[ks // 8] + (ks % 8) * 4096
            out += [f"ds_read_b64_tr_b16 {v(VW3(G,s_)+2*rd,2)}, v{VR3+4*(ad>>16)+fb} offset:{(ad & 0xffff) + rd*1024}" for rd in range(2)]
        return out
    def xl(sp):
        out = []
        for s_ in range(2):
            ks = 2 * sp + s_
            for i in range(2):
                o_ = [f"buffer_load_dwordx4 {a(AX3(ks,i),4)}, v{VXA+i}, s[32:35], s57 offen offset:{(ks%4)*1024} sc1 @x{sp}"]
                if ks % 4 == 0 and i == 0: o_ = [f"s_mov_b32 s57, {(ks//4)*4096}"] + o_
                out.append(o_)
        return out
    Q = []
    for sp in range(LA):
        for o_ in xl(sp): Q += o_
        if sp == 0:
            for G in range(3): Q += wreads3(G)
    main = []; side = {}
    for G in range(64):
        sp, fb = G // 4, G % 4
        if fb == 0: side.setdefault(4*G - 1, []).insert(0, f"WAITVM x{sp}")
        for i in range(2):
            for s_ in range(2):
                c_ = v(ACC3(fb,i),4)
                main.append(f"v_mfma_f32_16x16x32_bf16 {v(ACC3(fb,i),4)}, {v(VW3(G,s_),4)}, {a(AX3(2*sp+s_,i),4)}, {c_}")
        if G + 3 < 64:
            for q, x in enumerate(wreads3(G + 3)): side.setdefault(4*G + q, []).append(x)
        if sp + LA < 16: side.setdefault(4*G + 1, []).extend(xl(sp + LA)[fb])
        if sp + LA == 16 and fb < 2: side.setdefault(4*G + 1, []).append(AT[fb])
    Q += flatten(main, side)
    emit(salu_first(auto_lgkm(resolve_vm(Q), cyclic=False, merge=1, hoist=True)))
    fstamp(k, 10)
    if full: k.e("s_barrier")
    srd(k, 36, 22, 23, S_*D_*2, WS_H)
    srd(k, 40, 22, 23, S_*8, WS_ST)
    k.e(f"""
    s_lshl_b32 s61, s93, 11
    s_add_u32 s60, s64, s61
    s_add_u32 s61, s60, 32768
    """)
    for i in range(2):
        for p in range(2):
            for fb in (2*p, 2*p+1):
                o = ACC3(fb, i); r = VRES + i*8 + fb*2
                k.e(f"v_cvt_pk_bf16_f32 v{r}, v{o}, v{o+1}\nv_cvt_pk_bf16_f32 v{r+1}, v{o+2}, v{o+3}")
            k.e(f"buffer_store_dwordx4 {v(VRES+i*8+p*4,4)}, v{VL16}, s[36:39], s{60+i} offen offset:{p*1024} {OPT.st}")
    for i in range(2):
        regs = [ACC3(fb, i) + r for fb in range(4) for r in (0, 2)]
        k.e(pk("add", 36, regs[0], regs[1]) + "\n" + pk("mul", 38, regs[0], regs[0]) + "\n" + pk("fma", 38, regs[1], regs[1], 38))
        for r in regs[2:]: k.e(pk("add", 36, 36, r) + "\n" + pk("fma", 38, r, r, 38))
        k.e(f"v_add_f32 v{32+2*i}, v36, v37\nv_add_f32 v{33+2*i}, v38, v39")
    k.e(f"""
    v_lshrrev_b32 v{VY+3}, 1, v{VY+1}
    v_lshl_add_u32 v{VY+3}, v{VY+3}, 4, v{VY}
    v_permlane32_swap_b32 v32, v34
    v_permlane32_swap_b32 v33, v35
    v_and_b32 v{VY+4}, 1, v{VY+1}
    v_add_f32 v32, v32, v34
    v_add_f32 v33, v33, v35
    v_lshlrev_b32 v{VY+3}, 3, v{VY+3}
    v_lshl_add_u32 v{VY+3}, v{VY+4}, 2, v{VY+3}
    v_permlane16_swap_b32 v32, v33
    s_lshl_b32 s60, s76, 7
    v_add_f32 v32, v32, v33
    buffer_atomic_add_f32 v32, v{VY+3}, s[40:43], s60 offen sc1
    """)
    cold = []
    if full:
        phase4(k, LAST, cold, **p4)
        phase5(k, LAST, cold, **p5)
    Lfin = k.label("fin")
    k.e(f"s_branch {Lfin}" if OPT.diag or OPT.probe else "s_endpgm")
    k.e(";WARMEND")
    for x in cold: k.e(x)
    k.e(f"""
    {Lsp}:
    s_mov_b32 s94, {SPIN}
    {Lsp}_l:
    s_sleep 8
    s_sub_u32 s94, s94, 1
    s_cbranch_scc1 {Lok}
    buffer_load_dword v{VT+6}, v{VT+7}, s[32:35], 0 offen sc1
    s_waitcnt vmcnt(0)
    v_cmp_gt_u32 vcc, v{VT+5}, v{VT+6}
    s_nop 4
    s_cbranch_vccnz {Lsp}_l
    s_branch {Lok}
    """)
    Lm = k.label("maxloop"); Lp2 = k.label("pass2")
    k.e(f"{Lfb}:")
    ldk = [f"buffer_load_dwordx4 {a(AK(0,s_),4)}, v{VL16}, s[24:27], s51 offen offset:{s_*1024} sc1" for s_ in range(2)]
    ldv = [f"buffer_load_dwordx4 {a(AV(0,s_),4)}, v{VL16}, s[24:27], s51 offen offset:{2048+s_*1024} sc1" for s_ in range(2)]
    nxt = lambda L_: f"s_add_u32 s51, s51, 4096\ns_sub_u32 s50, s50, 1\ns_cmp_lg_u32 s50, 0\ns_cbranch_scc1 {L_}"
    k.e(f"s_waitcnt vmcnt(0) lgkmcnt(0)\ns_lshl_b32 s51, s67, 18\ns_mov_b32 s50, 64\nv_mov_b32 v{VM}, 0xff800000\nv_mov_b32 v{VM+1}, 0xff800000\nv_mov_b32 v{VY+8}, v{VSV}\n{Lm}:")
    k.e("\n".join(ldk + ["s_waitcnt vmcnt(0)"] + qk0(0) + qk0(1) + ["s_nop 15"]))
    for q in range(2):
        for r in range(0, 16, 2): k.e(f"v_max3_f32 v{VM+q}, v{VM+q}, v{VS(q)+r}, v{VS(q)+r+1}")
    k.e(nxt(Lm))
    k.e("\n".join(maxfin(0)) + f"\nv_mov_b32 v{VSV}, v{VY+8}")
    for r in list(range(VOK(0), VOK(0) + 32)) + list(range(VLs(0), VLs(0) + 8)): k.e(f"v_mov_b32 v{r}, 0")
    k.e(f"s_lshl_b32 s51, s67, 18\ns_mov_b32 s50, 64\n{Lp2}:")
    k.e("\n".join(ldk + ldv + ["s_waitcnt vmcnt(0)"] + qk(0) + qk(1) + ["s_nop 15"]))
    for q in range(2):
        for r in range(16): k.e(f"v_exp_f32 v{VS(q)+r}, v{VS(q)+r}")
        for r in range(8): k.e(f"v_cvt_pk_bf16_f32 v{VP(q)+r}, v{VS(q)+2*r}, v{VS(q)+2*r+1}")
    k.e("s_nop 1\n" + "\n".join(pv(0) + pv(1)) + "\ns_nop 7\n" + nxt(Lp2))
    for r in range(VPO, VPO + 32): k.e(f"v_mov_b32 v{r}, 0")
    k.e(f"""
    v_add_f32 v{VY+4}, v{VLs(0)}, v{VLs(0)+1}
    v_add_f32 v{VY+5}, v{VLs(1)}, v{VLs(1)+1}
    v_rcp_f32 v{VY+4}, v{VY+4}
    v_rcp_f32 v{VY+5}, v{VY+5}
    v_mov_b32 v{VY+6}, 0
    v_mov_b32 v{VY+7}, 0
    s_branch {Lno}
    {Lfin}:
    """)
    ffinish(k, k.nst - 1)
    if full and OPT.warm:
        st_ = add_warm_chains(k)
        if OPT.rep: print(st_, file=sys.stderr)
    return k


def all_kernels(**kw):
    g = lambda n: kw.get(n, {})
    return [gen_front(p4=g('p4'), p5=g('p5'), **g('f'))]

if __name__ == "__main__":
    hdr = "".join(l for l in open("sequential_preLN__softmax_full_mha__glu_gated_swiglu__prompt.s.ref") if l.startswith(";") and "@launch" not in l and "Override" not in l and "grid=ceil" not in l)
    kw = eval("dict(" + (sys.argv[1] if len(sys.argv) > 1 else "") + ")")
    for a_, b_ in kw.pop("opt", {}).items(): setattr(OPT, a_, b_)
    print(build_file(all_kernels(**kw), hdr))
```

```python
import sys, struct
from asmlib import *

S_, D_, F_ = 2048, 1024, 3584
MB = 1 << 20
PLANE = 16 * MB
WS_XN = 0; WS_Q = 4*MB; WS_KV = 8*MB; WS_H = 104*MB
WS_ST = 20*MB; WS_CS = WS_ST + 0x4000; WS_FLAG = WS_ST + 0x10000; WS_CNT = WS_ST + 0x10000; ZERO_BYTES = 0x40000
WS_STAMP = 21*MB
WS_CSP1 = 22*MB; WS_MU = WS_CSP1 + 0x40000; WS_RS = WS_MU + 0x2000
WS_O = 32*MB; WS_W2T = 38*MB
WS_G = 64*MB
WS_EX = 96*MB
WS_WF = 128*MB
RELOC = PLANE - 384
LOG2E = 1.4426950408889634
OOB = 0x40000000
SPIN = 0x40000
KNAME = "sequential_preLN__softmax_full_mha__glu_gated_swiglu__prompt_kernel"
def fbits(x): return hex(struct.unpack("<I", struct.pack("<f", x))[0])

class Opt:
    diag = False
    st = "sc1"
    reloc = True
    codepf = True
    rep = False
    only = None
    warm = True
    hrel = 1
    cls = 0
    tlb = 0
    w1 = ''
    w4 = ''
    ost = 'sc1'
    probe = None
    R = 4
    RS = 4
    at4 = 1
    ndef = 8
    exw = 0
OPT = Opt()

def prologue(k, nwg=256):
    k.e(f"""
    {'s_memrealtime s[100:101]' if OPT.diag else ''}
    s_cmp_ge_u32 s2, {nwg}
    s_cbranch_scc1 L_{k.name}_end
    s_load_dwordx16 s[4:19], s[0:1], 0
    s_load_dwordx4 s[20:23], s[0:1], 64
    v_lshrrev_b32 v1, 6, v0
    v_and_b32 v0, 63, v0
    v_readfirstlane_b32 s3, v1
    s_and_b32 s44, s2, 7
    s_lshr_b32 s45, s2, 3
    """)

def udiv_const(k, dst, src, c):
    sh = 20
    m = (1 << sh) // c + 1
    for x in range(0, 4096): assert (x * m) >> sh == x // c
    k.e(f"v_mul_u32_u24 v{dst}, {m}, v{src}\nv_lshrrev_b32 v{dst}, {sh}, v{dst}")

def tile_map(k, nb_m, nb_x, sm, sn):
    k.e(f"""
    s_and_b32 s{sm}, s44, {(1<<nb_x)-1}
    s_lshl_b32 s{sm}, s{sm}, {nb_m}
    s_and_b32 s{sn}, s45, {(1<<nb_m)-1}
    s_add_u32 s{sm}, s{sm}, s{sn}
    s_lshr_b32 s{sn}, s44, {nb_x}
    s_lshl_b32 s{sn}, s{sn}, {5-nb_m}
    s_lshr_b32 s79, s45, {nb_m}
    s_add_u32 s{sn}, s{sn}, s79
    """)

def reloc(k, addr, tmp):
    if not OPT.reloc: return
    k.e(f"""
    v_bfe_u32 v{tmp}, v{addr}, 7, 2
    v_add_u32 v{tmp}, 1, v{tmp}
    v_lshrrev_b32 v{tmp}, 2, v{tmp}
    v_mul_u32_u24 v{tmp}, {RELOC}, v{tmp}
    v_add_u32 v{addr}, v{addr}, v{tmp}
    """)

def code_pf_addr(k, first, last, vaddr, lane, chunk_s):
    L = k.label("pc")
    k.e(f"""
    s_getpc_b64 s[76:77]
    {L}:
    s_add_u32 s76, s76, {first}-{L}
    s_addc_u32 s77, s77, ({first}-{L})>>32
    s_lshl_b32 s78, s45, 2
    s_add_u32 s78, s78, s3
    s_lshl_b32 s78, s78, 9
    v_and_b32 v{vaddr}, 3, v{lane}
    v_lshl_add_u32 v{vaddr}, v{vaddr}, 7, s78
    v_min_u32 v{vaddr}, {last}-{first}, v{vaddr}
    v_mov_b32 v{vaddr+1}, s77
    v_add_co_u32 v{vaddr}, vcc, s76, v{vaddr}
    s_nop 1
    v_addc_co_u32 v{vaddr+1}, vcc, 0, v{vaddr+1}, vcc
    """)
def code_pf(vdst, vaddr):
    return f"global_load_dword v{vdst}, v[{vaddr}:{vaddr+1}], off"

def pk(op, d, *srcs):
    ops = []; lo = []; hi = []; neg = []
    for s_ in srcs:
        if isinstance(s_, tuple):
            r = s_[1]; ops.append(v(r & ~1, 2)); lo.append(r & 1); hi.append(r & 1); neg.append(int(s_[0] == 'nb'))
        else:
            assert s_ % 2 == 0
            ops.append(v(s_, 2)); lo.append(0); hi.append(1); neg.append(0)
    f = lambda x: "[" + ",".join(map(str, x)) + "]"
    t = f"v_pk_{op}_f32 {v(d,2)}, " + ", ".join(ops) + f" op_sel:{f(lo)} op_sel_hi:{f(hi)}"
    if any(neg): t += f" neg_lo:{f(neg)} neg_hi:{f(neg)}"
    return t

def sprinkle(base, extra):
    out = []; n = len(base); m = len(extra); q = 0
    for i, b in enumerate(base):
        out.append(b)
        while q < m and (q + 1) * n <= (i + 1) * (m + 1):
            out += extra[q]; q += 1
    for x in extra[q:]: out += x
    return out
def with_nop(op):
    return [op[0], "s_nop 0", op[1]] if len(op) > 1 else list(op)

def allreduce64(k, regs, tmp):
    for sh in (8, 4, 2, 1):
        k.e("s_nop 1")
        for r in regs: k.e(f"v_add_f32_dpp v{r}, v{r}, v{r} row_ror:{sh} row_mask:0xf bank_mask:0xf")
    for sw in ("v_permlane16_swap_b32", "v_permlane32_swap_b32"):
        for q, r in enumerate(regs): k.e(f"v_mov_b32 v{tmp+q}, v{r}")
        k.e("s_nop 1")
        for q, r in enumerate(regs): k.e(f"{sw} v{r}, v{tmp+q}")
        k.e("s_nop 1")
        for q, r in enumerate(regs): k.e(f"v_add_f32 v{r}, v{r}, v{tmp+q}")

def fstamp(k, i):
    if OPT.probe and i in OPT.probe[:2]:
        for q in range(2):
            if OPT.probe[q] == i: k.e(f"s_memrealtime s[{96+2*q}:{97+2*q}]\ns_waitcnt lgkmcnt(0)")
    if OPT.diag and (OPT.only is None or i in OPT.only):
        k.e(f"s_memrealtime s[96:97]\ns_memtime s[98:99]\ns_waitcnt lgkmcnt(0)\nv_writelane_b32 v254, s96, {i}\nv_writelane_b32 v255, s98, {i}")
def ffinish(k, i):
    if OPT.probe:
        k.e("s_waitcnt vmcnt(0)"); fstamp(k, i)
        k.e(f"""
        s_cmp_lg_u32 s2, {OPT.probe[2]}
        s_cbranch_scc1 L_{k.name}_end
        s_sub_u32 s28, s98, s96
        s_min_u32 s28, s28, 20000
        s_mul_i32 s28, s28, 8
        s_memrealtime s[30:31]
        s_waitcnt lgkmcnt(0)
        L_probe_spin:
        s_memrealtime s[32:33]
        s_waitcnt lgkmcnt(0)
        s_sub_u32 s29, s32, s30
        s_cmp_lt_u32 s29, s28
        s_cbranch_scc1 L_probe_spin
        """)
    if OPT.diag:
        k.e("s_waitcnt vmcnt(0)")
        fstamp(k, i)
        srd(k, 96, 22, 23, MB, WS_STAMP + 0x80000)
        k.e("v_mbcnt_lo_u32_b32 v0, -1, 0\nv_mbcnt_hi_u32_b32 v0, -1, v0\nv_lshlrev_b32 v0, 3, v0\ns_lshl_b32 s100, s2, 2\ns_add_u32 s100, s100, s3\ns_lshl_b32 s100, s100, 9")
        k.e("buffer_store_dwordx2 v[254:255], v0, s[96:99], s100 offen")
    k.e(f"L_{k.name}_end:\ns_endpgm")


def lane_id(k, r): k.e(f"v_mbcnt_lo_u32_b32 v{r}, -1, 0\nv_mbcnt_hi_u32_b32 v{r}, -1, v{r}")
NL = chr(10)
def signal(k, vone, vfa, off_s, tmp_s):
    k.e(f"s_lshl_b32 s{tmp_s}, s3, 20\ns_add_u32 s{tmp_s}, s{tmp_s}, s{off_s}\nbuffer_atomic_add v{vone}, v{vfa}, s[88:91], s{tmp_s} offen sc1")
def wait_multi(k, vaddr, nl, soff, target, vt, nwait=0, got=None):
    L2 = k.label("pdone"); L0 = k.label("poller"); L1 = k.label("poll"); L3 = k.label("pend")
    if OPT.warm: k.e(f"s_cmp_eq_u32 s3, 0\ns_cbranch_scc1 {L0}\ns_branch {L2}\n{L0}:")
    else: k.e(f"s_cmp_lg_u32 s3, 0\ns_cbranch_scc1 {L2}")
    k.e(f"""
    s_mov_b32 s50, {SPIN}
    s_mov_b64 exec, {(1 << nl) - 1}
    {f's_waitcnt vmcnt(0){NL}v_cmp_gt_u32 vcc, {got[1]}, v{got[0]}{NL}s_nop 4{NL}s_cbranch_vccz {L3}' if got is not None else ''}
    {L1}:
    v_mov_b32 v{vt}, 0
    s_sub_u32 s50, s50, 1
    s_cbranch_scc1 {L3}
    buffer_atomic_add v{vt}, v{vaddr}, s[88:91], {soff} offen sc0 sc1
    s_waitcnt vmcnt(0)
    v_cmp_gt_u32 vcc, {target}, v{vt}
    s_nop 4
    s_cbranch_vccnz {L1}
    {L3}:
    s_mov_b64 exec, -1
    {L2}:
    s_waitcnt vmcnt({nwait})
    s_barrier
    """)
C2 = 0x4000; C3 = 0x8000; C4 = 0xc000; C6 = 0x10000; C7 = 0x14000

def phase4(k, LAST, cold, D=2, MG=1, M=4, PL=7, EF=5, LEAD=48, GAP=4, PRE1=True, DS0=1.5, DS1=5.5, DSG=7, fine=False):
    STG = 28672; NSL = 5; CSB = NSL * STG
    ACC = lambda j, i: (j * 4 + i) * 4
    VD = 224; VX = 231; VR = 232; VFA = 249; VA = 236; CT = 244; VL = 235; VPD = 253; VPF = 252; VPA = 250
    T = 40
    AX = lambda n, i, s_: (n % NSL) * 32 + (i * 2 + s_) * 4
    AW = lambda g, s_: 160 + (g % 7) * 8 + s_ * 4
    Lst = k.label("code4")
    lane_id(k, VL)
    tile_map(k, 2, 1, 46, 47)
    k.e(f"""
    s_add_u32 s24, s22, {WS_WF}
    s_addc_u32 s25, s23, 0
    s_mov_b32 s26, {PLANE + 2*D_*F_*2}
    s_mul_i32 s53, s3, 7168
    s_mul_i32 s52, s47, {16*STG}
    s_add_u32 s52, s52, s53
    v_mov_b32 v{VX}, v78
    """)
    def dops(n):
        d = []
        for i in range(7):
            pre = [f"s_add_u32 s56, s52, {n*STG + i*1024}", f"s_add_u32 m0, s53, {(n % NSL)*STG + i*1024}"] if i % 4 == 0 else []
            d.append((pre, f"buffer_load_dwordx4 v{VX}, s[24:27], s56 offen offset:{(i%4)*1024} sc1 lds @s{n}"))
        return d
    def xops(n):
        return [([f"s_add_u32 s57, s49, {i*32768 + n*2048}"] if s_ == 0 else [],
                 f"buffer_load_dwordx4 {a(AX(n,i,s_),4)}, v{VX}, s[28:31], s57 offen offset:{s_*1024} sc1 @s{n}") for i in range(4) for s_ in range(2)]
    strip = lambda x: x.split(" @")[0]
    def direct(ops):
        o_ = []
        for pre, x in ops: o_ += pre + (["s_nop 0"] if any("m0" in y for y in pre) else []) + [x]
        return o_
    for x in direct(dops(0)): k.e(strip(x))
    k.e(f"""
    v_mov_b32 v{VFA}, v237
    v_mov_b32 v{VPD}, 1
    s_lshl_b32 s60, s92, 10
    s_add_u32 s60, s60, {C3}
    s_lshl_b32 s72, s3, 20
    s_add_u32 s72, s72, s60
    s_add_u32 s72, s72, {C6 - C3}
    s_waitcnt vmcnt(8)
    s_barrier
    """)
    signal(k, VPD, VFA, 60, 61)
    fstamp(k, 11)
    if PRE1:
        for x in direct(dops(1)): k.e(strip(x))
    k.e(f"""
    s_lshl_b32 s48, s46, 4
    s_lshl_b32 s49, s3, 2
    s_add_u32 s48, s48, s49
    s_lshl_b32 s49, s48, 15
    s_lshl_b32 s55, s3, 10
    s_add_u32 s55, s55, {CSB}
    v_lshlrev_b32 v{VR}, 4, v{VL}
    v_add_u32 v{VR+1}, {2*STG}, v{VR}
    v_add_u32 v{VR+2}, {4*STG}, v{VR}
    s_lshl_b32 s62, s46, 11
    s_add_u32 s62, s62, {C3}
    s_and_b32 s51, s47, {OPT.R - 1}
    s_lshl_b32 s51, s51, 7
    s_add_u32 s62, s62, s51
    v_and_b32 v{T+8}, 1, v{VL}
    v_lshlrev_b32 v{T+8}, 10, v{T+8}
    """)
    srd(k, 40, 22, 23, 2*F_*4, WS_CS); srd(k, 36, 22, 23, S_*8, WS_ST); srd(k, 28, 22, 23, PLANE + S_*D_*2, WS_H)
    srd(k, 32, 22, 23, PLANE + S_*F_*2, WS_G); srd(k, 64, 22, 23, WS_EX + 4*MB - WS_W2T, WS_W2T)
    k.e(f"""
    s_add_u32 s71, s72, {C7 - C6}
    s_add_u32 s70, s101, 4096
    s_mul_i32 s60, s48, {224*512}
    s_mul_i32 s61, s47, {7*512}
    s_add_u32 s60, s60, s61
    s_add_u32 s61, s60, {2*224*512}
    s_mul_i32 s58, s47, 448
    s_lshl_b32 s63, s48, 7
    s_lshl_b32 s94, s46, 1
    s_lshr_b32 s51, s47, 4
    s_add_u32 s94, s94, s51
    s_lshl_b32 s94, s94, 10
    s_add_u32 s94, s94, {C4}
    """)
    if OPT.codepf:
        code_pf_addr(k, Lst, LAST, VPA, VL, 3); k.e(code_pf(VPF, VPA))
    wait_multi(k, T+8, 2, "s62", 16, T+3)
    k.e(f"{Lst}:")
    fstamp(k, 12)
    groups = [(n, j) for n in range(16 - M) for j in range(14)]
    for p in range(7):
        for j in (p, p + 7): groups += [(n, j) for n in range(16 - M, 16)]
    def reads(g):
        n, j = groups[g]; sl = n % NSL
        return [f"ds_read_b128 {a(AW(g, s_), 4)}, v{VR + sl//2} offset:{(sl % 2) * STG + (2*j + s_) * 1024}" for s_ in range(2)]
    main = []
    for g, (n, j) in enumerate(groups):
        for i in range(4):
            for s_ in range(2):
                c_ = v(ACC(j,i),4) if (n or s_) else "0"
                main.append(f"v_mfma_f32_16x16x32_bf16 {v(ACC(j,i),4)}, {a(AW(g,s_),4)}, {a(AX(n,i,s_),4)}, {c_}")
    S = Sched(main)
    SB = lambda n: 112 * n
    NB = 8 * (14 - D)
    NR = 16 - M
    early = lambda n: n <= NR - 1 and n >= EF
    for g in range(D, len(groups)):
        n, j = groups[g]
        if g < 14 * NR and early(n) and j >= 12:
            for q, x in enumerate(reads(g)): S.put(SB(n) + 8 * (12 - D) + 4 * (j - 12) + 2 * q, x)
        else:
            for q, x in enumerate(reads(g)): S.put(8 * (g - D) + 4 * q, x)
    for n in range(1, NR + 1):
        tags = f"s{n}" if n < NR else " ".join(f"s{q}" for q in range(NR, 16))
        if OPT.at4 and n == OPT.at4 + 3: tags += " at"
        if n == DSG and OPT.ndef: tags += " ds"
        if early(n - 1): S.put(SB(n-1) + NB - 2, "s_waitcnt lgkmcnt(0)")
        S.put(SB(n-1) + NB - 1, "WAITVM " + tags); S.put(SB(n-1) + NB - 1, "s_barrier")
    ld = [(1, o) for o in (xops(1)[4:] if PRE1 else dops(1)[4:] + xops(1))]
    for n in range(2, 16):
        d_, x_ = dops(n), xops(n)
        ld += [(n, o) for o in (d_[:4] + x_[:4] + d_[4:] + x_[4:] if n < 8 else d_ + x_)]
    end_all = SB(NR - 1) + NB - LEAD
    pos = 1; step = (end_all - 1) / len(ld)
    for q, (n, (pre, x)) in enumerate(ld):
        want = max(pos, int(1 + q * step)) if n > 1 else pos
        if n >= NSL:
            fr = n - NSL
            lo = SB(fr) + NB if early(fr) else SB(fr + 1) + NB
            if "lds" not in x: lo = SB(fr + 1)
            want = max(want, lo + 1)
        want = S.near(want | 1, 8)
        if n < NR: assert want <= SB(n - 1) + NB - 40, (n, want)
        else: assert want < SB(NR - 1) + NB - 24, (n, want)
        for y in pre: S.put(want - 1, y)
        S.put(want, x); pos = want + GAP
        if OPT.rep and pre and "s56" in pre[0]: print("stage", n, "starts at", want / 112, file=sys.stderr)
    if OPT.codepf:
        for n in (4, NR - 3): S.put(S.near(SB(n) + 33, 8), code_pf(VPF, VPA))
    def gcheck(va, vd, mask, soff, target, p0, p1, tag):
        Lsp = k.label("gspin")
        S.stream([f"v_and_b32 v{va}, {mask}, v{VL}", f"v_lshlrev_b32 v{va}, 10, v{va}", f"s_mov_b32 s73, {soff}"], p0 - 12, p0 - 1)
        S.put(S.near(p0, 4), f"buffer_load_dword v{vd}, v{va}, s[88:91], s73 offen sc1 @{tag}")
        S.put(p1, f"WAITVM {tag}"); S.put(p1, f"v_cmp_gt_u32 vcc, {target}, v{vd}"); S.put(p1 + 4, f"s_cbranch_vccnz {Lsp}\n{Lsp}_r:")
        cold.extend(lines(f"""
        {Lsp}:
        s_mov_b32 s50, {SPIN}
        {Lsp}_l:
        s_sub_u32 s50, s50, 1
        s_cbranch_scc1 {Lsp}_r
        s_sleep 16
        buffer_load_dword v{vd}, v{va}, s[88:91], s73 offen sc1
        s_waitcnt vmcnt(0)
        v_cmp_gt_u32 vcc, {target}, v{vd}
        s_nop 4
        s_cbranch_vccnz {Lsp}_l
        s_branch {Lsp}_r
        """))
    S.stream(lines(f"""
    v_cmp_lt_u32 vcc, 27, v{VL}
    v_mov_b32 v{CT+2}, {F_*4 - 28*16}
    v_and_b32 v{CT+3}, 15, v{VL}
    v_cndmask_b32 v{CT+2}, 0, v{CT+2}, vcc
    v_lshl_add_u32 v{CT+2}, v{VL}, 4, v{CT+2}
    v_lshlrev_b32 v{CT+3}, 3, v{CT+3}
    """), SB(PL - 1), SB(PL) - 20)
    p_ = SB(PL + 1)
    if OPT.at4:
        for r in range(2): S.put(S.near(SB(OPT.at4) + 9 + 16 * r, 8), f"buffer_atomic_add_f32 v{226+r}, v228, s[40:43], s95 offen offset:{256*r} sc1 @at")
    S.put(S.near(SB(OPT.at4 + 2 if OPT.at4 else 0) + NB + 1, 8), f"buffer_atomic_add v{VPD}, v{VFA}, s[88:91], s72 offen sc1")
    gcheck(CT, CT + 1, 15, C6, 16, SB(PL) + 1, p_, "pl")
    dst = [f"buffer_store_dwordx4 {a(216+4*z,4)}, v{VX}, s[64:67], s{101 if z < 4 else 70} offen offset:{(z%4)*1024} sc1 @ds" for z in range(8)]
    dst += [f"buffer_store_dwordx4 a[248:251], v{VR}, s[64:67], s100 offen offset:{z*1024} sc1 @ds" for z in range(4)]
    dst = dst[12 - OPT.ndef:]
    for q, x in enumerate(dst): S.put(S.near(int(112 * (DS0 + q * (DS1 - DS0) / (len(dst) - 1))), 8), x)
    if dst:
        S.put(S.near(SB(DSG - 1) + NB + 1, 8), f"buffer_atomic_add v{VPD}, v{VFA}, s[88:91], s71 offen sc1")
        gcheck(226, 227, 15, C7, 16, SB(NR - 1) + 45, SB(NR) + 34, "p7")
    p_ += 6
    for i in range(4):
        p_ = S.near(p_ + 1, 8); S.put(p_, f"buffer_load_dwordx2 {v(VA+2*i,2)}, v{CT+3}, s[36:39], s63 offen offset:{i*128} sc1 @st")
    q_ = next(q for q in range(p_ + 2, S.n) if any("m0" in y for y in S.front[q] + S.ops[q]))
    assert not any("lds" in y for y in S.ops[q_ - 1] + S.ops[q_ - 2] + S.ops[q_])
    S.put(q_ - 2, "s_mov_b32 m0, s55"); S.put(q_ - 1, f"buffer_load_dwordx4 v{CT+2}, s[40:43], s58 offen sc1 lds @st")
    st2 = ["WAITVM st"]
    for i in range(4):
        b = VA + 2 * i
        st2 += lines(f"""v_mul_f32 v{b}, {fbits(-1.0/D_)}, v{b}
        v_mul_f32 v{b+1}, {fbits(1.0/D_)}, v{b+1}
        v_fma_f32 v{b+1}, -v{b}, v{b}, v{b+1}
        v_max_f32 v{b+1}, 0, v{b+1}
        v_add_f32 v{b+1}, {fbits(1e-5)}, v{b+1}""")
    st2 += [f"v_lshrrev_b32 v{CT+4}, 4, v{VL}", f"v_lshl_add_u32 v{CT+4}, v{CT+4}, 4, s55"]
    assert q_ < SB(PL + 2) - 16
    S.stream(st2, SB(PL + 2) + 40, SB(PL + 3) - 10)
    c0 = SB(PL + 3); assert PL + 5 <= NR
    for q in range(14):
        g0 = 2 * q; j = (g0 + 7 + q // 7) % 14
        w0 = c0 + 8 * g0
        S.put(w0 - 1, f"ds_read_b128 {v(CT,4)}, v{CT+4} offset:{j*64}")
        S.stream([f"v_fmac_f32 v{ACC(j,i)+r}, v{CT+r}, v{VA+2*i}" for i in range(4) for r in range(4)], w0 + 4, w0 + 15)
    c1 = c0 + 224
    kk = KB("t", 0, 0, 0)
    for i in range(4): kk.e(f"v_rsq_f32 v{VA+2*i}, v{VA+2*i+1}")
    kk.e(f"v_and_b32 v{CT}, 31, v{VL}\nv_lshlrev_b32 v{CT}, 4, v{CT}")
    reloc(kk, CT, CT+1)
    kk.e(f"v_lshrrev_b32 v{CT+1}, 5, v{VL}\nv_mul_u32_u24 v{CT+1}, {224*512}, v{CT+1}\nv_add_u32 v{CT}, v{CT}, v{CT+1}")
    for i in range(4): kk.e(f"v_mul_f32 v{VA+2*i}, {fbits(-LOG2E)}, v{VA+2*i}")
    T0 = SB(NR)
    S.stream(lines("\n".join(kk.lines)), c1, min(c1 + 40, T0 + 16 * M))
    assert M == 4
    S.stream(p5_early(VL), T0 + 2, T0 + 40)
    p_ = T0 + 44
    for n in range(P5_EARLY):
        for pre, x in p5_wops(n, p5_seq(1)):
            p_ = S.near(p_ + 4, 8)
            for z, y in enumerate(pre): S.put(p_ - len(pre) + z, y)
            S.put(p_, x)
    def epi(j, p, packed):
        ii = (2*p, 2*p+1); o_ = []
        G = lambda i: ACC(j, i); Uu = lambda i: ACC(j + 7, i)
        def op(name, d, s0, s1, s2=None):
            if packed: return [pk(name, d + r, *[(x + r if isinstance(x, int) else x) for x in (s0, s1, s2) if x is not None]) for r in (0, 2)]
            f_ = lambda x, r: f"v{x + r}" if isinstance(x, int) else f"v{x[1]}"
            return [f"v_{name}_f32 v{d+r}, " + ", ".join(f_(x, r) for x in (s0, s1, s2) if x is not None) for r in range(4)]
        for i in ii: o_ += op("mul", Uu(i), Uu(i), G(i)) + op("mul", G(i), G(i), ('b', VA+2*i))
        ex = [f"v_exp_f32 v{G(i)+r}, v{G(i)+r}" for i in ii for r in range(4)]
        fm = sum([op("fma", G(i), G(i), ('b', VA+2*i+1), ('b', VA+2*i+1)) for i in ii], [])
        rc = [f"v_rcp_f32 v{G(i)+r}, v{G(i)+r}" for i in ii for r in range(4)]
        ml = sum([op("mul", Uu(i), Uu(i), G(i)) for i in ii], [])
        o = G(2*p)
        fin_ = [f"v_cvt_pk_bf16_f32 v{o}, v{Uu(2*p)}, v{Uu(2*p)+1}", f"v_cvt_pk_bf16_f32 v{o+2}, v{Uu(2*p+1)}, v{Uu(2*p+1)+1}",
                f"v_cvt_pk_bf16_f32 v{o+1}, v{Uu(2*p)+2}, v{Uu(2*p)+3}", f"v_cvt_pk_bf16_f32 v{o+3}, v{Uu(2*p+1)+2}, v{Uu(2*p+1)+3}",
                f"v_permlane32_swap_b32 v{o}, v{o+2}", "s_nop 0", f"v_permlane32_swap_b32 v{o+1}, v{o+3}",
                f"buffer_store_dwordx4 {v(o,4)}, v{CT}, s[32:35], s{60+p} offen offset:{j*512} sc1"]
        return o_, ex, fm, rc, ml, fin_
    def zipl(x, y):
        o_ = []
        for q in range(max(len(x), len(y))): o_ += x[q:q+1] + y[q:q+1]
        return o_
    for p in range(6):
        A_, B_ = epi(p, 0, False), epi(p, 1, False)
        seq = A_[0] + zipl(A_[1], B_[0][:8]) + A_[2] + zipl(A_[3], B_[0][8:]) + zipl(B_[1], A_[4]) + B_[2] + zipl(B_[3], A_[5]) + B_[4] + B_[5]
        w0 = T0 + 16 * M * (p + 1)
        S.stream(seq, w0 + 2, w0 + 16 * M)
    if OPT.diag and fine:
        for q in range(32):
            S.put(56 * q + 1, "s_memtime s[98:99]"); S.put(56 * q + 41, f"v_writelane_b32 v255, s98, {24 + q}")
    Z = direct(xops(0)) + sum([reads(g) for g in range(D)], []) + direct(xops(1)[:4] if PRE1 else dops(1)[:4]) + ["WAITVM s0", "STAMP13"] + S.flat() + ["STAMP14", "s_barrier", "s_nop 5"]
    for p in range(2): Z += sum([list(x) for x in epi(6, p, True)], [])
    Z = auto_lgkm([x if not x.startswith("STAMP") else "s_" + x for x in resolve_vm(Z)], cyclic=False, merge=MG, hoist=True)
    if OPT.rep: print("p4", slot_report(Z[:Z.index("s_STAMP14")]), file=sys.stderr)
    for x in Z:
        if x.startswith("s_STAMP"): fstamp(k, int(x[7:]))
        else: k.e(x)

P5_UNITS = [4, 5, 6, 18, 19, 0, 1, 2, 3] + list(range(7, 18))
P5_EARLY = 5
def p5_seq(M):
    return [(n, h) for n in range(28 - M) for h in (0, 1)] + [(n, 1) for n in range(28 - M, 28)] + [(n, 0) for n in range(28 - M, 28)]
def p5_wops(c, seq):
    n, h = seq[c]
    return [([f"s_add_u32 s56, s{52 if h == 0 else 55}, {n*8192}", f"s_add_u32 m0, s53, {P5_UNITS[c % 20]*8192}"] if q == 0 else [],
             f"buffer_load_dwordx4 v224, s[24:27], s56 offen offset:{q*1024} sc1 lds @w{c}") for q in range(2)]
def p5_bits():
    if not OPT.cls: return 0, 0, 1, 0
    return [1, 2, 2][OPT.cls[3]], int(OPT.cls[3] == 2), 0, OPT.cls[2]
def p5_early(VL):
    kk = KB("t", 0, 0, 0)
    kb, kx, tb_, tx = p5_bits()
    kk.e(f"""
    s_bfe_u32 s54, s44, {hex(0x10000 + kb)}            ; kh
    s_xor_b32 s54, s54, {kx}
    s_bfe_u32 s46, s44, {hex(0x10000 + tb_)}
    s_xor_b32 s46, s46, {tx}
    s_lshl_b32 s46, s46, 3
    s_and_b32 s47, s45, 7
    s_add_u32 s46, s46, s47          ; tm
    s_bfe_u32 s47, s44, {hex(0x10000 + 3 - kb - tb_)}
    s_lshl_b32 s47, s47, 2
    s_lshr_b32 s48, s45, 3
    s_add_u32 s47, s47, s48          ; cn
    v_lshlrev_b32 v224, 4, v{VL}
    v_lshlrev_b32 v231, 4, v{VL}
    s_lshl_b32 s93, s47, 1
    s_add_u32 s93, s93, s54
    s_lshl_b32 s53, s3, 11
    s_mul_i32 s51, s54, {1792*128}
    s_add_u32 s51, s51, s53
    s_mul_i32 s52, s93, {F_*128}
    s_add_u32 s52, s52, s51
    s_xor_b32 s55, s93, 1
    s_mul_i32 s55, s55, {F_*128}
    s_add_u32 s55, s55, s51
    """)
    reloc(kk, 224, 225)
    return lines("\n".join(kk.lines)) + [f"s_add_u32 s24, s22, {WS_W2T}\ns_addc_u32 s25, s23, 0", f"s_mov_b32 s26, {PLANE + F_*D_*2}"]

def phase5(k, LAST, cold, D=3, MG=1, M=8, CM=0, NPRE=12, XPRE=3, LOPS=10, STEP=4.0, XL=40, BP=2, SW=9, RL=50, FW=24, KD=9, fine=False):
    NS = 28; UX = 16
    seq = p5_seq(M); NC = len(seq)
    ACC = lambda j, i: (j * 2 + i) * 4
    VW = lambda g, s_: 64 + (g % 4) * 8 + s_ * 4
    VD = 224; VR = 128; VL = 235; VFA = 249; VONE = 253; VL16 = 231; VT = 152; VRES = 160
    AX = lambda n, i, s_: (n % UX) * 16 + (i * 2 + s_) * 4
    strip = lambda x: x.split(" @")[0]
    def direct(ops):
        o_ = []
        for pre, x in ops: o_ += pre + (["s_nop 0"] if any("m0" in y for y in pre) else []) + [x]
        return o_
    def xops(n): return [([f"s_add_u32 s57, s49, {(q//2)*F_*32 + n*2048}"] if q % 2 == 0 else [],
                          f"buffer_load_dwordx4 {a(AX(n,q//2,q%2),4)}, v{VD}, s[32:35], s57 offen offset:{(q%2)*1024} sc1 @x{n}") for q in range(4)]
    for c in range(P5_EARLY, P5_EARLY + 4):
        for x in direct(p5_wops(c, seq)): k.e(strip(x))
    k.e(f"""
    s_xor_b32 s63, s2, {1 << p5_bits()[0]}             ; partner
    s_lshl_b32 s48, s46, 3
    s_lshl_b32 s49, s3, 1
    s_add_u32 s48, s48, s49
    s_mul_i32 s49, s48, {F_*32}
    s_mul_i32 s51, s54, {56*1024}
    s_add_u32 s49, s49, s51
    v_mov_b32 v{VR}, v{VL16}
    v_add_u32 v{VR+1}, 0x10000, v{VL16}
    v_add_u32 v{VR+2}, 0x20000, v{VL16}
    s_lshl_b32 s60, s48, 15
    s_lshl_b32 s61, s93, 11
    s_add_u32 s60, s60, s61
    s_add_u32 s58, s60, 32768
    s_lshr_b32 s62, s46, 1
    s_lshl_b32 s62, s62, 1
    s_add_u32 s62, s62, s54
    s_lshl_b32 s62, s62, 10
    s_add_u32 s62, s62, {C4}
    s_and_b32 s51, s47, {OPT.R - 1}
    s_lshl_b32 s51, s51, 7
    s_add_u32 s62, s62, s51
    s_waitcnt vmcnt(8)
    s_barrier
    """)
    signal(k, VONE, VFA, 94, 61)
    fstamp(k, 15)
    for i in range(2):
        for p in range(2): k.e(f"buffer_load_dwordx4 {v(VRES+i*8+p*4,4)}, v{VD if OPT.hrel else VL16}, s[28:31], s{60 if i == 0 else 58} offen offset:{p*1024} sc1")
    for c in range(P5_EARLY + 4, NPRE):
        for x in direct(p5_wops(c, seq)): k.e(strip(x))
    Lst = k.label("code5")
    if OPT.codepf:
        code_pf_addr(k, Lst, LAST, 250, VL, 3); k.e(code_pf(252, 250))
    wait_multi(k, VFA, 1, "s62", 16, VT+3)
    k.e(f"{Lst}:")
    fstamp(k, 16)
    gl = [(c, g) for c in range(NC - CM) for g in range(4)] + [(c, g) for p in range(2) for c in range(NC - CM, NC) for g in (2*p, 2*p+1)]
    def wreads(G):
        c, g = gl[G]; ad = P5_UNITS[c % 20] * 8192
        return [f"ds_read_b128 {v(VW(G,s_),4)}, v{VR+(ad>>16)} offset:{(ad & 0xffff) + s_*4096 + g*1024}" for s_ in range(2)]
    main = []
    for G, (c, g) in enumerate(gl):
        n, h = seq[c]
        for i in range(2):
            for s_ in range(2):
                d_ = v(ACC(4*h+g,i),4)
                main.append(f"v_mfma_f32_16x16x32_bf16 {d_}, {v(VW(G,s_),4)}, {a(AX(n,i,s_),4)}, {d_ if (n or s_ or h == 0) else '0'}")
    S = Sched(main)
    for G in range(D, 4 * NC):
        for q, x in enumerate(wreads(G)): S.put(4 * (G - D) + 2 * q, x)
    SB = lambda c: 16 * c
    bars = list(range(NPRE, NC - max(CM, 1) + 1, BP))
    bpos = {c: SB(c) - 4 * D - 1 for c in bars}
    pub = {m: max(b for b in bars if b <= m) for m in range(NPRE, NC)}
    for c in bars:
        S.put(bpos[c] - 1, "WAITVM " + " ".join(f"w{m}" for m in range(NPRE, NC) if pub[m] == c)); S.put(bpos[c], "s_barrier", front_ok=False)
    first = {}; lastuse = {}
    for c, (n, h) in enumerate(seq): first.setdefault(n, c); lastuse[n] = c
    for n in range(1, NS): S.put(SB(first[n]) - 2, f"WAITVM x{n}")
    items = [(bpos[pub[c]] - 1, c, p5_wops(c, seq)) for c in range(NPRE, NC)] + [(SB(first[n]) - 2, n, xops(n)) for n in range(XPRE, NS)]
    ops = [(dl, n, pre, x) for dl, n, o_ in sorted(items, key=lambda t: t[:2]) for pre, x in o_]
    late = [0] * len(ops); nxt = 10 ** 9
    for q in range(len(ops) - 1, -1, -1):
        lim = min(ops[max(q - LOPS, 0)][0] - 1, ops[q][0] - XL)
        keep = "lds" in ops[q][3] and ops[q][1] >= NC - M + 2
        if keep: lim = ops[q][0] - XL
        late[q] = nxt = min(lim, nxt - (4 if keep else 2))
    pos = 0
    for q, (dl, n, pre, x) in enumerate(ops):
        want = max(pos, min(int(q * STEP), late[q]), 1)
        if "lds" in x and n >= NC - M + KD: want = max(pos, late[q])
        if "lds" in x and n >= 20: want = max(want, min(bpos[b] for b in bars if bpos[b] >= SB(n - 20 + 1)) + 2)
        if "lds" not in x and n >= UX: want = max(want, SB(lastuse[n - UX] + 1) + 1)
        want |= 1
        assert want <= dl - 10, (n, x, want, dl)
        for y in pre: S.put(want - 1, y)
        S.put(want, x); pos = want + 2
        if OPT.rep and pre: print("p5", "w" if "lds" in x else "x", n, "at", want / 16, "slack", dl - want, file=sys.stderr)
    if OPT.codepf: S.put(S.near(SB(20) + 2, 4), code_pf(252, 250))
    kk = KB("t", 0, 0, 0)
    kk.e(f"""
    s_lshl_b32 s64, s2, 2
    s_add_u32 s64, s64, s3
    s_lshl_b32 s65, s63, 2
    s_add_u32 s65, s65, s3
    s_lshl_b32 s66, s64, 12
    s_lshl_b32 s67, s65, 12
    s_mov_b32 s42, {4*MB}
    s_mov_b32 s36, s18
    s_mov_b32 s37, s19
    s_mov_b32 s38, {S_*D_*2}
    v_and_b32 v{VT}, 15, v{VL}
    v_lshrrev_b32 v{VT+1}, 4, v{VL}
    v_and_b32 v{VT+2}, 1, v{VT+1}
    v_lshrrev_b32 v{VT+3}, 1, v{VT+1}
    v_lshlrev_b32 v{VT+2}, 5, v{VT+2}
    v_lshl_add_u32 v{VT+2}, v{VT+3}, 4, v{VT+2}
    v_lshl_add_u32 v{VT+2}, v{VT}, 11, v{VT+2}
    s_lshl_b32 s60, s48, 15
    s_lshl_b32 s61, s93, 7
    s_add_u32 s60, s60, s61
    s_add_u32 s61, s60, 32768
    s_mov_b32 s69, {SPIN}
    """)
    S.stream(lines("\n".join(kk.lines)) + [f"s_add_u32 s40, s22, {WS_EX}\ns_addc_u32 s41, s23, 0"], SB(4), SB(12))
    snd = []
    for p in range(2):
        for i in range(2):
            o = ACC(4+2*p, i); u = ACC(5+2*p, i)
            snd += [f"v_cvt_pk_bf16_f32 v{o}, v{o}, v{o+1}", f"v_cvt_pk_bf16_f32 v{o+1}, v{o+2}, v{o+3}",
                    f"v_cvt_pk_bf16_f32 v{o+2}, v{u}, v{u+1}", f"v_cvt_pk_bf16_f32 v{o+3}, v{u+2}, v{u+3}"]
            snd += [f"v_min_u32 v{o+r}, -2, v{o+r}" for r in range(4)]
            snd.append(f"buffer_store_dwordx4 {v(o,4)}, v{VL16}, s[40:43], s66 offen offset:{(i*2+p)*1024} sc1")
    rcv = [f"buffer_load_dwordx4 {v(VRES+i*8+p*4,4)}, v{VL16}, s[40:43], s67 offen offset:{(i*2+p)*1024} sc1" for i in range(2) for p in range(2)]
    K0 = SB(NC - M)
    if OPT.tlb & 8:
        S.put(S.near(K0 - 70, 8), f"buffer_load_dword v252, v{VL}, s[40:43], s66 offen")
        S.put(S.near(K0 + 40, 8), f"buffer_load_dword v252, v{VL}, s[36:39], s60 offen")
    S.stream(snd, K0 - 3, K0 + SW)
    H0 = S.n - 8 * CM
    for q, x in enumerate(rcv): S.put(max(K0 + SW + 1 + q, H0 - 8 - RL + 3 * q) | 1, x + " @rcv")
    Lp = k.label("xpoll")
    chk = [f"v_max3_u32 v{VT}, v{VRES}, v{VRES+1}, v{VRES+2}", f"v_max3_u32 v{VT+1}, v{VRES+3}, v{VRES+4}, v{VRES+5}"]
    for r in range(6, 14, 4): chk += [f"v_max3_u32 v{VT}, v{VT}, v{VRES+r}, v{VRES+r+1}", f"v_max3_u32 v{VT+1}, v{VT+1}, v{VRES+r+2}, v{VRES+r+3}"]
    chk += [f"v_max3_u32 v{VT}, v{VT}, v{VRES+14}, v{VRES+15}", f"v_max_u32 v{VT}, v{VT}, v{VT+1}", f"v_cmp_eq_u32 vcc, -1, v{VT}"]
    cold[0:0] = ([f"{Lp}:", "s_sub_u32 s69, s69, 1", f"s_cbranch_scc1 {Lp}_x"] + rcv + ["s_waitcnt vmcnt(0)"] + chk + ["s_nop 4", f"s_cbranch_vccnz {Lp}", f"s_branch {Lp}_x"])
    def fin5(p, packed):
        o_ = []
        for i in range(2):
            for fb in (2*p, 2*p+1):
                o = ACC(fb, i); r = VRES + i*8 + fb*2
                o_ += [f"v_lshlrev_b32 v{VT+4}, 16, v{r}", f"v_and_b32 v{VT+5}, 0xffff0000, v{r}", f"v_lshlrev_b32 v{VT+6}, 16, v{r+1}", f"v_and_b32 v{VT+7}, 0xffff0000, v{r+1}"]
                o_ += [pk("add", o, o, VT+4), pk("add", o+2, o+2, VT+6)] if packed else [f"v_add_f32 v{o+z}, v{o+z}, v{VT+4+z}" for z in range(4)]
                o_ += [f"v_cvt_pk_bf16_f32 v{r}, v{o}, v{o+1}", f"v_cvt_pk_bf16_f32 v{r+1}, v{o+2}, v{o+3}"]
            r = VRES + i*8 + p*4
            o_ += ["s_nop 1", f"v_permlane16_swap_b32 v{r}, v{r+2}", f"v_permlane16_swap_b32 v{r+1}, v{r+3}",
                   f"buffer_store_dwordx4 {v(r,4)}, v{VT+2}, s[36:39], s{60+i} offen offset:{p*64} {OPT.ost}"]
        return o_
    if CM:
        S.stream(["WAITVM rcv"] + chk, H0 - 8, H0 - 2); S.put(H0 + 2, f"s_cbranch_vccnz {Lp}\n{Lp}_x:")
        S.stream(fin5(0, False), H0 + 3, min(H0 + FW, S.n))
        post = ["s_nop 3"] + fin5(1, True)
    else: post = ["WAITVM rcv"] + chk + ["s_nop 4", f"s_cbranch_vccnz {Lp}\n{Lp}_x:"] + fin5(0, True) + fin5(1, True)
    if OPT.diag and fine:
        for q in range(28):
            S.put(32 * q + 1, "s_memtime s[98:99]"); S.put(32 * q + 21, f"v_writelane_b32 v255, s98, {24 + q}")
    Z = direct(xops(0)) + sum([wreads(G) for G in range(D)], [])
    for n in range(1, XPRE): Z += direct(xops(n))
    for i in range(2):
        for fb in range(4):
            o = ACC(fb, i); r = VRES + i*8 + fb*2
            Z += [f"v_lshlrev_b32 v{o}, 16, v{r}", f"v_and_b32 v{o+1}, 0xffff0000, v{r}", f"v_lshlrev_b32 v{o+2}, 16, v{r+1}", f"v_and_b32 v{o+3}, 0xffff0000, v{r+1}"]
    Z += ["s_nop 0", "WAITVM x0", "STAMP17"] + S.flat() + ["STAMP18"] + post
    Z = auto_lgkm([x if not x.startswith("STAMP") else "s_" + x for x in resolve_vm(Z)], cyclic=False, merge=MG, hoist=True)
    if OPT.rep: print("p5", slot_report(Z), file=sys.stderr)
    for x in Z:
        if x.startswith("s_STAMP"): fstamp(k, int(x[7:]))
        else: k.e(x)

def mkplan(rd, st0, wo, tch, st1=25):
    return ((rd[14:18], rd[7:14], rd[0:7]), (st0, st1), (wo, tch))
W_A = [12,13,14,15,16,17,18,19,20,21,22,23,23,24,24,25]
W_B = [9,11,12,13,14,15,16,17,18,19,20,21,22,23,24,25]
PLANS = {
 0: mkplan([1,1,2,2,3,3,4, 4,5,5,6,6,7,7, 8,9,10,11], 17, W_A, 0),
 1: mkplan([1,1,1,1,3,3,3, 5,5,5,5,7,7,7, 9,9,11,11], 17, W_A, 0),
 2: mkplan([0,0,0,0,2,2,2, 4,4,4,4,6,6,6, 8,8,10,10], 16, W_B, 2),
 3: mkplan([1,1,1,3,3,3,5, 5,5,7,7,7,9,9, 11,11,13,13], 19, [4,6,8,10,12,14,15,16,17,18,19,20,21,22,23,24], 0),
 4: mkplan([1,1,3,3,5,5,7, 7,9,9,11,11,13,13, 2,6,10,14], 19, [3,5,7,9,11,13,15,16,17,18,19,20,21,22,23,24], 0),
 5: mkplan([1,1,2,2,3,3,4, 4,5,5,6,6,7,7, 8,9,10,11], 19, W_A, 0),
}
def gen_front(BC=0, EI=7, JP=0, HLP=7, NB=22, POLL=8, CW=48, NSH=4, PUB=3, LSP=9, EW=36, AP=1, RP=2, DK=5, BS=4, NRS=6, RD=3, PL=0, ST0=16, AG=48, fine2=False, PAR=True, fine=False, MG=3, SIG=-1, PP=3, TB=1, LA=4, force_fb=False, full=True, p4={}, p5={}, abl=''):
    STG = 40960
    k = KB(KNAME if full else "k1_kernel", 256, 256, 4 * STG)
    k.fine = True; k.nst = 20 if full else 12; k.page = full
    LAST = f"L_{k.name}_end" if full else "L_k5_kernel_end"
    if full: k.launch = lambda: "; @launch grid=(256,1,1) block=(256,1,1) lds=163840\n"
    ACC = lambda j, i: (j * 4 + i) * 4
    VDX = 96; VDW = 100; VRX = 106; VRW = 114
    VL = 122; VPF = 123; VT = 124; VPA = 132; VZ = 134; VSA = 135
    VRAW = 136; VU = 216; VSUM = 220; VRT = 224
    VSEL = 192; VCD = 208; VCD2 = 212
    VCQ = 192; VCV = 208; VMT = 216; VRSt = 220; VMR = 224; VRR = 228
    AX = lambda st, i, s_: (st % 2) * 32 + (i * 2 + s_) * 4
    AW = lambda j, s_: 64 + j * 8 + s_ * 4
    prologue(k)
    fstamp(k, 0)
    if OPT.diag: k.e("v_writelane_b32 v254, s100, 63")
    k.e(f"""
    v_mov_b32 v{VL}, v0
    s_and_b32 s46, s45, 7
    s_and_b32 s47, s44, 1
    {'s_xor_b32 s47, s47, 1' if OPT.cls and OPT.cls[0] else ''}
    {'s_lshl_b32 s46, s46, 1' if PAR and not OPT.cls else 's_lshl_b32 s47, s47, 3'}
    s_add_u32 s46, s46, s47          ; rb
    s_lshr_b32 s47, s44, 1
    s_lshl_b32 s47, s47, 2
    s_lshr_b32 s48, s45, 3
    s_add_u32 s47, s47, s48          ; cb
    s_lshr_b32 s48, s3, 1            ; wm
    s_and_b32 s49, s3, 1             ; wn
    v_lshrrev_b32 v{VT}, 3, v{VL}       ; l/8
    v_and_b32 v{VT+1}, 7, v{VL}         ; p
    v_lshrrev_b32 v{VT+2}, 1, v{VT}     ; (l/8)>>1  (0..3)
    v_xor_b32 v{VT+3}, v{VT+1}, v{VT+2}
    s_lshl_b32 s50, s46, 7
    s_lshl_b32 s51, s3, 5
    s_add_u32 s50, s50, s51
    s_lshl_b32 s50, s50, 11             ; (rb*128 + w*32)*2048
    v_lshlrev_b32 v{VT+4}, 11, v{VT}
    v_add_u32 v{VT+4}, s50, v{VT+4}
    v_lshl_add_u32 v{VDX}, v{VT+3}, 4, v{VT+4}
    v_xor_b32 v{VT+3}, 4, v{VT+3}
    v_lshl_add_u32 v{VDX+1}, v{VT+3}, 4, v{VT+4}
    v_add_u32 v{VDX+2}, {2*15360}, v{VDX}
    v_add_u32 v{VDX+3}, {3*15360}, v{VDX+1}
    v_add_u32 v{VDX+1}, {15360}, v{VDX+1}
    v_and_b32 v{VT+2}, 1, v{VT+2}
    v_lshlrev_b32 v{VT+2}, 1, v{VT+2}
    v_xor_b32 v{VT+3}, v{VT+1}, v{VT+2}
    v_mul_u32_u24 v{VT+4}, 6144, v{VT}
    s_mul_i32 s50, s3, {16*6144}
    s_lshl_b32 s51, s47, 7
    s_add_u32 s50, s50, s51
    v_add_u32 v{VT+4}, s50, v{VT+4}
    v_lshl_add_u32 v{VDW}, v{VT+3}, 4, v{VT+4}
    v_xor_b32 v{VT+3}, 4, v{VT+3}
    v_lshl_add_u32 v{VDW+1}, v{VT+3}, 4, v{VT+4}
    v_add_u32 v{VDW+1}, {8*6144 - 1024}, v{VDW+1}
    """)
    for sg in range(1, 3):
        k.e(f"v_add_u32 v{VDW+2*sg}, {2048*sg}, v{VDW}\nv_add_u32 v{VDW+2*sg+1}, {2048*sg}, v{VDW+1}")
    k.e(f"""
    s_lshl_b32 s53, s3, 12
    s_lshl_b32 s54, s3, 11
    s_add_u32 s54, s54, 16384
    s_mov_b32 s59, {OOB}
    s_mov_b32 s63, s46
    s_mul_i32 s56, s63, {64*6144}
    s_lshl_b32 s57, s63, 7
    v_lshlrev_b32 v{VSA}, 4, v{VL}
    s_lshl_b32 s64, s46, 4
    s_add_u32 s64, s64, s47
    s_lshl_b32 s64, s64, 2
    s_add_u32 s64, s64, s3
    s_lshl_b32 s65, s64, 12
    s_lshl_b32 s66, s64, 8
    s_lshl_b32 s67, s47, 1
    s_add_u32 s67, s67, s49          ; head
    """)
    if OPT.codepf: code_pf_addr(k, k.name, LAST, VPA, VL, 3)
    if HLP:
        k.e(f"""
        v_min_u32 v{VZ}, 23, v{VL}
        v_lshlrev_b32 v{VZ}, 11, v{VZ}
        s_lshl_b32 s58, s45, 2
        s_add_u32 s58, s58, s3
        s_mul_i32 s58, s58, {24*2048}
        s_or_b32 s51, s47, 3
        s_lshl_b32 s51, s51, 7
        s_add_u32 s58, s58, s51
        {'s_bitcmp1_b32 s47, 2' + NL + 's_cselect_b32 s58, s59, s58' if HLP & 2 else ''}
        """)
    k.e("s_waitcnt lgkmcnt(0)")
    srd(k, 24, 6, 7, D_*3*D_*2)
    srd(k, 28, 4, 5, S_*D_*2)
    def vmem_ops(n):
        slot = n % 4; ops = []
        for q in range(4):
            o = [f"buffer_load_dwordx4 v{VDX+q}, s[28:31], s57 offen offset:{q*1024} {OPT.w1} lds @s{n}"]
            if q == 0: o = [f"s_add_u32 m0, s53, {slot*STG}"] + o
            ops.append(o)
        for sg in range(3):
            for q in range(2):
                o = [f"buffer_load_dwordx4 v{VDW+2*sg+q}, s[24:27], s56 offen offset:{q*1024} {OPT.w1} lds @s{n}"]
                if q == 0: o = [f"s_add_u32 m0, s54, {slot*STG + sg*8192}"] + o
                ops.append(o)
        return ops
    adv = ["s_add_u32 s63, s63, 1", "s_and_b32 s63, s63, 15", f"s_mul_i32 s56, s63, {64*6144}", "s_lshl_b32 s57, s63, 7"]
    P = []
    if 'st' in abl: P.append("STAMP20")
    hlp = [f"buffer_load_dword v{VPF}, v{VZ}, s[24:27], s58 offen"] if HLP else []
    if not HLP & 4: P += hlp
    if OPT.codepf: P.append(code_pf(VPF, VPA))
    v0_ = vmem_ops(0)
    for q, o in enumerate(v0_[4:] + v0_[:4] if HLP & 8 else v0_):
        if q == EI: P.append("EARLY")
        P += with_nop(o)
    if 'st' in abl: P.append("STAMP21")
    if HLP & 4: P += hlp
    for q in range(4): P.append(f"buffer_load_dwordx4 {v(VRAW+4*q,4)}, v{VSA}, s[28:31], s65 offen offset:{q*1024} @raw")
    P += adv
    setup = lines(f"""
    v_and_b32 v{VT}, 15, v{VL}
    v_lshrrev_b32 v{VT+1}, 4, v{VL}
    v_lshrrev_b32 v{VT+2}, 1, v{VT}
    v_xor_b32 v{VT+2}, v{VT+1}, v{VT+2}
    s_lshl_b32 s50, s48, 13
    v_lshlrev_b32 v{VT+3}, 7, v{VT}
    v_add_u32 v{VT+3}, s50, v{VT+3}
    v_lshl_add_u32 v{VRX}, v{VT+2}, 4, v{VT+3}
    v_xor_b32 v{VRX+1}, 64, v{VRX}
    v_lshrrev_b32 v{VT+2}, 2, v{VT}
    v_lshl_add_u32 v{VT+3}, v{VT+1}, 3, v{VT+2}
    v_lshrrev_b32 v{VT+2}, 1, v{VT+2}
    v_and_b32 v{VT+4}, 1, v{VT+1}
    v_lshl_add_u32 v{VT+2}, v{VT+4}, 1, v{VT+2}
    s_lshl_b32 s50, s49, 1
    v_xor_b32 v{VT+2}, s50, v{VT+2}
    v_lshlrev_b32 v{VT+2}, 5, v{VT+2}
    v_lshl_add_u32 v{VT+2}, v{VT+3}, 7, v{VT+2}
    v_and_b32 v{VT+4}, 3, v{VL}
    v_lshl_add_u32 v{VT+2}, v{VT+4}, 3, v{VT+2}
    v_add_u32 v{VRW}, 16384, v{VT+2}
    v_xor_b32 v{VRW+1}, 32, v{VRW}
    v_mov_b32 v{VT+5}, 0x3f803f80
    """)
    for sl in range(1, 4):
        for q in range(2):
            setup += [f"v_add_u32 v{VRX+2*sl+q}, {sl*STG}, v{VRX+q}", f"v_add_u32 v{VRW+2*sl+q}, {sl*STG}, v{VRW+q}"]
    for j in range(4):
        setup += [f"v_cmp_eq_u32 vcc, {j}, v{VT}", "s_nop 1", f"v_cndmask_b32 v{VSEL+4*j}, 0, v{VT+5}, vcc"]
        setup += [f"v_mov_b32 v{VSEL+4*j+r}, v{VSEL+4*j}" for r in (1, 2, 3)]
    kk = KB("t", 0, 0, 0)
    srd(kk, 36, 22, 23, ZERO_BYTES, WS_ST); srd(kk, 40, 22, 23, 0x44000, WS_CSP1); srd(kk, 32, 20, 21, 256)
    if EI < 10: P[P.index("EARLY"):P.index("EARLY") + 1] = [x.strip() for x in kk.lines] + setup + ["IDLE"]
    else: P += [x.strip() for x in kk.lines]
    P += [f"v_mov_b32 v{VZ}, 0", f"v_lshlrev_b32 v{VT+6}, 2, v{VL}", f"buffer_store_dword v{VZ}, v{VT+6}, s[36:39], s66 offen sc1 @pub"]
    jump = ["s_branch L_page1\n.p2align 12\nL_page1:"] + (["s_nop 0\n;WARM start 4 0"] if OPT.warm else [])
    if 'st' in abl: P.append("STAMP22")
    if EI >= 10: P += jump + setup + ["IDLE"]
    for q, o in enumerate(vmem_ops(1)):
        if EI < 10 and q == JP: P += jump
        P += with_nop(o)
    if EI < 10 and JP >= 10: P += jump
    if 'st' in abl: P.append("STAMP23")
    P += adv
    JO = [2, 3, 4, 5, 0, 1]
    def wreads(slot, pz, j=None):
        if j is None: j = JO[pz]
        return [f"ds_read_b64_tr_b16 {a(AW(pz,s_)+2*rd,2)}, v{VRW+2*slot+j%2} offset:{(j//2)*8192 + (32*s_+4*rd)*128}" for s_ in range(2) for rd in range(2)]
    def xreads(slot):
        return [f"ds_read_b128 {a(AX(slot,i,s_),4)}, v{VRX+2*slot+s_} offset:{i*2048}" for i in range(4) for s_ in range(2)]
    def allreads(slot):
        xr = xreads(slot)
        return xr[:2] + wreads(slot, 0) + xr[2:] + sum([wreads(slot, j) for j in range(1, 6)], [])
    rpos = [NB + q + q // 2 for q in range(32)]
    free = [p for p in range(NB, NB + 48) if p not in rpos]
    vpos = [free[(q * 15) // 10] for q in range(10)]
    NHR = sum(p < 48 for p in rpos); NH = sum(p < 48 for p in vpos)
    P += ["WAITVM s0", "s_barrier", "STAMP1"]
    P += allreads(0)[:NHR]
    for o in vmem_ops(2)[:NH]: P += with_nop(o)
    st1 = ["WAITVM raw"]
    for q in range(8):
        for r in range(2):
            x = VRAW + 8*r + q
            st1 += [f"v_dot2_f32_bf16 v{VSUM+2*r}, v{x}, v{VU}, {'0' if q == 0 else v(VSUM+2*r)}", f"v_dot2_f32_bf16 v{VSUM+2*r+1}, v{x}, v{x}, {'0' if q == 0 else v(VSUM+2*r+1)}"]
    st1.append("s_nop 0")
    kk = KB("t", 0, 0, 0); allreduce64(kk, [VSUM, VSUM+1, VSUM+2, VSUM+3], VRT); st1 += [x.strip() for x in kk.lines]
    for r in range(2):
        b = VSUM + 2*r
        st1 += lines(f"""
        v_mul_f32 v{b}, {fbits(-1.0/D_)}, v{b}
        v_mul_f32 v{b+1}, {fbits(1.0/D_)}, v{b+1}
        v_fma_f32 v{b+1}, -v{b}, v{b}, v{b+1}
        v_max_f32 v{b+1}, 0, v{b+1}
        v_add_f32 v{b+1}, {fbits(1e-5)}, v{b+1}
        v_rsq_f32 v{b+1}, v{b+1}
        """)
    st1 += lines(f"""
    v_lshlrev_b32 v{VRT}, 20, v{VL}
    s_lshl_b32 s68, s64, 4
    s_add_u32 s68, s68, {WS_MU - WS_CSP1}
    buffer_store_dwordx4 {v(VSUM,4)}, v{VRT}, s[40:43], s68 offen sc1 @pub
    """)
    cst = lines(f"""
    v_lshlrev_b32 v{VT+6}, 10, v{VT}
    v_lshl_add_u32 v{VT+6}, v{VT+1}, 8, v{VT+6}
    v_cmp_gt_u32 vcc, 4, v{VT}
    v_mov_b32 v{VT+7}, {OOB}
    s_mul_i32 s69, s67, 6144
    v_cndmask_b32 v{VT+6}, v{VT+7}, v{VT+6}, vcc
    s_lshl_b32 s70, s48, 29
    s_add_u32 s69, s69, s70
    s_lshl_b32 s70, s46, 4
    s_add_u32 s70, s70, s69
    buffer_store_dwordx4 {v(VCD,4)}, v{VT+6}, s[40:43], s70 offen sc1 @pub
    v_lshlrev_b32 v{VT+7}, 4, v{VT}
    v_lshl_add_u32 v{VT+7}, v{VT+1}, 27, v{VT+7}
    s_lshr_b32 s70, s46, 2
    s_lshl_b32 s70, s70, 8
    s_add_u32 s69, s69, s70
    s_bfe_u32 s70, s46, 0x10001
    s_lshl_b32 s70, s70, 10
    s_add_u32 s69, s69, s70
    s_and_b32 s70, s46, 1
    s_lshl_b32 s70, s70, 3
    s_add_u32 s69, s69, s70
    s_add_u32 s69, s69, 4096
    buffer_store_dwordx2 {v(VCD2,2)}, v{VT+7}, s[40:43], s69 offen sc1 @pub
    """)
    sig = lines(f"""
    v_mov_b32 v{VT+6}, 1
    v_lshlrev_b32 v{VT+7}, 8, v{VL}
    s_lshl_b32 s70, s3, 8
    s_and_b32 s71, s45, {NSH-1}
    s_mul_i32 s71, s71, {256//NSH}
    s_add_u32 s70, s70, s71
    buffer_atomic_add v{VT+6}, v{VT+7}, s[32:35], s70 offen sc1
    """)
    Lsp = k.label("spin"); Lok = k.label("ok")
    pol = [f"s_cmp_eq_u32 s3, 0\ns_cselect_b32 s73, {256//NSH}, 0", f"v_mov_b32 v{VT+5}, s73", f"v_and_b32 v{VT+7}, {NSH-1}, v{VL}",
           f"v_mul_u32_u24 v{VT+7}, {256//NSH}, v{VT+7}", "s_lshl_b32 s73, s3, 8", f"buffer_load_dword v{VT+6}, v{VT+7}, s[32:35], s73 offen sc1 @poll"]
    chk = ["WAITVM poll", f"v_cmp_gt_u32 vcc, v{VT+5}, v{VT+6}", "s_nop 4", f"s_cbranch_vccnz {Lsp}\n{Lok}:"]
    A = 238
    ld = lines(f"""
    v_lshrrev_b32 v{A+2}, 2, v{VT}
    v_and_b32 v{A+3}, 3, v{VT}
    v_lshl_add_u32 v{A+3}, v{VT+1}, 2, v{A+3}
    v_lshl_add_u32 v{A+3}, v{A+2}, 4, v{A+3}
    v_lshlrev_b32 v{A+3}, 3, v{A+3}
    v_lshlrev_b32 v{A+2}, 3, v{VL}
    s_mul_i32 s69, s67, 6144
    s_add_u32 s72, s69, 4096
    s_lshl_b32 s70, s46, 10
    s_lshl_b32 s71, s48, 9
    s_add_u32 s70, s70, s71
    s_add_u32 s70, s70, {WS_MU - WS_CSP1}
    """)
    nld0 = len(ld)
    ld.append(f"buffer_load_dwordx2 {v(VRAW,2)}, v{A+2}, s[40:43], s70 offen sc1 @cs")
    ld.append(f"buffer_load_dwordx2 {v(VMR,2)}, v{A+3}, s[40:43], s70 offen sc1 @cs")
    for j in range(4): ld.append(f"buffer_load_dwordx4 {v(VCQ+4*j,4)}, v{VSA}, s[40:43], s69 offen offset:{j*1024} sc1 @cs")
    for j in range(2): ld.append(f"buffer_load_dwordx4 {v(VCV+4*j,4)}, v{VSA}, s[40:43], s72 offen offset:{j*1024} sc1 @cs")
    bpm = [f"v_mov_b32 v{VMT}, v{VRAW}", f"v_mov_b32 v{VMT+2}, v{VRAW}", f"v_mov_b32 v{VRSt}, v{VRAW+1}", f"v_mov_b32 v{VRSt+2}, v{VRAW+1}", "s_nop 0",
           f"v_permlane32_swap_b32 v{VMT}, v{VMT+2}", f"v_permlane32_swap_b32 v{VRSt}, v{VRSt+2}"]
    bpm += [f"v_mov_b32 v{b+1}, v{b}" for b in (VMT, VMT+2, VRSt, VRSt+2)]
    bpm += [f"v_permlane16_swap_b32 v{b}, v{b+1}" for b in (VMT, VMT+2, VRSt, VRSt+2)]
    red = ["WAITVM cs"]
    for j in range(2):
        b = VCV + j
        red += [f"v_add_f32 v{b}, v{b}, v{b+2}", f"v_add_f32 v{b+4}, v{b+4}, v{b+6}", f"v_add_f32 v{b}, v{b}, v{b+4}"]
    for sw in ("v_permlane16_swap_b32", "v_permlane32_swap_b32"):
        red += [f"v_mov_b32 v{VCV+2}, v{VCV}", f"v_mov_b32 v{VCV+3}, v{VCV+1}", "s_nop 1", f"{sw} v{VCV}, v{VCV+2}", f"{sw} v{VCV+1}, v{VCV+3}",
                f"v_add_f32 v{VCV}, v{VCV}, v{VCV+2}", f"v_add_f32 v{VCV+1}, v{VCV+1}, v{VCV+3}"]
    for sh in (8, 4, 2, 1):
        for r in range(16): red.append(f"v_add_f32_dpp v{VCQ+r}, v{VCQ+r}, v{VCQ+r} row_ror:{sh} row_mask:0xf bank_mask:0xf")
    epi_setup = lines(f"""
    s_lshl_b32 s50, s67, 6
    s_lshl_b32 s51, s46, 2
    s_add_u32 s50, s50, s51
    s_lshl_b32 s51, s48, 1
    s_add_u32 s50, s50, s51
    s_lshl_b32 s60, s50, 11
    s_lshl_b32 s61, s50, 12
    s_add_u32 s62, s61, 4096
    v_lshlrev_b32 v{A+4}, 9, v{VT+1}
    v_lshl_add_u32 v{A+5}, v{VT}, 4, v{A+4}
    v_lshrrev_b32 v{A+6}, 3, v{VT}
    v_and_b32 v{A+7}, 7, v{VT}
    v_lshl_add_u32 v{A+6}, v{A+6}, 4, v{A+7}
    v_and_b32 v{A+7}, 1, v{VT+1}
    v_lshlrev_b32 v{A+7}, 10, v{A+7}
    v_lshrrev_b32 v{A+4}, 1, v{VT+1}
    v_lshl_add_u32 v{A+7}, v{A+4}, 9, v{A+7}
    v_lshl_add_u32 v{A+6}, v{A+6}, 4, v{A+7}
    s_lshl_b32 s55, s3, 13
    v_add_u32 v{A+8}, s55, v{A+5}
    v_add_u32 v{A+9}, s55, v{A+6}
    """)
    QR = lambda q, s_: v(q * 8 + s_ * 4, 4) if q < 2 else a(112 + (q - 2) * 8 + s_ * 4, 4)
    VS = lambda b_: 16 + b_ * 16; VC = lambda q: 48 + q * 16; VP = lambda b_: 112 + b_ * 8
    VRES = 128
    VOK = lambda q: 192 + q * 16; AOS = lambda q: 128 + (q - 2) * 16
    OR = lambda q: v(VOK(q), 16) if q < 2 else a(AOS(q), 16)
    VONE = 152; VIDX = 156; VKA = 157; VQW = 158; VCSA = 159; VQR = 160; VWO = 161; VCPS = 162; VCPD = 163; VM = 164; VSL = 168; VCSD = 172
    VLs = lambda q: 176 + 4 * q
    VX2 = 224
    VL2 = 232; VL16 = 233; VTP = 234; VOA = 235; VRA = 236; VFA = 237; VD1 = 238; VD2 = 239; VY = 240
    AK = lambda u, s_: [184, 200, 0, 16, 32, 48][u % 6] + s_ * 4
    AV = lambda u, s_: AK(u, s_) + 8
    ACSL = lambda b_: ([160, 164, 168] + list(range(64, 112, 4)))[b_]
    M18 = (1 << 16) // 18 + 1
    for x in range(1024): assert (x * M18) >> 16 == x // 18
    att_setup = lines(f"""
    v_mov_b32 v{VL2}, v{VL}
    v_mov_b32 v{VL16}, v{VSA}
    """)
    att_setup += [f"v_mov_b32 v{VLs(0)+r}, 0" for r in range(16)]
    VFD = 168
    kk = KB("t", 0, 0, 0)
    for i in range(7):
        kk.e(f"v_add_u32 v{VX2}, {64*i}, v{VL}")
        udiv_const(kk, VX2+1, VX2, 14)
        kk.e(f"v_mul_u32_u24 v{VX2+1}, {7168 - 224}, v{VX2+1}\nv_lshl_add_u32 v{VFD+i}, v{VX2}, 4, v{VX2+1}")
        if i % 4: kk.e(f"v_subrev_u32 v{VFD+i}, {(i%4)*1024}, v{VFD+i}")
    att_setup += lines("\n".join(kk.lines))
    att_setup += lines(f"""
    v_and_b32 v{VX2}, 6, v{VT}
    v_cmp_eq_u32 vcc, 0, v{VX2}
    v_mov_b32 v{VX2+1}, 0x3f803f80
    v_mov_b32 v{VX2+2}, 0x44444444
    v_cndmask_b32 v{VONE}, 0, v{VX2+1}, vcc
    v_cmp_eq_u32 vcc, 4, v{VX2}
    v_mov_b32 v{VONE+1}, v{VONE}
    v_and_b32 v{VX2}, 1, v{VT}
    v_cndmask_b32 v{VONE+2}, 0, v{VX2+1}, vcc
    v_cmp_eq_u32 vcc, 0, v{VX2}
    v_mov_b32 v{VONE+3}, v{VONE+2}
    v_mov_b32 v{VX2+3}, 0xeeeeeeee
    v_cndmask_b32 v{VIDX}, v{VX2+3}, v{VX2+2}, vcc
    s_lshl_b32 s51, s3, 13
    v_add_u32 v{VKA}, s51, v{VSA}
    s_lshl_b32 s51, s3, 12
    s_add_u32 s51, s51, 0x8000
    v_add_u32 v{VQW}, s51, v{VSA}
    v_xor_b32 v{VQR}, 0x2000, v{VQW}
    v_lshrrev_b32 v{VX2}, 3, v{VL}
    v_and_b32 v{VX2+1}, 7, v{VL}
    v_and_b32 v{VX2+2}, 6, v{VX2}
    v_xor_b32 v{VX2+1}, v{VX2+1}, v{VX2+2}
    v_lshlrev_b32 v{VX2}, 11, v{VX2}
    v_lshl_add_u32 v{VWO}, v{VX2+1}, 4, v{VX2}
    v_mov_b32 v{VCPD}, v{VSA}
    s_lshl_b32 s51, s3, 13
    s_add_u32 s51, s51, 0x20000
    v_and_b32 v{VX2+2}, 3, v{VL}
    v_lshl_add_u32 v{VX2+2}, v{VX2+2}, 3, s51
    v_lshrrev_b32 v{VX2}, 2, v{VL}
    v_mul_u32_u24 v{VX2}, 224, v{VX2}
    v_add_u32 v{VCSA}, v{VX2}, v{VX2+2}
    s_mul_i32 s51, s3, {0x8000 - 0x2000}
    s_add_u32 s51, s51, {16384 - 0x20000}
    v_add_u32 v{VCPS}, s51, v{VCSA}
    v_lshlrev_b32 v{VTP}, 7, v{VT}
    v_and_b32 v{VX2}, 31, v{VL}
    v_lshrrev_b32 v{VX2}, 2, v{VX2}
    v_lshrrev_b32 v{VX2+1}, 5, v{VL}
    v_lshl_add_u32 v{VX2+1}, v{VX2+1}, 4, v{VX2}
    v_lshrrev_b32 v{VX2}, 1, v{VX2}
    v_lshlrev_b32 v{VX2}, 5, v{VX2}
    v_lshl_add_u32 v{VX2}, v{VX2+1}, 7, v{VX2}
    v_add_u32 v248, v{VX2}, v{VX2+2}
    v_xor_b32 v249, 32, v248
    v_xor_b32 v250, 64, v248
    v_xor_b32 v251, 96, v248
    v_and_b32 v{VX2}, 1, v{VT+1}
    v_lshrrev_b32 v{VX2+1}, 1, v{VT+1}
    v_lshlrev_b32 v{VX2}, 5, v{VX2}
    v_lshl_add_u32 v{VX2}, v{VX2+1}, 4, v{VX2}
    v_lshl_add_u32 v{VRA}, v{VT}, 11, v{VX2}
    v_lshrrev_b32 v{VX2}, {OPT.RS.bit_length() - 1}, v{VL}
    v_lshlrev_b32 v{VFA}, 7, v{VL}
    v_lshl_add_u32 v{VFA}, v{VX2}, 20, v{VFA}
    """)
    kk = KB("t", 0, 0, 0); reloc(kk, VCPD, VX2)
    kk.e(f"""
    v_add_u32 v{VD2}, 15360, v{VWO}
    v_and_b32 v{VX2}, 1, v{VT+1}
    v_lshrrev_b32 v{VX2+1}, 1, v{VT+1}
    v_lshlrev_b32 v{VOA}, 4, v{VT}
    v_lshl_add_u32 v{VOA}, v{VX2}, 15, v{VOA}
    v_lshl_add_u32 v{VOA}, v{VX2+1}, 8, v{VOA}
    """)
    reloc(kk, VOA, VX2); att_setup += lines("\n".join(kk.lines))
    for r in range(4): att_setup.append(f"v_accvgpr_write_b32 a{248+r}, -1")
    kk = KB("t", 0, 0, 0)
    if OPT.cls: kk.e(f"s_and_b32 s92, s44, 1\ns_xor_b32 s92, s92, {OPT.cls[1]}\ns_lshl_b32 s92, s92, 3\ns_and_b32 s93, s44, 6\ns_add_u32 s92, s92, s93\ns_and_b32 s93, s45, 1\ns_add_u32 s92, s92, s93\ns_lshr_b32 s93, s45, 1")
    else: tile_map(kk, TB, 4 - TB, 92, 93)
    sc = lines("\n".join(kk.lines))
    sc += ["s_mov_b32 s80, s8", "s_mov_b32 s81, s9", f"s_mov_b32 s82, {D_*D_*2}", "s_mov_b32 s83, 0x20000",
           f"s_add_u32 s88, s22, {WS_CNT}\ns_addc_u32 s89, s23, 0", "s_mov_b32 s90, 0x18000", "s_mov_b32 s91, 0x20000"]
    sc += ["s_cmp_eq_u32 s49, 0\ns_cselect_b32 s36, s12, s14\ns_cselect_b32 s37, s13, s15"]
    sc += lines(f"""
    s_and_b32 s68, s2, 15
    s_lshl_b32 s68, s68, 1
    s_add_u32 s68, s68, s48
    s_lshr_b32 s65, s2, 4
    s_mul_i32 s101, s65, {64*7168}
    s_mul_i32 s75, s68, 224
    s_add_u32 s101, s101, s75
    s_mul_i32 s95, s49, {F_*4}
    s_lshl_b32 s75, s75, 1
    s_add_u32 s95, s95, s75
    s_mul_i32 s100, s68, {16*28672}
    s_mul_i32 s75, s65, 28672
    s_add_u32 s100, s100, s75
    s_mul_i32 s75, s49, 14336
    s_add_u32 s100, s100, s75
    s_add_u32 s100, s100, {WS_WF - WS_W2T}
    s_mov_b32 s38, {D_*F_*2}
    s_mov_b32 s39, 0x20000
    s_mov_b32 s84, s16
    s_mov_b32 s85, s17
    s_mov_b32 s86, {F_*D_*2}
    s_mov_b32 s87, 0x20000
    s_lshl_b32 s64, s2, 2
    s_add_u32 s64, s64, s3
    s_and_b32 s68, s64, 15
    s_lshr_b32 s65, s64, 4
    s_lshl_b32 s74, s65, 17
    s_lshl_b32 s75, s68, 7
    s_add_u32 s74, s74, s75
    s_mul_i32 s68, s68, {F_*128}
    s_lshl_b32 s79, s65, 13
    s_add_u32 s79, s79, s68""")
    sc += ["s_cmp_lt_u32 s64, 896\ns_cselect_b32 s79, s79, s59"]
    sc += lines(f"""
    s_lshl_b32 s76, s92, 3
    s_lshl_b32 s77, s3, 1
    s_add_u32 s76, s76, s77
    s_lshl_b32 s64, s76, 15
    s_lshl_b32 s77, s93, 7
    s_add_u32 s77, s77, s64
    s_add_u32 s78, s77, 32768
    s_lshl_b32 s52, s67, 18
    s_lshl_b32 s75, s48, 13
    s_add_u32 s52, s52, s75""")
    att_valu, att_salu = att_setup, sc

    ARES = 168
    resl = [f"buffer_load_dwordx4 {a(ARES+i*8+p*4,4)}, v{VRA}, s[28:31], s{77+i} offen offset:{p*64}" for i in range(2) for p in range(2)]
    VPA2 = 252
    pfa = []
    if OPT.codepf:
        kk = KB(k.name + "_b", 0, 0, 0); code_pf_addr(kk, "L_att_code", LAST, VPA2, VL, 3)
        pfa = ["\n".join(x.strip() for x in kk.lines)]
    idle = pfa + att_valu + epi_setup + [x for x in ld[:nld0] if x.startswith("v_")] + [f"v_mov_b32 v{VU}, 0x3f803f80"]
    P[P.index("IDLE"):P.index("IDLE") + 1] = idle
    groups = [(n, j) for n in range(14) for j in JO] + [(n, j) for n in (14, 15) for j in JO[:4]] + [(n, j) for n in (14, 15) for j in JO[4:]]
    main = []
    for g, (n, j) in enumerate(groups):
        for i in range(4):
            for s_ in range(2):
                w_, x_ = a(AW(g % 6,s_),4), a(AX(n,i,s_),4)
                if j >= 4: w_, x_ = x_, w_
                c_ = v(ACC(j,i),4) if (n or s_) else "0"
                main.append(f"v_mfma_f32_16x16x32_bf16 {v(ACC(j,i),4)}, {w_}, {x_}, {c_}")
    S = Sched(main); SB = lambda n: 48 * n
    for n in range(15):
        for q, x in enumerate(allreads(n % 4)):
            if (n or q >= NHR) and (n < 14 or q < 24): S.put(SB(n - 1) + rpos[q], x)
    B15 = SB(13) + rpos[23] + 1
    xr = xreads(3)
    for q, x in enumerate(xr[:2] + wreads(3, 88 % 6, 2) + xr[2:]): S.put(B15 + 1 + q + q // 4, x)
    for g in range(89, 96):
        for q, x in enumerate(wreads(groups[g][0] % 4, g % 6, groups[g][1])): S.put(8 * g - 15 + 2 * q, x)
    for g in range(6):
        j = JO[g]
        for s_ in range(2):
            d_ = v(VCD if j < 4 else VCD2, 4)
            c_ = d_ if (j not in (2, 4) or s_) else "0"
            o1, o2 = a(AW(g,s_),4), v(VSEL+4*(j%4),4)
            if j >= 4: o1, o2 = o2, o1
            S.put(8*g + 7, f"v_mfma_f32_16x16x32_bf16 {d_}, {o1}, {o2}, {c_}")
    for n in range(2, 16):
        for q, o in enumerate(vmem_ops(n)):
            if n == 2 and q < NH: continue
            pos = SB(n - 3) + vpos[q]
            if len(o) > 1: S.put(pos - 1, o[0])
            S.put(pos, o[-1])
        if n < 15:
            assert vpos[9] - 48 < NB - 4
            for q, x in enumerate(adv): S.put(SB(n - 2) + NB - 5 + q, x)
    for x in st1: S.put(NB - 1, x, front_ok=False)
    for n in range(15):
        bp = SB(n) + NB - 1 if n < 14 else B15
        S.put(bp, f"WAITVM s{n+1}" + (" pub" if n == PUB else ""), front_ok=n > 0); S.put(bp, "s_barrier", front_ok=False)
    S.stream(cst, SB(1) + 6, SB(2) - 8)
    S.stream(sig, SB(PUB) + NB - 12, SB(PUB) + NB - 2) if False else None
    S.stream(sig[:-1], SB(PUB), SB(PUB) + NB - 6); S.put(S.near(SB(PUB) + NB, 4), sig[-1])
    S.stream(att_salu, SB(PUB + 3), SB(PUB + 7))
    S.stream(pol[:-1] + [x for x in ld[:nld0] if not x.startswith("v_")], SB(PUB + 1), SB(PUB + 3))
    pc_ = SB(POLL) + NB - 8
    S.put(S.near(pc_ - 44, 4), pol[-1])
    S.put(pc_, chk[0]); S.put(pc_, chk[1]); S.put(pc_ + 4, chk[3])
    p_ = SB(POLL) + NB - LSP + 1
    for q, x in enumerate(ld[nld0:] + resl):
        if q == 8: p_ = max(p_, SB(12) + vpos[9])
        p_ = S.near(p_ + LSP, 4); S.put(p_, x)
        if q == 7: pcs = p_
    S.stream(red[:1] + bpm + red[1:], pcs + CW, SB(13) - 1)
    q_ = lambda r: f"row_newbcast:{r} row_mask:0xf bank_mask:0xf"
    for j, w0, w1 in ((5, 1, 16), (1, 17, 32), (3, 33, 48), (4, 48, 62), (2, 62, 78), (0, 79, 95)):
        if j < 4: cor = [f"v_fmac_f32 v{ACC(j,i)+r}, v{VCQ+4*j+r}, v{VMT+i}" for i in range(4) for r in range(4)]
        else: cor = [f"v_fmac_f32_dpp v{ACC(j,i)+r}, v{VMR}, v{VCV+j-4} {q_(4*i+r)}" for i in range(4) for r in range(4)]
        S.stream(cor, SB(13) + w0, SB(13) + w1)
    S.stream([f"s_add_u32 s24, s22, {WS_KV}\ns_addc_u32 s25, s23, 0", f"s_mov_b32 s26, {S_*D_*4}"] +
             ["s_lshl_b32 s54, s47, 10", "s_lshl_b32 s58, s3, 20", "s_add_u32 s53, s58, s54", f"s_and_b32 s51, s46, {OPT.R - 1}", "s_lshl_b32 s51, s51, 7",
              "s_add_u32 s54, s54, s51", "s_add_u32 s58, s58, s54", f"v_mov_b32 v{VX2+5}, 1", f"v_mov_b32 v{VX2+6}, 0", f"v_mov_b32 v{VX2+4}, -0.5",
              "s_lshl_b32 s72, s3, 19", "s_lshl_b32 s73, s93, 7", "s_add_u32 s72, s72, s73", "s_lshl_b32 s73, s3, 15",
              "s_mov_b32 s63, -1", f"s_add_u32 s40, s22, {WS_W2T}\ns_addc_u32 s41, s23, 0", f"s_mov_b32 s42, {WS_WF + PLANE + 2*D_*F_*2 - WS_W2T}",
              "s_lshl_b32 s56, s2, 2", "s_add_u32 s56, s56, s3", "s_lshl_b32 s56, s56, 12", f"s_add_u32 s56, s56, {WS_EX - WS_W2T}"], SB(13) + 24, SB(14) + 44)
    def cvt4(o, u):
        return [f"v_cvt_pk_bf16_f32 v{o}, v{o}, v{o+1}", f"v_cvt_pk_bf16_f32 v{o+1}, v{o+2}, v{o+3}",
                f"v_cvt_pk_bf16_f32 v{o+2}, v{u}, v{u+1}", f"v_cvt_pk_bf16_f32 v{o+3}, v{u+2}, v{u+3}"]
    ek = []; ev = []
    for i in range(4):
        o = ACC(2, i)
        ek += [f"v_mul_f32 v{ACC(j,i)+r}, v{ACC(j,i)+r}, v{VRSt+i}" for j in (2, 3) for r in range(4)] + cvt4(o, ACC(3, i))
        ek += [f"buffer_store_dwordx4 {v(o,4)}, v{A+6}, s[24:27], s{61 if i < 2 else 62} offen offset:{(i%2)*128} sc1 @kv",
               f"ds_write_b128 v{A+9}, {v(o,4)} offset:{(i//2)*4096 + (i%2)*128}"]
    for fb in range(2):
        for p in range(2):
            o = ACC(4 + fb, 2*p)
            ev += [f"v_mul_f32_dpp v{ACC(4+fb,i)+r}, v{VMR+1}, v{ACC(4+fb,i)+r} {q_(4*i+r)}" for i in (2*p, 2*p+1) for r in range(4)] + cvt4(o, ACC(4 + fb, 2*p + 1))
            ev += [f"buffer_store_dwordx4 {v(o,4)}, v{A+5}, s[24:27], s{61 if p == 0 else 62} offen offset:{2048 + fb*256} sc1 @kv",
                   f"ds_write_b128 v{A+8}, {v(o,4)} offset:{p*4096 + 2048 + fb*256}"]
    own = lambda u: [f"ds_read_b128 {a(AK(u,0)+4*q,4)}, v{VKA} offset:{u*4096 + q*1024}" for q in range(4)]
    E1 = SB(15)
    if OPT.tlb & 16:
        S.put(S.near(SB(14) + 41, 4), f"buffer_load_dword v{VPF}, v{VL}, s[24:27], s61 offen")
        S.put(S.near(SB(14) + 20, 4), f"buffer_load_dword v{VPF}, v{VL}, s[88:91], 0 offen offset:896")
    S.stream(ek + ev, E1, E1 + EW)
    S.stream(own(0) + own(1) + [f"v_mul_f32 v{VMT+i}, {fbits(LOG2E / 32 ** 0.5)}, v{VRSt+i}" for i in range(4)], E1 + EW, E1 + 47)
    if OPT.diag and fine:
        for q in range(16):
            S.put(48 * q + 1, "s_memtime s[98:99]"); S.put(48 * q + 31, f"v_writelane_b32 v255, s98, {24 + q}")
    if OPT.rep: print("p1", slot_report(S.flat()), "last load", p_ / 48, file=sys.stderr)
    P += S.flat()
    P.append("STAMP2")
    for i in range(4):
        P += [pk("mul", ACC(0,i)+r, ACC(0,i)+r, ('b', VMT+i)) for r in (0, 2)]
    for i in range(4):
        P += [pk("mul", ACC(1,i)+r, ACC(1,i)+r, ('b', VMT+i)) for r in (0, 2)] + cvt4(ACC(0, i), ACC(1, i))
    P.append('s_nop 0')
    for p in range(2):
        for r in range(4): P.append(f"v_permlane16_swap_b32 v{8*p+r}, v{8*p+4+r}")
    P += [f"ds_write_b128 v{VQW}, {v(4*q,4)} offset:{q*1024}" for q in range(4)]
    def qk0(q, u=0): return [f"v_mfma_f32_32x32x16_bf16 {v(VS(q%2),16)}, {a(AK(u,0),4)}, {QR(q,0)}, 0",
                             f"v_mfma_f32_32x32x16_bf16 {v(VS(q%2),16)}, {a(AK(u,1),4)}, {QR(q,1)}, {v(VS(q%2),16)}"]
    def rowmax(q, b_=None):
        if b_ is None: b_ = VS(q % 2)
        m_ = VM + q; t_ = VX2 + q % 2
        o_ = [f"v_max3_f32 v{m_}, v{b_}, v{b_+1}, v{b_+2}", f"v_max3_f32 v{t_}, v{b_+3}, v{b_+4}, v{b_+5}"]
        for r in range(6, 14, 4): o_ += [f"v_max3_f32 v{m_}, v{m_}, v{b_+r}, v{b_+r+1}", f"v_max3_f32 v{t_}, v{t_}, v{b_+r+2}, v{b_+r+3}"]
        return o_ + [f"v_max3_f32 v{m_}, v{m_}, v{b_+14}, v{b_+15}", f"v_max_f32 v{m_}, v{m_}, v{t_}"]
    def maxfin(q0, packed=True):
        o_ = [f"v_mov_b32 v{VX2+2}, v{VM+q0}", f"v_mov_b32 v{VX2+3}, v{VM+q0+1}", f"v_mov_b32 v{VX2+4}, -1.0",
              f"v_permlane32_swap_b32 v{VM+q0}, v{VX2+2}", f"v_permlane32_swap_b32 v{VM+q0+1}, v{VX2+3}",
              f"v_max_f32 v{VM+q0}, v{VM+q0}, v{VX2+2}", f"v_max_f32 v{VM+q0+1}, v{VM+q0+1}, v{VX2+3}"]
        for q in (q0, q0 + 1): o_ += [pk("mul", VC(q)+r, ('b', VM+q), ('b', VX2+4)) for r in range(0, 16, 2)]
        return o_
    def qkc(q): return [f"v_mfma_f32_32x32x16_bf16 {v(VC(q),16)}, {a(AK(0,0),4)}, {QR(q,0)}, 0",
                        f"v_mfma_f32_32x32x16_bf16 {v(VC(q),16)}, {a(AK(0,1),4)}, {QR(q,1)}, {v(VC(q),16)}"]
    rowmaxc = lambda q: rowmax(q, VC(q))
    mfin = lambda q0: [x for x in maxfin(q0) if not x.startswith("v_pk") and "-1.0" not in x]
    bc = lambda q: f"v_mfma_f32_32x32x2_f32 {v(VC(q),16)}, v{VX2+4}, v{VM+q}, 0"
    P += (qkc(0) + qkc(1) if BC else qk0(0) + qk0(1))
    sigop = f"buffer_atomic_add v{VX2+5}, v{VFA}, s[88:91], s53 offen sc0 sc1"
    P += ["s_waitcnt lgkmcnt(0)"] + (["WAITVM kv"] if SIG == -2 else []) + ["s_barrier"] + ([sigop] if SIG == -2 else []) + ["STAMP3"]
    P += [f"ds_read_b128 {a(112+4*q,4)}, v{VQR} offset:{q*1024}" for q in range(4)]
    P.append("s_nop 3")
    sig1 = ["WAITVM kv", "s_barrier", sigop] if SIG == -1 else []
    if BC:
        f0 = mfin(0); c2, c3 = qkc(2), qkc(3)
        P += rowmaxc(0) + c2[:1] + rowmaxc(1) + c2[1:] + f0[:2] + ["s_nop 0"] + f0[2:] + c3[:1] + ["s_nop 0", bc(0)] + c3[1:] + sig1 + rowmaxc(2)[:0]
    else: P += rowmax(0) + qk0(2) + rowmax(1) + qk0(3) + maxfin(0) + sig1 + rowmax(2)
    tl = [(u, q) for u in range(30) for q in range(4)] + [(u, q) for h in (2, 0) for u in (30, 31) for q in (h, h + 1)]
    def qk(n):
        u, q = tl[n]
        return [f"v_mfma_f32_32x32x16_bf16 {v(VS(n%2),16)}, {a(AK(u,0),4)}, {QR(q,0)}, {v(VC(q),16)}",
                f"v_mfma_f32_32x32x16_bf16 {v(VS(n%2),16)}, {a(AK(u,1),4)}, {QR(q,1)}, {v(VS(n%2),16)}"]
    def pv(n, first=False):
        u, q = tl[n]
        return [f"v_mfma_f32_32x32x16_bf16 {OR(q)}, {a(AV(u,s_),4)}, {v(VP(n%2)+4*s_,4)}, {'0' if first and s_ == 0 else OR(q)}" for s_ in range(2)] + \
               [f"v_smfmac_f32_16x16x64_bf16 {v(VLs(q),4)}, {v(VONE,4)}, {v(VP(n%2),8)}, v{VIDX}"]
    if BC:
        f2 = mfin(2); q0_ = qk(0)
        P += q0_[:1] + rowmaxc(2) + q0_[1:] + ["s_nop 1"] + rowmaxc(3) + [bc(1)] + f2[:2] + ["s_nop 0"] + f2[2:]
    else: P += qk(0) + rowmax(3) + maxfin(2)
    csm = lambda st: f"v_mfma_f32_16x16x32_bf16 {v(VCSD,4)}, {v(VSL,4)}, {a(ACSL(st),4)}, {v(VCSD,4)}"
    csl = lambda st: f"buffer_load_dwordx4 {a(ACSL(st),4)}, v{VCSA}, s[36:39], s66 offen"
    ACP = 188
    kvl = lambda u: [f"buffer_load_dwordx4 {a(AK(u,0)+4*q,4)}, v{VL16}, s[24:27], s57 offen offset:{q*1024} sc1 @u{u}" for q in range(4)]
    def kvadv(u):
        if u % 2: return ["s_add_u32 s57, s57, 4096"]
        return ["s_add_u32 s63, s63, 1", "s_cmp_eq_u32 s63, s46", "s_addc_u32 s63, s63, 0", "s_lshl_b32 s57, s63, 14", "s_add_u32 s57, s57, s52"]
    wol = [f"buffer_load_dwordx4 v{VWO}, s[80:83], s68 offen lds", f"buffer_load_dwordx4 v{VD2}, s[80:83], s68 offen offset:1024 lds"]
    woadv = ["s_add_u32 s65, s65, 1", "s_and_b32 s65, s65, 15", "s_lshl_b32 s68, s65, 15", "s_add_u32 s68, s68, s72", "s_lshl_b32 s69, s65, 11", "s_add_u32 m0, s69, s73"]
    def slot(n, m, after, mid1=()):
        b_ = VS(n % 2); p_ = VP(n % 2)
        ex = lambda r: f"v_exp_f32 v{b_+r}, v{b_+r}"
        cv = lambda r: f"v_cvt_pk_bf16_f32 v{p_+r}, v{b_+2*r}, v{b_+2*r+1}"
        seg = [[ex(0), ex(1), ex(2), ex(3)], [ex(4), cv(0), ex(5)] + list(mid1) + [cv(1), ex(6)], [ex(7), cv(2), ex(8), ex(9), cv(3)],
               [ex(10), ex(11), cv(4), ex(12), cv(5)], [ex(13), ex(14), ex(15), cv(6), cv(7)]]
        out = []
        for j_ in range(5):
            if m[j_]: out.append(m[j_])
            out += after.get(j_, []) + seg[j_]
        return out
    def emit(seq):
        for x in seq:
            if x.startswith("s_STAMP"): fstamp(k, int(x[7:]))
            else: k.e(x)
    fin = lambda Z: salu_first(auto_lgkm([x if not x.startswith("STAMP") else "s_" + x for x in resolve_vm(Z)], cyclic=False, merge=MG, hoist=True))
    def waitcnt(soff, target, vt):
        wait_multi(k, VFA, 1, f"s{soff}", target, vt)
    assert SIG <= PP <= 5
    Lfb = k.label("fb"); Lno = k.label("nofb")
    VSV = VX2 + 4
    VPO = VC(2)
    AF = [dict() for _ in range(128)]; MID = [[] for _ in range(128)]
    put = lambda n, j_, xs: AF[n].setdefault(j_, []).extend(xs)
    ev = []
    assert DK <= 5
    AF13 = lambda j, s_: (list(range(64, 112, 4)) + [160, 164])[2 * j + s_]
    AF2 = lambda z: 216 + 4 * z
    st_ = lambda r, so, off: f"buffer_store_dwordx4 {a(r,4)}, v{VCPD}, s[40:43], s{so} offen offset:{off} sc1"
    (CB, AB, BB), (st0, st1), (WOB, TCH) = PLANS[PL]
    if ST0: st0 = ST0
    nst = 26 - OPT.ndef; zz = [st0 + q * (st1 + 1 - st0) // nst for q in range(nst)]
    BS_, AS, XS = zz[0:7], zz[7:14], zz[14:]
    assert AS[0] >= AB[-1] + RD + 2 and BS_[0] >= BB[-1] + RD + 2 and WOB[12] >= AB[-1] + RD + 2 and WOB[8] >= BB[-1] + RD + 2 and len(WOB) == 16
    kv_at = {}
    for u in range(3, 32): kv_at[max(PP + RP * (u - 2), 4 * (u - DK))] = u
    B0 = 4 * BS
    for n in sorted(set(kv_at) | set(range(B0, B0 + 4 * 28, 4))):
        if n > 117: continue
        u = kv_at.get(n); b = (n - B0) // 4 if n >= B0 and n % 4 == 0 else -9
        pre = kvadv(u) if u else []; ops = kvl(u) if u else []
        def rds(tag, lst, n0):
            sp_ = [z for z in range(n0, n0 + 8) if z % 4][:NRS]
            put(sp_[0], 4, [f"WAITVM {tag}"])
            for q, x in enumerate(lst): put(sp_[q * len(sp_) // len(lst)], 4, [x])
        grp = []
        for z in range(WOB.count(b)):
            e = WOB.index(b) + z; so = (68, 69)[z]
            pre.append(f"s_add_u32 s{so}, s72, {e*32768}")
            grp.append((f"s_add_u32 m0, s73, {e*2048}", [x.replace("s68", f"s{so}") for x in wol]))
        for z in range(4):
            if CB[z] == b:
                so = (66, 75)[z % 2]; pre.append(f"s_add_u32 s{so}, s74, {z*32768}")
                grp.append((f"s_add_u32 m0, s55, {0x20000 + z*2048}", [x.replace("s[80:83], s68", f"s[84:87], s{so}") + " @g" for x in wol]))
        for s_, bl in enumerate((AB, BB)):
            for h in range(2):
                ii = [i for i in range(4*h, min(4*h + 4, 7)) if bl[i] == b]
                if ii: grp.append((f"s_add_u32 m0, s73, {(24576, 16384)[s_] + h*4096}",
                                   [f"buffer_load_dwordx4 v{VFD+i}, s[36:39], s{(101, 58)[s_]} offen offset:{(i%4)*1024} lds @f{s_}" for i in ii]))
        if b == BB[0]: pre.append(f"s_add_u32 s58, s101, {32*7168}")
        if grp:
            pre.append(grp[0][0]); fill = ops[len(ops) - min(len(ops), len(grp) - 1):]; ops = ops[:len(ops) - len(fill)] + grp[0][1]
            for g_ in grp[1:]: ops += [g_[0], fill.pop(0) if fill else "s_nop 0"] + g_[1]
        if b == CB[-1] + RD: rds("g", [f"ds_read_b64_tr_b16 {a(AF2(4*z+fb)+2*rd,2)}, v{248+fb} offset:{z*4096 + rd*1024}" for z in range(2) for fb in range(4) for rd in range(2)], n + 1)
        for s_, bl in enumerate((AB, BB)):
            if b == bl[-1] + RD:
                rds(f"f{s_}", [f"ds_read_b64_tr_b16 {a(AF13(j,s_)+2*rd,2)}, v{VCPS} offset:{(8192, 0)[s_] + j*32 + rd*16*224}" for j in range(7) for rd in range(2)], n + 1)
        sts = []
        for s_, sl in enumerate((AS, BS_)):
            for j in range(7):
                if sl[j] == b:
                    so = (100, 65, 71, 53)[j // 2]
                    if s_ == 1 and j == 0: pre += [f"s_add_u32 s{r_}, s100, {z*4096}" for z, r_ in ((1, 65), (2, 71), (3, 53))]
                    sts.append(st_(AF13(j, s_), so, (j % 2)*2048 + s_*1024))
        if b in (CB[-1] + RD + 2, AB[-1] + RD + 2, BB[-1] + RD + 2): sts = ["s_waitcnt lgkmcnt(0)"] + sts
        for z, bz in enumerate(XS):
            if bz == b:
                if z == 0: pre.append("s_add_u32 s66, s79, 4096")
                sts.append(st_(AF2(z), 79 if z < 4 else 66, (z % 4)*1024) if z < 8 else f"buffer_store_dwordx4 a[248:251], v{VL16}, s[40:43], s56 offen offset:{(z-8)*1024} sc1")
        ops = sts + ops
        if b == TCH:
            pre += ["s_lshl_b32 s62, s2, 2", "s_add_u32 s62, s62, s3", "s_lshl_b32 s62, s62, 11"]
            ops.append(f"buffer_load_dword v{VD1}, v{VTP}, s[80:83], s62 offen")
        if OPT.codepf and (u == 6 or n in (60, 116)): ops += [code_pf(VD1, VPA2)]
        if 'nost' in abl: ops = [re.sub(r"s\[40:43\], s\d+", "s[40:43], s59", x) for x in ops]
        if 'no13' in abl: ops = [x.replace("s101", "s59") for x in ops]
        if 'now2' in abl: ops = [re.sub(r"s\[84:87\], s\d+", "s[84:87], s59", x) for x in ops]
        if 'nowo' in abl: ops = [re.sub(r"s\[80:83\], s\d+", "s[80:83], s59", x) for x in ops]
        if 'ntld' in abl: ops = [x.replace(" lds @f", " nt lds @f").replace(" lds @g", " nt lds @g") for x in ops]
        if pre or ops: ev.append((n, pre, ops))
    assert B0 + 4 * max(AS + WOB) <= 117
    prev = PP
    for n, pre, ops in ev:
        spots = [(t_, j_) for t_ in range(prev + 1, n + 1) for j_ in range(4)]
        for q, x in enumerate(pre): put(*spots[q * len(spots) // len(pre)], [x])
        put(n, 4, ops); prev = n
    for u in range(2, 32): put(tl.index((u, 0 if u < 30 else 2)) - 2, 4, [f"WAITVM u{u}"])
    if SIG >= 0: put(SIG, 1, ["WAITVM kv", "s_barrier", sigop])
    for q, x in enumerate(kvadv(2)): put(PP, min(q, 4), [x])
    if AP is not None: put(AP, 4, [f"buffer_atomic_add v{VX2+6}, v{VFA}, s[88:91], s58 offen sc0 sc1"])
    sx = lines(f"""
    s_lshl_b32 s60, s46, 18
    s_lshl_b32 s61, s48, 17
    s_add_u32 s60, s60, s61
    s_lshl_b32 s61, s67, 10
    s_add_u32 s60, s60, s61
    s_add_u32 s61, s60, 65536
    s_mov_b32 s101, s79
    s_mov_b32 s100, s56
    s_mov_b32 s34, {PLANE + S_*D_*2}
    s_mov_b32 s70, {fbits(2.0**40 if not force_fb else 0.5)}
    s_add_u32 s32, s22, {WS_O}
    s_addc_u32 s33, s23, 0
    """)
    for q, x in enumerate(sx): put(118 + q // 4, q % 4, [x])
    if OPT.tlb & 1: put(122, 4, [f"buffer_load_dword v{VD1}, v{VOA}, s[32:35], s60 offen"])
    if OPT.tlb & 2: put(123, 4, [f"v_and_b32 v{VCPD}, 1, v{VL2}", f"v_mul_u32_u24 v{VCPD}, {PLANE - 256}, v{VCPD}", f"buffer_load_dword v{VD1}, v{VCPD}, s[32:35], s64 offen offset:384"])
    put(122, 4, [f"v_add_u32 v{VQR}, s73, v{VL16}", f"v_add_u32 v{VKA}, 0x20000, v{VKA}", f"ds_read_b128 {v(VSV,4)}, v{VQR}"])
    for r in range(4): put(124, 1 + r, [f"ds_write_b128 v{VKA}, {a(AOS(2)+4*r,4)} offset:{r*1024}"])
    for r in range(4): put(125, 1 + r, [f"ds_write_b128 v{VKA}, {a(AOS(3)+4*r,4)} offset:{4096 + r*1024}"])
    put(125, 4, [f"v_add_f32 v{VX2}, v{VLs(2)}, v{VLs(2)+1}", f"v_add_f32 v{VX2+1}, v{VLs(3)}, v{VLs(3)+1}", f"v_mov_b32 v{VX2+2}, v{VM+2}", f"v_mov_b32 v{VX2+3}, v{VM+3}"])
    put(126, 0, [f"ds_write_b128 v{VQR}, {v(VX2,4)}", f"v_xor_b32 v{VKA}, 0x4000, v{VKA}", f"v_xor_b32 v{VQW}, 0x10000, v{VQR}"])
    put(126, 4, ["s_waitcnt lgkmcnt(0)", "s_barrier", f"ds_read_b128 {v(VX2,4)}, v{VQW}"])
    for r in range(8): put(127, 2 + r // 3, [f"ds_read_b128 {v(VPO+4*r,4)}, v{VKA} offset:{r*1024}"])
    if OPT.diag and fine2:
        for q in range(31): put(4 * q + 5, 4, ["s_memtime s[98:99]"]); put(4 * q + 7, 0, [f"v_writelane_b32 v255, s98, {24 + q}"])
    for n in range(128):
        P += slot(n, (qk(n + 1) if n < 127 else [None] * 2) + (pv(n - 1, n <= 4) if n > 0 else [bc(2), None, bc(3)] if BC else [None] * 3), AF[n], MID[n])
        if n == 7: P.append("STAMP6")
        if n == PP:
            P.append("STAMP4")
            emit(fin(P))
            wait_multi(k, VFA, 1, "s54", 16, VX2 + 1, got=(VX2 + 5, 15) if AP is None else (VX2 + 6, 16))
            k.e("L_att_code:")
            fstamp(k, 5)
            P = kvl(2)
    sm_ = pv(127)
    P += ["s_nop 1", sm_[2], sm_[0], sm_[1], "STAMP7"]
    emit([x if not x.startswith("STAMP") else "s_" + x for x in resolve_vm(P)])
    k.e(f"""
    s_waitcnt lgkmcnt(8)
    v_max_f32 v{VY+10}, v{VM}, v{VX2+2}
    v_max_f32 v{VY+11}, v{VM+1}, v{VX2+3}
    v_sub_f32 v{VY+8}, v{VM}, v{VY+10}
    v_sub_f32 v{VY+9}, v{VM+1}, v{VY+11}
    v_sub_f32 v{VY+6}, v{VX2+2}, v{VY+10}
    v_sub_f32 v{VY+7}, v{VX2+3}, v{VY+11}
    v_add_f32 v{VY+4}, v{VLs(0)}, v{VLs(0)+1}
    v_add_f32 v{VY+5}, v{VLs(1)}, v{VLs(1)+1}
    v_add_f32 v{VY+2}, v{VX2}, v{VX2+1}
    v_add_f32 v{VY+3}, v{VY+4}, v{VY+5}
    v_add_f32 v{VY+2}, v{VY+2}, v{VY+3}
    v_cmp_ngt_f32 vcc, s70, v{VY+2}
    v_exp_f32 v{VY+8}, v{VY+8}
    v_exp_f32 v{VY+9}, v{VY+9}
    v_exp_f32 v{VY+6}, v{VY+6}
    v_exp_f32 v{VY+7}, v{VY+7}
    {pk("mul", VY+4, VY+4, VY+8)}
    s_cbranch_vccnz {Lfb}
    {pk("fma", VY+4, VX2, VY+6, VY+4)}
    v_rcp_f32 v{VY+10}, v{VY+4}
    v_rcp_f32 v{VY+11}, v{VY+5}
    s_waitcnt lgkmcnt(0)
    {pk("mul", VY+4, VY+8, VY+10)}
    {pk("mul", VY+6, VY+6, VY+10)}
    {Lno}:
    """)
    E = []
    for q in range(2):
        b_ = VOK(q); o_ = VPO + 16 * q
        for a_ in range(2):
            E += [pk("mul", b_+8*a_+r, b_+8*a_+r, ('b', VY+4+q)) for r in range(0, 8, 2)]
            E += [pk("fma", b_+8*a_+r, o_+8*a_+r, ('b', VY+6+q), b_+8*a_+r) for r in range(0, 8, 2)]
            E += [f"v_cvt_pk_bf16_f32 v{b_+8*a_+r}, v{b_+8*a_+2*r}, v{b_+8*a_+2*r+1}" for r in range(4)]
            E.append(f"buffer_store_dwordx4 {v(b_+8*a_,4)}, v{VOA}, s[32:35], s{60+q} offen offset:{a_*512} sc1 @o")
    ACC3 = lambda j, i: (j * 2 + i) * 4
    VW3 = lambda g, s_: 32 + (g % 4) * 8 + s_ * 4
    VR3 = 64
    VXA = 76
    AX3 = lambda ks, i: ((ks % 16) * 2 + i) * 4
    kk = KB("t", 0, 0, 0)
    srd(kk, 28, 22, 23, 2*F_*4, WS_CS)
    VSE = 32; VCSD = 168
    kk.e(f"v_and_b32 v{VY}, 15, v{VL2}\nv_lshrrev_b32 v{VY+1}, 4, v{VL2}\nv_mov_b32 v{VY+6}, 0x3f803f80\nv_lshlrev_b32 v{VD2}, 2, v{VL2}")
    for q in range(4):
        kk.e(f"v_cmp_eq_u32 vcc, {4*q}, v{VY}\nv_accvgpr_read_b32 v{VRES+q}, a{ARES+q}\ns_nop 0\nv_cndmask_b32 v{VSE+4*q}, 0, v{VY+6}, vcc")
        for r in (1, 2, 3): kk.e(f"v_mov_b32 v{VSE+4*q+r}, v{VSE+4*q}")
    for j in range(7):
        for s_ in range(2):
            d_ = v(VCSD + 4 * (j // 4), 4)
            kk.e(f"v_mfma_f32_16x16x32_bf16 {d_}, {v(VSE+4*(j%4),4)}, {a(AF13(j,s_),4)}, {d_ if (j % 4 or s_) else '0'}")
    AT = [f"buffer_atomic_add_f32 v{VCSD+4*r}, v{VD2}, s[28:31], s95 offen offset:{256*r} sc1" for r in range(2)]
    for r in range(4, 16): kk.e(f"v_accvgpr_read_b32 v{VRES+r}, a{ARES+r}")
    kk.e(f"v_mov_b32 v{VXA}, v{VL16}")
    for i in range(2):
        for p in range(2):
            r = VRES + i*8 + p*4
            kk.e(f"v_permlane16_swap_b32 v{r}, v{r+2}\nv_permlane16_swap_b32 v{r+1}, v{r+3}")
    for i in range(2):
        for fb in range(4):
            o = ACC3(fb, i); r = VRES + i*8 + fb*2
            kk.e(f"v_lshlrev_b32 v{o}, 16, v{r}\nv_and_b32 v{o+1}, 0xffff0000, v{r}\nv_lshlrev_b32 v{o+2}, 16, v{r+1}\nv_and_b32 v{o+3}, 0xffff0000, v{r+1}")
    reloc(kk, VXA, VY+7)
    kk.e(f"""
    v_mov_b32 v78, v{VXA}
    v_add_u32 v{VXA}, s64, v{VXA}
    v_add_u32 v{VXA+1}, 32768, v{VXA}
    v_and_b32 v{VY+7}, 31, v{VL2}
    v_lshrrev_b32 v{VY+7}, 2, v{VY+7}
    v_lshrrev_b32 v{VY+8}, 5, v{VL2}
    v_lshl_add_u32 v{VY+8}, v{VY+8}, 4, v{VY+7}
    v_lshrrev_b32 v{VY+7}, 1, v{VY+7}
    v_lshlrev_b32 v{VY+7}, 5, v{VY+7}
    v_lshl_add_u32 v{VY+7}, v{VY+8}, 7, v{VY+7}
    v_and_b32 v{VY+8}, 3, v{VL2}
    v_lshl_add_u32 v{VR3}, v{VY+8}, 3, v{VY+7}
    """)
    for fb in range(1, 4): kk.e(f"v_xor_b32 v{VR3+fb}, {fb*32}, v{VR3}")
    for rg in range(1, 2):
        for fb in range(4): kk.e(f"v_add_u32 v{VR3+4*rg+fb}, {rg*0x10000}, v{VR3+fb}")
    kk.e(f"""
    s_add_u32 s36, s22, {WS_H}
    s_addc_u32 s37, s23, 0
    s_mov_b32 s38, {PLANE + S_*D_*2}
    s_add_u32 s40, s22, {WS_ST}
    s_addc_u32 s41, s23, 0
    s_mov_b32 s42, {S_*8}
    s_lshl_b32 s66, s93, 11
    s_add_u32 s65, s64, s66
    s_add_u32 s66, s65, 32768
    v_mov_b32 v{VX2}, 1
    s_lshl_b32 s60, s46, 10
    s_add_u32 s60, s60, {C2}
    s_lshl_b32 s61, s3, 20
    s_add_u32 s61, s61, s60
    s_lshl_b32 s60, s92, 10
    s_add_u32 s60, s60, {C2}
    s_and_b32 s51, s93, {OPT.R - 1}
    s_lshl_b32 s51, s51, 7
    s_add_u32 s60, s60, s51
    """)
    E += lines("\n".join(kk.lines))
    E += ["WAITVM o", "s_barrier", f"buffer_atomic_add v{VX2}, v{VFA}, s[88:91], s61 offen sc1", f"ds_write_b128 v{VQR}, {v(VSV,4)}", "s_waitcnt lgkmcnt(0)", "STAMP8"]
    emit(["s_" + x if x.startswith("STAMP") else x for x in resolve_vm(E)])
    waitcnt(60, 16, VX2 + 1)
    fstamp(k, 9)
    qbase = [0, 0x8000, 0x10000, 0x18000]
    def wreads3(G):
        sp, fb = G // 4, G % 4
        out = []
        for s_ in range(2):
            ks = 2 * sp + s_; ad = qbase[ks // 8] + (ks % 8) * 4096
            out += [f"ds_read_b64_tr_b16 {v(VW3(G,s_)+2*rd,2)}, v{VR3+4*(ad>>16)+fb} offset:{(ad & 0xffff) + rd*1024}" for rd in range(2)]
        return out
    def xl(sp):
        out = []
        for s_ in range(2):
            ks = 2 * sp + s_
            for i in range(2):
                o_ = [f"buffer_load_dwordx4 {a(AX3(ks,i),4)}, v{VXA+i}, s[32:35], s57 offen offset:{(ks%4)*1024} sc1 @x{sp}"]
                if ks % 4 == 0 and i == 0: o_ = [f"s_mov_b32 s57, {(ks//4)*4096}"] + o_
                out.append(o_)
        return out
    Q = []
    for sp in range(LA):
        for o_ in xl(sp): Q += o_
        if sp == 0:
            for G in range(3): Q += wreads3(G)
    Lall = k.label("allspin")
    main = []; side = {}
    for G in range(64):
        sp, fb = G // 4, G % 4
        if fb == 0: side.setdefault(4*G - 1, []).insert(0, f"WAITVM x{sp}")
        for i in range(2):
            for s_ in range(2):
                c_ = v(ACC3(fb,i),4)
                main.append(f"v_mfma_f32_16x16x32_bf16 {v(ACC3(fb,i),4)}, {v(VW3(G,s_),4)}, {a(AX3(2*sp+s_,i),4)}, {c_}")
        if G + 3 < 64:
            for q, x in enumerate(wreads3(G + 3)): side.setdefault(4*G + q, []).append(x)
        if sp + LA < 16: side.setdefault(4*G + 1, []).extend(xl(sp + LA)[fb])
        if sp + LA == 16 and fb < 2 and not OPT.at4: side.setdefault(4*G + 1, []).append(AT[fb])
        if G in (4, 5, 6) and OPT.at4: side.setdefault(4*G + 2, []).append(f"v_mov_b32 v{222+G}, v{(VCSD, VCSD+4, VD2)[G-4]}")
        if G == 20: side.setdefault(4*G + 2, []).extend([f"v_lshlrev_b32 v{VY+8}, 10, v{VY}", "s_cmp_eq_u32 s3, 0\ns_cselect_b32 s50, 16, 0\ns_cselect_b32 s51, s70, s59"])
        if G == 10: side.setdefault(4*G + 2, []).append(f"s_and_b32 s70, s45, 3\ns_lshl_b32 s70, s70, 7\ns_add_u32 s70, s70, {C2 + 512}" if OPT.RS == 8 else f"s_mov_b32 s70, {C2}")
        if G == AG: side.setdefault(4*G + 3, []).append(f"buffer_load_dword v{VY+9}, v{VY+8}, s[88:91], s51 offen sc1 @all")
        if G == 62: side.setdefault(4*G + 1, []).extend(["WAITVM all", f"v_cmp_gt_u32 vcc, s50, v{VY+9}"])
        if G == 63: side.setdefault(4*G + 2, []).append(f"s_cbranch_vccnz {Lall}\n{Lall}_r:")
        if sp + LA == 16 and fb == 2 and OPT.tlb & 4: side.setdefault(4*G + 1, []).append(f"buffer_load_dword v{VD1}, v{VL2}, s[36:39], s65 offen")
    Q += flatten(main, side)
    emit(salu_first(auto_lgkm(resolve_vm(Q), cyclic=False, merge=1, hoist=True)))
    fstamp(k, 10)
    if full: k.e("s_barrier")
    k.e("s_nop 3")
    for i in range(2):
        for p in range(2):
            for fb in (2*p, 2*p+1):
                o = ACC3(fb, i); r = VRES + i*8 + fb*2
                k.e(f"v_cvt_pk_bf16_f32 v{r}, v{o}, v{o+1}\nv_cvt_pk_bf16_f32 v{r+1}, v{o+2}, v{o+3}")
            k.e(f"buffer_store_dwordx4 {v(VRES+i*8+p*4,4)}, v{78 if OPT.hrel else VL16}, s[36:39], s{65+i} offen offset:{p*1024} {OPT.st}")
    for i in range(2):
        regs = [ACC3(fb, i) + r for fb in range(4) for r in (0, 2)]
        k.e(pk("add", 36, regs[0], regs[1]) + "\n" + pk("mul", 38, regs[0], regs[0]) + "\n" + pk("fma", 38, regs[1], regs[1], 38))
        for r in regs[2:]: k.e(pk("add", 36, 36, r) + "\n" + pk("fma", 38, r, r, 38))
        k.e(f"v_add_f32 v{32+2*i}, v36, v37\nv_add_f32 v{33+2*i}, v38, v39")
    k.e(f"""
    v_lshrrev_b32 v{VY+3}, 1, v{VY+1}
    v_lshl_add_u32 v{VY+3}, v{VY+3}, 4, v{VY}
    v_permlane32_swap_b32 v32, v34
    v_permlane32_swap_b32 v33, v35
    v_and_b32 v{VY+4}, 1, v{VY+1}
    v_add_f32 v32, v32, v34
    v_add_f32 v33, v33, v35
    v_lshlrev_b32 v{VY+3}, 3, v{VY+3}
    v_lshl_add_u32 v{VY+3}, v{VY+4}, 2, v{VY+3}
    v_permlane16_swap_b32 v32, v33
    s_lshl_b32 s60, s76, 7
    v_add_f32 v32, v32, v33
    buffer_atomic_add_f32 v32, v{VY+3}, s[40:43], s60 offen sc1
    """)
    cold = lines(f"""
    {Lall}:
    s_mov_b32 s94, {SPIN}
    {Lall}_l:
    s_sub_u32 s94, s94, 1
    s_cbranch_scc1 {Lall}_r
    s_sleep 8
    buffer_load_dword v{VY+9}, v{VY+8}, s[88:91], s51 offen sc1
    s_waitcnt vmcnt(0)
    v_cmp_gt_u32 vcc, s50, v{VY+9}
    s_nop 4
    s_cbranch_vccnz {Lall}_l
    s_branch {Lall}_r
    """)
    if full:
        phase4(k, LAST, cold, **p4)
        phase5(k, LAST, cold, **p5)
    Lfin = k.label("fin")
    k.e(f"s_branch {Lfin}" if OPT.diag or OPT.probe else "s_endpgm")
    k.e(";WARMEND")
    for x in cold: k.e(x)
    k.e(f"""
    {Lsp}:
    s_mov_b32 s94, {SPIN}
    {Lsp}_l:
    s_sleep 8
    s_sub_u32 s94, s94, 1
    s_cbranch_scc1 {Lok}
    buffer_load_dword v{VT+6}, v{VT+7}, s[32:35], 0 offen sc1
    s_waitcnt vmcnt(0)
    v_cmp_gt_u32 vcc, v{VT+5}, v{VT+6}
    s_nop 4
    s_cbranch_vccnz {Lsp}_l
    s_branch {Lok}
    """)
    Lm = k.label("maxloop"); Lp2 = k.label("pass2")
    k.e(f"{Lfb}:")
    ldk = [f"buffer_load_dwordx4 {a(AK(0,s_),4)}, v{VL16}, s[24:27], s51 offen offset:{s_*1024} sc1" for s_ in range(2)]
    ldv = [f"buffer_load_dwordx4 {a(AV(0,s_),4)}, v{VL16}, s[24:27], s51 offen offset:{2048+s_*1024} sc1" for s_ in range(2)]
    nxt = lambda L_: f"s_add_u32 s51, s51, 4096\ns_sub_u32 s50, s50, 1\ns_cmp_lg_u32 s50, 0\ns_cbranch_scc1 {L_}"
    k.e(f"s_waitcnt vmcnt(0) lgkmcnt(0)\ns_lshl_b32 s51, s67, 18\ns_mov_b32 s50, 64\nv_mov_b32 v{VM}, 0xff800000\nv_mov_b32 v{VM+1}, 0xff800000\nv_mov_b32 v{VY+8}, v{VSV}\n{Lm}:")
    k.e("\n".join(ldk + ["s_waitcnt vmcnt(0)"] + qk0(0) + qk0(1) + ["s_nop 15"]))
    for q in range(2):
        for r in range(0, 16, 2): k.e(f"v_max3_f32 v{VM+q}, v{VM+q}, v{VS(q)+r}, v{VS(q)+r+1}")
    k.e(nxt(Lm))
    k.e("\n".join(maxfin(0)) + f"\nv_mov_b32 v{VSV}, v{VY+8}")
    for r in list(range(VOK(0), VOK(0) + 32)) + list(range(VLs(0), VLs(0) + 8)): k.e(f"v_mov_b32 v{r}, 0")
    k.e(f"s_lshl_b32 s51, s67, 18\ns_mov_b32 s50, 64\n{Lp2}:")
    k.e("\n".join(ldk + ldv + ["s_waitcnt vmcnt(0)"] + qk(0) + qk(1) + ["s_nop 15"]))
    for q in range(2):
        for r in range(16): k.e(f"v_exp_f32 v{VS(q)+r}, v{VS(q)+r}")
        for r in range(8): k.e(f"v_cvt_pk_bf16_f32 v{VP(q)+r}, v{VS(q)+2*r}, v{VS(q)+2*r+1}")
    k.e("s_nop 1\n" + "\n".join(pv(0) + pv(1)) + "\ns_nop 7\n" + nxt(Lp2))
    for r in range(VPO, VPO + 32): k.e(f"v_mov_b32 v{r}, 0")
    k.e(f"""
    v_add_f32 v{VY+4}, v{VLs(0)}, v{VLs(0)+1}
    v_add_f32 v{VY+5}, v{VLs(1)}, v{VLs(1)+1}
    v_rcp_f32 v{VY+4}, v{VY+4}
    v_rcp_f32 v{VY+5}, v{VY+5}
    v_mov_b32 v{VY+6}, 0
    v_mov_b32 v{VY+7}, 0
    s_branch {Lno}
    {Lfin}:
    """)
    ffinish(k, k.nst - 1)
    if full and OPT.warm:
        st_ = add_warm_chains(k)
        if OPT.rep: print(st_, file=sys.stderr)
    return k


def all_kernels(**kw):
    g = lambda n: kw.get(n, {})
    return [gen_front(p4=g('p4'), p5=g('p5'), **g('f'))]

if __name__ == "__main__":
    hdr = "".join(l for l in open("sequential_preLN__softmax_full_mha__glu_gated_swiglu__prompt.s.ref") if l.startswith(";") and "@launch" not in l and "Override" not in l and "grid=ceil" not in l)
    kw = eval("dict(" + (sys.argv[1] if len(sys.argv) > 1 else "") + ")")
    for a_, b_ in kw.pop("opt", {}).items(): setattr(OPT, a_, b_)
    print(build_file(all_kernels(**kw), hdr))
```

```python
import re, sys
from asmlib import regs_of
TRANS = ("v_exp", "v_rcp", "v_rsq", "v_log", "v_sqrt", "v_sin", "v_cos")
def parse(l):
    op = l.split()[0]; rest = l[len(op):]
    rest = re.sub(r"(op_sel|op_sel_hi|neg_lo|neg_hi|quad_perm):\[[^\]]*\]", "", rest)
    ops = [x.strip() for x in rest.split(",")]
    R = lambda xs: regs_of(",".join(xs))
    d = dict(op=op, w=set(), r=set(), kind="s", c=set(), ab=set(), passes=0, data=set())
    if op.startswith(("v_mfma", "v_smfmac")):
        d["kind"] = "m"; d["w"] = R(ops[:1]); d["ab"] = R(ops[1:3]); d["passes"] = 16 if "32x32x2_f32" in op else 8 if "32x32" in op else 4
        if op.startswith("v_smfmac"): d["c"] = d["w"]; d["ab"] |= R(ops[3:4])
        else: d["c"] = R(ops[3:4])
        d["r"] = d["ab"] | d["c"]
    elif op.startswith("v_"):
        d["kind"] = "v"
        if op.startswith("v_cmp") or op.startswith(("v_readfirstlane", "v_readlane")): d["r"] = R(ops[1:])
        else:
            d["w"] = R(ops[:1]); d["r"] = R(ops[1:])
            if op.startswith(("v_fmac", "v_permlane", "v_writelane", "v_dot2c")) or "dpp" in op: d["r"] |= d["w"]
            if op.startswith("v_permlane"): d["w"] |= R(ops[1:2])
    elif op.startswith("ds_read"): d["kind"] = "x"; d["ld"] = R(ops[:1]); d["r"] = R(ops[1:])
    elif op.startswith("ds_write"): d["kind"] = "x"; d["r"] = R(ops)
    elif op.startswith(("buffer_load", "global_load")):
        d["kind"] = "x"
        if " lds" in l: d["r"] = R(ops)
        else: d["ld"] = R(ops[:1]); d["r"] = R(ops[1:])
    elif op.startswith(("buffer_store", "buffer_atomic")):
        d["kind"] = "x"; d["r"] = R(ops)
        if "x4" in op or "x3" in op: d["data"] = R(ops[:1])
    d["n"] = int(ops[0]) + 1 if op == "s_nop" else 1
    d["vccw"] = op.startswith("v_cmp") and ops[0] == "vcc" or "_co_" in op
    d["vccr"] = op.startswith("v_cndmask") or op.startswith("v_addc")
    d["m0w"] = op.startswith("s_") and ops[0] == "m0"
    d["lds"] = " lds" in l
    return d
def check(seq, name=""):
    ins = [(i, l, parse(l)) for i, l in seq]; bad = 0
    for q, (i, l, a) in enumerate(ins):
        ws = 0
        for (i2, l2, b) in ins[q+1:q+20]:
            need = 0
            if a["kind"] == "m":
                big = {4: 8, 8: 12, 16: 18}[a["passes"]]
                if b["kind"] == "m" and a["passes"] == 16:
                    if a["w"] & b["ab"]: need = 18
                elif b["kind"] == "m":
                    if a["w"] & b["ab"]: need = big
                    elif a["w"] & b["c"] and not (a["w"] == b["c"] and a["passes"] == b["passes"]): need = big - 2
                elif b["kind"] in "vx":
                    if a["w"] & (b["r"] | b["w"] | b.get("ld", set())): need = big
                    elif b["kind"] == "v" and a["c"] & b["w"]: need = 7 if a["passes"] == 8 else 3
            elif a["kind"] == "v":
                if b["kind"] == "m" and a["w"] & b["r"]: need = 2
                if b["kind"] == "v":
                    if a["op"].startswith(TRANS) and not b["op"].startswith(TRANS) and a["w"] & b["r"]: need = 1
                    if (b["op"].startswith("v_permlane") or "dpp" in b["op"]) and a["w"] & b["r"]: need = max(need, 2)
                    if b["op"].startswith(("v_readfirstlane", "v_readlane")) and a["w"] & b["r"]: need = max(need, 1)
                    if a["vccw"] and b["vccr"]: need = max(need, 2)
                    if a["op"].startswith("v_dot") and b["op"] != a["op"] and a["w"] & (b["r"] | b["w"]): need = max(need, 3)
                if a["vccw"] and b["op"].startswith("s_cbranch_vcc"): need = 5
            elif a["data"] and b["kind"] == "v" and a["data"] & b["w"]: need = 2
            elif a["m0w"] and b["lds"]: need = 1
            if ws < need:
                bad += 1; print(f"{name} HAZARD need {need} have {ws}: line {i}: {l}  ->  line {i2}: {l2}")
            if b["op"] in ("s_branch", "s_endpgm"): break
            if a["vccw"] and b["vccw"]: a = dict(a); a["vccw"] = False
            ws += b["n"]
            if ws >= 18: break
    return bad
if __name__ == "__main__":
    L = [(i + 1, l.split(";")[0].strip()) for i, l in enumerate(open(sys.argv[1])) if l.startswith("    ")]
    L = [x for x in L if x[1] and not x[1].startswith(".")]
    bad = check(L)
    raw = [l.rstrip() for l in open(sys.argv[1])]
    lab = {l[:-1]: i + 1 for i, l in enumerate(raw) if l.endswith(":") and not l.startswith(" ")}
    for q, (i, l) in enumerate(L):
        m = re.match(r"s_c?branch\w* (\S+)", l)
        if m and m.group(1) in lab and "execz" not in l:
            t = lab[m.group(1)]
            head = [x for x in L if x[0] > t][:14]
            tail = [(a_, b_ if a_ != i else "s_nop 0") for a_, b_ in L[max(0, q-13):q+1]]
            cut = max([z for z, x in enumerate(tail) if x[1].startswith(("s_branch", "s_endpgm"))], default=-1)
            bad += check(tail[cut+1:] + head, f"[edge {i}->{t}]")
    print("hazards:", bad)
```
